```python
import torch

def _softmax(x, axis=-1):
    return torch.softmax(x, dim=axis)

def _gelu(x):
    return torch.nn.functional.gelu(x, approximate='tanh')

def _silu(x):
    return torch.nn.functional.silu(x)

def _sigmoid(x):
    return torch.sigmoid(x)

def _layernorm(x, axis=-1, eps=1e-05):
    m = x.mean(dim=axis, keepdim=True)
    v = x.var(dim=axis, keepdim=True, unbiased=False)
    return (x - m) / torch.sqrt(v + eps)

def _scatter_add(tgt, idx, src, axis=0):
    return tgt.clone().index_add_(axis, idx, src)

def _segment_sum(src, seg, n):
    out = torch.zeros((n,) + src.shape[1:], dtype=src.dtype)
    return out.index_add_(0, seg, src)

def _pad(x, pw):
    flat = tuple((v for pair in reversed(pw) for v in pair))
    return torch.nn.functional.pad(x, flat)
kernel_name = 'adaLN_cond__memory_aug_recurrent_mem_tr__swiglu_ffn__prompt'

def setup_inputs():

    _w = lambda a: (lambda t: t.to(torch.bfloat16) if t.is_floating_point() else t)(torch.as_tensor(a))

    def _A_setup():
        B, S, Dm = (1, 2048, 512)
        H, Dh = (32, 128)
        M, seg = (8, 32)
        seg = min(seg, S)
        S = S // seg * seg
        return {'x': _w((lambda *s: torch.randn(*s, dtype=torch.bfloat16) * 0.05)(B, S, Dm)), 'mem0': _w((lambda *s: torch.randn(*s, dtype=torch.bfloat16) * 0.4)(B, M, Dm)), 'Wq': _w((lambda *s: torch.randn(*s, dtype=torch.bfloat16) * 3.2)(Dm, H, Dh) * Dm ** (-0.5)), 'Wk': _w((lambda *s: torch.randn(*s, dtype=torch.bfloat16) * 3.2)(Dm, H, Dh) * Dm ** (-0.5)), 'Wv': _w((lambda *s: torch.randn(*s, dtype=torch.bfloat16) * 0.4)(Dm, H, Dh) * Dm ** (-0.5)), 'Wo': _w((lambda *s: torch.randn(*s, dtype=torch.bfloat16) * 0.4)(H, Dh, Dm) * (H * Dh) ** (-0.5)), 'seg_len': seg}
    _A_in = _A_setup()

    def _B_setup():
        B, S, D, F = (1, 2048, 512, 1792)
        return {'x': _w((lambda *s: torch.randn(*s, dtype=torch.bfloat16) * 0.05)(B, S, D)), 'w_gate': _w((lambda *s: torch.randn(*s, dtype=torch.bfloat16) * 0.05)(D, F)), 'w_up': _w((lambda *s: torch.randn(*s, dtype=torch.bfloat16) * 0.05)(D, F)), 'w_down': _w((lambda *s: torch.randn(*s, dtype=torch.bfloat16) * 0.05)(F, D))}
    _B_in = _B_setup()
    return {'A_x': _A_in['x'], 'A_mem0': _A_in['mem0'], 'A_Wq': _A_in['Wq'], 'A_Wk': _A_in['Wk'], 'A_Wv': _A_in['Wv'], 'A_Wo': _A_in['Wo'], 'A_seg_len': _A_in['seg_len'], 'B_x': _B_in['x'], 'B_w_gate': _B_in['w_gate'], 'B_w_up': _B_in['w_up'], 'B_w_down': _B_in['w_down'], 'c': _w((lambda *s: torch.randn(*s, dtype=torch.bfloat16) * 0.1)(1, 512) * 8.0), 'w_mod': _w((lambda *s: torch.randn(*s, dtype=torch.bfloat16) * 0.1)(512, 6 * 512) * 512 ** (-0.5) * 8.0)}

def reference(A_x, A_mem0, A_Wq, A_Wk, A_Wv, A_Wo, A_seg_len, B_x, B_w_gate, B_w_up, B_w_down, c, w_mod):

    def _A_ref(x, mem0, Wq, Wk, Wv, Wo, seg_len):
        B, S, Dm = x.shape
        H, Dh = (Wq.shape[1], Wq.shape[2])
        M = mem0.shape[1]
        scale = Dh ** (-0.5)
        n_seg = S // seg_len
        L = M + seg_len
        idx = torch.arange(L)
        mask = (idx[:, None] < M) | (idx[:, None] >= idx[None, :])
        mem = mem0
        outs = []
        for s in range(n_seg):
            xs = x[:, s * seg_len:(s + 1) * seg_len, :].clone()
            h = torch.concatenate([mem, xs], axis=1)
            q = torch.einsum('btd,dhe->bhte', h, Wq)
            k = torch.einsum('btd,dhe->bhte', h, Wk)
            v = torch.einsum('btd,dhe->bhte', h, Wv)
            scores = torch.einsum('bhqe,bhke->bhqk', q, k) * scale
            scores = torch.where(mask[None, None], scores, -1000000000.0)
            p = _softmax(scores, axis=-1)
            o = torch.einsum('bhqk,bhke->bhqe', p, v)
            o = torch.einsum('bhte,hed->btd', o, Wo)
            mem = o[:, :M, :].clone()
            outs.append(o[:, M:, :])
        return torch.concatenate(outs, axis=1)

    def _B_ref(x, w_gate, w_up, w_down):
        g = _silu(x @ w_gate)
        u = x @ w_up
        return g * u @ w_down
    x = A_x
    mod = (_silu(c) @ w_mod).reshape(c.shape[0], 6, 1, -1)
    sa, ca, ga, sb, cb, gb = (mod[:, 0].clone(), mod[:, 1].clone(), mod[:, 2].clone(), mod[:, 3].clone(), mod[:, 4].clone(), mod[:, 5].clone())
    h = _layernorm(x, axis=-1) * (1 + ca) + sa
    x = x + ga * _A_ref(h, A_mem0, A_Wq, A_Wk, A_Wv, A_Wo, A_seg_len)
    h = _layernorm(x, axis=-1) * (1 + cb) + sb
    x = x + gb * _B_ref(h, B_w_gate, B_w_up, B_w_down)
    return x
```

```python
import re

TRANS = ('v_exp_f32', 'v_log_f32', 'v_rcp_f32', 'v_rsq_f32', 'v_sqrt_f32', 'v_sin_f32', 'v_cos_f32',
         'v_rcp_iflag_f32')
_REG = re.compile(r'^(-|\|)?(abs\()?([vas])(\d+|\[(\d+):(\d+)\])\)?\|?$')


def regs_of(tok):
    tok = tok.strip()
    if tok in ('vcc',):
        return {('s', 106), ('s', 107)}
    if tok in ('vcc_lo',):
        return {('s', 106)}
    if tok in ('vcc_hi',):
        return {('s', 107)}
    if tok == 'exec':
        return {('s', 126), ('s', 127)}
    if tok == 'exec_lo':
        return {('s', 126)}
    if tok == 'exec_hi':
        return {('s', 127)}
    if tok == 'm0':
        return {('s', 124)}
    m = _REG.match(tok)
    if not m:
        return set()
    k = m.group(3)
    if m.group(5) is not None:
        return {(k, i) for i in range(int(m.group(5)), int(m.group(6)) + 1)}
    return {(k, int(m.group(4)))}


def split_ops(s):
    out, depth, cur = [], 0, ''
    for ch in s:
        if ch in '[(':
            depth += 1
        if ch in '])':
            depth -= 1
        if ch == ',' and depth == 0:
            out.append(cur.strip())
            cur = ''
        else:
            cur += ch
    if cur.strip():
        out.append(cur.strip())
    return out


class Ins:
    __slots__ = ('text', 'mn', 'kind', 'rd', 'wr', 'passes', 'srcc', 'srcab', 'dpp', 'wide_store', 'lds_dma',
                 'sgpr_rd')


def mfma_passes(mn):
    if '32x32x16' in mn or '32x32x8' in mn or 'smfmac_f32_32x32' in mn:
        return 8
    if '16x16x32' in mn or '16x16x16' in mn or 'smfmac_f32_16x16' in mn:
        return 4
    raise ValueError('unknown mfma ' + mn)


def parse(text):
    t = text.split(';')[0].strip()
    sp = t.split(None, 1)
    mn = sp[0]
    rest = sp[1] if len(sp) > 1 else ''
    ops = split_ops(rest)
    mods = ''
    if ops:
        last = ops[-1].split()
        if len(last) > 1:
            ops[-1] = last[0]
            mods = ' '.join(last[1:])
    ins = Ins()
    ins.text, ins.mn = text, mn
    ins.rd, ins.wr = set(), set()
    ins.passes = 0
    ins.srcc, ins.srcab = set(), set()
    ins.dpp = ('_dpp' in mn) or ('row_' in mods) or ('quad_perm' in mods)
    ins.wide_store = False
    ins.lds_dma = False
    R = [regs_of(o) for o in ops]
    base = mn.replace('_e32', '').replace('_e64', '').replace('_dpp', '').replace('_sdwa', '')
    if mn.startswith('v_mfma'):
        ins.kind = 'mfma'
        ins.passes = mfma_passes(mn)
        ins.wr = R[0]
        ins.srcab = R[1] | R[2]
        ins.srcc = R[3]
        ins.rd = ins.srcab | ins.srcc
    elif mn.startswith('v_smfmac'):
        ins.kind = 'mfma'
        ins.passes = mfma_passes(mn)
        ins.wr = R[0]
        ins.srcab = R[1] | R[2] | R[3]
        ins.srcc = R[0]
        ins.rd = ins.srcab | ins.srcc
    elif mn.startswith('v_'):
        ins.kind = 'valu'
        if base.startswith('v_permlane') and 'swap' in base:
            ins.wr = R[0] | R[1]
            ins.rd = R[0] | R[1]
        elif base in ('v_add_co_u32', 'v_sub_co_u32', 'v_subrev_co_u32'):
            ins.wr = R[0] | R[1]
            ins.rd = R[2] | R[3]
        elif base in ('v_addc_co_u32', 'v_subb_co_u32'):
            ins.wr = R[0] | R[1]
            ins.rd = R[2] | R[3] | R[4]
        elif base == 'v_nop':
            pass
        else:
            ins.wr = set(R[0])
            for r in R[1:]:
                ins.rd |= r
            if base in ('v_fmac_f32', 'v_pk_fmac_f16', 'v_dot2c_f32_bf16', 'v_writelane_b32') or ins.dpp:
                ins.rd |= R[0]
            if base.startswith('v_cmpx'):
                ins.wr |= regs_of('exec')
    elif mn.startswith('ds_'):
        ins.kind = 'ds'
        if mn.startswith('ds_read') or mn.startswith('ds_bpermute') or mn.startswith('ds_permute') or mn.startswith('ds_swizzle'):
            ins.wr = R[0]
            for r in R[1:]:
                ins.rd |= r
        else:
            for r in R:
                ins.rd |= r
    elif mn.startswith('buffer_') or mn.startswith('global_'):
        ins.kind = 'vmem'
        toks = mods.split()
        if mn in ('buffer_wbl2', 'buffer_inv'):
            pass
        elif 'lds' in toks or mn.startswith('global_load_lds'):
            ins.lds_dma = True
            for r in R:
                ins.rd |= r
            ins.rd |= regs_of('m0')
        elif '_load' in mn:
            ins.wr = R[0]
            for r in R[1:]:
                ins.rd |= r
            if 'd16' in mn:
                ins.rd |= R[0]
        elif '_atomic' in mn:
            for r in R:
                ins.rd |= r
            if 'sc0' in toks:
                ins.wr = set(R[0])
        else:
            for r in R:
                ins.rd |= r
            if 'x3' in mn or 'x4' in mn:
                ins.wide_store = True
    elif mn.startswith('s_'):
        ins.kind = 'salu'
        if mn in ('s_nop', 's_waitcnt', 's_barrier', 's_sleep', 's_setprio', 's_endpgm', 's_branch') or mn.startswith('s_cbranch') or mn.startswith('s_cmp') or mn.startswith('s_bitcmp'):
            for r in R:
                ins.rd |= r
        elif mn.startswith('s_load') or mn.startswith('s_memtime') or mn.startswith('s_memrealtime') or mn.startswith('s_buffer_load'):
            ins.kind = 'smem'
            ins.wr = R[0]
            for r in R[1:]:
                ins.rd |= r
        else:
            ins.wr = set(R[0]) if R else set()
            for r in R[1:]:
                ins.rd |= r
            if 'saveexec' in mn:
                ins.wr |= regs_of('exec')
    else:
        raise ValueError('unknown instruction ' + text)
    return ins


def need(prod, cons):
    n = 0
    pk, ck = prod.kind, cons.kind
    pv = {r for r in prod.wr if r[0] in 'va'}
    ps = {r for r in prod.wr if r[0] == 's'}
    if pk == 'valu':
        if ck == 'mfma' and (pv & cons.rd):
            n = max(n, 2)
        if ck == 'valu':
            cb = cons.mn
            if cb.startswith('v_permlane') and (pv & cons.rd):
                n = max(n, 2)
            if cons.dpp and (pv & cons.rd):
                n = max(n, 2)
            if (cb.startswith('v_readlane') or cb.startswith('v_readfirstlane')) and (pv & cons.rd):
                n = max(n, 1)
            if prod.mn.replace('_e32', '').replace('_e64', '') in TRANS and (pv & (cons.rd | cons.wr)):
                n = max(n, 1)
            if ('op_sel' in prod.text or 'sdwa' in prod.mn) and (pv & (cons.rd | cons.wr)):
                n = max(n, 1)
            if ps & cons.rd:
                n = max(n, 4 if (cb.startswith('v_readlane') or cb.startswith('v_writelane') or cb.startswith('v_div_fmas')) else 2)
            if ps & regs_of('exec'):
                n = max(n, 5 if cons.dpp else 4 if (cb.startswith('v_read') or cb.startswith('v_permlane') or cb.startswith('v_writelane')) else 0)
        if ck == 'mfma' and (ps & regs_of('exec')):
            n = max(n, 4)
        if ck == 'vmem' and (ps & cons.rd):
            n = max(n, 5)
        if ck in ('salu', 'smem') and (ps & cons.rd):
            n = max(n, 1)
    if pk in ('vmem', 'ds') and ck == 'valu' and cons.dpp and (pv & cons.rd):
        n = max(n, 0)
    if pk == 'mfma':
        p = prod.passes
        tab_ab = {2: 5, 4: 8, 8: 12, 16: 20}[p]
        tab_c = {2: 4, 4: 6, 8: 10, 16: 18}[p]
        if ck == 'mfma':
            if pv & cons.srcab:
                n = max(n, tab_ab)
            if pv & cons.srcc:
                if not (pv == cons.srcc and cons.passes == p):
                    n = max(n, tab_c)
                elif p == 2:
                    n = max(n, 2)
            elif pv & cons.wr:
                n = max(n, tab_c)
        elif ck in ('valu', 'vmem', 'ds'):
            if pv & (cons.rd | cons.wr):
                n = max(n, tab_ab)
        if ck == 'valu' and (prod.srcc & cons.wr):
            n = max(n, {2: 1, 4: 3, 8: 7, 16: 15}[p])
        if ck in ('vmem', 'ds') and (prod.srcc & cons.wr):
            n = max(n, {2: 1, 4: 3, 8: 7, 16: 15}[p])
    if pk == 'vmem' and prod.wide_store:
        data = {r for r in prod.rd if r[0] in 'va'}
        if data & cons.wr:
            n = max(n, 2)
    if pk == 'salu' and (('s', 124) in prod.wr):
        if cons.lds_dma or 'addtid' in cons.mn or cons.mn.startswith('s_movrel') or cons.mn.startswith('s_sendmsg'):
            n = max(n, 1)
    if pk == 'salu' and (ps & regs_of('exec')):
        pass
    return n


def worst(prod):
    if prod.kind == 'mfma':
        return {2: 5, 4: 8, 8: 12, 16: 20}[prod.passes]
    if prod.kind == 'valu':
        if any(r[0] == 's' for r in prod.wr):
            return 5
        return 2
    if prod.kind == 'vmem' and prod.wide_store:
        return 2
    if prod.kind == 'salu' and (('s', 124) in prod.wr):
        return 1
    return 0


class Asm:
    def __init__(self):
        self.lines = []
        self.hist = []
        self.pos = 0
        self.ninstr = 0
        self.uid = 0
        self.nops = 0

    def raw(self, text):
        self.lines.append(text)

    def comment(self, text):
        self.lines.append('    ; ' + text)

    def _pad(self, n):
        while n > 0:
            k = min(n, 16)
            self.lines.append('    s_nop %d' % (k - 1))
            self.pos += k
            self.nops += k
            self.ninstr += 1
            n -= k

    def flush(self):
        req = 0
        for ins, p in self.hist:
            req = max(req, worst(ins) - (self.pos - p - 1))
        self._pad(req)
        self.hist = []

    def label(self, name):
        self.flush()
        self.lines.append(name + ':')

    def newlabel(self, stem='L'):
        self.uid += 1
        return '%s_%d' % (stem, self.uid)

    def i(self, text):
        for t in text.strip().split('\n'):
            t = t.strip()
            if not t:
                continue
            if t.startswith(';'):
                self.lines.append('    ' + t)
                continue
            ins = parse(t)
            if ins.mn in ('s_branch', 's_endpgm', 's_setpc_b64', 's_swappc_b64') or ins.mn.startswith('s_cbranch'):
                req = 0
                for p_ins, p in self.hist:
                    req = max(req, worst(p_ins) - (self.pos - p - 1) - 1, need(p_ins, ins) - (self.pos - p - 1))
                self._pad(req)
                self.lines.append('    ' + t)
                self.pos += 1
                self.ninstr += 1
                self.hist = []
                continue
            req = 0
            for p_ins, p in self.hist:
                req = max(req, need(p_ins, ins) - (self.pos - p - 1))
            self._pad(req)
            self.lines.append('    ' + t)
            if ins.mn == 's_nop':
                self.pos += int(t.split()[1], 0) + 1
            else:
                self.hist.append((ins, self.pos))
                self.pos += 1
            self.ninstr += 1
            self.hist = [(a, p) for a, p in self.hist if self.pos - p <= 24]

    def ds(self, text, tag=None):
        self.i(text)
        if not hasattr(self, 'lq'):
            self.lq = []
        self.lq.append(tag)

    def wl(self, tag):
        lq = getattr(self, 'lq', [])
        idx = [k for k, t in enumerate(lq) if t == tag]
        if not idx:
            return
        n = len(lq) - 1 - idx[-1]
        n = min(n, 15)
        self.i('s_waitcnt lgkmcnt(%d)' % n)
        self.lq = lq[len(lq) - n:] if n else []

    def wl_all(self):
        self.i('s_waitcnt lgkmcnt(0)')
        self.lq = []

    def text(self):
        return '\n'.join(self.lines) + '\n'


def vr(base, n=1):
    return 'v%d' % base if n == 1 else 'v[%d:%d]' % (base, base + n - 1)


def ar(base, n=1):
    return 'a%d' % base if n == 1 else 'a[%d:%d]' % (base, base + n - 1)


def sr(base, n=1):
    return 's%d' % base if n == 1 else 's[%d:%d]' % (base, base + n - 1)


def ur(idx, n=1):
    if idx >= 256:
        return ar(idx - 256, n)
    assert idx + n <= 256
    return vr(idx, n)
```

```python
from common import *
from roles import load_weights, WSR, xlane

L_MEM = 131072
L_KX = 139264
L_VX = 147456
L_QI = 155648
L_KI = L_QI + 2304
L_VI = L_KI + 2304
L_SEL = L_VI + 2048 + 64
QS = 288

vWV, vL2, vKX, vIDX, vQW, vVW, vQR, vKM, vVM, vPST, vX1, vX2, vT0, vT1 = range(2, 16)
RA, RB, RC, RD = 16, 48, 80, 112
WQ, WK, WO = 256, 384, 128
sPC, sPP, sMC, sMR, sM3, sFLG, sKVF, sKVS, sOUT, sSRC, sDST = range(72, 83)
sHF = 84


def emit(A, x):
    if callable(x):
        x()
    else:
        A.i(x)


def mix(A, mf, fill, per=2, start=0):
    fill = list(fill)
    for k, m in enumerate(mf):
        emit(A, m)
        if k >= start:
            for _ in range(per):
                if fill:
                    emit(A, fill.pop(0))
    for f in fill:
        emit(A, f)


def role_chain(A, sy, end, nsteps=64):
    sH = sR
    srd(A, S_A, P_WQ, 512 * 8192)
    srd(A, S_B, P_WK, 512 * 8192)
    srd(A, S_C, P_WV, 512 * 8192)
    srd(A, S_D, P_WO, 4096 * 1024)
    G, N, G1, TT, TA, TB = 16, 17, 18, 19, 20, 21
    A.i(f'v_lshrrev_b32 v{G}, 4, v0')
    A.i(f'v_and_b32 v{N}, 15, v0')
    A.i(f'v_and_b32 v{G1}, 1, v{G}')
    A.i(f'v_lshrrev_b32 v{TT}, 5, v0')
    A.i(f's_lshl_b32 s{sT0}, s{sW}, 15')
    A.i(f'v_add_u32 v{vWV}, s{sT0}, v1')
    A.i(f'v_add_u32 v{vL2}, {L_MEM}, v1')
    A.i(f'v_lshlrev_b32 v{vKX}, 9, v{G}')
    A.i(f'v_lshl_add_u32 v{vKX}, v{N}, 4, v{vKX}')
    A.i(f'v_add_u32 v{vKX}, {L_KX}, v{vKX}')
    A.i(f's_mov_b32 s{sHF}, 0xff00ff00')
    A.i(f's_mov_b32 s{sHF+1}, 0xff00ff00')
    A.i(f'v_mov_b32 v{vIDX}, 0x4444')
    A.i(f'v_mov_b32 v{TA}, 0xeeee')
    A.i(f'v_cndmask_b32 v{vIDX}, v{vIDX}, v{TA}, s[{sHF}:{sHF+1}]')
    A.i(f'v_lshlrev_b32 v{TA}, 1, v{G1}')
    A.i(f'v_add_u32 v{TA}, v{TA}, v{TT}')
    A.i(f'v_mul_u32_u24 v{vQW}, {2*QS}, v{TA}')
    A.i(f'v_lshl_add_u32 v{vQW}, v{N}, 2, v{vQW}')
    A.i(f's_lshl_b32 s{sT0}, s{sW}, 6')
    A.i(f's_add_u32 s{sT0}, s{sT0}, {L_QI}')
    A.i(f'v_add_u32 v{vQW}, s{sT0}, v{vQW}')
    A.i(f'v_lshrrev_b32 v{vPST}, 1, v{N}')
    A.i(f'v_lshlrev_b32 v{vPST}, 13, v{vPST}')
    A.i(f'v_lshl_add_u32 v{vPST}, v{TA}, 4, v{vPST}')
    A.i(f'v_and_b32 v{TB}, 1, v{N}')
    A.i(f'v_lshl_add_u32 v{vPST}, v{TB}, 6, v{vPST}')
    A.i(f's_lshl_b32 s{sT0}, s{sW}, 16')
    A.i(f's_lshl_b32 s{sT1}, s{sH}, 8')
    A.i(f's_add_u32 s{sT0}, s{sT0}, s{sT1}')
    A.i(f'v_add_u32 v{vPST}, s{sT0}, v{vPST}')
    A.i(f'v_lshlrev_b32 v{vVW}, 8, v{TT}')
    A.i(f'v_lshl_add_u32 v{vVW}, v{N}, 4, v{vVW}')
    A.i(f'v_lshl_add_u32 v{vVW}, v{G1}, 3, v{vVW}')
    A.i(f's_lshl_b32 s{sT0}, s{sW}, 9')
    A.i(f's_add_u32 s{sT0}, s{sT0}, {L_VI}')
    A.i(f'v_add_u32 v{vVW}, s{sT0}, v{vVW}')
    A.i(f'v_and_b32 v{TA}, 7, v{N}')
    A.i(f'v_mul_u32_u24 v{vQR}, {QS}, v{TA}')
    A.i(f'v_lshl_add_u32 v{vQR}, v{G}, 4, v{vQR}')
    A.i(f'v_add_u32 v{vQR}, {L_QI}, v{vQR}')
    A.i(f'v_lshrrev_b32 v{TA}, 2, v{N}')
    A.i(f'v_lshl_add_u32 v{TA}, v{TA}, 1, v{TB}')
    A.i(f'v_mul_u32_u24 v{vKM}, {QS}, v{TA}')
    A.i(f'v_lshl_add_u32 v{vKM}, v{G}, 4, v{vKM}')
    A.i(f'v_add_u32 v{vKM}, {L_KI}, v{vKM}')
    A.i(f'v_lshlrev_b32 v{vVM}, 4, v{N}')
    A.i(f'v_lshl_add_u32 v{vVM}, v{G}, 2, v{vVM}')
    A.i(f'v_add_u32 v{vVM}, {L_VI}, v{vVM}')
    A.i(f'v_lshlrev_b32 v{vX1}, 3, v{TB}')
    A.i(f'v_lshrrev_b32 v{TA}, 3, v{N}')
    A.i(f'v_lshl_add_u32 v{vX1}, v{TA}, 2, v{vX1}')
    A.i(f'v_bfe_u32 v{TA}, v{N}, 1, 2')
    A.i(f'v_add_u32 v{vX1}, v{vX1}, v{TA}')
    A.i(f'v_lshlrev_b32 v{vX1}, 4, v{vX1}')
    A.i(f'v_lshl_add_u32 v{vX1}, v{G}, 8, v{vX1}')
    A.i(f's_lshl_b32 s{sT0}, s{sH}, 13')
    A.i(f'v_add_u32 v{vX1}, s{sT0}, v{vX1}')
    A.i(f'v_lshlrev_b32 v{vX2}, 4, v{N}')
    A.i(f'v_lshl_add_u32 v{vX2}, v{G}, 3, v{vX2}')
    A.i(f's_lshl_b32 s{sT0}, s{sH}, 8')
    A.i(f'v_add_u32 v{vX2}, s{sT0}, v{vX2}')
    Lw2, Lw3, Lwe = A.newlabel('CHw2'), A.newlabel('CHw3'), A.newlabel('CHwe')
    A.i(f's_lshl_b32 s{sT0}, s{sH}, 7')
    A.i(f's_add_u32 s{sFLG}, s{sT0}, {F_CH:#x}')
    A.i(f's_add_u32 s{sKVF}, s{sT0}, {F_KV:#x}')
    A.i(f's_lshl_b32 s{sT0}, s{sH}, 11')
    A.i(f's_add_u32 s{sOUT}, s{sT0}, {KM:#x}')
    A.i(f's_lshl_b32 s{sT0}, s{sH}, 13')
    A.i(f's_add_u32 s{sSRC}, s{sT0}, {KX:#x}')
    A.i(f's_mov_b32 s{sDST}, {L_KX}')
    A.i(f's_mov_b32 s{sKVS}, 0')
    A.i(f's_cmp_eq_u32 s{sW}, 3')
    A.i(f's_cbranch_scc1 {Lw3}')
    A.i(f's_cmp_eq_u32 s{sW}, 2')
    A.i(f's_cbranch_scc0 {Lwe}')
    A.label(Lw2)
    A.i(f'v_mul_u32_u24 v{vX1}, {QS}, v{G}')
    A.i(f'v_lshl_add_u32 v{vX1}, v{N}, 4, v{vX1}')
    A.i(f'v_add_u32 v{vX1}, {L_KI}, v{vX1}')
    A.i(f'v_add_u32 v{vX2}, {4*QS}, v{vX1}')
    A.i(f's_branch {Lwe}')
    A.label(Lw3)
    A.i(f'v_add_u32 v{vX1}, {L_VI}, v1')
    A.i(f'v_add_u32 v{vX2}, {L_VI+1024}, v1')
    A.i(f's_add_u32 s{sFLG}, s{sFLG}, {32*FL}')
    A.i(f's_add_u32 s{sKVF}, s{sKVF}, {32*FL}')
    A.i(f's_add_u32 s{sOUT}, s{sOUT}, {VM-KM:#x}')
    A.i(f's_add_u32 s{sSRC}, s{sSRC}, {VT-KX:#x}')
    A.i(f's_mov_b32 s{sDST}, {L_VX}')
    A.label(Lwe)
    for c in range(4):
        A.i(f'v_mov_b32 v{24+c}, 0')
        A.i(f'v_cmp_eq_u32 vcc, {2*c}, v{N}')
        A.i(f'v_mov_b32 v{TA}, 0x3f80')
        A.i(f'v_cndmask_b32 v{24+c}, v{24+c}, v{TA}, vcc')
        A.i(f'v_cmp_eq_u32 vcc, {2*c+1}, v{N}')
        A.i(f'v_mov_b32 v{TA}, 0x3f800000')
        A.i(f'v_cndmask_b32 v{24+c}, v{24+c}, v{TA}, vcc')
    A.i(f'ds_write_b128 v{vL2}, v[24:27] offset:{L_SEL-L_MEM}')
    A.i(f'v_lshrrev_b32 v{TA}, 1, v{G}')
    A.i(f'v_lshlrev_b32 v{vT0}, 17, v{TA}')
    A.i(f'v_lshl_add_u32 v{vT0}, v{G1}, 15, v{vT0}')
    A.i(f'v_lshl_add_u32 v{vT0}, v{N}, 2, v{vT0}')
    A.i(f'v_lshlrev_b32 v{vT1}, 12, v{G}')
    A.i(f'v_lshl_add_u32 v{vT1}, v{N}, 4, v{vT1}')
    A.i(f's_lshl_b32 s86, s{sH}, 8')
    A.i(f's_lshl_b32 s{sT0}, s{sW}, 6')
    A.i(f's_add_u32 s86, s86, s{sT0}')
    A.i(f's_lshl_b32 s87, s{sH}, 17')
    A.i(f's_lshl_b32 s{sT0}, s{sW}, 8')
    A.i(f's_add_u32 s87, s87, s{sT0}')

    def mem_units(srd_s, wbase):
        u = []
        for ks in range(8):
            for r in range(8):
                d0 = 64 * ks + 32 * (r >> 2) + 8 * (r & 1) + 2 * ((r >> 1) & 1)
                u.append((srd_s, vT0, 86, d0 * 8192, (d0 + 1) * 8192, 1,
                          [(wbase + (ks * 2) * 8 + r, 0, f's{SELLO}'), (wbase + (ks * 2 + 1) * 8 + r, 0, f's{SELHI}')]))
        return u

    ST = 24
    def v_units():
        u = []
        for ks in range(8):
            for r in range(8):
                d0 = 64 * ks + 32 * (r >> 2) + 8 * (r & 1) + 2 * ((r >> 1) & 1)

                def mk(t, r=r, ks=ks):
                    def f(hi, lo, sel):
                        A.i(f'v_perm_b32 v{ST + t*4 + (r & 3)}, v{hi}, v{lo}, {sel}')
                        if (r & 3) == 3:
                            A.i(f'ds_write_b128 v{vWV}, {vr(ST + t*4, 4)} offset:{((ks*2+t)*2 + (r >> 2))*1024}')
                            if t == 1:
                                A.i('s_waitcnt lgkmcnt(0)')
                    return f
                u.append((S_C, vT0, 86, d0 * 8192, (d0 + 1) * 8192, 1,
                          [(mk(0), 0, f's{SELLO}'), (mk(1), 0, f's{SELHI}')]))
        return u

    def o_units():
        u = []
        for ks2 in range(2):
            for r in range(8):
                e0 = 64 * ks2 + 32 * (r & 1) + 16 * (r >> 2) + 2 * ((r >> 1) & 1)
                outs = []
                for c in range(4):
                    outs.append((WO + ((2 * c) * 2 + ks2) * 8 + r, c, f's{SELLO}'))
                    outs.append((WO + ((2 * c + 1) * 2 + ks2) * 8 + r, c, f's{SELHI}'))
                u.append((S_D, vT1, 87, e0 * 1024, (e0 + 1) * 1024, 4, outs))
        return u

    load_weights(A, mem_units(S_A, WQ) + mem_units(S_B, WK) + v_units() + o_units(), 48, 32, 22)
    srd(A, S_A, P_MEM0, 8192)
    A.i(f's_mov_b32 s{sPC}, {XP:#x}')
    A.i(f's_mov_b32 s{sPP}, {XP + 0x40000:#x}')
    A.i(f's_mov_b32 s{sMC}, {XM:#x}')
    A.i(f's_mov_b32 s{sMR}, {XM + 0x2000:#x}')
    A.i(f's_mov_b32 s{sM3}, {XM + 0x4000:#x}')
    A.i(f's_mov_b32 s{sS}, 0')
    Lio0, Lpre = A.newlabel('CHio0'), A.newlabel('CHpre')
    A.i(f's_cmp_ge_u32 s{sW}, 2')
    A.i(f's_cbranch_scc1 {Lio0}')
    A.i(f'v_and_b32 v{vT0}, 7, v0')
    A.i(f'v_lshlrev_b32 v{vT0}, 10, v{vT0}')
    A.i(f'v_lshrrev_b32 v{vT1}, 3, v0')
    A.i(f'v_lshl_add_u32 v{vT0}, v{vT1}, 4, v{vT0}')
    A.i(f's_lshl_b32 s{sT0}, s{sW}, 9')
    for i in range(4):
        A.i(f'buffer_load_dwordx4 {vr(RA+16+4*i,4)}, v{vT0}, s[{S_A}:{S_A+3}], s{sT0} offen offset:{i*128}')
    A.i(f's_lshl_b32 s{sT0}, s{sW}, 12')
    A.i(f'v_add_u32 v{vT0}, s{sT0}, v{vL2}')
    A.i('s_waitcnt vmcnt(0)')
    for i in range(4):
        A.i(f'ds_write_b128 v{vT0}, {vr(RA+16+4*i,4)} offset:{i*1024}')
    A.i(f's_branch {Lpre}')
    A.label(Lio0)

    def io_fetch(sseg):
        if sy.on:
            Lok, Lp = A.newlabel('CHkvok'), A.newlabel('CHkvp')
            A.label(Lp)
            A.i(f's_cmp_gt_u32 s{sKVS}, s{sseg}')
            A.i(f's_cbranch_scc1 {Lok}')
            A.i(f'buffer_load_dword v{vT0}, off, {WSR}, s{sKVF} sc1')
            A.i('s_waitcnt vmcnt(0)')
            A.i(f'v_readfirstlane_b32 s{sKVS}, v{vT0}')
            A.i(f's_branch {Lp}')
            A.label(Lok)
        A.i(f's_lshl_b32 s{sT0}, s{sseg}, 18')
        A.i(f's_add_u32 s{sT0}, s{sT0}, s{sSRC}')
        A.i(f's_mov_b32 m0, s{sDST}')
        for i in range(8):
            if i == 4:
                A.i(f's_add_u32 s{sT0}, s{sT0}, 4096')
                A.i(f's_add_u32 s{sT1}, s{sDST}, 4096')
                A.i(f's_mov_b32 m0, s{sT1}')
            A.i(f'buffer_load_dwordx4 v1, {WSR}, s{sT0} offen offset:{(i&3)*1024} sc1 lds')

    io_fetch(sS)
    A.label(Lpre)

    AQ, AK, AV = RD, RD + 8, RD
    MA = RA
    VR = RB
    S1, S2 = RB + 24, RB + 28
    QF, KR = RC, RC + 16
    KMF = RC + 16
    S0 = RD + 8
    TM = RD + 12
    VXF = RC
    OD = RA
    VMF = RB
    P4, PM = RD + 8, RD + 12
    OA = RD
    def WD(t):
        return (RB + 16 + 4 * t) if t < 4 else (RC + 4 * (t - 4))
    PK = RA

    def vring_read(f):
        b = VR + (f % 3) * 8
        A.ds(f'ds_read_b128 {vr(b,4)}, v{vWV} offset:{f*2048}', ('vr', f))
        A.ds(f'ds_read_b128 {vr(b+4,4)}, v{vWV} offset:{f*2048+1024}', ('vr', f))

    def pre_step():
        for r in range(16):
            A.i(f'v_mov_b32 v{RD+r}, 0')
        for f in range(3):
            vring_read(f)

    pre_step()
    Ltop = A.newlabel('CHtop')
    Lfin = A.newlabel('CHfin')
    A.wl_all()
    A.label(Ltop)
    A.i('s_barrier')
    for ks in range(8):
        A.ds(f'ds_read_b128 {vr(MA+4*ks,4)}, v{vL2} offset:{ks*1024}', ('ma', ks))

    def sm(acc, a, w):
        return f'v_smfmac_f32_16x16x64_bf16 {vr(acc,4)}, {vr(a,4)}, {ur(w,8)}, v{vIDX}'

    mf = []
    for ks in range(8):
        mf.append(lambda ks=ks: (A.wl(('ma', ks)), A.i(sm(AQ, MA + 4 * ks, WQ + (ks * 2) * 8))))
        mf.append(sm(AQ + 4, MA + 4 * ks, WQ + (ks * 2 + 1) * 8))
    SEN = RC
    fill = [f'v_mov_b32 v{SEN+i}, -1' for i in range(4)]
    fill += [f's_lshl_b32 s{sT0}, s{sH}, 13', f's_lshl_b32 s{sT1}, s{sW}, 11', f's_add_u32 s{sT0}, s{sT0}, s{sT1}',
             f's_add_u32 s{sT0}, s{sT0}, s{sPP}',
             f'buffer_store_dwordx4 {vr(SEN,4)}, v1, {WSR}, s{sT0} offen',
             f's_lshl_b32 s{sT1}, s{sH}, 8',
             f'buffer_store_dwordx4 {vr(SEN,4)}, v1, {WSR}, s{sT0} offen offset:1024',
             f's_add_u32 s{sT1}, s{sT1}, s{sMR}',
             lambda: A.i(f's_mov_b64 exec, 0xffff\nbuffer_store_dwordx4 {vr(SEN,4)}, v1, {WSR}, s{sT1} offen\ns_mov_b64 exec, -1')]
    mix(A, mf, fill, per=1, start=1)

    def fold_qk(acc, off):
        f = []
        for t in range(2):
            f.append(f'v_permlane32_swap_b32 v{acc+4*t}, v{acc+4*t+2}')
            f.append(f'v_permlane32_swap_b32 v{acc+4*t+1}, v{acc+4*t+3}')
        for t in range(2):
            f.append(f'v_add_f32 v{acc+4*t}, v{acc+4*t}, v{acc+4*t+2}')
            f.append(f'v_add_f32 v{acc+4*t+1}, v{acc+4*t+1}, v{acc+4*t+3}')
        f.append(f'v_cvt_pk_bf16_f32 v{acc+2}, v{acc}, v{acc+4}')
        f.append(f'v_cvt_pk_bf16_f32 v{acc+3}, v{acc+1}, v{acc+5}')
        f.append(lambda: A.ds(f'ds_write_b32 v{vQW}, v{acc+2} offset:{off}', 'w'))
        f.append(lambda: A.ds(f'ds_write_b32 v{vQW}, v{acc+3} offset:{off+QS}', 'w'))
        return f

    def kx_read(ks):
        b = KR + (ks & 1) * 8
        A.ds(f'ds_read_b128 {vr(b,4)}, v{vKX} offset:{ks*2048}', ('kx', ks))
        A.ds(f'ds_read_b128 {vr(b+4,4)}, v{vKX} offset:{ks*2048+256}', ('kx', ks))

    def publish_prev():
        if not sy.on:
            return
        Ls = A.newlabel('CHpub')
        A.i(f's_cmp_lt_u32 s{sW}, 2')
        A.i(f's_cbranch_scc1 {Ls}')
        A.i(f'v_mov_b32 v{vT0}, s{sS}')
        A.i('s_mov_b64 exec, 1')
        A.i(f'buffer_store_dword v{vT0}, off, {WSR}, s{sFLG} sc1')
        A.i('s_mov_b64 exec, -1')
        A.label(Ls)

    mf = []
    for ks in range(8):
        mf.append(sm(AK, MA + 4 * ks, WK + (ks * 2) * 8))
        mf.append(sm(AK + 4, MA + 4 * ks, WK + (ks * 2 + 1) * 8))
    mix(A, mf[:8], fold_qk(AQ, 0), per=3, start=2)
    mix(A, mf[8:10], [])
    A.wl('w')
    A.i('s_waitcnt vmcnt(0)')
    A.i('s_barrier')
    fill = [lambda ks=ks: A.ds(f'ds_read_b128 {vr(QF+4*ks,4)}, v{vQR} offset:{ks*64}', ('q', ks)) for ks in range(4)]
    fill += [lambda: kx_read(0), lambda: kx_read(1)]
    fill += [f'v_mov_b32 v{AV+r}, 0' for r in range(8)]
    mix(A, mf[10:], fill, per=3)
    publish_prev()
    mf = []
    for ks in range(4):
        b = KR + (ks & 1) * 8
        c1 = '0' if ks == 0 else vr(S1, 4)
        c2 = '0' if ks == 0 else vr(S2, 4)
        mf.append(lambda ks=ks, b=b, c1=c1: (A.wl(('kx', ks)), A.i(f'v_mfma_f32_16x16x32_bf16 {vr(S1,4)}, {vr(b,4)}, {vr(QF+4*ks,4)}, {c1}')))
        mf.append(lambda ks=ks, b=b, c2=c2: (A.i(f'v_mfma_f32_16x16x32_bf16 {vr(S2,4)}, {vr(b+4,4)}, {vr(QF+4*ks,4)}, {c2}'),
                                            kx_read(ks + 2) if ks + 2 < 4 else None))
    mix(A, mf, fold_qk(AK, L_KI - L_QI), per=3, start=1)

    vstate = {'f': 0}
    def vstep():
        f = vstate['f']
        ks, t = f >> 1, f & 1
        A.wl(('vr', f))
        A.i(f'v_smfmac_f32_16x16x64_bf16 {vr(AV+4*t,4)}, {vr(MA+4*ks,4)}, {vr(VR+(f%3)*8,8)}, v{vIDX}')
        if f + 3 < 16:
            vring_read(f + 3)
        vstate['f'] = f + 1

    vstep()
    vstep()
    A.wl('w')
    A.i('s_barrier')
    for ks in range(4):
        A.ds(f'ds_read_b128 {vr(KMF+4*ks,4)}, v{vKM} offset:{ks*64}', ('km', ks))
    SX = S1
    MX, SUMX = S2, S2 + 1
    f = [f'v_cndmask_b32 v{S1+r}, v{S1+r}, v{S2+r}, s[{sHF}:{sHF+1}]' for r in range(4)]
    def r2(a, b, t):
        return [f'v_cvt_pk_bf16_f32 v{t}, v{a}, v{b}', f'v_lshlrev_b32 v{a}, 16, v{t}', f'v_and_b32 v{b}, s{sHIM}, v{t}']
    f += r2(SX, SX + 1, S2 + 2) + r2(SX + 2, SX + 3, S2 + 3)
    f += [f'v_mul_f32 v{SX+r}, s{sSCALE}, v{SX+r}' for r in range(4)]
    f += r2(SX, SX + 1, S2 + 2) + r2(SX + 2, SX + 3, S2 + 3)
    f += [f'v_max3_f32 v{MX}, v{SX}, v{SX+1}, v{SX+2}', f'v_max_f32 v{MX}, v{MX}, v{SX+3}',
          f'v_max_f32_dpp v{MX}, v{MX}, v{MX} row_ror:8 row_mask:0xf bank_mask:0xf']
    mix(A, [vstep, vstep, vstep], f, per=6)
    for ks in range(4):
        A.wl(('km', ks))
        c = '0' if ks == 0 else vr(S0, 4)
        A.i(f'v_mfma_f32_16x16x32_bf16 {vr(S0,4)}, {vr(KMF+4*ks,4)}, {vr(QF+4*ks,4)}, {c}')
    xlane(A, 'v_max_f32', MX, S2 + 2)
    vstep()
    A.i(f'v_mul_f32 v{MX}, s{sLOG2E}, v{MX}')
    for r in range(4):
        A.i(f'v_fma_f32 v{SX+r}, v{SX+r}, s{sLOG2E}, -v{MX}')
    f = r2(S0, S0 + 1, TM) + [f'v_mul_f32 v{S0}, s{sSCALE}, v{S0}', f'v_mul_f32 v{S0+1}, s{sSCALE}, v{S0+1}'] + r2(S0, S0 + 1, TM)
    f += [f'v_mul_f32 v{S0}, s{sLOG2E}, v{S0}', f'v_mul_f32 v{S0+1}, s{sLOG2E}, v{S0+1}',
          f'v_max3_f32 v{TM}, v{S0}, v{S0+1}, v{MX}']
    f += [f'v_mov_b32 v{TM+1}, v{TM}', f'v_exp_f32 v{SX}, v{SX}', f'v_permlane32_swap_b32 v{TM}, v{TM+1}',
          f'v_max_f32 v{TM}, v{TM}, v{TM+1}', f'v_mov_b32 v{TM+1}, v{TM}', f'v_exp_f32 v{SX+1}, v{SX+1}',
          f'v_permlane16_swap_b32 v{TM}, v{TM+1}', f'v_max_f32 v{TM}, v{TM}, v{TM+1}']
    f += [f'v_sub_f32 v{S0}, v{S0}, v{TM}', f'v_sub_f32 v{S0+1}, v{S0+1}, v{TM}', f'v_sub_f32 v{MX}, v{MX}, v{TM}',
          f'v_exp_f32 v{S0}, v{S0}', f'v_exp_f32 v{S0+1}, v{S0+1}', f'v_exp_f32 v{MX}, v{MX}',
          f'v_exp_f32 v{SX+2}, v{SX+2}', f'v_exp_f32 v{SX+3}, v{SX+3}']
    f += [f'v_add_f32 v{TM}, v{S0}, v{S0+1}', f'v_add_f32 v{SUMX}, v{SX}, v{SX+1}', f'v_add_f32 v{TM+1}, v{SX+2}, v{SX+3}',
          f'v_mul_f32 v{TM}, 0.5, v{TM}', f'v_add_f32 v{SUMX}, v{SUMX}, v{TM+1}', f'v_fmac_f32 v{TM}, v{SUMX}, v{MX}',
          f'v_add_f32_dpp v{TM}, v{TM}, v{TM} row_ror:8 row_mask:0xf bank_mask:0xf',
          f'v_mov_b32 v{TM+1}, v{TM}', f'v_permlane32_swap_b32 v{TM}, v{TM+1}', f'v_add_f32 v{TM}, v{TM}, v{TM+1}',
          f'v_mov_b32 v{TM+1}, v{TM}', f'v_permlane16_swap_b32 v{TM}, v{TM+1}', f'v_add_f32 v{TM}, v{TM}, v{TM+1}',
          f'v_rcp_f32 v{TM}, v{TM}', f'v_mul_f32 v{MX}, v{MX}, v{TM}',
          f'v_mul_f32 v{S0}, v{S0}, v{TM}', f'v_mul_f32 v{S0+1}, v{S0+1}, v{TM}']
    f += [f'v_mul_f32 v{SX+r}, v{SX+r}, v{MX}' for r in range(4)]
    f += [f'v_cvt_pk_bf16_f32 v{PM}, v{S0}, v{S0+1}', f'v_mov_b32 v{PM+1}, 0',
          f'v_cvt_pk_bf16_f32 v{P4}, v{SX}, v{SX+1}', f'v_cvt_pk_bf16_f32 v{P4+1}, v{SX+2}, v{SX+3}',
          f'v_mov_b32_dpp v{P4+2}, v{P4} row_ror:8 row_mask:0xf bank_mask:0xf',
          f'v_mov_b32_dpp v{P4+3}, v{P4+1} row_ror:8 row_mask:0xf bank_mask:0xf']
    vx = [lambda i=i: A.ds(f'ds_read_b128 {vr(VXF+4*i,4)}, v{vL2} offset:{L_VX-L_MEM+i*1024}', ('vx', i)) for i in range(8)]
    nrem = 16 - vstate['f']
    f2 = []
    for k, x in enumerate(f):
        f2.append(x)
        if k >= 6 and k % 3 == 0 and vx:
            f2.append(vx.pop(0))
    f2 += vx
    nfirst = 4 * nrem
    mix(A, [vstep] * nrem, f2[:nfirst], per=4)
    g = [f'v_permlane32_swap_b32 v{AV+r}, v{AV+4+r}' for r in range(4)]
    g += [f'v_add_f32 v{AV+r}, v{AV+r}, v{AV+4+r}' for r in range(4)]
    g += [f'v_cvt_pk_bf16_f32 v{AV+4}, v{AV}, v{AV+1}', f'v_cvt_pk_bf16_f32 v{AV+5}, v{AV+2}, v{AV+3}',
          lambda: A.ds(f'ds_write_b64 v{vVW}, {vr(AV+4,2)}', 'w')]
    rest = f2[nfirst:]
    for x in rest[:8]:
        emit(A, x)
    for x in g:
        emit(A, x)
    for x in rest[8:]:
        emit(A, x)
    def pvx(i):
        return lambda: (A.wl(('vx', i)), A.i(f'v_mfma_f32_16x16x32_bf16 {vr(OD+4*i,4)}, {vr(VXF+4*i,4)}, {vr(P4,4)}, 0'))
    def pvm(i):
        return lambda: (A.wl(('vm', i)), A.i(f'v_mfma_f32_16x16x16_bf16 {vr(OD+4*i,4)}, {vr(VMF+2*i,2)}, {vr(PM,2)}, {vr(OD+4*i,4)}'))
    zero_lo = [f'v_mov_b32 v{RB+16+k}, 0' for k in range(16)]
    zero_hi = [f'v_mov_b32 v{RC+k}, 0' for k in range(16)]
    mix(A, [pvx(0), pvx(1)], zero_lo[:4], per=2)
    A.wl_all()
    A.i('s_barrier')
    A.i(f's_cmp_eq_u32 s{sS}, {nsteps-1}')
    A.i(f's_cbranch_scc1 {Lfin}')
    for i in range(8):
        A.ds(f'ds_read2st64_b32 {vr(VMF+2*i,2)}, v{vVM} offset0:{i} offset1:{i}', ('vm', i))
    mix(A, [pvx(i) for i in range(2, 8)], zero_lo[4:], per=2)
    mix(A, [pvm(i) for i in range(4)], zero_hi[:8], per=2)

    def opack(ks2):
        f = []
        lo, hi = OD + 16 * ks2, OD + 16 * ks2 + 8
        for c in range(4):
            f.append(f'v_cvt_pk_bf16_f32 v{OA+4*ks2+c}, v{lo+c}, v{lo+4+c}')
            f.append(f'v_cvt_pk_bf16_f32 v{hi+c}, v{hi+c}, v{hi+4+c}')
            f.append(f'v_cndmask_b32 v{OA+4*ks2+c}, v{OA+4*ks2+c}, v{hi+c}, s[{sHF}:{sHF+1}]')
        return f
    mix(A, [pvm(i) for i in range(4, 8)], zero_hi[8:] + opack(0)[:4], per=3)
    for x in opack(0)[4:]:
        emit(A, x)
    IMG = RC + 16
    def wo(t, ks2):
        return f'v_smfmac_f32_16x16x64_bf16 {vr(WD(t),4)}, {vr(OA+4*ks2,4)}, {ur(WO+(t*2+ks2)*8,8)}, v{vIDX}'
    img = [lambda: A.ds(f'ds_read_b128 {vr(IMG,4)}, v{vX1}', 'img') if False else None]
    mix(A, [wo(t, 0) for t in range(8)], opack(1), per=3, start=1)

    def wfold(t):
        d = WD(t)
        return [f'v_permlane32_swap_b32 v{d}, v{d+2}', f'v_permlane32_swap_b32 v{d+1}, v{d+3}',
                f'v_add_f32 v{d}, v{d}, v{d+2}', f'v_add_f32 v{d+1}, v{d+1}, v{d+3}']
    def wpack(c):
        a, b = WD(2 * c), WD(2 * c + 1)
        return [f'v_cvt_pk_bf16_f32 v{PK+c}, v{a}, v{b}', f'v_cvt_pk_bf16_f32 v{PK+4+c}, v{a+1}, v{b+1}',
                f'v_min_u32 v{PK+c}, -2, v{PK+c}', f'v_min_u32 v{PK+4+c}, -2, v{PK+4+c}']
    f = []
    for c in range(4):
        f += wfold(2 * c) + wfold(2 * c + 1) + wpack(c)
    mix(A, [wo(t, 1) for t in range(8)], f, per=4, start=2)
    Lx, Lio, Lh2, Lnext = (A.newlabel(x) for x in ('CHx', 'CHio', 'CHh2', 'CHnext'))
    A.i(f's_cmp_ge_u32 s{sW}, 2')
    A.i(f's_cbranch_scc1 {Lio}')
    A.i(f'buffer_store_dwordx4 {vr(PK,4)}, v{vPST}, {WSR}, s{sPC} offen')
    A.i(f'buffer_store_dwordx4 {vr(PK+4,4)}, v{vPST}, {WSR}, s{sPC} offen offset:128')
    A.i(f's_cmp_eq_u32 s{sW}, 1')
    A.i(f's_cbranch_scc1 {Lh2}')
    SELR, RS = RD, RD + 4
    A.i(f'ds_read_b128 {vr(SELR,4)}, v{vL2} offset:{L_SEL-L_MEM}')
    A.i(f's_add_u32 s{sT1}, s{sPC}, 4096')
    Lp1, Lok1 = A.newlabel('CHp1'), A.newlabel('CHok1')
    A.label(Lp1)
    for L in range(8):
        A.i(f'buffer_load_dwordx4 {vr(RC+4*L,4)}, v{vX1}, {WSR}, s{sPC if L < 4 else sT1} offen offset:{(L&3)*1024} sc1')
    A.i('s_waitcnt lgkmcnt(0)')
    for L in range(8):
        A.i(f's_waitcnt vmcnt({7-L})')
        c = '0' if L == 0 else vr(RS, 4)
        A.i(f'v_mfma_f32_16x16x32_bf16 {vr(RS,4)}, {vr(SELR,4)}, {vr(RC+4*L,4)}, {c}')
    A.i(f'v_cmp_u_f32 vcc, v{RS}, v{RS+1}')
    A.i(f'v_cvt_pk_bf16_f32 v{RS+4}, v{RS}, v{RS+1}')
    A.i(f'v_cvt_pk_bf16_f32 v{RS+5}, v{RS+2}, v{RS+3}')
    A.i('s_cmp_eq_u64 vcc, 0')
    A.i(f's_cbranch_scc1 {Lok1}')
    A.i(f'v_max3_u32 v{vT0}, v{RC}, v{RC+1}, v{RC+2}')
    for k in range(3, 31, 2):
        A.i(f'v_max3_u32 v{vT0}, v{vT0}, v{RC+k}, v{RC+k+1}')
    A.i(f'v_max_u32 v{vT0}, v{vT0}, v{RC+31}')
    A.i(f'v_cmp_eq_u32 vcc, -1, v{vT0}')
    A.i('s_cmp_lg_u64 vcc, 0')
    A.i(f's_cbranch_scc1 {Lp1}')
    A.i(f'v_min_u32 v{RS+4}, -2, v{RS+4}')
    A.i(f'v_min_u32 v{RS+5}, -2, v{RS+5}')
    A.label(Lok1)
    A.i('s_mov_b64 exec, 0xffffffff')
    A.i(f'buffer_store_dwordx2 {vr(RS+4,2)}, v{vX2}, {WSR}, s{sMC} offen')
    A.i('s_mov_b64 exec, -1')
    A.label(Lh2)
    pre_step()
    A.i(f's_lshl_b32 s{sT0}, s{sW}, 12')
    A.i(f'v_add_u32 v{vT1}, s{sT0}, v{vL2}')
    A.i(f's_add_u32 s{sT0}, s{sT0}, s{sMC}')
    HB = RA + 16
    Lp2 = A.newlabel('CHp2')
    A.label(Lp2)
    for i in range(4):
        A.i(f'buffer_load_dwordx4 {vr(HB+4*i,4)}, v1, {WSR}, s{sT0} offen offset:{i*1024} sc1')
    for i in range(4):
        A.i(f's_waitcnt vmcnt({3-i})')
        A.i(f'ds_write_b128 v{vT1}, {vr(HB+4*i,4)} offset:{i*1024}')
        if i == 0:
            A.i(f'v_max3_u32 v{vT0}, v{HB}, v{HB+1}, v{HB+2}')
            A.i(f'v_max_u32 v{vT0}, v{vT0}, v{HB+3}')
        else:
            A.i(f'v_max3_u32 v{vT0}, v{vT0}, v{HB+4*i}, v{HB+4*i+1}')
            A.i(f'v_max3_u32 v{vT0}, v{vT0}, v{HB+4*i+2}, v{HB+4*i+3}')
    A.i(f'v_cmp_eq_u32 vcc, -1, v{vT0}')
    A.i('s_cmp_lg_u64 vcc, 0')
    A.i(f's_cbranch_scc1 {Lp2}')
    A.i(f's_branch {Lnext}')
    A.label(Lio)
    A.i(f'ds_read_b128 {vr(IMG,4)}, v{vX1}')
    A.i(f'ds_read_b128 {vr(IMG+4,4)}, v{vX2}')
    A.i(f'buffer_store_dwordx4 {vr(PK,4)}, v{vPST}, {WSR}, s{sPC} offen')
    A.i(f'buffer_store_dwordx4 {vr(PK+4,4)}, v{vPST}, {WSR}, s{sPC} offen offset:128')
    A.i(f's_lshl_b32 s{sT0}, s{sS}, 16')
    A.i(f's_add_u32 s{sT0}, s{sT0}, s{sOUT}')
    A.i('s_waitcnt lgkmcnt(0)')
    A.i(f'buffer_store_dwordx4 {vr(IMG,4)}, v1, {WSR}, s{sT0} offen sc1')
    A.i(f'buffer_store_dwordx4 {vr(IMG+4,4)}, v1, {WSR}, s{sT0} offen offset:1024 sc1')
    A.i(f's_add_u32 s{sT2}, s{sS}, 1')
    io_fetch(sT2)
    pre_step()
    A.label(Lnext)
    A.i(f's_mov_b32 s{sT0}, s{sPC}')
    A.i(f's_mov_b32 s{sPC}, s{sPP}')
    A.i(f's_mov_b32 s{sPP}, s{sT0}')
    A.i(f's_mov_b32 s{sT0}, s{sMC}')
    A.i(f's_mov_b32 s{sMC}, s{sMR}')
    A.i(f's_mov_b32 s{sMR}, s{sM3}')
    A.i(f's_mov_b32 s{sM3}, s{sT0}')
    A.i(f's_add_u32 s{sS}, s{sS}, 1')
    A.wl_all()
    A.i(f's_branch {Ltop}')
    A.label(Lfin)
    A.i(f's_cmp_lt_u32 s{sW}, 2')
    A.i(f's_cbranch_scc1 {end}')
    A.i(f'ds_read_b128 {vr(IMG,4)}, v{vX1}')
    A.i(f'ds_read_b128 {vr(IMG+4,4)}, v{vX2}')
    A.i(f's_lshl_b32 s{sT0}, s{sS}, 16')
    A.i(f's_add_u32 s{sT0}, s{sT0}, s{sOUT}')
    A.i('s_waitcnt lgkmcnt(0)')
    A.i(f'buffer_store_dwordx4 {vr(IMG,4)}, v1, {WSR}, s{sT0} offen sc1')
    A.i(f'buffer_store_dwordx4 {vr(IMG+4,4)}, v1, {WSR}, s{sT0} offen offset:1024 sc1')
    if sy.on:
        A.i('s_waitcnt vmcnt(0)')
        A.i(f's_add_u32 s{sT0}, s{sS}, 1')
        A.i(f'v_mov_b32 v{vT0}, s{sT0}')
        A.i('s_mov_b64 exec, 1')
        A.i(f'buffer_store_dword v{vT0}, off, {WSR}, s{sFLG} sc1')
        A.i('s_mov_b64 exec, -1')
    A.i(f's_branch {end}')
```

```python
from asmdsl import *

H = 0x0000000
H2 = 0x0200000
X1 = 0x0400000
MOD = 0x0600000
FLAGS = 0x0610000
XP = 0x0700000
XM = 0x0780000
KM = 0x0800000
VM = 0x0C00000
KX = 0x1000000
VT = 0x2000000
OB = 0x3000000
PART = 0x4000000
GU = 0x5000000
WS_BYTES = 0x10000000

FL = 128
F_TICKET = FLAGS + 0 * FL
F_H = FLAGS + 16 * FL
F_KV = FLAGS + 80 * FL
F_CH = FLAGS + 144 * FL
F_QA = FLAGS + 208 * FL
F_WO = FLAGS + 272 * FL
F_R = FLAGS + 304 * FL
F_F1 = FLAGS + 320 * FL

P_X, P_MEM0, P_WQ, P_WK, P_WV, P_WO, P_SEG, P_BX, P_WG, P_WU, P_WD, P_C, P_WMOD, P_OUT, P_DBG, P_WS = [4 + 2 * i for i in range(16)]
S_WS, S_A, S_B, S_C, S_D = 36, 40, 44, 48, 52
sR, sW, sS = 56, 57, 58
sT0, sT1, sT2, sT3, sT4, sT5 = 59, 60, 61, 62, 63, 64
SELLO, SELHI = 66, 67
sHIM = 68
sLOG2E = 69
sSCALE = 70

LOG2E = 0x3fb8aa3b
SCALE = 0x3db504f3


def srd(A, s, ptr, nbytes):
    A.i(f's_mov_b32 s{s}, s{ptr}')
    A.i(f's_and_b32 s{s+1}, s{ptr+1}, 0xffff')
    A.i(f's_mov_b32 s{s+2}, {nbytes:#x}')
    A.i(f's_mov_b32 s{s+3}, 0x20000')


def prologue(A, nwg, end_label):
    A.i(f's_cmp_ge_u32 s2, {nwg}')
    A.i(f's_cbranch_scc1 {end_label}')
    A.i('s_load_dwordx16 s[4:19], s[0:1], 0')
    A.i('s_load_dwordx16 s[20:35], s[0:1], 64')
    A.i('v_lshrrev_b32 v1, 6, v0')
    A.i(f'v_readfirstlane_b32 s{sW}, v1')
    A.i('v_and_b32 v0, 63, v0')
    A.i('v_lshlrev_b32 v1, 4, v0')
    A.i(f's_mov_b32 s{SELLO}, 0x05040100')
    A.i(f's_mov_b32 s{SELHI}, 0x07060302')
    A.i(f's_mov_b32 s{sHIM}, 0xffff0000')
    A.i(f's_mov_b32 s{sLOG2E}, {LOG2E:#x}')
    A.i(f's_mov_b32 s{sSCALE}, {SCALE:#x}')
    A.i('s_waitcnt lgkmcnt(0)')
    srd(A, S_WS, P_WS, WS_BYTES)
    for s in (S_A, S_B, S_C, S_D):
        srd(A, s, P_WS, WS_BYTES)


def unpack(A, lo, hi, src):
    A.i(f'v_lshlrev_b32 v{lo}, 16, v{src}')
    A.i(f'v_and_b32 v{hi}, s{sHIM}, v{src}')


def round2(A, a, b, tmp):
    A.i(f'v_cvt_pk_bf16_f32 v{tmp}, v{a}, v{b}')
    A.i(f'v_lshlrev_b32 v{a}, 16, v{tmp}')
    A.i(f'v_and_b32 v{b}, s{sHIM}, v{tmp}')


def move_to(A, dst_u, src_v):
    if dst_u >= 256:
        A.i(f'v_accvgpr_write_b32 a{dst_u-256}, v{src_v}')
    elif dst_u != src_v:
        A.i(f'v_mov_b32 v{dst_u}, v{src_v}')


def perm_to(A, dst_u, hi_src, lo_src, sel, tmp):
    if dst_u >= 256:
        A.i(f'v_perm_b32 v{tmp}, v{hi_src}, v{lo_src}, {sel}')
        A.i(f'v_accvgpr_write_b32 a{dst_u-256}, v{tmp}')
    else:
        A.i(f'v_perm_b32 v{dst_u}, v{hi_src}, v{lo_src}, {sel}')


def wave_sum(A, v, sdst):
    for sh in (1, 2, 4, 8):
        A.i(f'v_add_f32_dpp v{v}, v{v}, v{v} row_shr:{sh} row_mask:0xf bank_mask:0xf bound_ctrl:0')
    A.i(f'v_add_f32_dpp v{v}, v{v}, v{v} row_bcast:15 row_mask:0xa bank_mask:0xf')
    A.i(f'v_add_f32_dpp v{v}, v{v}, v{v} row_bcast:31 row_mask:0xc bank_mask:0xf')
    A.i(f'v_readlane_b32 s{sdst}, v{v}, 63')


class Sync:
    def __init__(self, enabled):
        self.on = enabled

    def publish(self, A, vaddr, vtmp, sval):
        if not self.on:
            return
        A.i(f'v_mov_b32 v{vtmp}, s{sval}')
        A.i('s_mov_b64 exec, 1')
        A.i(f'buffer_store_dword v{vtmp}, v{vaddr}, s[{S_WS}:{S_WS+3}], 0 offen sc1')
        A.i('s_mov_b64 exec, -1')

    def wait(self, A, vaddr, vtmp, sneed, sleep=1):
        if not self.on:
            return
        L = A.newlabel('Lw')
        L2 = A.newlabel('Lwd')
        A.label(L)
        A.i(f'buffer_load_dword v{vtmp}, v{vaddr}, s[{S_WS}:{S_WS+3}], 0 offen sc1')
        A.i('s_waitcnt vmcnt(0)')
        A.i(f'v_cmp_le_u32 vcc, s{sneed}, v{vtmp}')
        A.i('s_cmp_eq_u64 vcc, exec')
        A.i(f's_cbranch_scc1 {L2}')
        if sleep:
            A.i(f's_sleep {sleep}')
        A.i(f's_branch {L}')
        A.label(L2)
```

```python
from common import *

WSR = f's[{S_WS}:{S_WS+3}]'


def load_weights(A, units, tmp0, batch_regs, ptmp):
    batches = []
    cur, used = [], 0
    for u in units:
        w = u[5]
        if used + 2 * w > batch_regs or len(cur) >= 15:
            batches.append(cur)
            cur, used = [], 0
        cur.append((u, used))
        used += 2 * w
    if cur:
        batches.append(cur)

    def issue(bi):
        base = tmp0 + (bi & 1) * batch_regs
        for (srd_s, voff, sbase, off0, off1, w, outs), at in batches[bi]:
            for k, off in enumerate((off0, off1)):
                A.i(f's_add_u32 s{sT0}, s{sbase}, {off:#x}')
                mn = {1: 'buffer_load_dword', 2: 'buffer_load_dwordx2', 4: 'buffer_load_dwordx4'}[w]
                A.i(f'{mn} {vr(base + at + k * w, w)}, v{voff}, s[{srd_s}:{srd_s+3}], s{sT0} offen')

    issue(0)
    for bi in range(len(batches)):
        if bi + 1 < len(batches):
            issue(bi + 1)
            A.i(f's_waitcnt vmcnt({2 * len(batches[bi + 1])})')
        else:
            A.i('s_waitcnt vmcnt(0)')
        base = tmp0 + (bi & 1) * batch_regs
        for (srd_s, voff, sbase, off0, off1, w, outs), at in batches[bi]:
            for n, (dst, dw, sel) in enumerate(outs):
                if callable(dst):
                    dst(base + at + w + dw, base + at + dw, sel)
                else:
                    perm_to(A, dst, base + at + w + dw, base + at + dw, sel, ptmp + (n & 1))


def role_init(A, end):
    Lfill = A.newlabel('Lfill')
    A.i(f's_cmp_ge_u32 s2, 48')
    A.i(f's_cbranch_scc1 {Lfill}')
    srd(A, S_A, P_C, 1024)
    srd(A, S_B, P_WMOD, 512 * 6144)
    A.i(f's_lshl_b32 s{sT0}, s{sW}, 6')
    A.i(f'v_add_u32 v2, s{sT0}, v0')
    A.i('v_and_b32 v3, 7, v2')
    A.i('v_lshrrev_b32 v4, 3, v2')
    A.i('v_lshlrev_b32 v5, 5, v4')
    A.i(f'buffer_load_dwordx4 v[8:11], v5, s[{S_A}:{S_A+3}], 0 offen')
    A.i(f'buffer_load_dwordx4 v[12:15], v5, s[{S_A}:{S_A+3}], 0 offen offset:16')
    A.i(f's_mov_b32 s{sT1}, {16*6144}')
    A.i(f'v_mul_lo_u32 v6, v4, s{sT1}')
    A.i('v_lshl_add_u32 v6, v3, 4, v6')
    A.i(f's_lshl_b32 s{sT1}, s2, 7')
    for i in range(16):
        A.i(f's_add_u32 s{sT0}, s{sT1}, {i*6144}')
        A.i(f'buffer_load_dwordx4 v[{64+4*i}:{67+4*i}], v6, s[{S_B}:{S_B+3}], s{sT0} offen')
    A.i('s_waitcnt vmcnt(16)')
    for i in range(8):
        unpack(A, 16 + 2 * i, 17 + 2 * i, 8 + i)
    for i in range(16):
        A.i(f'v_mul_f32 v{32+i}, s{sLOG2E}, v{16+i}')
    for i in range(16):
        A.i(f'v_exp_f32 v{32+i}, -v{32+i}')
    for i in range(16):
        A.i(f'v_add_f32 v{32+i}, 1.0, v{32+i}')
    for i in range(16):
        A.i(f'v_rcp_f32 v{32+i}, v{32+i}')
    for i in range(16):
        A.i(f'v_mul_f32 v{16+i}, v{16+i}, v{32+i}')
    for i in range(8):
        round2(A, 16 + 2 * i, 17 + 2 * i, 48)
    for j in range(8):
        A.i(f'v_mov_b32 v{32+j}, 0')
    for i in range(16):
        A.i(f's_waitcnt vmcnt({15-i})')
        for d in range(4):
            unpack(A, 48, 49, 64 + 4 * i + d)
            A.i(f'v_fmac_f32 v{32+2*d}, v{16+i}, v48')
            A.i(f'v_fmac_f32 v{33+2*d}, v{16+i}, v49')
    A.i('v_lshlrev_b32 v5, 8, v4')
    A.i('v_lshl_add_u32 v5, v3, 5, v5')
    A.i('ds_write_b128 v5, v[32:35]')
    A.i('ds_write_b128 v5, v[36:39] offset:16')
    A.i('s_waitcnt lgkmcnt(0)')
    A.i('s_barrier')
    A.i(f's_cmp_lg_u32 s{sW}, 0')
    A.i(f's_cbranch_scc1 {end}')
    A.i('v_lshlrev_b32 v5, 2, v0')
    for i in range(32):
        A.i(f'ds_read_b32 v{64+i}, v5 offset:{i*256}')
        if i == 14 or i == 29:
            A.i('s_waitcnt lgkmcnt(0)')
    A.i('s_waitcnt lgkmcnt(0)')
    for st in (16, 8, 4, 2, 1):
        for i in range(st):
            A.i(f'v_add_f32 v{64+i}, v{64+i}, v{64+st+i}')
    A.i('v_cvt_pk_bf16_f32 v64, v64, v64')
    A.i('v_lshlrev_b32 v64, 16, v64')
    A.i(f's_lshl_b32 s{sT0}, s2, 8')
    A.i(f's_add_u32 s{sT0}, s{sT0}, {MOD:#x}')
    A.i(f'buffer_store_dword v64, v5, {WSR}, s{sT0} offen')
    A.i(f's_branch {end}')
    A.label(Lfill)
    A.i(f's_sub_u32 s{sT0}, s2, 48')
    A.i(f's_lshl_b32 s{sT1}, s{sT0}, 14')
    A.i(f's_add_u32 s{sT2}, s{sT1}, {XP:#x}')
    A.i(f's_add_u32 s{sT3}, s{sT1}, {FLAGS - 34*16384:#x}')
    A.i(f's_cmp_lt_u32 s{sT0}, 34')
    A.i(f's_cselect_b32 s{sT2}, s{sT2}, s{sT3}')
    A.i(f's_cselect_b32 s{sT3}, -1, 0')
    A.i(f's_lshl_b32 s{sT1}, s{sW}, 12')
    A.i(f's_add_u32 s{sT2}, s{sT2}, s{sT1}')
    for i in range(4):
        A.i(f'v_mov_b32 v{4+i}, s{sT3}')
    for i in range(4):
        A.i(f'buffer_store_dwordx4 v[4:7], v1, {WSR}, s{sT2} offen offset:{i*1024}')
    A.i(f's_branch {end}')


def load_mod8(A, dst, which):
    A.i(f's_mov_b32 s{sT0}, {MOD + which*2048:#x}')
    A.i(f'buffer_load_dwordx4 v[{dst}:{dst+3}], v2, {WSR}, s{sT0} offen sc1')
    A.i(f'buffer_load_dwordx4 v[{dst+4}:{dst+7}], v2, {WSR}, s{sT0} offen offset:16 sc1')


def one_plus(A, c, tmp):
    for j in range(8):
        A.i(f'v_add_f32 v{c+j}, 1.0, v{c+j}')
    for j in range(4):
        round2(A, c + 2 * j, c + 2 * j + 1, tmp)


def ln_core(A, x, t, c1, sh, out):
    A.i(f'v_add_f32 v{t}, v{x}, v{x+1}')
    A.i(f'v_add_f32 v{t+1}, v{x+2}, v{x+3}')
    A.i(f'v_add_f32 v{t+2}, v{x+4}, v{x+5}')
    A.i(f'v_add_f32 v{t+3}, v{x+6}, v{x+7}')
    A.i(f'v_add_f32 v{t}, v{t}, v{t+1}')
    A.i(f'v_add_f32 v{t+2}, v{t+2}, v{t+3}')
    A.i(f'v_add_f32 v{t}, v{t}, v{t+2}')
    wave_sum(A, t, sT4)
    A.i(f'v_mov_b32 v{t+8}, 0x3b000000')
    A.i(f'v_mul_f32 v{t+9}, s{sT4}, v{t+8}')
    for j in range(8):
        A.i(f'v_sub_f32 v{t+j}, v{x+j}, v{t+9}')
    A.i(f'v_mul_f32 v{t}, v{t}, v{t}')
    A.i(f'v_mul_f32 v{t+1}, v{t+1}, v{t+1}')
    for j in range(2, 8):
        A.i(f'v_fmac_f32 v{t+(j&1)}, v{t+j}, v{t+j}')
    A.i(f'v_add_f32 v{t}, v{t}, v{t+1}')
    wave_sum(A, t, sT4)
    A.i(f'v_mul_f32 v{t+8}, s{sT4}, v{t+8}')
    round2(A, t + 8, t + 9, t)
    A.i(f'v_add_f32 v{t+8}, 0x3727c5ac, v{t+8}')
    A.i(f'v_cvt_pk_bf16_f32 v{t+8}, v{t+8}, v{t+8}')
    A.i(f'v_lshlrev_b32 v{t+8}, 16, v{t+8}')
    A.i(f'v_sqrt_f32 v{t+8}, v{t+8}')
    A.i(f'v_cvt_pk_bf16_f32 v{t+8}, v{t+8}, v{t+8}')
    A.i(f'v_lshlrev_b32 v{t+8}, 16, v{t+8}')
    A.i(f'v_rcp_f32 v{t+8}, v{t+8}')
    for j in range(8):
        A.i(f'v_sub_f32 v{x+j}, v{x+j}, v{t+9}')
    for j in range(4):
        round2(A, x + 2 * j, x + 2 * j + 1, t + j)
    for j in range(8):
        A.i(f'v_mul_f32 v{x+j}, v{x+j}, v{t+8}')
    for j in range(4):
        round2(A, x + 2 * j, x + 2 * j + 1, t + j)
    for j in range(8):
        A.i(f'v_mul_f32 v{x+j}, v{x+j}, v{c1+j}')
    for j in range(4):
        round2(A, x + 2 * j, x + 2 * j + 1, t + j)
    for j in range(8):
        A.i(f'v_add_f32 v{x+j}, v{x+j}, v{sh+j}')
    for j in range(4):
        A.i(f'v_cvt_pk_bf16_f32 v{out+j}, v{x+2*j}, v{x+2*j+1}')


def role_ln1(A, sy, sidx):
    srd(A, S_A, P_X, 2048 * 1024)
    A.i('v_lshlrev_b32 v2, 5, v0')
    A.i(f's_lshl_b32 s{sT1}, s{sidx}, 2')
    A.i(f's_add_u32 s{sT1}, s{sT1}, s{sW}')
    A.i(f's_lshl_b32 s{sT1}, s{sT1}, 10')
    load_mod8(A, 8, 1)
    load_mod8(A, 16, 0)
    for q in range(8):
        A.i(f's_add_u32 s{sT0}, s{sT1}, {q*256*1024:#x}')
        A.i(f'buffer_load_dwordx4 v[{64+4*q}:{67+4*q}], v1, s[{S_A}:{S_A+3}], s{sT0} offen')
    A.i(f's_lshl_b32 s{sT0}, s{sidx}, 7')
    A.i(f's_add_u32 s{sT0}, s{sT0}, {F_H:#x}')
    A.i(f'v_mov_b32 v3, s{sT0}')
    A.i('s_waitcnt vmcnt(8)')
    one_plus(A, 8, 4)
    for q in range(8):
        if q == 0:
            A.i('s_waitcnt vmcnt(7)')
        elif q == 1:
            A.i('s_waitcnt vmcnt(0)')
        for j in range(4):
            unpack(A, 24 + 2 * j, 25 + 2 * j, 64 + 4 * q + j)
        ln_core(A, 24, 32, 8, 16, 44 + 4 * (q & 1))
        A.i(f's_add_u32 s{sT0}, s{sT1}, {H + q*256*1024:#x}')
        A.i(f'buffer_store_dwordx4 v[{44+4*(q&1)}:{47+4*(q&1)}], v1, {WSR}, s{sT0} offen sc1')
        if sy.on and q in (0, 3, 7):
            A.i('s_waitcnt vmcnt(0)')
            A.i('s_barrier')
            Ls = A.newlabel('Lln')
            A.i(f's_cmp_lg_u32 s{sW}, 0')
            A.i(f's_cbranch_scc1 {Ls}')
            A.i(f's_mov_b32 s{sT0}, {q+1}')
            sy.publish(A, 3, 4, sT0)
            A.label(Ls)


XB0 = 0
XBS = 32768


def t1_setup(A, vdma, vrd, swap_odd=False):
    A.i(f's_and_b32 s{sT0}, s{sW}, 1')
    A.i(f's_lshl_b32 s{sT1}, s{sT0}, 7')
    A.i(f'v_xor_b32 v{vdma}, s{sT1}, v1')
    A.i(f'v_and_b32 v{vrd+7}, 15, v0')
    A.i(f'v_lshrrev_b32 v{vrd+6}, 4, v0')
    A.i(f'v_xor_b32 v{vrd+6}, v{vrd+6}, v{vrd+7}')
    A.i(f'v_lshlrev_b32 v{vrd+6}, 4, v{vrd+6}')
    A.i(f'v_lshl_or_b32 v{vrd+7}, v{vrd+7}, 10, v{vrd+6}')
    if swap_odd:
        A.i(f's_lshl_b32 s{sT1}, s{sT0}, 14')
        A.i(f'v_xor_b32 v{vrd+7}, s{sT1}, v{vrd+7}')
    for k in range(4):
        A.i(f'v_xor_b32 v{vrd+k}, {k*64}, v{vrd+7}')
    for k in range(3, -1, -1):
        A.i(f'v_xor_b32 v{vrd+4+k}, 0x4000, v{vrd+k}')


def t1_dma(A, vdma, vtmp, ssrc, sbuf):
    A.i(f's_lshl_b32 s{sT0}, s{sW}, 13')
    A.i(f's_add_u32 s{sT1}, s{sT0}, s{ssrc}')
    A.i(f's_add_u32 s{sT0}, s{sT0}, s{sbuf}')
    A.i(f's_mov_b32 m0, s{sT0}')
    for i in range(8):
        if i == 4:
            A.i(f's_add_u32 s{sT0}, s{sT0}, 4096')
            A.i(f's_add_u32 s{sT1}, s{sT1}, 4096')
            A.i(f's_mov_b32 m0, s{sT0}')
        A.i(f'v_xor_b32 v{vtmp+(i&1)}, {i*16}, v{vdma}')
        A.i(f'buffer_load_dwordx4 v{vtmp+(i&1)}, {WSR}, s{sT1} offen offset:{(i&3)*1024} sc1 lds')


def t1_compute(A, vrd, vabuf, xf, wbase, dbase, swapped, mid=None):
    def rd(ks):
        for tt in range(2):
            A.i(f'ds_read_b128 {vr(xf + (ks & 3) * 8 + tt * 4, 4)}, v{vabuf + tt*4 + (ks & 3)} offset:{(ks >> 2) * 256}')
    for ks in range(3):
        rd(ks)
    for ks in range(16):
        if ks + 3 < 16:
            rd(ks + 3)
            A.i('s_waitcnt lgkmcnt(6)')
        else:
            A.i(f's_waitcnt lgkmcnt({2 * (15 - ks)})')
        for t in range(2):
            for tt in range(2):
                d = ur(dbase + (t * 2 + tt) * 4, 4)
                w = ur(wbase + (ks * 2 + t) * 4, 4)
                x = vr(xf + (ks & 3) * 8 + tt * 4, 4)
                c = '0' if ks == 0 else d
                if swapped:
                    A.i(f'v_mfma_f32_16x16x32_bf16 {d}, {w}, {x}, {c}')
                else:
                    A.i(f'v_mfma_f32_16x16x32_bf16 {d}, {x}, {w}, {c}')
        if mid is not None:
            mid(ks)


def paired_units(srd_s, voff, sbase, rs, nks, wbase):
    units = []
    for ks in range(nks):
        for i in range(4):
            r0 = 32 * ks + 2 * i
            units.append((srd_s, voff, sbase, r0 * rs, (r0 + 1) * rs, 1,
                          [(wbase + (ks * 2 + 0) * 4 + i, 0, f's{SELLO}'), (wbase + (ks * 2 + 1) * 4 + i, 0, f's{SELHI}')]))
    return units


def lane_woff(A, dst, rs, colbytes, tmp):
    A.i(f'v_lshrrev_b32 v{tmp}, 4, v0')
    A.i(f's_mov_b32 s{sT0}, {8*rs}')
    A.i(f'v_mul_lo_u32 v{dst}, v{tmp}, s{sT0}')
    A.i(f'v_and_b32 v{tmp}, 15, v0')
    A.i(f'v_mul_u32_u24 v{tmp}, {colbytes}, v{tmp}')
    A.i(f'v_add_u32 v{dst}, v{dst}, v{tmp}')


def h_flag_addr(A, vdst, sseg, stmp):
    A.i(f's_and_b32 s{stmp}, s{sseg}, 7')
    A.i(f's_lshl_b32 s{stmp}, s{stmp}, 10')
    A.i(f's_add_u32 s{stmp}, s{stmp}, {F_H:#x}')
    A.i(f'v_and_b32 v{vdst}, 7, v0')
    A.i(f'v_lshlrev_b32 v{vdst}, 7, v{vdst}')
    A.i(f'v_add_u32 v{vdst}, s{stmp}, v{vdst}')


def t1_loop(A, sy, name, seg0, segstep, src_base, wait_src, body, vdma, vrd, vab, vtmp, vflag):
    Ltop, Lhave, Lnopf, Lend = (A.newlabel(name + x) for x in ('top', 'have', 'nopf', 'end'))
    A.i(f's_mov_b32 s72, {XB0}')
    A.i('s_mov_b32 s73, 0')
    A.label(Ltop)
    A.i('s_cmp_lg_u32 s73, 0')
    A.i(f's_cbranch_scc1 {Lhave}')
    wait_src(sS, True, None)
    A.i(f's_lshl_b32 s75, s{sS}, 15')
    A.i(f's_add_u32 s75, s75, {src_base:#x}')
    t1_dma(A, vdma, vtmp, 75, 72)
    A.label(Lhave)
    A.i('s_waitcnt vmcnt(0)')
    A.i('s_barrier')
    for k in range(8):
        A.i(f'v_add_u32 v{vab+k}, s72, v{vrd+k}')
    A.i('s_mov_b32 s73, 0')
    A.i(f's_add_u32 s74, s{sS}, {segstep}')
    A.i('s_cmp_ge_u32 s74, 64')
    A.i(f's_cbranch_scc1 {Lnopf}')
    wait_src(74, False, Lnopf)
    A.i('s_lshl_b32 s75, s74, 15')
    A.i(f's_add_u32 s75, s75, {src_base:#x}')
    A.i(f's_xor_b32 s76, s72, {XBS}')
    t1_dma(A, vdma, vtmp, 75, 76)
    A.i('s_mov_b32 s73, 1')
    A.label(Lnopf)
    body()
    if sy.on:
        A.i('s_waitcnt vmcnt(0)')
    A.i('s_barrier')
    if sy.on:
        Ls = A.newlabel(name + 'pub')
        A.i(f's_cmp_lg_u32 s{sW}, 0')
        A.i(f's_cbranch_scc1 {Ls}')
        A.i(f's_add_u32 s{sT0}, s{sS}, 1')
        sy.publish(A, vflag, vtmp, sT0)
        A.label(Ls)
    A.i(f's_xor_b32 s72, s72, {XBS}')
    A.i(f's_add_u32 s{sS}, s{sS}, {segstep}')
    A.i(f's_cmp_lt_u32 s{sS}, 64')
    A.i(f's_cbranch_scc1 {Ltop}')
    A.label(Lend)


def flag_test(A, sy, vaddr, vtmp, sneed, blocking, Lnot):
    if not sy.on:
        return
    if blocking:
        sy.wait(A, vaddr, vtmp, sneed)
    else:
        A.i(f'buffer_load_dword v{vtmp}, v{vaddr}, {WSR}, 0 offen sc1')
        A.i('s_waitcnt vmcnt(0)')
        A.i(f'v_cmp_le_u32 vcc, s{sneed}, v{vtmp}')
        A.i('s_cmp_eq_u64 vcc, exec')
        A.i(f's_cbranch_scc0 {Lnot}')


def make_wait_h(A, sy, va, vtmp):
    def wait_src(sseg, blocking, Lnot):
        if not sy.on:
            return
        h_flag_addr(A, va, sseg, sT0)
        A.i(f's_lshr_b32 s{sT2}, s{sseg}, 3')
        A.i(f's_add_u32 s{sT2}, s{sT2}, 1')
        flag_test(A, sy, va, vtmp, sT2, blocking, Lnot)
    return wait_src


def role_kv(A, sy, is_v):
    name = 'V' if is_v else 'K'
    srd(A, S_A, P_WV if is_v else P_WK, 512 * 8192)
    VDMA, VRD, VAB, VT_, VFL, VST, VWA = 2, 4, 12, 20, 22, 23, 24
    XF, D, PK = 32, 64, 80
    lane_woff(A, 3, 8192, 4, 4)
    A.i(f's_lshl_b32 s77, s{sR}, 8')
    A.i(f's_lshl_b32 s{sT0}, s{sW}, 6')
    A.i(f's_add_u32 s77, s77, s{sT0}')
    load_weights(A, paired_units(S_A, 3, 77, 8192, 16, 256), 128, 32, 4)
    t1_setup(A, VDMA, VRD, swap_odd=is_v)
    A.i(f's_lshl_b32 s{sT0}, s{sR}, 7')
    A.i(f's_add_u32 s{sT0}, s{sT0}, {F_KV + (32*FL if is_v else 0):#x}')
    A.i(f'v_mov_b32 v{VFL}, s{sT0}')
    if is_v:
        A.i(f's_lshl_b32 s77, s{sR}, 13')
        A.i(f's_lshl_b32 s{sT0}, s{sW}, 11')
        A.i(f's_add_u32 s77, s77, s{sT0}')
        A.i(f's_add_u32 s77, s77, {VT:#x}')
        A.i(f'v_mov_b32 v{VST}, v1')
    else:
        A.i(f's_lshl_b32 s77, s{sR}, 13')
        A.i(f's_lshl_b32 s{sT0}, s{sW}, 11')
        A.i(f's_add_u32 s77, s77, s{sT0}')
        A.i(f's_add_u32 s77, s77, {KX:#x}')
        A.i(f'v_lshrrev_b32 v{VST}, 4, v0')
        A.i(f'v_lshlrev_b32 v{VST}, 9, v{VST}')
        A.i(f'v_and_b32 v{VT_}, 15, v0')
        A.i(f'v_lshl_add_u32 v{VST}, v{VT_}, 4, v{VST}')
    A.i(f's_mov_b32 s{sS}, 0')

    def body():
        t1_compute(A, VRD, VAB, XF, 256, D, swapped=not is_v)
        A.i(f's_lshl_b32 s{sT0}, s{sS}, 18')
        A.i(f's_add_u32 s{sT0}, s{sT0}, s77')
        if is_v:
            for t in range(2):
                for tt in range(2):
                    d = D + (t * 2 + tt) * 4
                    A.i(f'v_cvt_pk_bf16_f32 v{PK+t*4+tt*2}, v{d}, v{d+1}')
                    A.i(f'v_cvt_pk_bf16_f32 v{PK+t*4+tt*2+1}, v{d+2}, v{d+3}')
                A.i(f'buffer_store_dwordx4 v[{PK+t*4}:{PK+t*4+3}], v{VST}, {WSR}, s{sT0} offen offset:{t*1024} sc1')
        else:
            for tt in range(2):
                for r in range(4):
                    A.i(f'v_cvt_pk_bf16_f32 v{PK+tt*4+r}, v{D+tt*4+r}, v{D+(2+tt)*4+r}')
                A.i(f'buffer_store_dwordx4 v[{PK+tt*4}:{PK+tt*4+3}], v{VST}, {WSR}, s{sT0} offen offset:{tt*256} sc1')

    t1_loop(A, sy, name, 0, 1, H, make_wait_h(A, sy, VWA, VT_), body, VDMA, VRD, VAB, VT_, VFL)


def score_round(A, regs, tmp):
    for a, b in zip(regs[0::2], regs[1::2]):
        round2(A, a, b, tmp)
    for a in regs:
        A.i(f'v_mul_f32 v{a}, s{sSCALE}, v{a}')
    for a, b in zip(regs[0::2], regs[1::2]):
        round2(A, a, b, tmp)


def xlane(A, op, v, t):
    A.i(f'v_mov_b32 v{t}, v{v}')
    A.i(f'v_permlane32_swap_b32 v{v}, v{t}')
    A.i(f'{op} v{v}, v{v}, v{t}')
    A.i(f'v_mov_b32 v{t}, v{v}')
    A.i(f'v_permlane16_swap_b32 v{v}, v{t}')
    A.i(f'{op} v{v}, v{v}, v{t}')


QIMG = 65536


def role_qa(A, sy):
    srd(A, S_A, P_WQ, 512 * 8192)
    VDMA, VRD, VAB, VT_, VFL, VWA = 2, 4, 12, 20, 22, 24
    VQW, VQR, VKX, VKM, VVM, VOST, VFKV, VFCH = 23, 25, 26, 27, 28, 29, 30, 31
    XF, D, PK = 32, 64, 80
    KF, VF, QF, KMF, VMF = 96, 128, 144, 160, 176
    S1, S2, S0, PX, PY, PM, OD, TM = 184, 188, 192, 196, 200, 204, 208, 224
    sH = 78
    A.i(f's_lshr_b32 s{sH}, s{sR}, 1')
    lane_woff(A, 3, 8192, 4, 4)
    A.i(f's_lshl_b32 s77, s{sH}, 8')
    A.i(f's_lshl_b32 s{sT0}, s{sW}, 6')
    A.i(f's_add_u32 s77, s77, s{sT0}')
    load_weights(A, paired_units(S_A, 3, 77, 8192, 16, 256), 128, 32, 4)
    t1_setup(A, VDMA, VRD)
    A.i(f's_lshl_b32 s{sT0}, s{sR}, 7')
    A.i(f's_add_u32 s{sT0}, s{sT0}, {F_QA:#x}')
    A.i(f'v_mov_b32 v{VFL}, s{sT0}')
    A.i(f'v_lshrrev_b32 v{TM}, 4, v0')
    A.i(f'v_and_b32 v{TM+1}, 15, v0')
    A.i(f'v_lshlrev_b32 v{VKX}, 9, v{TM}')
    A.i(f'v_lshl_add_u32 v{VKX}, v{TM+1}, 4, v{VKX}')
    A.i(f's_lshl_b32 s{sT0}, s{sW}, 11')
    A.i(f's_add_u32 s{sT0}, s{sT0}, {QIMG}')
    A.i(f'v_add_u32 v{VQW}, s{sT0}, v{VKX}')
    A.i(f's_and_b32 s79, s{sW}, 1')
    A.i(f's_lshr_b32 s80, s{sW}, 1')
    A.i(f's_lshl_b32 s{sT0}, s79, 8')
    A.i(f's_add_u32 s{sT1}, s{sT0}, {QIMG}')
    A.i(f'v_add_u32 v{VQR}, s{sT1}, v{VKX}')
    A.i(f's_lshl_b32 s{sT1}, s80, 12')
    A.i(f's_add_u32 s{sT1}, s{sT1}, s{sT0}')
    A.i(f'v_add_u32 v{VOST}, s{sT1}, v{VKX}')
    A.i(f'v_lshrrev_b32 v{TM+2}, 2, v{TM+1}')
    A.i(f'v_and_b32 v{TM+3}, 1, v{TM+1}')
    A.i(f'v_lshl_add_u32 v{TM+2}, v{TM+2}, 1, v{TM+3}')
    A.i(f'v_lshlrev_b32 v{TM+2}, 8, v{TM+2}')
    A.i(f'v_lshl_add_u32 v{VKM}, v{TM}, 4, v{TM+2}')
    A.i(f'v_lshlrev_b32 v{VVM}, 4, v{TM+1}')
    A.i(f'v_lshl_add_u32 v{VVM}, v{TM}, 2, v{VVM}')
    A.i(f's_lshl_b32 s{sT0}, s80, 10')
    A.i(f'v_add_u32 v{VVM}, s{sT0}, v{VVM}')
    A.i(f'v_and_b32 v{TM+2}, 1, v0')
    A.i(f'v_lshlrev_b32 v{TM+2}, 12, v{TM+2}')
    A.i(f's_lshl_b32 s{sT0}, s{sH}, 7')
    A.i(f's_add_u32 s{sT1}, s{sT0}, {F_KV:#x}')
    A.i(f'v_add_u32 v{VFKV}, s{sT1}, v{TM+2}')
    A.i(f's_add_u32 s{sT1}, s{sT0}, {F_CH:#x}')
    A.i(f'v_add_u32 v{VFCH}, s{sT1}, v{TM+2}')
    A.i(f's_lshl_b32 s{sT0}, s79, 4')
    A.i(f'v_lshlrev_b32 v{TM+2}, 2, v{TM}')
    A.i(f'v_sub_u32 v{TM+2}, v{TM+1}, v{TM+2}')
    A.i(f'v_add_u32 v{TM+2}, s{sT0}, v{TM+2}')
    for i in range(8):
        A.i(f'v_cmp_le_i32 s[{84+2*i}:{85+2*i}], {16*(i>>2)+(i&3)}, v{TM+2}')
    A.i(f'v_mov_b32 v{PM+1}, 0')
    A.i(f's_and_b32 s{sS}, s{sR}, 1')

    def body():
        A.i(f's_add_u32 s{sT2}, s{sS}, 1')
        sy.wait(A, VFKV, VT_, sT2)
        A.i(f's_lshl_b32 s81, s{sS}, 18')
        A.i(f's_lshl_b32 s{sT0}, s{sH}, 13')
        A.i(f's_add_u32 s81, s81, s{sT0}')
        A.i(f's_add_u32 s{sT0}, s81, {KX:#x}')
        A.i(f's_add_u32 s{sT1}, s{sT0}, 4096')
        for kt in range(2):
            for ks in range(4):
                so = sT0 if ks < 2 else sT1
                A.i(f'buffer_load_dwordx4 {vr(KF+(kt*4+ks)*4,4)}, v{VKX}, {WSR}, s{so} offen offset:{(ks&1)*2048+kt*256} sc1')
        A.i(f's_lshl_b32 s{sT0}, s80, 12')
        A.i(f's_add_u32 s{sT0}, s{sT0}, s81')
        A.i(f's_add_u32 s{sT0}, s{sT0}, {VT:#x}')
        for i in range(4):
            A.i(f'buffer_load_dwordx4 {vr(VF+i*4,4)}, v1, {WSR}, s{sT0} offen offset:{i*1024} sc1')
        t1_compute(A, VRD, VAB, XF, 256, D, swapped=True)
        for tt in range(2):
            for r in range(4):
                A.i(f'v_cvt_pk_bf16_f32 v{PK+tt*4+r}, v{D+tt*4+r}, v{D+(2+tt)*4+r}')
            A.i(f'ds_write_b128 v{VQW}, v[{PK+tt*4}:{PK+tt*4+3}] offset:{tt*256}')
        A.i('s_waitcnt lgkmcnt(0)')
        A.i('s_barrier')
        for ks in range(4):
            A.i(f'ds_read_b128 {vr(QF+ks*4,4)}, v{VQR} offset:{ks*2048}')
        A.i('s_waitcnt vmcnt(0) lgkmcnt(0)')
        for kt, S in ((0, S1), (1, S2)):
            for ks in range(4):
                c = '0' if ks == 0 else vr(S, 4)
                A.i(f'v_mfma_f32_16x16x32_bf16 {vr(S,4)}, {vr(KF+(kt*4+ks)*4,4)}, {vr(QF+ks*4,4)}, {c}')
        xs = [S1 + i for i in range(8)]
        score_round(A, xs, TM)
        A.i(f'v_mov_b32 v{TM}, 0xce6e6b28')
        for i in range(8):
            A.i(f'v_cndmask_b32 v{S1+i}, v{TM}, v{S1+i}, s[{84+2*i}:{85+2*i}]')
        A.i(f'v_max3_f32 v{TM+2}, v{S1}, v{S1+1}, v{S1+2}')
        A.i(f'v_max3_f32 v{TM+2}, v{TM+2}, v{S1+3}, v{S1+4}')
        A.i(f'v_max3_f32 v{TM+2}, v{TM+2}, v{S1+5}, v{S1+6}')
        A.i(f'v_max_f32 v{TM+2}, v{TM+2}, v{S1+7}')
        A.i(f's_add_u32 s{sT2}, s{sS}, 1')
        sy.wait(A, VFCH, VT_, sT2)
        A.i(f's_lshr_b32 s{sT0}, s81, 2')
        A.i(f's_add_u32 s{sT1}, s{sT0}, {VM:#x}')
        A.i(f's_add_u32 s{sT0}, s{sT0}, {KM:#x}')
        for ks in range(4):
            A.i(f'buffer_load_dwordx4 {vr(KMF+ks*4,4)}, v{VKM}, {WSR}, s{sT0} offen offset:{ks*64} sc1')
        for i in range(4):
            A.i(f'buffer_load_dword v{VMF+2*i}, v{VVM}, {WSR}, s{sT1} offen offset:{i*256} sc1')
            A.i(f'v_mov_b32 v{VMF+2*i+1}, 0')
        for ks in range(4):
            A.i(f's_waitcnt vmcnt({7-ks})')
            c = '0' if ks == 0 else vr(S0, 4)
            A.i(f'v_mfma_f32_16x16x32_bf16 {vr(S0,4)}, {vr(KMF+ks*4,4)}, {vr(QF+ks*4,4)}, {c}')
        score_round(A, [S0, S0 + 1], TM)
        A.i(f'v_max3_f32 v{TM+2}, v{TM+2}, v{S0}, v{S0+1}')
        xlane(A, 'v_max_f32', TM + 2, TM + 3)
        vals = xs + [S0, S0 + 1]
        A.i(f'v_mul_f32 v{TM+2}, s{sLOG2E}, v{TM+2}')
        for a in vals:
            A.i(f'v_fma_f32 v{a}, v{a}, s{sLOG2E}, -v{TM+2}')
        for a in vals:
            A.i(f'v_exp_f32 v{a}, v{a}')
        A.i(f'v_add_f32 v{TM+2}, v{vals[0]}, v{vals[1]}')
        A.i(f'v_add_f32 v{TM+4}, v{vals[2]}, v{vals[3]}')
        for k in range(4, 10, 2):
            A.i(f'v_add_f32 v{TM+2}, v{TM+2}, v{vals[k]}')
            A.i(f'v_add_f32 v{TM+4}, v{TM+4}, v{vals[k+1]}')
        A.i(f'v_add_f32 v{TM+2}, v{TM+2}, v{TM+4}')
        xlane(A, 'v_add_f32', TM + 2, TM + 3)
        A.i(f'v_rcp_f32 v{TM+2}, v{TM+2}')
        for a in vals:
            A.i(f'v_mul_f32 v{a}, v{a}, v{TM+2}')
        for k in range(4):
            A.i(f'v_cvt_pk_bf16_f32 v{PX+k}, v{S1+2*k}, v{S1+2*k+1}')
            A.i(f'v_cvt_pk_bf16_f32 v{PY+(k^2)}, v{S1+2*k}, v{S1+2*k+1}')
        A.i(f'v_cvt_pk_bf16_f32 v{PM}, v{S0}, v{S0+1}')
        A.i('s_waitcnt vmcnt(0)')
        for i in range(4):
            p = PY if (i >> 1) else PX
            A.i(f'v_mfma_f32_16x16x32_bf16 {vr(OD+4*i,4)}, {vr(VF+4*i,4)}, {vr(p,4)}, 0')
        for i in range(4):
            A.i(f'v_mfma_f32_16x16x16_bf16 {vr(OD+4*i,4)}, {vr(VMF+2*i,2)}, {vr(PM,2)}, {vr(OD+4*i,4)}')
        A.i(f's_add_u32 s{sT0}, s81, {OB:#x}')
        for u in range(2):
            for r in range(4):
                A.i(f'v_cvt_pk_bf16_f32 v{PK+u*4+r}, v{OD+8*u+r}, v{OD+8*u+4+r}')
            A.i(f'buffer_store_dwordx4 v[{PK+u*4}:{PK+u*4+3}], v{VOST}, {WSR}, s{sT0} offen offset:{u*2048} sc1')

    t1_loop(A, sy, 'QA', 0, 2, H, make_wait_h(A, sy, VWA, VT_), body, VDMA, VRD, VAB, VT_, VFL)


def natural_units(srd_s, voff, sbase, rs, nks, ntiles, wbase, vsel, tile_stride=32, tile_index=None):
    units = []
    for ks in range(nks):
        for t in range(ntiles):
            for i in range(4):
                r0 = 32 * ks + 2 * i
                idx = tile_index(ks, t) if tile_index else ks * ntiles + t
                units.append((srd_s, voff, sbase, r0 * rs + t * tile_stride, (r0 + 1) * rs + t * tile_stride, 1,
                              [(wbase + idx * 4 + i, 0, f'v{vsel}')]))
    return units


def natural_setup(A, voff, vsel, rs, tmp):
    A.i(f'v_lshrrev_b32 v{tmp}, 4, v0')
    A.i(f's_mov_b32 s{sT0}, {8*rs}')
    A.i(f'v_mul_lo_u32 v{voff}, v{tmp}, s{sT0}')
    A.i(f'v_and_b32 v{tmp}, 14, v0')
    A.i(f'v_lshl_add_u32 v{voff}, v{tmp}, 1, v{voff}')
    A.i(f'v_and_b32 v{tmp}, 1, v0')
    A.i(f'v_cmp_eq_u32 vcc, 1, v{tmp}')
    A.i(f'v_mov_b32 v{vsel}, s{SELLO}')
    A.i(f'v_mov_b32 v{tmp}, s{SELHI}')
    A.i(f'v_cndmask_b32 v{vsel}, v{vsel}, v{tmp}, vcc')


def role_wo(A, sy):
    srd(A, S_A, P_WO, 4096 * 1024)
    VPC, VFL, VFQ, VT_, VLW, VLR, VST = 2, 5, 6, 7, 8, 9, 10
    XF, D, RD = 32, 96, 128
    natural_setup(A, 3, 4, 1024, 5)
    A.i(f's_lshr_b32 s78, s{sR}, 3')
    A.i(f's_and_b32 s79, s{sR}, 7')
    A.i(f's_lshl_b32 s80, s78, 2')
    A.i(f's_add_u32 s80, s80, s{sW}')
    A.i(f's_lshl_b32 s77, s80, 18')
    A.i(f's_lshl_b32 s{sT0}, s79, 7')
    A.i(f's_add_u32 s77, s77, s{sT0}')
    load_weights(A, natural_units(S_A, 3, 77, 1024, 8, 4, 256, 4), 128, 32, 6)
    A.i(f'v_lshrrev_b32 v{VT_}, 4, v0')
    A.i(f'v_lshlrev_b32 v{VPC}, 9, v{VT_}')
    A.i(f'v_and_b32 v{VST}, 15, v0')
    A.i(f'v_lshl_add_u32 v{VPC}, v{VST}, 4, v{VPC}')
    A.i(f'v_lshlrev_b32 v{VST}, 11, v{VST}')
    A.i(f'v_lshl_add_u32 v{VST}, v{VT_}, 4, v{VST}')
    A.i(f's_lshl_b32 s{sT0}, s79, 8')
    A.i(f's_lshl_b32 s{sT1}, s{sW}, 6')
    A.i(f's_add_u32 s{sT0}, s{sT0}, s{sT1}')
    A.i(f's_lshl_b32 s{sT1}, s78, 16')
    A.i(f's_add_u32 s{sT0}, s{sT0}, s{sT1}')
    A.i(f's_add_u32 s81, s{sT0}, {PART:#x}')
    A.i(f's_lshl_b32 s{sT0}, s{sW}, 13')
    A.i(f'v_add_u32 v{VLW}, s{sT0}, v1')
    A.i(f's_lshl_b32 s{sT0}, s{sW}, 11')
    A.i(f'v_add_u32 v{VLR}, s{sT0}, v1')
    A.i(f's_lshl_b32 s{sT0}, s{sR}, 7')
    A.i(f's_add_u32 s{sT0}, s{sT0}, {F_WO:#x}')
    A.i(f'v_mov_b32 v{VFL}, s{sT0}')
    A.i(f'v_and_b32 v{VT_}, 1, v0')
    A.i(f'v_lshlrev_b32 v{VT_}, 8, v{VT_}')
    A.i(f's_lshl_b32 s{sT0}, s80, 9')
    A.i(f's_add_u32 s{sT0}, s{sT0}, {F_QA:#x}')
    A.i(f'v_add_u32 v{VFQ}, s{sT0}, v{VT_}')
    A.i(f's_lshl_b32 s82, s80, 14')
    A.i(f's_add_u32 s82, s82, {OB:#x}')
    A.i(f's_mov_b32 s{sS}, 0')
    Ltop = A.newlabel('WOtop')
    A.label(Ltop)
    if sy.on:
        A.i(f's_and_b32 s{sT0}, s{sS}, 1')
        A.i(f's_lshl_b32 s{sT0}, s{sT0}, 7')
        A.i(f'v_add_u32 v11, s{sT0}, v{VFQ}')
        A.i(f's_add_u32 s{sT2}, s{sS}, 1')
        sy.wait(A, 11, VT_, sT2)
    A.i(f's_lshl_b32 s{sT0}, s{sS}, 18')
    A.i(f's_add_u32 s{sT0}, s{sT0}, s82')
    for ks in range(8):
        if ks and (ks & 1) == 0:
            A.i(f's_add_u32 s{sT0}, s{sT0}, 4096')
        for tt in range(2):
            A.i(f'buffer_load_dwordx4 {vr(XF+(ks*2+tt)*4,4)}, v{VPC}, {WSR}, s{sT0} offen offset:{(ks&1)*2048+tt*256} sc1')
    for ks in range(8):
        A.i(f's_waitcnt vmcnt({14-2*ks})')
        for t in range(4):
            for tt in range(2):
                d = vr(D + (t * 2 + tt) * 4, 4)
                c = '0' if ks == 0 else d
                A.i(f'v_mfma_f32_16x16x32_bf16 {d}, {ur(256+(ks*4+t)*4,4)}, {vr(XF+(ks*2+tt)*4,4)}, {c}')
    for q in range(8):
        A.i(f'ds_write_b128 v{VLW}, {vr(D+q*4,4)} offset:{q*1024}')
    A.i('s_waitcnt lgkmcnt(0)')
    A.i('s_barrier')
    for u in range(2):
        for w2 in range(4):
            A.i(f'ds_read_b128 {vr(RD+(u*4+w2)*4,4)}, v{VLR} offset:{w2*8192+u*1024}')
    A.i(f's_lshl_b32 s{sT0}, s{sS}, 18')
    A.i(f's_add_u32 s{sT0}, s{sT0}, s81')
    A.i(f's_add_u32 s{sT1}, s{sT0}, {16*2048}')
    for u in range(2):
        A.i(f's_waitcnt lgkmcnt({4-4*u})')
        b = RD + u * 16
        for r in range(4):
            A.i(f'v_add_f32 v{b+r}, v{b+r}, v{b+4+r}')
            A.i(f'v_add_f32 v{b+8+r}, v{b+8+r}, v{b+12+r}')
        for r in range(4):
            A.i(f'v_add_f32 v{b+r}, v{b+r}, v{b+8+r}')
        A.i(f'buffer_store_dwordx4 {vr(b,4)}, v{VST}, {WSR}, s{sT0 if u == 0 else sT1} offen sc1')
    if sy.on:
        A.i('s_waitcnt vmcnt(0)')
    A.i('s_barrier')
    if sy.on:
        Ls = A.newlabel('WOpub')
        A.i(f's_cmp_lg_u32 s{sW}, 0')
        A.i(f's_cbranch_scc1 {Ls}')
        A.i(f's_add_u32 s{sT0}, s{sS}, 1')
        sy.publish(A, VFL, VT_, sT0)
        A.label(Ls)
    A.i(f's_add_u32 s{sS}, s{sS}, 1')
    A.i(f's_cmp_lt_u32 s{sS}, 64')
    A.i(f's_cbranch_scc1 {Ltop}')


def role_r(A, sy):
    srd(A, S_A, P_X, 2048 * 1024)
    VFL, VFW, VT_ = 3, 4, 5
    GA, C1, SH, X, T, PK, XR, PT = 8, 16, 24, 32, 40, 52, 56, 64
    A.i('v_lshlrev_b32 v2, 5, v0')
    load_mod8(A, GA, 2)
    load_mod8(A, C1, 4)
    load_mod8(A, SH, 3)
    A.i(f's_and_b32 s78, s{sR}, 7')
    A.i(f's_lshl_b32 s78, s78, 2')
    A.i(f's_add_u32 s78, s78, s{sW}')
    A.i(f's_lshl_b32 s{sT0}, s{sR}, 7')
    A.i(f's_add_u32 s{sT0}, s{sT0}, {F_R:#x}')
    A.i(f'v_mov_b32 v{VFL}, s{sT0}')
    A.i(f'v_and_b32 v{VFW}, 31, v0')
    A.i(f'v_lshlrev_b32 v{VFW}, 7, v{VFW}')
    A.i(f'v_add_u32 v{VFW}, {F_WO:#x}, v{VFW}')
    A.i('s_waitcnt vmcnt(0)')
    one_plus(A, C1, VT_)
    A.i(f's_lshr_b32 s{sS}, s{sR}, 3')
    Ltop = A.newlabel('Rtop')
    A.label(Ltop)
    A.i(f's_lshl_b32 s79, s{sS}, 5')
    A.i(f's_add_u32 s79, s79, s78')
    A.i(f's_lshl_b32 s79, s79, 10')
    A.i(f'buffer_load_dwordx4 {vr(XR,4)}, v1, s[{S_A}:{S_A+3}], s79 offen')
    A.i(f's_add_u32 s{sT2}, s{sS}, 1')
    sy.wait(A, VFW, VT_, sT2)
    A.i(f's_lshl_b32 s{sT0}, s{sS}, 18')
    A.i(f's_lshl_b32 s{sT1}, s78, 11')
    A.i(f's_add_u32 s{sT0}, s{sT0}, s{sT1}')
    A.i(f's_add_u32 s{sT0}, s{sT0}, {PART:#x}')
    for kq in range(4):
        if kq:
            A.i(f's_add_u32 s{sT0}, s{sT0}, 0x10000')
        A.i(f'buffer_load_dwordx4 {vr(PT+kq*8,4)}, v2, {WSR}, s{sT0} offen sc1')
        A.i(f'buffer_load_dwordx4 {vr(PT+kq*8+4,4)}, v2, {WSR}, s{sT0} offen offset:16 sc1')
    A.i('s_waitcnt vmcnt(0)')
    for j in range(8):
        A.i(f'v_add_f32 v{PT+j}, v{PT+j}, v{PT+8+j}')
        A.i(f'v_add_f32 v{PT+16+j}, v{PT+16+j}, v{PT+24+j}')
    for j in range(8):
        A.i(f'v_add_f32 v{PT+j}, v{PT+j}, v{PT+16+j}')
    for j in range(4):
        round2(A, PT + 2 * j, PT + 2 * j + 1, T + j)
    for j in range(8):
        A.i(f'v_mul_f32 v{PT+j}, v{PT+j}, v{GA+j}')
    for j in range(4):
        round2(A, PT + 2 * j, PT + 2 * j + 1, T + j)
    for j in range(4):
        unpack(A, X + 2 * j, X + 2 * j + 1, XR + j)
    for j in range(8):
        A.i(f'v_add_f32 v{X+j}, v{X+j}, v{PT+j}')
    for j in range(4):
        A.i(f'v_cvt_pk_bf16_f32 v{XR+j}, v{X+2*j}, v{X+2*j+1}')
    A.i(f's_add_u32 s{sT0}, s79, {X1:#x}')
    A.i(f'buffer_store_dwordx4 {vr(XR,4)}, v1, {WSR}, s{sT0} offen sc1')
    for j in range(4):
        unpack(A, X + 2 * j, X + 2 * j + 1, XR + j)
    ln_core(A, X, T, C1, SH, PK)
    A.i(f's_add_u32 s{sT0}, s79, {H2:#x}')
    A.i(f'buffer_store_dwordx4 {vr(PK,4)}, v1, {WSR}, s{sT0} offen sc1')
    A.i('s_waitcnt vmcnt(0)')
    if sy.on:
        A.i('s_barrier')
        Ls = A.newlabel('Rpub')
        A.i(f's_cmp_lg_u32 s{sW}, 0')
        A.i(f's_cbranch_scc1 {Ls}')
        A.i(f's_add_u32 s{sT0}, s{sS}, 1')
        sy.publish(A, VFL, VT_, sT0)
        A.label(Ls)
    A.i(f's_add_u32 s{sS}, s{sS}, 2')
    A.i(f's_cmp_lt_u32 s{sS}, 64')
    A.i(f's_cbranch_scc1 {Ltop}')


def role_f1(A, sy):
    srd(A, S_A, P_WG, 512 * 3584)
    srd(A, S_B, P_WU, 512 * 3584)
    VDMA, VRD, VAB, VT_, VFL, VST, VWA = 2, 4, 12, 20, 22, 23, 24
    XF, D, PK, T = 32, 64, 80, 88
    natural_setup(A, 3, 25, 3584, 4)
    A.i(f's_lshl_b32 s77, s{sR}, 7')
    A.i(f's_lshl_b32 s{sT0}, s{sW}, 5')
    A.i(f's_add_u32 s77, s77, s{sT0}')
    ug = natural_units(S_A, 3, 77, 3584, 16, 1, 256, 25, tile_index=lambda ks, t: ks * 2)
    uu = natural_units(S_B, 3, 77, 3584, 16, 1, 256, 25, tile_index=lambda ks, t: ks * 2 + 1)
    load_weights(A, ug + uu, 128, 32, 4)
    t1_setup(A, VDMA, VRD)
    A.i(f's_lshl_b32 s{sT0}, s{sR}, 7')
    A.i(f's_add_u32 s{sT0}, s{sT0}, {F_F1:#x}')
    A.i(f'v_mov_b32 v{VFL}, s{sT0}')
    A.i(f'v_lshrrev_b32 v{VST}, 5, v0')
    A.i(f'v_lshlrev_b32 v{VST}, 9, v{VST}')
    A.i(f'v_and_b32 v{VT_}, 15, v0')
    A.i(f'v_lshl_add_u32 v{VST}, v{VT_}, 4, v{VST}')
    A.i(f'v_bfe_u32 v{VT_}, v0, 4, 1')
    A.i(f'v_lshl_add_u32 v{VST}, v{VT_}, 3, v{VST}')
    A.i(f's_lshl_b32 s77, s{sR}, 12')
    A.i(f's_lshl_b32 s{sT0}, s{sW}, 10')
    A.i(f's_add_u32 s77, s77, s{sT0}')
    A.i(f's_add_u32 s77, s77, {GU:#x}')
    A.i(f's_mov_b32 s{sS}, 0')

    def wait_src(sseg, blocking, Lnot):
        if not sy.on:
            return
        A.i(f's_and_b32 s{sT0}, s{sseg}, 1')
        A.i(f's_lshl_b32 s{sT0}, s{sT0}, 10')
        A.i(f's_add_u32 s{sT0}, s{sT0}, {F_R:#x}')
        A.i(f'v_and_b32 v{VWA}, 7, v0')
        A.i(f'v_lshlrev_b32 v{VWA}, 7, v{VWA}')
        A.i(f'v_add_u32 v{VWA}, s{sT0}, v{VWA}')
        A.i(f's_add_u32 s{sT2}, s{sseg}, 1')
        flag_test(A, sy, VWA, VT_, sT2, blocking, Lnot)

    def body():
        t1_compute(A, VRD, VAB, XF, 256, D, swapped=True)
        g = [D + i for i in range(8)]
        u = [D + 8 + i for i in range(8)]
        for k in range(0, 8, 2):
            round2(A, g[k], g[k + 1], T)
        for k in range(8):
            A.i(f'v_mul_f32 v{T+k}, s{sLOG2E}, v{g[k]}')
        for k in range(8):
            A.i(f'v_exp_f32 v{T+k}, -v{T+k}')
        for k in range(0, 8, 2):
            round2(A, u[k], u[k + 1], PK)
        for k in range(8):
            A.i(f'v_add_f32 v{T+k}, 1.0, v{T+k}')
        for k in range(8):
            A.i(f'v_rcp_f32 v{T+k}, v{T+k}')
        for k in range(8):
            A.i(f'v_mul_f32 v{g[k]}, v{g[k]}, v{T+k}')
        for k in range(0, 8, 2):
            round2(A, g[k], g[k + 1], T)
        for k in range(8):
            A.i(f'v_mul_f32 v{g[k]}, v{g[k]}, v{u[k]}')
        for k in range(4):
            A.i(f'v_cvt_pk_bf16_f32 v{PK+k}, v{g[2*k]}, v{g[2*k+1]}')
        A.i(f's_mul_i32 s{sT0}, s{sS}, 114688')
        A.i(f's_add_u32 s{sT0}, s{sT0}, s77')
        for tt in range(2):
            A.i(f'buffer_store_dwordx2 v[{PK+2*tt}:{PK+2*tt+1}], v{VST}, {WSR}, s{sT0} offen offset:{tt*256} sc1')

    t1_loop(A, sy, 'F1', 0, 1, H2, wait_src, body, VDMA, VRD, VAB, VT_, VFL)


def role_f2(A, sy):
    srd(A, S_A, P_WD, 1792 * 1024)
    srd(A, S_B, P_OUT, 2048 * 1024)
    VPC, VFQ, VT_, VLW, VLR, VST, GB = 2, 6, 7, 8, 9, 10, 12
    XF, D, RD, XR = 32, 144, 160, 176
    lane_woff(A, 3, 1024, 4, 4)
    A.i(f's_mul_i32 s77, s{sW}, {448*1024}')
    A.i(f's_lshl_b32 s{sT0}, s{sR}, 6')
    A.i(f's_add_u32 s77, s77, s{sT0}')
    load_weights(A, paired_units(S_A, 3, 77, 1024, 14, 256), 128, 32, 4)
    A.i(f'v_lshrrev_b32 v{VT_}, 4, v0')
    A.i(f'v_lshlrev_b32 v{VPC}, 9, v{VT_}')
    A.i(f'v_and_b32 v{VST}, 15, v0')
    A.i(f'v_lshl_add_u32 v{VPC}, v{VST}, 4, v{VPC}')
    A.i(f's_and_b32 s78, s{sW}, 1')
    A.i(f's_lshr_b32 s79, s{sW}, 1')
    A.i(f'v_lshlrev_b32 v{VST}, 10, v{VST}')
    A.i(f'v_lshl_add_u32 v{VST}, v{VT_}, 4, v{VST}')
    A.i(f's_lshl_b32 s{sT0}, s78, 14')
    A.i(f's_lshl_b32 s{sT1}, s{sR}, 6')
    A.i(f's_add_u32 s{sT0}, s{sT0}, s{sT1}')
    A.i(f's_lshl_b32 s{sT1}, s79, 3')
    A.i(f's_add_u32 s{sT0}, s{sT0}, s{sT1}')
    A.i(f'v_add_u32 v{VST}, s{sT0}, v{VST}')
    A.i(f'v_lshlrev_b32 v{VT_}, 5, v{VT_}')
    A.i(f's_lshl_b32 s{sT0}, s{sR}, 7')
    A.i(f's_lshl_b32 s{sT1}, s79, 4')
    A.i(f's_add_u32 s{sT0}, s{sT0}, s{sT1}')
    A.i(f's_add_u32 s{sT0}, s{sT0}, {MOD + 5*2048:#x}')
    A.i(f'buffer_load_dwordx4 {vr(GB,4)}, v{VT_}, {WSR}, s{sT0} offen sc1')
    A.i(f's_lshl_b32 s{sT0}, s{sW}, 12')
    A.i(f'v_add_u32 v{VLW}, s{sT0}, v1')
    A.i(f's_lshl_b32 s{sT0}, s78, 10')
    A.i(f's_lshl_b32 s{sT1}, s79, 3')
    A.i(f's_add_u32 s{sT0}, s{sT0}, s{sT1}')
    A.i(f'v_add_u32 v{VLR}, s{sT0}, v1')
    A.i(f'v_and_b32 v{VFQ}, 7, v0')
    A.i(f'v_min_u32 v{VFQ}, 6, v{VFQ}')
    A.i(f'v_lshlrev_b32 v{VFQ}, 7, v{VFQ}')
    A.i(f's_mul_i32 s{sT0}, s{sW}, {7*FL}')
    A.i(f's_add_u32 s{sT0}, s{sT0}, {F_F1:#x}')
    A.i(f'v_add_u32 v{VFQ}, s{sT0}, v{VFQ}')
    A.i(f's_mul_i32 s82, s{sW}, {56*512}')
    A.i(f's_add_u32 s82, s82, {GU:#x}')
    A.i(f's_mov_b32 s{sS}, 0')
    Ltop = A.newlabel('F2top')
    A.label(Ltop)
    A.i(f's_add_u32 s{sT2}, s{sS}, 1')
    sy.wait(A, VFQ, VT_, sT2)
    A.i(f's_mul_i32 s{sT0}, s{sS}, 114688')
    A.i(f's_add_u32 s{sT0}, s{sT0}, s82')
    for ks in range(14):
        if ks and (ks & 1) == 0:
            A.i(f's_add_u32 s{sT0}, s{sT0}, 4096')
        for tt in range(2):
            A.i(f'buffer_load_dwordx4 {vr(XF+(ks*2+tt)*4,4)}, v{VPC}, {WSR}, s{sT0} offen offset:{(ks&1)*2048+tt*256} sc1')
    A.i(f's_lshl_b32 s83, s{sS}, 15')
    A.i(f's_add_u32 s{sT0}, s83, {X1:#x}')
    A.i(f'buffer_load_dwordx2 {vr(XR,2)}, v{VST}, {WSR}, s{sT0} offen sc1')
    for ks in range(14):
        A.i(f's_waitcnt vmcnt({27-2*ks})')
        for t in range(2):
            for tt in range(2):
                d = vr(D + (t * 2 + tt) * 4, 4)
                c = '0' if ks == 0 else d
                A.i(f'v_mfma_f32_16x16x32_bf16 {d}, {ur(256+(ks*2+t)*4,4)}, {vr(XF+(ks*2+tt)*4,4)}, {c}')
    for q in range(4):
        A.i(f'ds_write_b128 v{VLW}, {vr(D+q*4,4)} offset:{q*1024}')
    A.i('s_waitcnt lgkmcnt(0)')
    A.i('s_barrier')
    for t in range(2):
        for w2 in range(4):
            A.i(f'ds_read_b64 {vr(RD+(t*4+w2)*2,2)}, v{VLR} offset:{w2*4096+t*2048}')
    A.i('s_waitcnt vmcnt(0) lgkmcnt(0)')
    A.i('s_barrier')
    for t in range(2):
        b = RD + t * 8
        for r in range(2):
            A.i(f'v_add_f32 v{b+r}, v{b+r}, v{b+2+r}')
            A.i(f'v_add_f32 v{b+4+r}, v{b+4+r}, v{b+6+r}')
        for r in range(2):
            A.i(f'v_add_f32 v{b+r}, v{b+r}, v{b+4+r}')
    f = [RD, RD + 8, RD + 1, RD + 9]
    round2(A, f[0], f[1], VT_)
    round2(A, f[2], f[3], VT_)
    for k in range(4):
        A.i(f'v_mul_f32 v{f[k]}, v{f[k]}, v{GB+k}')
    round2(A, f[0], f[1], VT_)
    round2(A, f[2], f[3], VT_)
    unpack(A, RD + 2, RD + 3, XR)
    unpack(A, RD + 4, RD + 5, XR + 1)
    for k in range(4):
        A.i(f'v_add_f32 v{f[k]}, v{f[k]}, v{RD+2+k}')
    A.i(f'v_cvt_pk_bf16_f32 v{XR}, v{f[0]}, v{f[1]}')
    A.i(f'v_cvt_pk_bf16_f32 v{XR+1}, v{f[2]}, v{f[3]}')
    A.i(f'buffer_store_dwordx2 {vr(XR,2)}, v{VST}, s[{S_B}:{S_B+3}], s83 offen')
    A.i(f's_add_u32 s{sS}, s{sS}, 1')
    A.i(f's_cmp_lt_u32 s{sS}, 64')
    A.i(f's_cbranch_scc1 {Ltop}')
```

```python
import sys
from common import *
import roles, chain

NAME = 'adaLN_cond__memory_aug_recurrent_mem_tr__swiglu_ffn__prompt'
HEADER = open('cdna_kernels/%s.s.ref' % NAME).read().split('; Override launch')[0]
L_TICK = 163584
LDS_ALL = 163840


def kd(name, vgpr=512, accum=256, sgpr=102):
    return f'''.section .rodata,"a"
.p2align 6
.amdhsa_kernel {name}
  .amdhsa_next_free_vgpr {vgpr}
  .amdhsa_next_free_sgpr {sgpr}
  .amdhsa_accum_offset {accum}
  .amdhsa_group_segment_fixed_size 0
  .amdhsa_kernarg_size 128
  .amdhsa_user_sgpr_count 2
  .amdhsa_user_sgpr_kernarg_segment_ptr 1
  .amdhsa_system_sgpr_workgroup_id_x 1
  .amdhsa_float_denorm_mode_32 3
.end_amdhsa_kernel
.text
'''


def start(A, name):
    A.raw(f'.globl {name}\n.p2align 8\n.type {name},@function\n{name}:')
    A.hist = []


def ticket(A):
    L = A.newlabel('Ltk')
    A.i(f's_getreg_b32 s{sT3}, hwreg(HW_REG_XCC_ID, 0, 4)')
    A.i(f's_and_b32 s{sT3}, s{sT3}, 7')
    A.i(f'v_mov_b32 v2, {L_TICK}')
    A.i(f's_cmp_lg_u32 s{sW}, 0')
    A.i(f's_cbranch_scc1 {L}')
    A.i(f's_lshl_b32 s{sT0}, s{sT3}, 7')
    A.i(f's_add_u32 s{sT0}, s{sT0}, {F_TICKET:#x}')
    A.i('v_mov_b32 v3, 1')
    A.i('s_mov_b64 exec, 1')
    A.i(f'buffer_atomic_add v3, off, {roles.WSR}, s{sT0} sc0')
    A.i('s_waitcnt vmcnt(0)')
    A.i('ds_write_b32 v2, v3')
    A.i('s_mov_b64 exec, -1')
    A.i('s_waitcnt lgkmcnt(0)')
    A.label(L)
    A.i('s_barrier')
    A.i('ds_read_b32 v3, v2')
    A.i('s_waitcnt lgkmcnt(0)')
    A.i(f'v_readfirstlane_b32 s{sT4}, v3')


def build(mode):
    A = Asm()
    launches = []
    kds = []

    def kernel(name, nwg, body, lds, vgpr=512, accum=256):
        start(A, name)
        end = A.newlabel('Lend')
        prologue(A, nwg, end)
        body(end)
        A.label(end)
        A.i('s_endpgm')
        launches.append(f'; @launch kernel={name} grid=({nwg},1,1) block=(256,1,1) lds={lds}')
        kds.append(kd(name, vgpr, accum))

    kernel('init_kernel', 86, lambda end: roles.role_init(A, end), 8192, 128, 128)
    if mode == 'multi':
        sy = Sync(False)

        def simple(fn):
            def body(end):
                A.i(f's_mov_b32 s{sR}, s2')
                fn()
            return body
        kernel('ln1_kernel', 64, simple(lambda: roles.role_ln1(A, sy, sR)), 0)
        kernel('k_kernel', 32, simple(lambda: roles.role_kv(A, sy, False)), LDS_ALL)
        kernel('v_kernel', 32, simple(lambda: roles.role_kv(A, sy, True)), LDS_ALL)

        def chain_body(end):
            ticket(A)
            A.i(f's_cmp_lg_u32 s{sT3}, 0')
            A.i(f's_cbranch_scc1 {end}')
            A.i(f's_cmp_ge_u32 s{sT4}, 32')
            A.i(f's_cbranch_scc1 {end}')
            A.i(f's_mov_b32 s{sR}, s{sT4}')
            chain.role_chain(A, sy, end)
        kernel('chain_kernel', 256, chain_body, LDS_ALL)
        kernel('qa_kernel', 64, simple(lambda: roles.role_qa(A, sy)), LDS_ALL)
        kernel('wo_kernel', 32, simple(lambda: roles.role_wo(A, sy)), LDS_ALL)
        kernel('r_kernel', 16, simple(lambda: roles.role_r(A, sy)), 0)
        kernel('f1_kernel', 28, simple(lambda: roles.role_f1(A, sy)), LDS_ALL)
        kernel('f2_kernel', 16, simple(lambda: roles.role_f2(A, sy)), LDS_ALL)
    else:
        sy = Sync(True)

        def main_body(end):
            ticket(A)
            A.i(f's_cmp_ge_u32 s{sT4}, 32')
            A.i(f's_cbranch_scc1 {end}')
            A.i(f's_mov_b32 s{sR}, s{sT4}')
            labs = [A.newlabel('Lx%d' % i) for i in range(8)]
            for x in range(1, 8):
                A.i(f's_cmp_eq_u32 s{sT3}, {x}')
                A.i(f's_cbranch_scc1 {labs[x]}')
            chain.role_chain(A, sy, end)
            A.label(labs[1])
            roles.role_kv(A, sy, False)
            A.i(f's_branch {end}')
            A.label(labs[2])
            roles.role_kv(A, sy, True)
            A.i(f's_branch {end}')
            A.label(labs[4])
            A.i(f's_add_u32 s{sR}, s{sR}, 32')
            A.label(labs[3])
            roles.role_qa(A, sy)
            A.i(f's_branch {end}')
            A.label(labs[6])
            A.i(f's_add_u32 s{sR}, s{sR}, 32')
            A.label(labs[5])
            roles.role_ln1(A, sy, sR)
            Lf1 = A.newlabel('Lf1')
            A.i(f's_cmp_ge_u32 s{sR}, 32')
            A.i(f's_cbranch_scc1 {Lf1}')
            roles.role_wo(A, sy)
            A.i(f's_branch {end}')
            A.label(Lf1)
            A.i(f's_sub_u32 s{sR}, s{sR}, 32')
            A.i(f's_cmp_ge_u32 s{sR}, 28')
            A.i(f's_cbranch_scc1 {end}')
            roles.role_f1(A, sy)
            A.i(f's_branch {end}')
            A.label(labs[7])
            Lr = A.newlabel('Lr')
            A.i(f's_cmp_ge_u32 s{sR}, 16')
            A.i(f's_cbranch_scc1 {Lr}')
            roles.role_f2(A, sy)
            A.i(f's_branch {end}')
            A.label(Lr)
            A.i(f's_sub_u32 s{sR}, s{sR}, 16')
            roles.role_r(A, sy)
        kernel('main_kernel', 256, main_body, LDS_ALL)
    out = HEADER + '\n'.join(launches) + '\n'
    out += '.amdgcn_target "amdgcn-amd-amdhsa--gfx950"\n.text\n'
    out += A.text()
    out += ''.join(kds)
    return out, A


if __name__ == '__main__':
    mode = sys.argv[1]
    path = sys.argv[2]
    out, A = build(mode)
    open(path, 'w').write(out)
    print('instructions', A.ninstr, 'nop states', A.nops, 'bytes', len(out))
```

```python
from common import *
from roles import load_weights, WSR

L_MEM = 131072
L_KX = 139264
L_VX = 147456
L_QI = 155648
L_KI = L_QI + 2304
L_OI = L_KI + 2304
L_SEL = L_OI + 2048 + 64
L_VI = L_QI
QS = 288

vWV, vL2, vKX, vIDX, vQW, vQR, vPST, vX1, vX2, vVW, vOR, vOW, vLW, vT0 = range(2, 16)
vPF = 0
RA, RB, RC, RD = 16, 48, 80, 112
WK, WV, WQR, WOR = 256, 384, 128, 192
sPC, sPC2, sMC, sFLG, sKVF, sKVS, sOUT, sNX, sDST, sRST, sH1, sFA = range(72, 84)
sHF = 84
sLF = 86
sIO = 88
sSC2 = 90
sRP, sRM = 92, 93
sKS, sVS, sPFA, sPFD = 94, 95, 96, 97
sD2, sNV, sS1 = 65, 71, 3


def emit(A, x):
    if callable(x):
        x()
    else:
        A.i(x)


def mix(A, mf, fill, per=2, start=0):
    fill = list(fill)
    for k, m in enumerate(mf):
        emit(A, m)
        if k >= start:
            for _ in range(per):
                if fill:
                    emit(A, fill.pop(0))
    for f in fill:
        emit(A, f)


def role_chain(A, sy, end, nsteps=64):
    opts = getattr(sy, 'opts', set())
    sH = sR
    srd(A, S_A, P_WQ, 512 * 8192)
    srd(A, S_B, P_WK, 512 * 8192)
    srd(A, S_C, P_WV, 512 * 8192)
    srd(A, S_D, P_WO, 4096 * 1024)
    G, N, G1, TT, TA, TB, WA, WB, LN = 16, 17, 18, 19, 20, 21, 32, 33, 34
    A.i(f'v_mov_b32 v{LN}, v0')
    A.i(f'v_lshrrev_b32 v{G}, 4, v0')
    A.i(f'v_and_b32 v{N}, 15, v0')
    A.i(f'v_and_b32 v{G1}, 1, v{G}')
    A.i(f'v_lshrrev_b32 v{TT}, 5, v0')
    A.i(f'v_lshlrev_b32 v{vPF}, 3, v1')
    A.i(f's_lshl_b32 s{sT0}, s{sW}, 15')
    A.i(f'v_add_u32 v{vWV}, s{sT0}, v1')
    A.i(f'v_add_u32 v{vL2}, {L_MEM}, v1')
    A.i(f's_lshl_b32 s{sT0}, s{sW}, 11')
    A.i(f'v_add_u32 v{vLW}, s{sT0}, v{vL2}')
    A.i(f'v_lshlrev_b32 v{vKX}, 9, v{G}')
    A.i(f'v_lshl_add_u32 v{vKX}, v{N}, 4, v{vKX}')
    A.i(f'v_add_u32 v{vKX}, {L_KX}, v{vKX}')
    A.i(f's_mov_b32 s{sHF}, 0xff00ff00')
    A.i(f's_mov_b32 s{sHF+1}, 0xff00ff00')
    A.i(f's_mov_b32 s{sLF}, 0x00ff00ff')
    A.i(f's_mov_b32 s{sLF+1}, 0x00ff00ff')
    A.i(f's_mov_b32 s{sSC2}, {SCALE:#x}')
    A.i(f's_mov_b32 s{sSC2+1}, {SCALE:#x}')
    A.i(f's_cmp_eq_u32 s{sW}, 3')
    A.i(f's_cselect_b32 s{sIO}, 1, 0')
    A.i(f's_mov_b32 s{sIO+1}, 0')
    A.i(f'v_mov_b32 v{vIDX}, 0x4444')
    A.i(f'v_mov_b32 v{TA}, 0xeeee')
    A.i(f'v_cndmask_b32 v{vIDX}, v{vIDX}, v{TA}, s[{sHF}:{sHF+1}]')
    A.i(f'v_lshlrev_b32 v{TA}, 1, v{G1}')
    A.i(f'v_add_u32 v{TA}, v{TA}, v{TT}')
    A.i(f'v_mul_u32_u24 v{vQW}, {2*QS}, v{TA}')
    A.i(f'v_lshl_add_u32 v{vQW}, v{N}, 2, v{vQW}')
    A.i(f's_lshl_b32 s{sT0}, s{sW}, 6')
    A.i(f's_add_u32 s{sT0}, s{sT0}, {L_QI}')
    A.i(f'v_add_u32 v{vQW}, s{sT0}, v{vQW}')
    A.i(f'v_lshrrev_b32 v{vPST}, 1, v{N}')
    A.i(f'v_lshlrev_b32 v{vPST}, 13, v{vPST}')
    A.i(f'v_lshl_add_u32 v{vPST}, v{G}, 4, v{vPST}')
    A.i(f'v_and_b32 v{TB}, 1, v{N}')
    A.i(f'v_lshl_add_u32 v{vPST}, v{TB}, 6, v{vPST}')
    A.i(f's_lshl_b32 s{sT0}, s{sW}, 16')
    A.i(f's_lshl_b32 s{sT1}, s{sH}, 7')
    A.i(f's_add_u32 s{sT0}, s{sT0}, s{sT1}')
    A.i(f'v_add_u32 v{vPST}, s{sT0}, v{vPST}')
    A.i(f'v_lshlrev_b32 v{vVW}, 8, v{TT}')
    A.i(f'v_lshl_add_u32 v{vVW}, v{N}, 4, v{vVW}')
    A.i(f'v_lshl_add_u32 v{vVW}, v{G1}, 3, v{vVW}')
    A.i(f's_lshl_b32 s{sT0}, s{sW}, 9')
    A.i(f's_add_u32 s{sT0}, s{sT0}, {L_VI}')
    A.i(f'v_add_u32 v{vVW}, s{sT0}, v{vVW}')
    A.i(f'v_and_b32 v{TA}, 7, v{N}')
    A.i(f'v_mul_u32_u24 v{vQR}, {QS}, v{TA}')
    A.i(f'v_lshl_add_u32 v{vQR}, v{G}, 4, v{vQR}')
    A.i(f'v_add_u32 v{vQR}, {L_QI}, v{vQR}')
    A.i(f'v_lshlrev_b32 v{vOR}, 7, v{G}')
    A.i(f'v_lshl_add_u32 v{vOR}, v{TA}, 4, v{vOR}')
    A.i(f'v_add_u32 v{vOR}, {L_OI}, v{vOR}')
    A.i(f's_lshl_b32 s{sT0}, s{sW}, 9')
    A.i(f'v_add_u32 v{vOW}, s{sT0}, v{vOR}')
    A.i(f'v_lshlrev_b32 v{vX1}, 6, v{TB}')
    A.i(f'v_lshl_add_u32 v{vX1}, v{G1}, 4, v{vX1}')
    A.i(f'v_bfe_u32 v{TA}, v{N}, 2, 1')
    A.i(f'v_lshl_add_u32 v{vX1}, v{TA}, 7, v{vX1}')
    A.i(f'v_bfe_u32 v{TA}, v{N}, 1, 1')
    A.i(f'v_lshl_add_u32 v{vX1}, v{TA}, 3, v{vX1}')
    A.i(f's_lshl_b32 s{sT0}, s{sH}, 8')
    A.i(f's_and_b32 s{sT1}, s{sW}, 1')
    A.i(f's_lshl_b32 s{sT2}, s{sT1}, 5')
    A.i(f's_add_u32 s{sT0}, s{sT0}, s{sT2}')
    A.i(f'v_add_u32 v{vX1}, s{sT0}, v{vX1}')
    A.i(f'v_mov_b32 v{vX2}, 0')
    A.i(f's_lshl_b32 s{sH1}, s{sH}, 13')
    A.i(f's_lshl_b32 s{sT2}, s{sT1}, 12')
    A.i(f's_add_u32 s{sH1}, s{sH1}, s{sT2}')
    A.i(f's_lshl_b32 s{sT0}, s{sH}, 7')
    A.i(f's_add_u32 s{sKVF}, s{sT0}, {F_KV:#x}')
    A.i(f's_add_u32 s{sFLG}, s{sT0}, {F_CH:#x}')
    A.i(f's_lshl_b32 s{sT0}, s{sH}, 11')
    A.i(f's_lshr_b32 s{sT2}, s{sW}, 1')
    A.i(f's_lshl_b32 s{sT2}, s{sT2}, 22')
    A.i(f's_add_u32 s{sOUT}, s{sT0}, s{sT2}')
    A.i(f's_lshl_b32 s{sT2}, s{sT1}, 10')
    A.i(f's_add_u32 s{sOUT}, s{sOUT}, s{sT2}')
    A.i(f's_add_u32 s{sOUT}, s{sOUT}, {KM:#x}')
    A.i(f's_lshl_b32 s{sT0}, s{sH}, 13')
    A.i(f's_lshl_b32 s{sT2}, s{sW}, 11')
    A.i(f's_add_u32 s{sRST}, s{sT0}, s{sT2}')
    A.i(f's_add_u32 s{sNX}, s{sRST}, {KX:#x}')
    A.i(f's_add_u32 s{sDST}, s{sT2}, {L_KX}')
    A.i(f's_lshl_b32 s{sPFD}, s{sT1}, 24')
    A.i(f's_sub_u32 s{sPFD}, s{sPFD}, s{sT2}')
    A.i(f's_mov_b32 s{sKVS}, {0 if sy.on else 64}')
    A.i(f's_mov_b32 s{sKS}, 0')
    A.i(f's_mov_b32 s{sVS}, 0')
    A.i(f'v_mul_u32_u24 v{vX2}, {QS}, v{G}')
    A.i(f'v_lshl_add_u32 v{vX2}, v{N}, 4, v{vX2}')
    A.i(f's_mul_i32 s{sT0}, s{sT1}, {4*QS}')
    A.i(f's_add_u32 s{sT0}, s{sT0}, {L_KI}')
    A.i(f'v_add_u32 v{vX2}, s{sT0}, v{vX2}')
    Lwe = A.newlabel('CHwe')
    A.i(f's_cmp_lt_u32 s{sW}, 2')
    A.i(f's_cbranch_scc1 {Lwe}')
    A.i(f's_lshl_b32 s{sT0}, s{sT1}, 10')
    A.i(f's_add_u32 s{sT0}, s{sT0}, {L_VI}')
    A.i(f'v_add_u32 v{vX2}, s{sT0}, v1')
    A.label(Lwe)
    for c in range(4):
        A.i(f'v_mov_b32 v{24+c}, 0')
        A.i(f'v_cmp_eq_u32 vcc, {2*c}, v{N}')
        A.i(f'v_mov_b32 v{TA}, 0x3f80')
        A.i(f'v_cndmask_b32 v{24+c}, v{24+c}, v{TA}, vcc')
        A.i(f'v_cmp_eq_u32 vcc, {2*c+1}, v{N}')
        A.i(f'v_mov_b32 v{TA}, 0x3f800000')
        A.i(f'v_cndmask_b32 v{24+c}, v{24+c}, v{TA}, vcc')
    A.i(f'ds_write_b128 v{vL2}, v[24:27] offset:{L_SEL-L_MEM}')
    A.i(f'v_lshrrev_b32 v{TA}, 1, v{G}')
    A.i(f'v_lshlrev_b32 v{WA}, 17, v{TA}')
    A.i(f'v_lshl_add_u32 v{WA}, v{G1}, 15, v{WA}')
    A.i(f'v_lshl_add_u32 v{WA}, v{N}, 2, v{WA}')
    A.i(f'v_lshlrev_b32 v{WB}, 12, v{G}')
    A.i(f'v_lshl_add_u32 v{WB}, v{N}, 4, v{WB}')
    sWA, sWB = sT4, sT5
    A.i(f's_lshl_b32 s{sWA}, s{sH}, 8')
    A.i(f's_lshl_b32 s{sT0}, s{sW}, 6')
    A.i(f's_add_u32 s{sWA}, s{sWA}, s{sT0}')
    A.i(f's_lshl_b32 s{sWB}, s{sH}, 17')
    A.i(f's_lshl_b32 s{sT0}, s{sW}, 8')
    A.i(f's_add_u32 s{sWB}, s{sWB}, s{sT0}')

    def mem_units(srd_s, dst, ks_list):
        u = []
        for ks in ks_list:
            for r in range(8):
                d0 = 64 * ks + 32 * (r >> 2) + 8 * (r & 1) + 2 * ((r >> 1) & 1)
                u.append((srd_s, WA, sWA, d0 * 8192, (d0 + 1) * 8192, 1,
                          [(dst(ks * 2) + r, 0, f's{SELLO}'), (dst(ks * 2 + 1) + r, 0, f's{SELHI}')]))
        return u

    def o_units(dst, ks_list):
        u = []
        for ks in ks_list:
            for uu in range(4):
                e0 = 32 * ks + 16 * (uu >> 1) + 2 * (uu & 1)
                outs = []
                for cg in range(4):
                    for st in range(2):
                        outs.append((dst(ks * 4 + cg) + 2 * uu + st, 2 * st + (cg >> 1),
                                     f's{SELHI if (cg & 1) else SELLO}'))
                u.append((S_D, WB, sWB, e0 * 1024, (e0 + 1) * 1024, 4, outs))
        return u

    WO_STREAM = [0, 1, 2, 3, 4, 13, 14, 15]
    def spill(first_reg, nfrag, lds_frag0):
        for f in range(nfrag):
            for hq in range(2):
                A.i(f'ds_write_b128 v{vWV}, {vr(first_reg + f*8 + hq*4, 4)} offset:{(lds_frag0 + f)*2048 + hq*1024}')
            A.i('s_waitcnt lgkmcnt(0)')
    load_weights(A, o_units(lambda p: 128 + p * 8, range(4)), 48, 32, 22)
    for k, p in enumerate(WO_STREAM):
        spill(128 + p * 8, 1, 8 + k)
    for r in range(63, -1, -1):
        A.i(f'v_mov_b32 v{WOR + r}, v{128 + 40 + r}')
    load_weights(A, mem_units(S_A, lambda f: 128 + f * 8, range(4)), 48, 32, 22)
    spill(128, 8, 0)
    load_weights(A, mem_units(S_A, lambda f: WQR + (f - 8) * 8, range(4, 8)) + mem_units(S_B, lambda f: WK + f * 8, range(8))
                 + mem_units(S_C, lambda f: WV + f * 8, range(8)), 48, 32, 22)
    sy.trace(A, vT0, None, imm=101, wave=0)
    srd(A, S_A, P_MEM0, 8192)
    A.i(f's_mov_b32 s{sS}, 0')
    A.i(f'v_and_b32 v{vT0}, 7, v{LN}')
    A.i(f'v_lshlrev_b32 v{vT0}, 10, v{vT0}')
    A.i(f'v_lshrrev_b32 v{TA}, 3, v{LN}')
    A.i(f'v_lshl_add_u32 v{vT0}, v{TA}, 4, v{vT0}')
    A.i(f's_lshl_b32 s{sT0}, s{sW}, 8')
    for i in range(2):
        A.i(f'buffer_load_dwordx4 {vr(RC+4*i,4)}, v{vT0}, s[{S_A}:{S_A+3}], s{sT0} offen offset:{i*128}')
    A.i('s_waitcnt vmcnt(0)')
    for i in range(2):
        A.i(f'ds_write_b128 v{vLW}, {vr(RC+4*i,4)} offset:{i*1024}')
    A.i('s_waitcnt lgkmcnt(0)')

    slow = []
    def kv_wait(sseg, r0, r1):
        if sy.on:
            Lok, Lp = A.newlabel('CHkvok'), A.newlabel('CHkvp')
            A.i(f's_cmp_gt_u32 s{sKVS}, s{sseg}')
            A.i(f's_cbranch_scc0 {Lp}')
            A.label(Lok)
            slow.append((Lp, Lok, sseg, r0, r1))

    def kv_dma(which):
        A.i(f's_mov_b32 m0, s{sD2 if which else sDST}')
        for i in range(2):
            A.i(f'buffer_load_dwordx4 v1, {WSR}, s{sNV if which else sNX} offen offset:{i*1024} sc1 lds')

    A.i(f's_add_u32 s{sD2}, s{sDST}, {L_VX-L_KX}')
    A.i(f's_add_u32 s{sNV}, s{sNX}, {VT-KX:#x}')
    kv_wait(sS, 34, 35)
    kv_dma(0)
    kv_dma(1)

    stamps = []
    Lfin = A.newlabel('CHfin')
    Lcut = A.newlabel('CHcut')
    def stamp(name):
        if ('cut' + name) in opts:
            A.i(f's_cmp_eq_u32 s{sS}, {nsteps-1}')
            A.i(f's_cbranch_scc1 {Lfin}')
            A.i(f's_branch {Lcut}')

    prof = 'prof' in opts
    def ts(k):
        if prof:
            A.i(f's_memtime s[{4+2*k}:{5+2*k}]')
    def cnt(k):
        if prof:
            A.i(f's_add_u32 s{28+k}, s{28+k}, 1')
    if prof:
        for k in range(4, 32):
            A.i(f's_mov_b32 s{k}, 0')
    AQ, AK, AV = RD, RD + 8, RD
    MA = RA
    XQ = RB
    S1, S2 = RB + 24, RB + 28
    QF, KR = RC, RC + 16
    S0, PM0, PM1 = RD + 8, RD + 12, RD + 14
    P4, VXF, OP, WD = RC, RC + 4, RC + 12, RC + 16
    OD, OA = RB + 24, RA
    PK = RC
    YS = [RB, RB + 8, RB + 16, RA + 16, RA + 24]

    def frag_read(reg, lf, tag):
        return [lambda: A.ds(f'ds_read_b128 {vr(reg,4)}, v{vWV} offset:{lf*2048}', tag),
                lambda: A.ds(f'ds_read_b128 {vr(reg+4,4)}, v{vWV} offset:{lf*2048+1024}', tag)]

    def pre_step():
        for f in range(8):
            for x in frag_read(XQ + 8 * f, f, 'xq'):
                x()
            A.i(f'v_mov_b64 {vr(RD+2*f,2)}, 0')

    def step_scalars():
        A.i(f's_and_b32 s{sT0}, s{sS}, 3')
        A.i(f's_lshl_b32 s{sPC}, s{sT0}, 18')
        A.i(f's_add_u32 s{sPC}, s{sPC}, {XP:#x}')
        A.i(f's_add_u32 s{sPC2}, s{sPC}, 4096')
        A.i(f's_lshl_b32 s{sMC}, s{sT0}, 13')
        A.i(f's_add_u32 s{sMC}, s{sMC}, {XM:#x}')
        A.i(f's_add_u32 s{sS1}, s{sS}, 1')
        A.i(f's_min_u32 s{sS1}, s{sS1}, 63')
        A.i(f's_add_u32 s{sT1}, s{sNX}, s{sPFD}')
        A.i(f's_add_u32 s{sNX}, s{sNX}, 0x40000')
        A.i(f's_add_u32 s{sNV}, s{sNV}, 0x40000')
        A.i(f's_add_u32 s{sPFA}, s{sT1}, 0x80000')
        A.i(f's_add_u32 s{sT2}, s{sS}, 2')
        A.i(f's_cmp_gt_u32 s{sKVS}, s{sT2}')
        A.i(f's_cselect_b32 s{sPFA}, s{sPFA}, s{sT1}')
        A.i(f's_add_u32 s{sT0}, s{sS}, 3')
        A.i(f's_and_b32 s{sT0}, s{sT0}, 3')
        A.i(f's_lshl_b32 s{sT0}, s{sT0}, 18')
        A.i(f's_add_u32 s{sT0}, s{sT0}, s{sRST}')
        A.i(f's_add_u32 s{sRP}, s{sT0}, {XP:#x}')
        A.i(f's_xor_b32 s{sRM}, s{sMC}, 0x4000')
        A.i(f's_lshl_b32 s{sT1}, s{sH}, 8')
        A.i(f's_add_u32 s{sRM}, s{sRM}, s{sT1}')

    pre_step()
    step_scalars()
    Ltop = A.newlabel('CHtop')
    A.i('s_waitcnt vmcnt(0)')
    A.wl_all()
    A.label(Ltop)
    _orig_i = A.i
    def _filt(text):
        for t in text.split('\n'):
            if 'novm' in opts and t.startswith('buffer_') and 's101' not in t:
                continue
            if 'nokv' in opts and ('buffer_store' in t and 'sc1' in t):
                continue
            if 'nodma' in opts and (' lds' in t and 'buffer_load' in t):
                continue
            if 'nopf' in opts and t.startswith('buffer_load_dword v'):
                continue
            if 'plainkv' in opts and ('buffer_store' in t and 'sc1' in t):
                t = t.replace(' sc1', '')
            _orig_i(t)
    A.i = _filt
    A.i('s_barrier')
    stamp('Ba')
    ts(4)
    for ks in range(8):
        A.ds(f'ds_read_b128 {vr(MA+4*ks,4)}, v{vL2} offset:{ks*1024}', ('ma', ks))

    def sm(acc, a, w):
        return f'v_smfmac_f32_16x16x64_bf16 {vr(acc,4)}, {vr(a,4)}, {ur(w,8)}, v{vIDX}'

    A.i(f'buffer_load_dword v{vT0}, v{vPF}, {WSR}, s{sPFA} offen sc1')
    if sy.on:
        A.i(f'buffer_load_dword v{vT0}, off, {WSR}, s{sKVF} sc1')
    def wq(f):
        return XQ + 8 * f if f < 8 else WQR + 8 * (f - 8)
    def kx_read(j):
        A.ds(f'ds_read_b128 {vr(KR+(j&3)*4,4)}, v{vKX} offset:{(j>>1)*2048+(j&1)*256}', ('kx', j))
    mf = []
    for ks in range(8):
        if ks in (0, 1, 2, 3):
            mf.append(lambda ks=ks: (A.wl(('ma', ks)), A.i(sm(AQ, MA + 4 * ks, wq(ks * 2)))))
        elif ks == 4:
            mf.append(lambda ks=ks: (A.wl(('ma', 7)), A.i(sm(AQ, MA + 4 * ks, wq(ks * 2)))))
        else:
            mf.append(sm(AQ, MA + 4 * ks, wq(ks * 2)))
        mf.append(sm(AQ + 4, MA + 4 * ks, wq(ks * 2 + 1)))
    fill = []
    for k in range(3):
        fill += frag_read(YS[k], 8 + k, ('y', k))
    fill += [lambda j=j: kx_read(j) for j in range(2)]
    mix(A, mf, fill, per=1, start=8)
    stamp('Qdone')

    def fold_qk(acc, off, t0, t1):
        f = []
        for t in range(2):
            f.append(f'v_permlane32_swap_b32 v{acc+4*t}, v{acc+4*t+2}')
            f.append(f'v_permlane32_swap_b32 v{acc+4*t+1}, v{acc+4*t+3}')
        for t in range(2):
            f.append(f'v_pk_add_f32 {vr(acc+4*t,2)}, {vr(acc+4*t,2)}, {vr(acc+4*t+2,2)}')
        f.append(f'v_cvt_pk_bf16_f32 v{t0}, v{acc}, v{acc+4}')
        f.append(f'v_cvt_pk_bf16_f32 v{t1}, v{acc+1}, v{acc+5}')
        f.append(lambda: A.ds(f'ds_write2_b32 v{vQW}, v{t0}, v{t1} offset0:0 offset1:{QS//4}', 'w') if off == 0 else
                 (A.ds(f'ds_write_b32 v{vQW}, v{t0} offset:{off}', 'w'), A.ds(f'ds_write_b32 v{vQW}, v{t1} offset:{off+QS}', 'w')))
        return f

    mf = []
    for ks in range(8):
        mf.append(sm(AK, MA + 4 * ks, WK + (ks * 2) * 8))
        mf.append(sm(AK + 4, MA + 4 * ks, WK + (ks * 2 + 1) * 8))
    mix(A, mf[:4], [lambda j=j: kx_read(j) for j in range(2, 4)] + [f'v_mov_b64 {vr(S2,2)}, -1', f'v_mov_b64 {vr(S2+2,2)}, -1'], per=1)
    mix(A, mf[4:13], fold_qk(AQ, 0, AQ + 2, AQ + 3), per=1)
    mix(A, mf[13:16], [f'v_mov_b64 {vr(AV+r,2)}, 0' for r in (0, 4, 6)], per=1)
    A.wl('w')
    A.i('s_barrier')
    stamp('Bb')
    for ks in range(4):
        A.ds(f'ds_read_b128 {vr(QF+4*ks,4)}, v{vQR} offset:{ks*64}', ('q', ks))
    A.i(f'v_mov_b64 {vr(AV+2,2)}, 0')
    early = 'earlyrst' in opts
    if early:
        A.i(f'buffer_store_dwordx4 {vr(S2,4)}, v1, {WSR}, s{sRP} offen')
    stamp('Kdone')

    vstate = {'f': 0}
    def vstep():
        f = 15 - vstate['f']
        ks, t = f >> 1, f & 1
        A.i(sm(AV + 4 * t, MA + 4 * ks, WV + f * 8))
        vstate['f'] += 1

    def smx(j):
        ks, kt = j >> 1, j & 1
        S = S2 if kt else S1
        c = '0' if ks == 0 else vr(S, 4)
        def f():
            A.wl(('kx', j))
            A.wl(('q', ks))
            A.i(f'v_mfma_f32_16x16x32_bf16 {vr(S,4)}, {vr(KR+(j&3)*4,4)}, {vr(QF+4*ks,4)}, {c}')
            if j + 4 < 8:
                kx_read(j + 4)
        return f
    for x in fold_qk(AK, L_KI - L_QI, AK + 2, AK + 3):
        emit(A, x)
    if early:
        A.i(f'buffer_store_dwordx4 {vr(S2,4)}, v1, {WSR}, s{sRP} offen offset:1024')
        A.i('s_mov_b64 exec, 0xffff')
        A.i(f'buffer_store_dwordx4 {vr(S2,4)}, v1, {WSR}, s{sRM} offen')
        A.i('s_mov_b64 exec, -1')
    A.wl(('q', 3))
    for j in range(4):
        smx(j)()
    A.wl('w')
    if sy.on:
        A.i('s_waitcnt vmcnt(%d)' % (5 if early else 2))
    A.i('s_barrier')
    stamp('Bc')
    vstep()
    if sy.on:
        A.i(f'v_mov_b32 v{PM0}, s{sS}')
        A.i(f's_mov_b64 exec, s[{sIO}:{sIO+1}]')
        A.i(f'buffer_store_dword v{PM0}, off, {WSR}, s{sFLG} sc1')
        A.i('s_mov_b64 exec, -1')
    A.wl(('kx', 7))
    for j in range(4, 8):
        smx(j)()
        A.ds(f'ds_read_b128 {vr(KR+4*(j-4),4)}, v{vQR} offset:{L_KI-L_QI+(j-4)*64}', ('km', j - 4))
    SX = S1
    T0, T1, T2 = S2, S2 + 1, S0 + 2
    def r1(a):
        return f'v_cvt_pk_bf16_f32 v{a}, 0, v{a}'
    vstep()
    A.i(f'v_mov_b64 {vr(PM0,2)}, 0')
    vstep()
    A.i(f'v_mov_b64 {vr(PM1,2)}, 0')
    fx = [f'v_cndmask_b32 v{S1+r}, v{S1+r}, v{S2+r}, s[{sHF}:{sHF+1}]' for r in range(4)]
    fx += [r1(SX + r) for r in range(4)]
    fx += [f'v_mul_f32 v{SX+r}, s{sSCALE}, v{SX+r}' for r in range(4)]
    fx += [r1(SX + r) for r in range(4)]
    fx += [f'v_max3_f32 v{T0}, v{SX}, v{SX+1}, v{SX+2}']
    s0 = []
    for ks in range(4):
        c = '0' if ks == 0 else vr(S0, 4)
        s0.append(lambda ks=ks, c=c: (A.wl(('km', ks if ks != 1 else 3)), A.i(f'v_mfma_f32_16x16x32_bf16 {vr(S0,4)}, {vr(KR+4*ks,4)}, {vr(QF+4*ks,4)}, {c}')))
    mix(A, s0, fx[:8], per=2)
    stamp('S0')
    for t in range(2):
        A.ds(f'ds_read_b128 {vr(VXF+4*t,4)}, v{vLW} offset:{L_VX-L_MEM+t*1024}', ('vx', t))
    for x in fx[8:]:
        emit(A, x)
    wz = [f'v_mov_b64 {vr(WD+r,2)}, 0' for r in range(0, 16, 2)]
    f = [f'v_cndmask_b32 v{S0}, v{S0}, v{S0+2}, s[{sHF}:{sHF+1}]', f'v_cndmask_b32 v{S0+1}, v{S0+1}, v{S0+3}, s[{sHF}:{sHF+1}]',
         r1(S0), r1(S0 + 1), f'v_mul_f32 v{S0}, s{sSCALE}, v{S0}', f'v_mul_f32 v{S0+1}, s{sSCALE}, v{S0+1}', r1(S0), r1(S0 + 1),
         f'v_max3_f32 v{T1}, v{SX+3}, v{S0}, v{S0+1}', f'v_max_f32 v{T0}, v{T0}, v{T1}',
         vstep, wz[0],
         f'v_max_f32_dpp v{T0}, v{T0}, v{T0} row_ror:8 row_mask:0xf bank_mask:0xf',
         f'v_mov_b32 v{T1}, v{T0}', vstep, wz[1], f'v_permlane32_swap_b32 v{T0}, v{T1}', f'v_max_f32 v{T0}, v{T0}, v{T1}',
         f'v_mov_b32 v{T1}, v{T0}', vstep, wz[2], f'v_permlane16_swap_b32 v{T0}, v{T1}', f'v_max_f32 v{T0}, v{T0}, v{T1}',
         f'v_mul_f32 v{T0}, s{sLOG2E}, v{T0}']
    vals = [SX, SX + 1, SX + 2, SX + 3, S0, S0 + 1]
    for a in vals:
        f += [f'v_fma_f32 v{a}, v{a}, s{sLOG2E}, -v{T0}', vstep]
    yr = frag_read(YS[3], 8 + 3, ('y', 3)) + frag_read(YS[4], 8 + 4, ('y', 4))
    f += [yr[0], vstep]
    f += [f'v_exp_f32 v{a}, v{a}' for a in vals]
    f += [f'v_pk_add_f32 {vr(T0,2)}, {vr(SX,2)}, {vr(SX+2,2)}', f'v_add_f32 v{T2}, v{S0}, v{S0+1}', f'v_add_f32 v{T0}, v{T0}, v{T1}',
          f'v_fma_f32 v{T0}, v{T2}, 0.5, v{T0}', vstep, wz[3],
          f'v_add_f32_dpp v{T0}, v{T0}, v{T0} row_ror:8 row_mask:0xf bank_mask:0xf',
          f'v_mov_b32 v{T1}, v{T0}', vstep, wz[4], f'v_permlane32_swap_b32 v{T0}, v{T1}', f'v_add_f32 v{T0}, v{T0}, v{T1}',
          f'v_mov_b32 v{T1}, v{T0}', vstep, wz[5], f'v_permlane16_swap_b32 v{T0}, v{T1}', f'v_add_f32 v{T0}, v{T0}, v{T1}',
          f'v_rcp_f32 v{T0}, v{T0}', yr[1]]
    f += [f'v_pk_mul_f32 {vr(a,2)}, {vr(a,2)}, {vr(T0,2)} op_sel_hi:[1,0]' for a in (SX, SX + 2, S0)]
    f += [f'v_cvt_pk_bf16_f32 v{P4}, v{SX}, v{SX+1}', f'v_cvt_pk_bf16_f32 v{P4+1}, v{SX+2}, v{SX+3}',
          f'v_cvt_pk_bf16_f32 v{T2}, v{S0}, v{S0+1}',
          f'v_mov_b32_dpp v{P4+2}, v{P4} row_ror:8 row_mask:0xf bank_mask:0xf',
          f'v_mov_b32_dpp v{P4+3}, v{P4+1} row_ror:8 row_mask:0xf bank_mask:0xf']
    for x in f:
        emit(A, x)
    assert vstate['f'] == 16, vstate
    pmv = [f'v_mov_b32_dpp v{PM0}, v{T2} quad_perm:[0,1,2,3] row_mask:0x3 bank_mask:0xf',
           f'v_mov_b32_dpp v{PM0+1}, v{T2} row_ror:8 row_mask:0x3 bank_mask:0xf',
           f'v_mov_b32_dpp v{PM1}, v{T2} quad_perm:[0,1,2,3] row_mask:0xc bank_mask:0xf',
           f'v_mov_b32_dpp v{PM1+1}, v{T2} row_ror:8 row_mask:0xc bank_mask:0xf']
    g = [f'v_permlane32_swap_b32 v{AV+r}, v{AV+4+r}' for r in range(4)]
    g += [f'v_pk_add_f32 {vr(AV,2)}, {vr(AV,2)}, {vr(AV+4,2)}', f'v_pk_add_f32 {vr(AV+2,2)}, {vr(AV+2,2)}, {vr(AV+6,2)}']
    g += [f'v_cvt_pk_bf16_f32 v{AV+4}, v{AV}, v{AV+1}', f'v_cvt_pk_bf16_f32 v{AV+5}, v{AV+2}, v{AV+3}']
    stamp('P')
    for x in g[:2]:
        emit(A, x)
    A.wl(('vx', 1))
    A.i(f'v_mfma_f32_16x16x32_bf16 {vr(OD,4)}, {vr(VXF,4)}, {vr(P4,4)}, 0')
    for x in g[2:4]:
        emit(A, x)
    A.i(f'v_mfma_f32_16x16x32_bf16 {vr(OD+4,4)}, {vr(VXF+4,4)}, {vr(P4,4)}, 0')
    for x in g[4:] + pmv:
        emit(A, x)
    A.i(f'v_mfma_f32_16x16x16_bf16 {vr(OD,4)}, {vr(AV+4,2)}, {vr(PM0,2)}, {vr(OD,4)}')
    A.i(f'v_mfma_f32_16x16x16_bf16 {vr(OD+4,4)}, {vr(AV+4,2)}, {vr(PM1,2)}, {vr(OD+4,4)}')
    A.ds(f'ds_write_b64 v{vVW}, {vr(AV+4,2)}', 'w')
    kv_wait(sS1, RC + 4, RC + 5)
    kv_dma(1)
    SEN = RC + 4
    for x in [yr[2], yr[3], wz[6], wz[7]] + ([] if early else [f'v_mov_b64 {vr(SEN,2)}, -1', f'v_mov_b64 {vr(SEN+2,2)}, -1']):
        emit(A, x)
    A.i(f's_mov_b64 exec, s[{sLF}:{sLF+1}]')
    for c in range(4):
        A.i(f'v_cvt_pk_bf16_f32 v{OP+c}, v{OD+c}, v{OD+4+c}')
    A.ds(f'ds_write_b128 v{vOW}, {vr(OP,4)}', 'w')
    A.i('s_mov_b64 exec, -1')
    if not early:
        A.i(f'buffer_store_dwordx4 {vr(SEN,4)}, v1, {WSR}, s{sRP} offen')
    A.i(f's_cmp_eq_u32 s{sS}, {nsteps-1}')
    A.wl_all()
    A.i('s_barrier')
    for ks in range(4):
        A.ds(f'ds_read_b128 {vr(OA+4*ks,4)}, v{vOR} offset:{ks*512}', ('o', ks))
    if not early:
        A.i(f'buffer_store_dwordx4 {vr(SEN,4)}, v1, {WSR}, s{sRP} offen offset:1024')
        A.i('s_mov_b64 exec, 0xffff')
        A.i(f'buffer_store_dwordx4 {vr(SEN,4)}, v1, {WSR}, s{sRM} offen')
        A.i('s_mov_b64 exec, -1')
    A.i(f's_cbranch_scc1 {Lfin}')
    kv_dma(0)
    stamp('Bd')
    for p in range(16):
        ks, cg = p >> 2, p & 3
        if p == 0:
            A.wl(('o', 0))
        if p == 4:
            A.wl(('o', 3))
        if p < 5:
            w = YS[p]
        elif p < 13:
            w = WOR + (p - 5) * 8
        else:
            w = YS[p - 13]
            if p == 13:
                A.wl(('y', 15))
        A.i(sm(WD + 4 * cg, OA + 4 * ks, w))
        if 1 <= p <= 6:
            k = (p - 1) >> 1
            frag_read(YS[k], 8 + 5 + k, ('y', 13 + k))[(p - 1) & 1]()
    for r in range(4):
        A.i(f'v_cvt_pk_bf16_f32 v{PK+2*r}, v{WD+r}, v{WD+4+r}')
    for r in range(4):
        A.i(f'v_cvt_pk_bf16_f32 v{PK+2*r+1}, v{WD+8+r}, v{WD+12+r}')
        if r == 1:
            A.i(f'buffer_store_dwordx4 {vr(PK,4)}, v{vPST}, {WSR}, s{sPC} offen')
    A.i(f'buffer_store_dwordx4 {vr(PK+4,4)}, v{vPST}, {WSR}, s{sPC2} offen')
    stamp('Wo')
    if prof:
        ts(5)
        A.i('s_waitcnt lgkmcnt(0)')
        for k in range(5):
            A.i(f's_sub_u32 s{sT0}, s{4+2*(k+1)}, s{4+2*k}')
            A.i(f's_cmp_gt_u32 s{sS}, 4')
            A.i(f's_cselect_b32 s{sT0}, s{sT0}, 0')
            A.i(f's_add_u32 s{20+k}, s{20+k}, s{sT0}')
        A.i('s_mov_b32 s4, s14')
    SELR, RS, HA, IMG = RA, RA + 4, RA + 16, RA + 12
    Lbe = A.newlabel('CHbe')
    A.ds(f'ds_read_b128 {vr(SELR,4)}, v{vL2} offset:{L_SEL-L_MEM}', 'sel')
    A.ds(f'ds_read_b128 {vr(IMG,4)}, v{vX2}', 'img')
    if sy.on:
        A.i('s_waitcnt vmcnt(9)')
        A.i(f'v_readfirstlane_b32 s{sKVS}, v{vT0}')
    sy.trace(A, RD, sS, imm=0, wave=3)
    pre_step()
    A.i(f's_add_u32 s{sT5}, s{sPC}, s{sH1}')
    A.i(f's_lshl_b32 s{sT3}, s{sW}, 11')
    A.i(f's_add_u32 s{sT3}, s{sT3}, s{sMC}')
    A.i(f's_mov_b32 s{sT4}, s{sMC}')

    def check(H, n):
        A.i(f'v_max3_u32 v{RS+4}, v{H}, v{H+1}, v{H+2}')
        for k in range(3, n - 1, 2):
            A.i(f'v_max3_u32 v{RS+4}, v{RS+4}, v{H+k}, v{H+k+1}')
        A.i(f'v_max_u32 v{RS+4}, v{RS+4}, v{H+n-1}')
        A.i(f'v_cmp_eq_u32 vcc, -1, v{RS+4}')
        A.i('s_cmp_lg_u64 vcc, 0')

    A.wl_all()
    A.i(f's_cmp_ge_u32 s{sW}, 2')
    A.i(f's_cbranch_scc1 {Lbe}')
    for _ in range(getattr(sy, 'd1', 1)):
        A.i('s_nop 15')
    Lp1 = A.newlabel('CHp1')
    A.label(Lp1)
    cnt(0)
    for L in range(4):
        A.i(f'buffer_load_dwordx4 {vr(HA+4*L,4)}, v1, {WSR}, s{sT5} offen offset:{L*1024} sc1')
    for L in range(4):
        A.i(f's_waitcnt vmcnt({3-L})')
        c = '0' if L == 0 else vr(RS, 4)
        A.i(f'v_mfma_f32_16x16x32_bf16 {vr(RS,4)}, {vr(SELR,4)}, {vr(HA+4*L,4)}, {c}')
    check(HA, 16)
    if 'nox' not in opts:
        A.i(f's_cbranch_scc1 {Lp1}')
    for r in range(4):
        A.i(f'v_add_f32_dpp v{RS+r}, v{RS+r}, v{RS+r} row_ror:8 row_mask:0xf bank_mask:0xf')
    A.i('s_mov_b64 exec, 0x00ff00ff')
    A.i(f'v_cvt_pk_bf16_f32 v{RS}, v{RS}, v{RS+1}')
    A.i(f'v_cvt_pk_bf16_f32 v{RS+1}, v{RS+2}, v{RS+3}')
    A.i(f'buffer_store_dwordx2 {vr(RS,2)}, v{vX1}, {WSR}, s{sT4} offen')
    A.i('s_mov_b64 exec, -1')
    A.label(Lbe)
    ts(1)
    A.i('s_barrier')
    ts(2)
    A.i(f's_lshl_b32 s{sT4}, s{sS}, 16')
    A.i(f's_add_u32 s{sT4}, s{sT4}, s{sOUT}')
    A.i(f's_add_u32 s{sS}, s{sS}, 1')
    step_scalars()
    for _ in range(getattr(sy, 'd2', 2)):
        A.i('s_nop 15')
    Lp2 = A.newlabel('CHp2')
    A.label(Lp2)
    cnt(1)
    for i in range(2):
        A.i(f'buffer_load_dwordx4 {vr(HA+4*i,4)}, v1, {WSR}, s{sT3} offen offset:{i*1024} sc1')
    for i in range(2):
        A.i(f's_waitcnt vmcnt({1-i})')
        A.i(f'ds_write_b128 v{vLW}, {vr(HA+4*i,4)} offset:{i*1024}')
    check(HA, 8)
    if 'nox' not in opts:
        A.i(f's_cbranch_scc1 {Lp2}')
    ts(3)
    A.i(f'buffer_store_dwordx4 {vr(IMG,4)}, v1, {WSR}, s{sT4} offen sc1')
    A.i('s_waitcnt lgkmcnt(0)')
    A.i(f's_branch {Ltop}')
    A.label(Lcut)
    A.i(f's_add_u32 s{sS}, s{sS}, 1')
    sy.trace(A, RD, sS, imm=0, wave=3)
    A.wl_all()
    A.i(f's_branch {Ltop}')
    A.i = _orig_i
    A.label(Lfin)
    if prof:
        A.i(f's_lshl_b32 s101, s{sW}, 6')
        A.i('s_add_u32 s101, s101, s100')
        A.i('s_mov_b64 exec, 1')
        for k in range(10):
            A.i(f'v_mov_b32 v{vT0}, s{20+k}')
            A.i(f'buffer_store_dword v{vT0}, off, {WSR}, s101 offset:{512+4*k}')
        A.i('s_mov_b64 exec, -1')
    A.i(f'ds_read_b128 {vr(RC,4)}, v{vX2}')
    A.i(f's_lshl_b32 s{sT4}, s{sS}, 16')
    A.i(f's_add_u32 s{sT4}, s{sT4}, s{sOUT}')
    A.i('s_waitcnt lgkmcnt(0)')
    A.i(f'buffer_store_dwordx4 {vr(RC,4)}, v1, {WSR}, s{sT4} offen sc1')
    if sy.on:
        A.i('s_waitcnt vmcnt(0)')
        A.i('s_barrier')
        A.i(f's_add_u32 s{sT0}, s{sS}, 1')
        A.i(f'v_mov_b32 v{vT0}, s{sT0}')
        A.i(f's_mov_b64 exec, s[{sIO}:{sIO+1}]')
        A.i(f'buffer_store_dword v{vT0}, off, {WSR}, s{sFLG} sc1')
        A.i('s_mov_b64 exec, -1')
    A.i(f's_branch {end}')
    for Lp, Lok, sseg, r0, r1 in slow:
        A.label(Lp)
        A.i(f'buffer_load_dword v{r0}, off, {WSR}, s{sKVF} sc1')
        A.i('s_waitcnt vmcnt(0)')
        A.i(f'v_readfirstlane_b32 s{sKVS}, v{r0}')
        A.i(f's_cmp_gt_u32 s{sKVS}, s{sseg}')
        A.i(f's_cbranch_scc1 {Lok}')
        A.i(f's_branch {Lp}')
```

```python
from asmdsl import *

H = 0x0000000
H2 = 0x0200000
X1 = 0x0400000
MOD = 0x0600000
FLAGS = 0x0610000
XM = 0x06F8000
XP = 0x0700000
KM = 0x0800000
VM = 0x0C00000
KX = 0x1000000
VT = 0x2000000
OB = 0x3000000
PART = 0x4000000
GU = 0x5000000
TRACE = 0x6000000
WS_BYTES = 0x10000000

FL = 128
F_TICKET = FLAGS + 0 * FL
F_H = FLAGS + 16 * FL
F_KV = FLAGS + 80 * FL
F_CH = FLAGS + 144 * FL
F_QA = FLAGS + 208 * FL
F_WO = FLAGS + 272 * FL
F_R = FLAGS + 304 * FL
F_F1 = FLAGS + 320 * FL

P_X, P_MEM0, P_WQ, P_WK, P_WV, P_WO, P_SEG, P_BX, P_WG, P_WU, P_WD, P_C, P_WMOD, P_OUT, P_DBG, P_WS = [4 + 2 * i for i in range(16)]
S_WS, S_A, S_B, S_C, S_D = 36, 40, 44, 48, 52
sR, sW, sS = 56, 57, 58
sT0, sT1, sT2, sT3, sT4, sT5 = 59, 60, 61, 62, 63, 64
SELLO, SELHI = 66, 67
sHIM = 68
sLOG2E = 69
sSCALE = 70

LOG2E = 0x3fb8aa3b
SCALE = 0x3db504f3


def srd(A, s, ptr, nbytes):
    A.i(f's_mov_b32 s{s}, s{ptr}')
    A.i(f's_and_b32 s{s+1}, s{ptr+1}, 0xffff')
    A.i(f's_mov_b32 s{s+2}, {nbytes:#x}')
    A.i(f's_mov_b32 s{s+3}, 0x20000')


def prologue(A, nwg, end_label):
    A.i(f's_cmp_ge_u32 s2, {nwg}')
    A.i(f's_cbranch_scc1 {end_label}')
    A.i('s_load_dwordx16 s[4:19], s[0:1], 0')
    A.i('s_load_dwordx16 s[20:35], s[0:1], 64')
    A.i('v_lshrrev_b32 v1, 6, v0')
    A.i(f'v_readfirstlane_b32 s{sW}, v1')
    A.i('v_and_b32 v0, 63, v0')
    A.i('v_lshlrev_b32 v1, 4, v0')
    A.i(f's_mov_b32 s{SELLO}, 0x05040100')
    A.i(f's_mov_b32 s{SELHI}, 0x07060302')
    A.i(f's_mov_b32 s{sHIM}, 0xffff0000')
    A.i(f's_mov_b32 s{sLOG2E}, {LOG2E:#x}')
    A.i(f's_mov_b32 s{sSCALE}, {SCALE:#x}')
    A.i('s_waitcnt lgkmcnt(0)')
    srd(A, S_WS, P_WS, WS_BYTES)
    for s in (S_A, S_B, S_C, S_D):
        srd(A, s, P_WS, WS_BYTES)


def unpack(A, lo, hi, src):
    A.i(f'v_lshlrev_b32 v{lo}, 16, v{src}')
    A.i(f'v_and_b32 v{hi}, s{sHIM}, v{src}')


def round2(A, a, b, tmp):
    A.i(f'v_cvt_pk_bf16_f32 v{tmp}, v{a}, v{b}')
    A.i(f'v_lshlrev_b32 v{a}, 16, v{tmp}')
    A.i(f'v_and_b32 v{b}, s{sHIM}, v{tmp}')


def move_to(A, dst_u, src_v):
    if dst_u >= 256:
        A.i(f'v_accvgpr_write_b32 a{dst_u-256}, v{src_v}')
    elif dst_u != src_v:
        A.i(f'v_mov_b32 v{dst_u}, v{src_v}')


def perm_to(A, dst_u, hi_src, lo_src, sel, tmp):
    if dst_u >= 256:
        A.i(f'v_perm_b32 v{tmp}, v{hi_src}, v{lo_src}, {sel}')
        A.i(f'v_accvgpr_write_b32 a{dst_u-256}, v{tmp}')
    else:
        A.i(f'v_perm_b32 v{dst_u}, v{hi_src}, v{lo_src}, {sel}')


def wave_sum(A, v, sdst):
    for sh in (1, 2, 4, 8):
        A.i(f'v_add_f32_dpp v{v}, v{v}, v{v} row_shr:{sh} row_mask:0xf bank_mask:0xf bound_ctrl:0')
    A.i(f'v_add_f32_dpp v{v}, v{v}, v{v} row_bcast:15 row_mask:0xa bank_mask:0xf')
    A.i(f'v_add_f32_dpp v{v}, v{v}, v{v} row_bcast:31 row_mask:0xc bank_mask:0xf')
    A.i(f'v_readlane_b32 s{sdst}, v{v}, 63')


class Sync:
    def __init__(self, enabled, trace=False):
        self.on = enabled
        self.tr = trace
        self.pub_base = 0

    def trace(self, A, vtmp, sidx=None, imm=0, wave=None, lim=None):
        if not self.tr:
            return
        L = None
        if wave is not None:
            L = A.newlabel('Ltr')
            A.i(f's_cmp_lg_u32 s{sW}, {wave}')
            A.i(f's_cbranch_scc1 {L}')
            if lim:
                A.i(f's_cmp_ge_u32 s{sidx}, {lim}')
                A.i(f's_cbranch_scc1 {L}')
        A.i('s_memrealtime s[98:99]')
        if sidx is not None:
            A.i(f's_lshl_b32 s101, s{sidx}, 2')
            A.i(f's_add_u32 s101, s101, s100')
        else:
            A.i('s_mov_b32 s101, s100')
        A.i('s_waitcnt lgkmcnt(0)')
        A.i(f'v_mov_b32 v{vtmp}, s98')
        A.i('s_mov_b64 exec, 1')
        A.i(f'buffer_store_dword v{vtmp}, off, s[{S_WS}:{S_WS+3}], s101 offset:{imm*4}')
        A.i('s_mov_b64 exec, -1')
        if L:
            A.label(L)

    def publish(self, A, vaddr, vtmp, sval):
        if not self.on:
            return
        A.i(f'v_mov_b32 v{vtmp}, s{sval}')
        A.i('s_mov_b64 exec, 1')
        A.i(f'buffer_store_dword v{vtmp}, v{vaddr}, s[{S_WS}:{S_WS+3}], 0 offen sc1')
        A.i('s_mov_b64 exec, -1')
        self.trace(A, vtmp, sval, imm=self.pub_base)

    def wait(self, A, vaddr, vtmp, sneed, sleep=1):
        if not self.on:
            return
        L = A.newlabel('Lw')
        L2 = A.newlabel('Lwd')
        A.label(L)
        A.i(f'buffer_load_dword v{vtmp}, v{vaddr}, s[{S_WS}:{S_WS+3}], 0 offen sc1')
        A.i('s_waitcnt vmcnt(0)')
        A.i(f'v_cmp_le_u32 vcc, s{sneed}, v{vtmp}')
        A.i('s_cmp_eq_u64 vcc, exec')
        A.i(f's_cbranch_scc1 {L2}')
        sleep = getattr(self, 'dsl', sleep)
        if sleep:
            A.i(f's_sleep {sleep}')
        A.i(f's_branch {L}')
        A.label(L2)
```

```python
from common import *
from roles import *

F_L = FLAGS + 272 * FL
NPX = 4


def role_post(A, sy, sX):
    WOW, F1W, F2W = 256, 384, 128
    VPC, VLW, VLR, VSTP, VFQ, VFL, VT_, VDMA = 2, 3, 4, 5, 6, 7, 8, 10
    VRD, VSTG, VST2, VLR2, VF3, V32, GB = 11, 19, 20, 21, 22, 23, 24
    CG = 240
    sKB, sPRT, sOSRC, sGUD, sGUS, sFB, sC28 = 72, 73, 74, 75, 76, 77, 78
    srd(A, S_A, P_WO, 4096 * 1024)
    srd(A, S_B, P_WG, 512 * 3584)
    srd(A, S_C, P_WU, 512 * 3584)
    srd(A, S_D, P_WD, 1792 * 1024)
    natural_setup(A, 28, 29, 1024, 30)
    A.i(f's_lshr_b32 s80, s{sR}, 3')
    A.i(f's_and_b32 s81, s{sR}, 7')
    A.i(f's_lshl_b32 s{sKB}, s80, 2')
    A.i(f's_add_u32 s{sKB}, s{sKB}, s{sW}')
    A.i(f's_lshl_b32 s82, s{sKB}, 18')
    A.i(f's_lshl_b32 s{sT0}, s81, 7')
    A.i(f's_add_u32 s82, s82, s{sT0}')
    load_weights(A, natural_units(S_A, 28, 82, 1024, 8, 4, WOW, 29), 64, 32, 30)
    natural_setup(A, 28, 29, 3584, 30)
    A.i(f's_min_u32 s{sC28}, s{sR}, 27')
    A.i(f's_lshl_b32 s82, s{sC28}, 7')
    A.i(f's_lshl_b32 s{sT0}, s{sW}, 5')
    A.i(f's_add_u32 s82, s82, s{sT0}')
    ug = natural_units(S_B, 28, 82, 3584, 16, 1, F1W, 29, tile_index=lambda ks, t: ks * 2)
    uu = natural_units(S_C, 28, 82, 3584, 16, 1, F1W, 29, tile_index=lambda ks, t: ks * 2 + 1)
    load_weights(A, ug + uu, 64, 32, 30)
    lane_woff(A, 28, 1024, 4, 30)
    A.i(f's_lshr_b32 s83, s{sR}, 1')
    A.i(f's_and_b32 s84, s{sR}, 1')
    A.i(f's_mul_i32 s82, s{sW}, {448*1024}')
    A.i(f's_lshl_b32 s{sT0}, s83, 6')
    A.i(f's_add_u32 s82, s82, s{sT0}')
    load_weights(A, paired_units(S_D, 28, 82, 1024, 14, F2W), 64, 32, 30)
    srd(A, S_A, P_X, 2048 * 1024)
    srd(A, S_B, P_OUT, 2048 * 1024)
    G, T = 28, 29
    A.i(f'v_lshrrev_b32 v{G}, 4, v0')
    A.i(f'v_and_b32 v{T}, 15, v0')
    A.i(f'v_lshlrev_b32 v{VPC}, 9, v{G}')
    A.i(f'v_lshl_add_u32 v{VPC}, v{T}, 4, v{VPC}')
    A.i(f'v_lshlrev_b32 v{V32}, 5, v0')
    A.i(f'v_lshlrev_b32 v{VSTP}, 11, v{T}')
    A.i(f'v_lshl_add_u32 v{VSTP}, v{G}, 4, v{VSTP}')
    A.i(f's_lshl_b32 s{sT0}, s81, 8')
    A.i(f's_lshl_b32 s{sT1}, s{sW}, 6')
    A.i(f's_add_u32 s{sT0}, s{sT0}, s{sT1}')
    A.i(f's_lshl_b32 s{sT1}, s80, 16')
    A.i(f's_add_u32 s{sT0}, s{sT0}, s{sT1}')
    A.i(f's_add_u32 s{sPRT}, s{sT0}, {PART:#x}')
    RED = 65536
    A.i(f's_lshl_b32 s{sT0}, s{sW}, 13')
    A.i(f's_add_u32 s{sT0}, s{sT0}, {RED}')
    A.i(f'v_add_u32 v{VLW}, s{sT0}, v1')
    A.i(f's_lshl_b32 s{sT0}, s{sW}, 11')
    A.i(f's_add_u32 s{sT0}, s{sT0}, {RED}')
    A.i(f'v_add_u32 v{VLR}, s{sT0}, v1')
    A.i(f'v_and_b32 v30, 1, v0')
    A.i(f'v_lshlrev_b32 v30, 8, v30')
    A.i(f's_lshl_b32 s{sT0}, s{sKB}, 9')
    A.i(f's_add_u32 s{sT0}, s{sT0}, {F_QA:#x}')
    A.i(f'v_add_u32 v{VFQ}, s{sT0}, v30')
    A.i(f's_lshl_b32 s{sOSRC}, s{sKB}, 14')
    A.i(f's_add_u32 s{sOSRC}, s{sOSRC}, {OB:#x}')
    A.i(f's_mul_i32 s{sFB}, s{sX}, {96*FL}')
    A.i(f's_add_u32 s{sFB}, s{sFB}, {F_L:#x}')
    A.i(f'v_and_b32 v{VFL}, 31, v0')
    A.i(f'v_lshlrev_b32 v{VFL}, 7, v{VFL}')
    A.i(f'v_add_u32 v{VFL}, s{sFB}, v{VFL}')
    A.i(f'v_and_b32 v{VF3}, 7, v0')
    A.i(f'v_min_u32 v{VF3}, 6, v{VF3}')
    A.i(f'v_lshlrev_b32 v{VF3}, 7, v{VF3}')
    A.i(f's_mul_i32 s{sT0}, s{sW}, {7*FL}')
    A.i(f's_add_u32 s{sT0}, s{sT0}, s{sFB}')
    A.i(f's_add_u32 s{sT0}, s{sT0}, {64*FL}')
    A.i(f'v_add_u32 v{VF3}, s{sT0}, v{VF3}')
    A.i(f's_lshl_b32 s{sT0}, s{sR}, 7')
    A.i(f's_add_u32 s{sFB}, s{sFB}, s{sT0}')
    t1_setup(A, VDMA, VRD)
    A.i(f'v_lshrrev_b32 v{VSTG}, 5, v0')
    A.i(f'v_lshlrev_b32 v{VSTG}, 9, v{VSTG}')
    A.i(f'v_lshl_add_u32 v{VSTG}, v{T}, 4, v{VSTG}')
    A.i(f'v_bfe_u32 v30, v0, 4, 1')
    A.i(f'v_lshl_add_u32 v{VSTG}, v30, 3, v{VSTG}')
    A.i(f's_lshl_b32 s{sGUD}, s{sC28}, 12')
    A.i(f's_lshl_b32 s{sT0}, s{sW}, 10')
    A.i(f's_add_u32 s{sGUD}, s{sGUD}, s{sT0}')
    A.i(f's_add_u32 s{sGUD}, s{sGUD}, {GU:#x}')
    A.i(f'v_lshlrev_b32 v{VST2}, 10, v{T}')
    A.i(f'v_lshl_add_u32 v{VST2}, v{G}, 4, v{VST2}')
    A.i(f's_lshl_b32 s{sT0}, s84, 14')
    A.i(f's_lshl_b32 s{sT1}, s83, 6')
    A.i(f's_add_u32 s{sT0}, s{sT0}, s{sT1}')
    A.i(f's_lshl_b32 s{sT1}, s{sW}, 2')
    A.i(f's_add_u32 s{sT0}, s{sT0}, s{sT1}')
    A.i(f'v_add_u32 v{VST2}, s{sT0}, v{VST2}')
    A.i(f's_add_u32 s{sT0}, s{sT1}, {RED}')
    A.i(f'v_add_u32 v{VLR2}, s{sT0}, v1')
    A.i(f's_mul_i32 s{sGUS}, s{sW}, {56*512}')
    A.i(f's_lshl_b32 s{sT0}, s84, 8')
    A.i(f's_add_u32 s{sGUS}, s{sGUS}, s{sT0}')
    A.i(f's_add_u32 s{sGUS}, s{sGUS}, {GU:#x}')
    A.i(f'v_lshlrev_b32 v30, 5, v{G}')
    A.i(f's_lshl_b32 s{sT0}, s83, 7')
    A.i(f's_lshl_b32 s{sT1}, s{sW}, 3')
    A.i(f's_add_u32 s{sT0}, s{sT0}, s{sT1}')
    A.i(f's_add_u32 s{sT0}, s{sT0}, {MOD + 5*2048:#x}')
    A.i(f'buffer_load_dwordx2 {vr(GB,2)}, v30, {WSR}, s{sT0} offen sc1')
    SBL = 131072
    for dst, which in ((CG, 2), (CG + 8, 4), (32, 3)):
        A.i(f's_mov_b32 s{sT0}, {MOD + which*2048:#x}')
        A.i(f'buffer_load_dwordx4 {vr(dst,4)}, v{V32}, {WSR}, s{sT0} offen sc1')
        A.i(f'buffer_load_dwordx4 {vr(dst+4,4)}, v{V32}, {WSR}, s{sT0} offen offset:16 sc1')
    A.i('s_waitcnt vmcnt(0)')
    one_plus(A, CG + 8, VT_)
    A.i(f'v_add_u32 v26, {SBL}, v{V32}')
    A.i('ds_write_b128 v26, v[32:35]')
    A.i('ds_write_b128 v26, v[36:39] offset:16')
    A.i('s_waitcnt lgkmcnt(0)')
    A.i(f's_mov_b32 s{sS}, s{sX}')

    def lpublish(stage):
        Ls = A.newlabel('PSpub')
        A.i(f's_cmp_lg_u32 s{sW}, 0')
        A.i(f's_cbranch_scc1 {Ls}')
        A.i(f'v_mov_b32 v{VT_}, s{sT2}')
        A.i(f's_add_u32 s{sT0}, s{sFB}, {stage*32*FL}')
        A.i('s_mov_b64 exec, 1')
        A.i(f'buffer_store_dword v{VT_}, off, {WSR}, s{sT0}')
        A.i('s_mov_b64 exec, -1')
        sy.trace(A, VT_, sS, imm=1 + 64 * stage)
        A.label(Ls)

    def lwait(vaddr, off):
        L, L2 = A.newlabel('PSw'), A.newlabel('PSwd')
        A.i(f's_mov_b32 s{sT0}, {off}')
        A.label(L)
        A.i(f'buffer_load_dword v{VT_}, v{vaddr}, {WSR}, s{sT0} offen sc1')
        A.i('s_waitcnt vmcnt(0)')
        A.i(f'v_cmp_le_u32 vcc, s{sT2}, v{VT_}')
        A.i('s_cmp_eq_u64 vcc, exec')
        A.i(f's_cbranch_scc0 {L}')

    Ltop = A.newlabel('PStop')
    A.label(Ltop)
    A.i(f's_add_u32 s{sT2}, s{sS}, 1')
    XF, D, RD_ = 32, 96, 32
    A.i(f's_lshl_b32 s79, s{sS}, 5')
    A.i(f's_add_u32 s79, s79, s{sR}')
    A.i(f's_lshl_b32 s79, s79, 10')
    A.i(f'buffer_load_dwordx4 v[28:31], v1, s[{S_A}:{S_A+3}], s79 offen')
    if sy.on:
        A.i(f's_and_b32 s{sT0}, s{sS}, 1')
        A.i(f's_lshl_b32 s{sT0}, s{sT0}, 7')
        A.i(f'v_add_u32 v27, s{sT0}, v{VFQ}')
        sy.wait(A, 27, VT_, sT2)
    A.i(f's_lshl_b32 s{sT0}, s{sS}, 18')
    A.i(f's_add_u32 s{sT0}, s{sT0}, s{sOSRC}')
    for ks in range(8):
        if ks and (ks & 1) == 0:
            A.i(f's_add_u32 s{sT0}, s{sT0}, 4096')
        for tt in range(2):
            A.i(f'buffer_load_dwordx4 {vr(XF+(ks*2+tt)*4,4)}, v{VPC}, {WSR}, s{sT0} offen offset:{(ks&1)*2048+tt*256} sc1')
    for ks in range(8):
        A.i(f's_waitcnt vmcnt({14-2*ks})')
        for t in range(4):
            for tt in range(2):
                d = vr(D + (t * 2 + tt) * 4, 4)
                c = '0' if ks == 0 else d
                A.i(f'v_mfma_f32_16x16x32_bf16 {d}, {ur(WOW+(ks*4+t)*4,4)}, {vr(XF+(ks*2+tt)*4,4)}, {c}')
    for q in range(8):
        A.i(f'ds_write_b128 v{VLW}, {vr(D+q*4,4)} offset:{q*1024}')
    A.i('s_waitcnt lgkmcnt(0)')
    A.i('s_barrier')
    for u in range(2):
        for w2 in range(4):
            A.i(f'ds_read_b128 {vr(RD_+(u*4+w2)*4,4)}, v{VLR} offset:{w2*8192+u*1024}')
    A.i(f's_lshl_b32 s{sT0}, s{sS}, 18')
    A.i(f's_add_u32 s{sT0}, s{sT0}, s{sPRT}')
    A.i(f's_add_u32 s{sT1}, s{sT0}, {16*2048}')
    for u in range(2):
        A.i(f's_waitcnt lgkmcnt({4-4*u})')
        b = RD_ + u * 16
        for r in (0, 2):
            A.i(f'v_pk_add_f32 {vr(b+r,2)}, {vr(b+r,2)}, {vr(b+4+r,2)}')
            A.i(f'v_pk_add_f32 {vr(b+8+r,2)}, {vr(b+8+r,2)}, {vr(b+12+r,2)}')
        for r in (0, 2):
            A.i(f'v_pk_add_f32 {vr(b+r,2)}, {vr(b+r,2)}, {vr(b+8+r,2)}')
        A.i(f'buffer_store_dwordx4 {vr(b,4)}, v{VSTP}, {WSR}, s{sT0 if u == 0 else sT1} offen')
    A.i('s_waitcnt vmcnt(0)')
    A.i('s_barrier')
    lpublish(0)
    Lf1 = A.newlabel('PSf1')
    A.i(f's_cmp_lg_u32 s{sW}, 1')
    A.i(f's_cbranch_scc1 {Lf1}')
    X, TT_, PK, PT, SH = 32, 40, 52, 64, 96
    A.i(f'ds_read_b128 {vr(SH,4)}, v26')
    A.i(f'ds_read_b128 {vr(SH+4,4)}, v26 offset:16')
    lwait(VFL, 0)
    A.i(f's_lshl_b32 s{sT0}, s{sS}, 18')
    A.i(f's_lshl_b32 s{sT1}, s{sR}, 11')
    A.i(f's_add_u32 s{sT0}, s{sT0}, s{sT1}')
    A.i(f's_add_u32 s{sT0}, s{sT0}, {PART:#x}')
    for kq in range(4):
        if kq:
            A.i(f's_add_u32 s{sT0}, s{sT0}, 0x10000')
        A.i(f'buffer_load_dwordx4 {vr(PT+kq*8,4)}, v{V32}, {WSR}, s{sT0} offen sc1')
        A.i(f'buffer_load_dwordx4 {vr(PT+kq*8+4,4)}, v{V32}, {WSR}, s{sT0} offen offset:16 sc1')
    for j in range(4):
        unpack(A, X + 2 * j, X + 2 * j + 1, 28 + j)
    A.i('s_waitcnt vmcnt(0) lgkmcnt(0)')
    for j in range(0, 8, 2):
        A.i(f'v_pk_add_f32 {vr(PT+j,2)}, {vr(PT+j,2)}, {vr(PT+8+j,2)}')
        A.i(f'v_pk_add_f32 {vr(PT+16+j,2)}, {vr(PT+16+j,2)}, {vr(PT+24+j,2)}')
    for j in range(0, 8, 2):
        A.i(f'v_pk_add_f32 {vr(PT+j,2)}, {vr(PT+j,2)}, {vr(PT+16+j,2)}')
    for j in range(8):
        A.i(f'v_cvt_pk_bf16_f32 v{PT+j}, 0, v{PT+j}')
    for j in range(8):
        A.i(f'v_mul_f32 v{PT+j}, v{PT+j}, v{CG+j}')
    for j in range(8):
        A.i(f'v_cvt_pk_bf16_f32 v{PT+j}, 0, v{PT+j}')
    for j in range(8):
        A.i(f'v_add_f32 v{X+j}, v{X+j}, v{PT+j}')
    for j in range(4):
        A.i(f'v_cvt_pk_bf16_f32 v{28+j}, v{X+2*j}, v{X+2*j+1}')
    A.i(f's_add_u32 s{sT0}, s79, {X1:#x}')
    A.i(f'buffer_store_dwordx4 v[28:31], v1, {WSR}, s{sT0} offen')
    for j in range(8):
        A.i(f'v_cvt_pk_bf16_f32 v{X+j}, 0, v{X+j}')
    ln_core(A, X, TT_, CG + 8, SH, PK)
    A.i(f's_add_u32 s{sT0}, s79, {H2:#x}')
    A.i(f'buffer_store_dwordx4 {vr(PK,4)}, v1, {WSR}, s{sT0} offen')
    A.i('s_waitcnt vmcnt(0)')
    A.i(f'v_mov_b32 v{VT_}, s{sT2}')
    A.i(f's_add_u32 s{sT0}, s{sFB}, {32*FL}')
    A.i('s_mov_b64 exec, 1')
    A.i(f'buffer_store_dword v{VT_}, off, {WSR}, s{sT0}')
    A.i('s_mov_b64 exec, -1')
    sy.trace(A, VT_, sS, imm=1 + 64)
    A.label(Lf1)
    Lf2 = A.newlabel('PSf2')
    A.i(f's_cmp_ge_u32 s{sR}, 28')
    A.i(f's_cbranch_scc1 {Lf2}')
    A.i(f'v_and_b32 v27, 7, v0')
    A.i(f'v_lshlrev_b32 v27, 7, v27')
    A.i(f's_lshl_b32 s{sT1}, s{sR}, 7')
    A.i(f's_sub_u32 s{sT1}, s{sFB}, s{sT1}')
    A.i(f's_lshl_b32 s{sT0}, s{sW}, 10')
    A.i(f's_add_u32 s{sT1}, s{sT1}, s{sT0}')
    A.i(f'v_add_u32 v27, s{sT1}, v27')
    lwait(27, 32 * FL)
    A.i(f's_lshl_b32 s85, s{sS}, 15')
    A.i(f's_add_u32 s85, s85, {H2:#x}')
    A.i('s_mov_b32 s86, 0')
    t1_dma(A, VDMA, VT_, 85, 86)
    A.i('s_waitcnt vmcnt(0)')
    A.i('s_barrier')
    XF1, D1, PK1, T1 = 32, 64, 80, 88
    t1_compute(A, VRD, VRD, XF1, F1W, D1, swapped=True)
    g = [D1 + i for i in range(8)]
    u = [D1 + 8 + i for i in range(8)]
    for k in range(8):
        A.i(f'v_cvt_pk_bf16_f32 v{g[k]}, 0, v{g[k]}')
    for k in range(8):
        A.i(f'v_mul_f32 v{T1+k}, s{sLOG2E}, v{g[k]}')
    for k in range(8):
        A.i(f'v_exp_f32 v{T1+k}, -v{T1+k}')
    for k in range(8):
        A.i(f'v_cvt_pk_bf16_f32 v{u[k]}, 0, v{u[k]}')
    for k in range(8):
        A.i(f'v_add_f32 v{T1+k}, 1.0, v{T1+k}')
    for k in range(8):
        A.i(f'v_rcp_f32 v{T1+k}, v{T1+k}')
    for k in range(8):
        A.i(f'v_mul_f32 v{g[k]}, v{g[k]}, v{T1+k}')
    for k in range(8):
        A.i(f'v_cvt_pk_bf16_f32 v{g[k]}, 0, v{g[k]}')
    for k in range(8):
        A.i(f'v_mul_f32 v{g[k]}, v{g[k]}, v{u[k]}')
    for k in range(4):
        A.i(f'v_cvt_pk_bf16_f32 v{PK1+k}, v{g[2*k]}, v{g[2*k+1]}')
    A.i(f's_mul_i32 s{sT0}, s{sS}, 114688')
    A.i(f's_add_u32 s{sT0}, s{sT0}, s{sGUD}')
    for tt in range(2):
        A.i(f'buffer_store_dwordx2 {vr(PK1+2*tt,2)}, v{VSTG}, {WSR}, s{sT0} offen offset:{tt*256}')
    A.i('s_waitcnt vmcnt(0)')
    A.i('s_barrier')
    lpublish(2)
    A.label(Lf2)
    XF2, D2, R2, XR = 32, 96, 104, 112
    lwait(VF3, 0)
    A.i(f's_mul_i32 s{sT0}, s{sS}, 114688')
    A.i(f's_add_u32 s{sT0}, s{sT0}, s{sGUS}')
    for ks in range(14):
        if ks and (ks & 1) == 0:
            A.i(f's_add_u32 s{sT0}, s{sT0}, 4096')
        A.i(f'buffer_load_dwordx4 {vr(XF2+ks*4,4)}, v{VPC}, {WSR}, s{sT0} offen offset:{(ks&1)*2048} sc1')
    A.i(f's_lshl_b32 s85, s{sS}, 15')
    A.i(f's_add_u32 s{sT0}, s85, {X1:#x}')
    A.i(f'buffer_load_dword v{XR}, v{VST2}, {WSR}, s{sT0} offen sc1')
    for ks in range(14):
        A.i(f's_waitcnt vmcnt({14-ks})')
        for t in range(2):
            d = vr(D2 + t * 4, 4)
            c = '0' if ks == 0 else d
            A.i(f'v_mfma_f32_16x16x32_bf16 {d}, {ur(F2W+(ks*2+t)*4,4)}, {vr(XF2+ks*4,4)}, {c}')
    for t in range(2):
        A.i(f'ds_write_b128 v{VLW}, {vr(D2+t*4,4)} offset:{t*1024}')
    A.i('s_waitcnt lgkmcnt(0)')
    A.i('s_barrier')
    for t in range(2):
        for w2 in range(4):
            A.i(f'ds_read_b32 v{R2+t*4+w2}, v{VLR2} offset:{w2*8192+t*1024}')
    A.i('s_waitcnt vmcnt(0) lgkmcnt(0)')
    A.i('s_barrier')
    for t in range(2):
        b = R2 + t * 4
        A.i(f'v_pk_add_f32 {vr(b,2)}, {vr(b,2)}, {vr(b+2,2)}')
        A.i(f'v_add_f32 v{b}, v{b}, v{b+1}')
    f = [R2, R2 + 4]
    for k in range(2):
        A.i(f'v_cvt_pk_bf16_f32 v{f[k]}, 0, v{f[k]}')
    for k in range(2):
        A.i(f'v_mul_f32 v{f[k]}, v{f[k]}, v{GB+k}')
    for k in range(2):
        A.i(f'v_cvt_pk_bf16_f32 v{f[k]}, 0, v{f[k]}')
    unpack(A, R2 + 1, R2 + 2, XR)
    A.i(f'v_add_f32 v{f[0]}, v{f[0]}, v{R2+1}')
    A.i(f'v_add_f32 v{f[1]}, v{f[1]}, v{R2+2}')
    A.i(f'v_cvt_pk_bf16_f32 v{XR}, v{f[0]}, v{f[1]}')
    A.i(f'buffer_store_dword v{XR}, v{VST2}, s[{S_B}:{S_B+3}], s85 offen')
    sy.trace(A, VT_, sS, imm=1 + 192 - 1, wave=0)
    A.i(f's_add_u32 s{sS}, s{sS}, {NPX}')
    A.i(f's_cmp_lt_u32 s{sS}, 64')
    A.i(f's_cbranch_scc1 {Ltop}')
```

```python
from common import *

WSR = f's[{S_WS}:{S_WS+3}]'


def load_weights(A, units, tmp0, batch_regs, ptmp):
    batches = []
    cur, used = [], 0
    for u in units:
        w = u[5]
        if used + 2 * w > batch_regs or len(cur) >= 15:
            batches.append(cur)
            cur, used = [], 0
        cur.append((u, used))
        used += 2 * w
    if cur:
        batches.append(cur)

    def issue(bi):
        base = tmp0 + (bi & 1) * batch_regs
        for (srd_s, voff, sbase, off0, off1, w, outs), at in batches[bi]:
            for k, off in enumerate((off0, off1)):
                A.i(f's_add_u32 s{sT0}, s{sbase}, {off:#x}')
                mn = {1: 'buffer_load_dword', 2: 'buffer_load_dwordx2', 4: 'buffer_load_dwordx4'}[w]
                A.i(f'{mn} {vr(base + at + k * w, w)}, v{voff}, s[{srd_s}:{srd_s+3}], s{sT0} offen')

    issue(0)
    for bi in range(len(batches)):
        if bi + 1 < len(batches):
            issue(bi + 1)
            A.i(f's_waitcnt vmcnt({2 * len(batches[bi + 1])})')
        else:
            A.i('s_waitcnt vmcnt(0)')
        base = tmp0 + (bi & 1) * batch_regs
        for (srd_s, voff, sbase, off0, off1, w, outs), at in batches[bi]:
            for n, (dst, dw, sel) in enumerate(outs):
                if callable(dst):
                    dst(base + at + w + dw, base + at + dw, sel)
                else:
                    perm_to(A, dst, base + at + w + dw, base + at + dw, sel, ptmp + (n & 1))


def role_init(A, end):
    Lfill = A.newlabel('Lfill')
    A.i(f's_cmp_ge_u32 s2, 48')
    A.i(f's_cbranch_scc1 {Lfill}')
    srd(A, S_A, P_C, 1024)
    srd(A, S_B, P_WMOD, 512 * 6144)
    A.i(f's_lshl_b32 s{sT0}, s{sW}, 6')
    A.i(f'v_add_u32 v2, s{sT0}, v0')
    A.i('v_and_b32 v3, 7, v2')
    A.i('v_lshrrev_b32 v4, 3, v2')
    A.i('v_lshlrev_b32 v5, 5, v4')
    A.i(f'buffer_load_dwordx4 v[8:11], v5, s[{S_A}:{S_A+3}], 0 offen')
    A.i(f'buffer_load_dwordx4 v[12:15], v5, s[{S_A}:{S_A+3}], 0 offen offset:16')
    A.i(f's_mov_b32 s{sT1}, {16*6144}')
    A.i(f'v_mul_lo_u32 v6, v4, s{sT1}')
    A.i('v_lshl_add_u32 v6, v3, 4, v6')
    A.i(f's_lshl_b32 s{sT1}, s2, 7')
    for i in range(16):
        A.i(f's_add_u32 s{sT0}, s{sT1}, {i*6144}')
        A.i(f'buffer_load_dwordx4 v[{64+4*i}:{67+4*i}], v6, s[{S_B}:{S_B+3}], s{sT0} offen')
    A.i('s_waitcnt vmcnt(16)')
    for i in range(8):
        unpack(A, 16 + 2 * i, 17 + 2 * i, 8 + i)
    for i in range(16):
        A.i(f'v_mul_f32 v{32+i}, s{sLOG2E}, v{16+i}')
    for i in range(16):
        A.i(f'v_exp_f32 v{32+i}, -v{32+i}')
    for i in range(16):
        A.i(f'v_add_f32 v{32+i}, 1.0, v{32+i}')
    for i in range(16):
        A.i(f'v_rcp_f32 v{32+i}, v{32+i}')
    for i in range(16):
        A.i(f'v_mul_f32 v{16+i}, v{16+i}, v{32+i}')
    for i in range(8):
        round2(A, 16 + 2 * i, 17 + 2 * i, 48)
    for j in range(8):
        A.i(f'v_mov_b32 v{32+j}, 0')
    for i in range(16):
        A.i(f's_waitcnt vmcnt({15-i})')
        for d in range(4):
            unpack(A, 48, 49, 64 + 4 * i + d)
            A.i(f'v_fmac_f32 v{32+2*d}, v{16+i}, v48')
            A.i(f'v_fmac_f32 v{33+2*d}, v{16+i}, v49')
    A.i('v_lshlrev_b32 v5, 8, v4')
    A.i('v_lshl_add_u32 v5, v3, 5, v5')
    A.i('ds_write_b128 v5, v[32:35]')
    A.i('ds_write_b128 v5, v[36:39] offset:16')
    A.i('s_waitcnt lgkmcnt(0)')
    A.i('s_barrier')
    A.i(f's_cmp_lg_u32 s{sW}, 0')
    A.i(f's_cbranch_scc1 {end}')
    A.i('v_lshlrev_b32 v5, 2, v0')
    for i in range(32):
        A.i(f'ds_read_b32 v{64+i}, v5 offset:{i*256}')
        if i == 14 or i == 29:
            A.i('s_waitcnt lgkmcnt(0)')
    A.i('s_waitcnt lgkmcnt(0)')
    for st in (16, 8, 4, 2, 1):
        for i in range(st):
            A.i(f'v_add_f32 v{64+i}, v{64+i}, v{64+st+i}')
    A.i('v_cvt_pk_bf16_f32 v64, v64, v64')
    A.i('v_lshlrev_b32 v64, 16, v64')
    A.i(f's_lshl_b32 s{sT0}, s2, 8')
    A.i(f's_add_u32 s{sT0}, s{sT0}, {MOD:#x}')
    A.i(f'buffer_store_dword v64, v5, {WSR}, s{sT0} offen')
    A.i(f's_branch {end}')
    A.label(Lfill)
    A.i(f's_sub_u32 s{sT0}, s2, 48')
    A.i(f's_lshl_b32 s{sT1}, s{sT0}, 14')
    A.i(f's_add_u32 s{sT2}, s{sT1}, {XM:#x}')
    A.i(f's_add_u32 s{sT3}, s{sT1}, {FLAGS - 66*16384:#x}')
    A.i(f's_cmp_lt_u32 s{sT0}, 66')
    A.i(f's_cselect_b32 s{sT2}, s{sT2}, s{sT3}')
    A.i(f's_cselect_b32 s{sT3}, -1, 0')
    A.i(f's_lshl_b32 s{sT1}, s{sW}, 12')
    A.i(f's_add_u32 s{sT2}, s{sT2}, s{sT1}')
    for i in range(4):
        A.i(f'v_mov_b32 v{4+i}, s{sT3}')
    for i in range(4):
        A.i(f'buffer_store_dwordx4 v[4:7], v1, {WSR}, s{sT2} offen offset:{i*1024}')
    A.i(f's_branch {end}')


def load_mod8(A, dst, which):
    A.i(f's_mov_b32 s{sT0}, {MOD + which*2048:#x}')
    A.i(f'buffer_load_dwordx4 v[{dst}:{dst+3}], v2, {WSR}, s{sT0} offen sc1')
    A.i(f'buffer_load_dwordx4 v[{dst+4}:{dst+7}], v2, {WSR}, s{sT0} offen offset:16 sc1')


def one_plus(A, c, tmp):
    for j in range(8):
        A.i(f'v_add_f32 v{c+j}, 1.0, v{c+j}')
    for j in range(4):
        round2(A, c + 2 * j, c + 2 * j + 1, tmp)


def ln_core(A, x, t, c1, sh, out):
    A.i(f'v_add_f32 v{t}, v{x}, v{x+1}')
    A.i(f'v_add_f32 v{t+1}, v{x+2}, v{x+3}')
    A.i(f'v_add_f32 v{t+2}, v{x+4}, v{x+5}')
    A.i(f'v_add_f32 v{t+3}, v{x+6}, v{x+7}')
    A.i(f'v_add_f32 v{t}, v{t}, v{t+1}')
    A.i(f'v_add_f32 v{t+2}, v{t+2}, v{t+3}')
    A.i(f'v_add_f32 v{t}, v{t}, v{t+2}')
    wave_sum(A, t, sT4)
    A.i(f'v_mov_b32 v{t+8}, 0x3b000000')
    A.i(f'v_mul_f32 v{t+9}, s{sT4}, v{t+8}')
    for j in range(8):
        A.i(f'v_sub_f32 v{t+j}, v{x+j}, v{t+9}')
    A.i(f'v_mul_f32 v{t}, v{t}, v{t}')
    A.i(f'v_mul_f32 v{t+1}, v{t+1}, v{t+1}')
    for j in range(2, 8):
        A.i(f'v_fmac_f32 v{t+(j&1)}, v{t+j}, v{t+j}')
    A.i(f'v_add_f32 v{t}, v{t}, v{t+1}')
    wave_sum(A, t, sT4)
    A.i(f'v_mul_f32 v{t+8}, s{sT4}, v{t+8}')
    round2(A, t + 8, t + 9, t)
    A.i(f'v_add_f32 v{t+8}, 0x3727c5ac, v{t+8}')
    A.i(f'v_cvt_pk_bf16_f32 v{t+8}, v{t+8}, v{t+8}')
    A.i(f'v_lshlrev_b32 v{t+8}, 16, v{t+8}')
    A.i(f'v_sqrt_f32 v{t+8}, v{t+8}')
    A.i(f'v_cvt_pk_bf16_f32 v{t+8}, v{t+8}, v{t+8}')
    A.i(f'v_lshlrev_b32 v{t+8}, 16, v{t+8}')
    A.i(f'v_rcp_f32 v{t+8}, v{t+8}')
    for j in range(8):
        A.i(f'v_sub_f32 v{x+j}, v{x+j}, v{t+9}')
    for j in range(4):
        round2(A, x + 2 * j, x + 2 * j + 1, t + j)
    for j in range(8):
        A.i(f'v_mul_f32 v{x+j}, v{x+j}, v{t+8}')
    for j in range(4):
        round2(A, x + 2 * j, x + 2 * j + 1, t + j)
    for j in range(8):
        A.i(f'v_mul_f32 v{x+j}, v{x+j}, v{c1+j}')
    for j in range(4):
        round2(A, x + 2 * j, x + 2 * j + 1, t + j)
    for j in range(8):
        A.i(f'v_add_f32 v{x+j}, v{x+j}, v{sh+j}')
    for j in range(4):
        A.i(f'v_cvt_pk_bf16_f32 v{out+j}, v{x+2*j}, v{x+2*j+1}')


def role_ln1(A, sy, sidx):
    srd(A, S_A, P_X, 2048 * 1024)
    A.i('v_lshlrev_b32 v2, 5, v0')
    A.i(f's_lshl_b32 s{sT1}, s{sidx}, 2')
    A.i(f's_add_u32 s{sT1}, s{sT1}, s{sW}')
    A.i(f's_lshl_b32 s{sT1}, s{sT1}, 10')
    load_mod8(A, 8, 1)
    load_mod8(A, 16, 0)
    for q in range(8):
        A.i(f's_add_u32 s{sT0}, s{sT1}, {q*256*1024:#x}')
        A.i(f'buffer_load_dwordx4 v[{64+4*q}:{67+4*q}], v1, s[{S_A}:{S_A+3}], s{sT0} offen')
    A.i(f's_lshl_b32 s{sT0}, s{sidx}, 7')
    A.i(f's_add_u32 s{sT0}, s{sT0}, {F_H:#x}')
    A.i(f'v_mov_b32 v3, s{sT0}')
    A.i('s_waitcnt vmcnt(8)')
    one_plus(A, 8, 4)
    for q in range(8):
        if q == 0:
            A.i('s_waitcnt vmcnt(7)')
        elif q == 1:
            A.i('s_waitcnt vmcnt(0)')
        for j in range(4):
            unpack(A, 24 + 2 * j, 25 + 2 * j, 64 + 4 * q + j)
        ln_core(A, 24, 32, 8, 16, 44 + 4 * (q & 1))
        A.i(f's_add_u32 s{sT0}, s{sT1}, {H + q*256*1024:#x}')
        A.i(f'buffer_store_dwordx4 v[{44+4*(q&1)}:{47+4*(q&1)}], v1, {WSR}, s{sT0} offen sc1')
        if sy.on and q in (0, 3, 7):
            A.i('s_waitcnt vmcnt(0)')
            A.i('s_barrier')
            Ls = A.newlabel('Lln')
            A.i(f's_cmp_lg_u32 s{sW}, 0')
            A.i(f's_cbranch_scc1 {Ls}')
            A.i(f's_mov_b32 s{sT0}, {q+1}')
            sy.publish(A, 3, 4, sT0)
            A.label(Ls)


XB0 = 0
XBS = 32768


def t1_setup(A, vdma, vrd, swap_odd=False):
    A.i(f's_and_b32 s{sT0}, s{sW}, 1')
    A.i(f's_lshl_b32 s{sT1}, s{sT0}, 7')
    A.i(f'v_xor_b32 v{vdma}, s{sT1}, v1')
    A.i(f'v_and_b32 v{vrd+7}, 15, v0')
    A.i(f'v_lshrrev_b32 v{vrd+6}, 4, v0')
    A.i(f'v_xor_b32 v{vrd+6}, v{vrd+6}, v{vrd+7}')
    A.i(f'v_lshlrev_b32 v{vrd+6}, 4, v{vrd+6}')
    A.i(f'v_lshl_or_b32 v{vrd+7}, v{vrd+7}, 10, v{vrd+6}')
    if swap_odd:
        A.i(f's_lshl_b32 s{sT1}, s{sT0}, 14')
        A.i(f'v_xor_b32 v{vrd+7}, s{sT1}, v{vrd+7}')
    for k in range(4):
        A.i(f'v_xor_b32 v{vrd+k}, {k*64}, v{vrd+7}')
    for k in range(3, -1, -1):
        A.i(f'v_xor_b32 v{vrd+4+k}, 0x4000, v{vrd+k}')


def t1_dma(A, vdma, vtmp, ssrc, sbuf):
    A.i(f's_lshl_b32 s{sT0}, s{sW}, 13')
    A.i(f's_add_u32 s{sT1}, s{sT0}, s{ssrc}')
    A.i(f's_add_u32 s{sT0}, s{sT0}, s{sbuf}')
    A.i(f's_mov_b32 m0, s{sT0}')
    for i in range(8):
        if i == 4:
            A.i(f's_add_u32 s{sT0}, s{sT0}, 4096')
            A.i(f's_add_u32 s{sT1}, s{sT1}, 4096')
            A.i(f's_mov_b32 m0, s{sT0}')
        A.i(f'v_xor_b32 v{vtmp+(i&1)}, {i*16}, v{vdma}')
        A.i(f'buffer_load_dwordx4 v{vtmp+(i&1)}, {WSR}, s{sT1} offen offset:{(i&3)*1024} sc1 lds')


def t1_compute(A, vrd, vabuf, xf, wbase, dbase, swapped, mid=None):
    def rd(ks):
        for tt in range(2):
            A.i(f'ds_read_b128 {vr(xf + (ks & 3) * 8 + tt * 4, 4)}, v{vabuf + tt*4 + (ks & 3)} offset:{(ks >> 2) * 256}')
    for ks in range(3):
        rd(ks)
    for ks in range(16):
        if ks + 3 < 16:
            rd(ks + 3)
            A.i('s_waitcnt lgkmcnt(6)')
        else:
            A.i(f's_waitcnt lgkmcnt({2 * (15 - ks)})')
        for t in range(2):
            for tt in range(2):
                d = ur(dbase + (t * 2 + tt) * 4, 4)
                w = ur(wbase + (ks * 2 + t) * 4, 4)
                x = vr(xf + (ks & 3) * 8 + tt * 4, 4)
                c = '0' if ks == 0 else d
                if swapped:
                    A.i(f'v_mfma_f32_16x16x32_bf16 {d}, {w}, {x}, {c}')
                else:
                    A.i(f'v_mfma_f32_16x16x32_bf16 {d}, {x}, {w}, {c}')
        if mid is not None:
            mid(ks)


def paired_units(srd_s, voff, sbase, rs, nks, wbase):
    units = []
    for ks in range(nks):
        for i in range(4):
            r0 = 32 * ks + 2 * i
            units.append((srd_s, voff, sbase, r0 * rs, (r0 + 1) * rs, 1,
                          [(wbase + (ks * 2 + 0) * 4 + i, 0, f's{SELLO}'), (wbase + (ks * 2 + 1) * 4 + i, 0, f's{SELHI}')]))
    return units


def lane_woff(A, dst, rs, colbytes, tmp):
    A.i(f'v_lshrrev_b32 v{tmp}, 4, v0')
    A.i(f's_mov_b32 s{sT0}, {8*rs}')
    A.i(f'v_mul_lo_u32 v{dst}, v{tmp}, s{sT0}')
    A.i(f'v_and_b32 v{tmp}, 15, v0')
    A.i(f'v_mul_u32_u24 v{tmp}, {colbytes}, v{tmp}')
    A.i(f'v_add_u32 v{dst}, v{dst}, v{tmp}')


def h_flag_addr(A, vdst, sseg, stmp):
    A.i(f's_and_b32 s{stmp}, s{sseg}, 7')
    A.i(f's_lshl_b32 s{stmp}, s{stmp}, 10')
    A.i(f's_add_u32 s{stmp}, s{stmp}, {F_H:#x}')
    A.i(f'v_and_b32 v{vdst}, 7, v0')
    A.i(f'v_lshlrev_b32 v{vdst}, 7, v{vdst}')
    A.i(f'v_add_u32 v{vdst}, s{stmp}, v{vdst}')


def t1_loop(A, sy, name, seg0, segstep, src_base, wait_src, body, vdma, vrd, vab, vtmp, vflag):
    Ltop, Lhave, Lnopf, Lend = (A.newlabel(name + x) for x in ('top', 'have', 'nopf', 'end'))
    A.i(f's_mov_b32 s72, {XB0}')
    A.i('s_mov_b32 s73, 0')
    A.label(Ltop)
    A.i('s_cmp_lg_u32 s73, 0')
    A.i(f's_cbranch_scc1 {Lhave}')
    wait_src(sS, True, None)
    A.i(f's_lshl_b32 s75, s{sS}, 15')
    A.i(f's_add_u32 s75, s75, {src_base:#x}')
    t1_dma(A, vdma, vtmp, 75, 72)
    A.label(Lhave)
    A.i('s_waitcnt vmcnt(0)')
    A.i('s_barrier')
    for k in range(8):
        A.i(f'v_add_u32 v{vab+k}, s72, v{vrd+k}')
    A.i('s_mov_b32 s73, 0')
    A.i(f's_add_u32 s74, s{sS}, {segstep}')
    A.i('s_cmp_ge_u32 s74, 64')
    A.i(f's_cbranch_scc1 {Lnopf}')
    wait_src(74, False, Lnopf)
    A.i('s_lshl_b32 s75, s74, 15')
    A.i(f's_add_u32 s75, s75, {src_base:#x}')
    A.i(f's_xor_b32 s76, s72, {XBS}')
    t1_dma(A, vdma, vtmp, 75, 76)
    A.i('s_mov_b32 s73, 1')
    A.label(Lnopf)
    body()
    if sy.on:
        A.i('s_waitcnt vmcnt(0)')
    A.i('s_barrier')
    if sy.on:
        Ls = A.newlabel(name + 'pub')
        A.i(f's_cmp_lg_u32 s{sW}, 0')
        A.i(f's_cbranch_scc1 {Ls}')
        A.i(f's_add_u32 s{sT0}, s{sS}, 1')
        sy.publish(A, vflag, vtmp, sT0)
        A.label(Ls)
    A.i(f's_xor_b32 s72, s72, {XBS}')
    A.i(f's_add_u32 s{sS}, s{sS}, {segstep}')
    A.i(f's_cmp_lt_u32 s{sS}, 64')
    A.i(f's_cbranch_scc1 {Ltop}')
    A.label(Lend)


def flag_test(A, sy, vaddr, vtmp, sneed, blocking, Lnot):
    if not sy.on:
        return
    if blocking:
        sy.wait(A, vaddr, vtmp, sneed)
    else:
        A.i(f'buffer_load_dword v{vtmp}, v{vaddr}, {WSR}, 0 offen sc1')
        A.i('s_waitcnt vmcnt(0)')
        A.i(f'v_cmp_le_u32 vcc, s{sneed}, v{vtmp}')
        A.i('s_cmp_eq_u64 vcc, exec')
        A.i(f's_cbranch_scc0 {Lnot}')


def make_wait_h(A, sy, va, vtmp):
    def wait_src(sseg, blocking, Lnot):
        if not sy.on:
            return
        h_flag_addr(A, va, sseg, sT0)
        A.i(f's_lshr_b32 s{sT2}, s{sseg}, 3')
        A.i(f's_add_u32 s{sT2}, s{sT2}, 1')
        flag_test(A, sy, va, vtmp, sT2, blocking, Lnot)
    return wait_src


def role_kv(A, sy, is_v):
    name = 'V' if is_v else 'K'
    srd(A, S_A, P_WV if is_v else P_WK, 512 * 8192)
    VDMA, VRD, VAB, VT_, VFL, VST, VWA = 2, 4, 12, 20, 22, 23, 24
    XF, D, PK = 32, 64, 80
    lane_woff(A, 3, 8192, 4, 4)
    A.i(f's_lshl_b32 s77, s{sR}, 8')
    A.i(f's_lshl_b32 s{sT0}, s{sW}, 6')
    A.i(f's_add_u32 s77, s77, s{sT0}')
    load_weights(A, paired_units(S_A, 3, 77, 8192, 16, 256), 128, 32, 4)
    t1_setup(A, VDMA, VRD)
    A.i(f's_lshl_b32 s{sT0}, s{sR}, 7')
    A.i(f's_add_u32 s{sT0}, s{sT0}, {F_KV + (32*FL if is_v else 0):#x}')
    A.i(f'v_mov_b32 v{VFL}, s{sT0}')
    if is_v:
        A.i(f's_lshl_b32 s77, s{sR}, 13')
        A.i(f's_lshl_b32 s{sT0}, s{sW}, 11')
        A.i(f's_add_u32 s77, s77, s{sT0}')
        A.i(f's_add_u32 s77, s77, {VT:#x}')
        A.i(f'v_mov_b32 v{VST}, v1')
    else:
        A.i(f's_lshl_b32 s77, s{sR}, 13')
        A.i(f's_lshl_b32 s{sT0}, s{sW}, 11')
        A.i(f's_add_u32 s77, s77, s{sT0}')
        A.i(f's_add_u32 s77, s77, {KX:#x}')
        A.i(f'v_lshrrev_b32 v{VST}, 4, v0')
        A.i(f'v_lshlrev_b32 v{VST}, 9, v{VST}')
        A.i(f'v_and_b32 v{VT_}, 15, v0')
        A.i(f'v_lshl_add_u32 v{VST}, v{VT_}, 4, v{VST}')
    A.i(f's_mov_b32 s{sS}, 0')

    def body():
        t1_compute(A, VRD, VAB, XF, 256, D, swapped=not is_v)
        A.i(f's_lshl_b32 s{sT0}, s{sS}, 18')
        A.i(f's_add_u32 s{sT0}, s{sT0}, s77')
        if is_v:
            for t in range(2):
                for tt in range(2):
                    d = D + (t * 2 + tt) * 4
                    A.i(f'v_cvt_pk_bf16_f32 v{PK+t*4+tt*2}, v{d}, v{d+1}')
                    A.i(f'v_cvt_pk_bf16_f32 v{PK+t*4+tt*2+1}, v{d+2}, v{d+3}')
                A.i(f'buffer_store_dwordx4 v[{PK+t*4}:{PK+t*4+3}], v{VST}, {WSR}, s{sT0} offen offset:{t*1024} sc1')
        else:
            for tt in range(2):
                for r in range(4):
                    A.i(f'v_cvt_pk_bf16_f32 v{PK+tt*4+r}, v{D+tt*4+r}, v{D+(2+tt)*4+r}')
                A.i(f'buffer_store_dwordx4 v[{PK+tt*4}:{PK+tt*4+3}], v{VST}, {WSR}, s{sT0} offen offset:{tt*256} sc1')

    t1_loop(A, sy, name, 0, 1, H, make_wait_h(A, sy, VWA, VT_), body, VDMA, VRD, VAB, VT_, VFL)


def score_round(A, regs, tmp):
    for a, b in zip(regs[0::2], regs[1::2]):
        round2(A, a, b, tmp)
    for a in regs:
        A.i(f'v_mul_f32 v{a}, s{sSCALE}, v{a}')
    for a, b in zip(regs[0::2], regs[1::2]):
        round2(A, a, b, tmp)


def xlane(A, op, v, t):
    A.i(f'v_mov_b32 v{t}, v{v}')
    A.i(f'v_permlane32_swap_b32 v{v}, v{t}')
    A.i(f'{op} v{v}, v{v}, v{t}')
    A.i(f'v_mov_b32 v{t}, v{v}')
    A.i(f'v_permlane16_swap_b32 v{v}, v{t}')
    A.i(f'{op} v{v}, v{v}, v{t}')


QIMG = 65536


def role_qa(A, sy):
    srd(A, S_A, P_WQ, 512 * 8192)
    VDMA, VRD, VAB, VT_, VFL, VWA = 2, 4, 12, 20, 22, 24
    VQW, VQR, VKX, VKM, VVM, VOST, VFKV, VFCH = 23, 25, 26, 27, 28, 29, 30, 31
    XF, D, PK = 32, 64, 80
    KF, VF, QF, KMF, VMF = 96, 128, 144, 160, 176
    S1, S2, S0, PX, PY, PM, OD, TM = 184, 188, 192, 196, 200, 204, 208, 224
    sH = 78
    A.i(f's_lshr_b32 s{sH}, s{sR}, 1')
    lane_woff(A, 3, 8192, 4, 4)
    A.i(f's_lshl_b32 s77, s{sH}, 8')
    A.i(f's_lshl_b32 s{sT0}, s{sW}, 6')
    A.i(f's_add_u32 s77, s77, s{sT0}')
    load_weights(A, paired_units(S_A, 3, 77, 8192, 16, 256), 128, 32, 4)
    t1_setup(A, VDMA, VRD)
    A.i(f's_lshl_b32 s{sT0}, s{sR}, 7')
    A.i(f's_add_u32 s{sT0}, s{sT0}, {F_QA:#x}')
    A.i(f'v_mov_b32 v{VFL}, s{sT0}')
    A.i(f'v_lshrrev_b32 v{TM}, 4, v0')
    A.i(f'v_and_b32 v{TM+1}, 15, v0')
    A.i(f'v_lshlrev_b32 v{VKX}, 9, v{TM}')
    A.i(f'v_lshl_add_u32 v{VKX}, v{TM+1}, 4, v{VKX}')
    A.i(f's_lshl_b32 s{sT0}, s{sW}, 11')
    A.i(f's_add_u32 s{sT0}, s{sT0}, {QIMG}')
    A.i(f'v_add_u32 v{VQW}, s{sT0}, v{VKX}')
    A.i(f's_and_b32 s79, s{sW}, 1')
    A.i(f's_lshr_b32 s80, s{sW}, 1')
    A.i(f's_lshl_b32 s{sT0}, s79, 8')
    A.i(f's_add_u32 s{sT1}, s{sT0}, {QIMG}')
    A.i(f'v_add_u32 v{VQR}, s{sT1}, v{VKX}')
    A.i(f's_lshl_b32 s{sT1}, s80, 12')
    A.i(f's_add_u32 s{sT1}, s{sT1}, s{sT0}')
    A.i(f'v_add_u32 v{VOST}, s{sT1}, v{VKX}')
    A.i(f'v_lshrrev_b32 v{TM+2}, 2, v{TM+1}')
    A.i(f'v_and_b32 v{TM+3}, 1, v{TM+1}')
    A.i(f'v_lshl_add_u32 v{TM+2}, v{TM+2}, 1, v{TM+3}')
    A.i(f'v_lshlrev_b32 v{TM+2}, 8, v{TM+2}')
    A.i(f'v_lshl_add_u32 v{VKM}, v{TM}, 4, v{TM+2}')
    A.i(f'v_lshlrev_b32 v{VVM}, 4, v{TM+1}')
    A.i(f'v_lshl_add_u32 v{VVM}, v{TM}, 2, v{VVM}')
    A.i(f's_lshl_b32 s{sT0}, s80, 10')
    A.i(f'v_add_u32 v{VVM}, s{sT0}, v{VVM}')
    A.i(f'v_and_b32 v{TM+2}, 1, v0')
    A.i(f'v_lshlrev_b32 v{TM+2}, 12, v{TM+2}')
    A.i(f's_lshl_b32 s{sT0}, s{sH}, 7')
    A.i(f's_add_u32 s{sT1}, s{sT0}, {F_KV:#x}')
    A.i(f'v_mov_b32 v{VFKV}, s{sT1}')
    A.i(f's_add_u32 s{sT1}, s{sT0}, {F_CH:#x}')
    A.i(f'v_mov_b32 v{VFCH}, s{sT1}')
    A.i(f's_lshl_b32 s{sT0}, s79, 4')
    A.i(f'v_lshlrev_b32 v{TM+2}, 2, v{TM}')
    A.i(f'v_sub_u32 v{TM+2}, v{TM+1}, v{TM+2}')
    A.i(f'v_add_u32 v{TM+2}, s{sT0}, v{TM+2}')
    for i in range(8):
        A.i(f'v_cmp_le_i32 s[{82+2*i}:{83+2*i}], {16*(i>>2)+(i&3)}, v{TM+2}')
    A.i(f'v_mov_b32 v{PM+1}, 0')
    A.i(f's_and_b32 s{sS}, s{sR}, 1')

    def body():
        A.i(f's_add_u32 s{sT2}, s{sS}, 1')
        sy.wait(A, VFKV, VT_, sT2)
        A.i(f's_lshl_b32 s81, s{sS}, 18')
        A.i(f's_lshl_b32 s{sT0}, s{sH}, 13')
        A.i(f's_add_u32 s81, s81, s{sT0}')
        A.i(f's_add_u32 s{sT0}, s81, {KX:#x}')
        A.i(f's_add_u32 s{sT1}, s{sT0}, 4096')
        for kt in range(2):
            for ks in range(4):
                so = sT0 if ks < 2 else sT1
                A.i(f'buffer_load_dwordx4 {vr(KF+(kt*4+ks)*4,4)}, v{VKX}, {WSR}, s{so} offen offset:{(ks&1)*2048+kt*256} sc1')
        A.i(f's_lshl_b32 s{sT0}, s80, 12')
        A.i(f's_add_u32 s{sT0}, s{sT0}, s81')
        A.i(f's_add_u32 s{sT0}, s{sT0}, {VT:#x}')
        for i in range(4):
            A.i(f'buffer_load_dwordx4 {vr(VF+i*4,4)}, v1, {WSR}, s{sT0} offen offset:{i*1024} sc1')
        t1_compute(A, VRD, VAB, XF, 256, D, swapped=True)
        for tt in range(2):
            for r in range(4):
                A.i(f'v_cvt_pk_bf16_f32 v{PK+tt*4+r}, v{D+tt*4+r}, v{D+(2+tt)*4+r}')
            A.i(f'ds_write_b128 v{VQW}, v[{PK+tt*4}:{PK+tt*4+3}] offset:{tt*256}')
        A.i('s_waitcnt lgkmcnt(0)')
        A.i('s_barrier')
        for ks in range(4):
            A.i(f'ds_read_b128 {vr(QF+ks*4,4)}, v{VQR} offset:{ks*2048}')
        A.i('s_waitcnt vmcnt(0) lgkmcnt(0)')
        for kt, S in ((0, S1), (1, S2)):
            for ks in range(4):
                c = '0' if ks == 0 else vr(S, 4)
                A.i(f'v_mfma_f32_16x16x32_bf16 {vr(S,4)}, {vr(KF+(kt*4+ks)*4,4)}, {vr(QF+ks*4,4)}, {c}')
        xs = [S1 + i for i in range(8)]
        score_round(A, xs, TM)
        A.i(f'v_mov_b32 v{TM}, 0xce6e6b28')
        for i in range(8):
            A.i(f'v_cndmask_b32 v{S1+i}, v{TM}, v{S1+i}, s[{82+2*i}:{83+2*i}]')
        A.i(f'v_max3_f32 v{TM+2}, v{S1}, v{S1+1}, v{S1+2}')
        A.i(f'v_max3_f32 v{TM+2}, v{TM+2}, v{S1+3}, v{S1+4}')
        A.i(f'v_max3_f32 v{TM+2}, v{TM+2}, v{S1+5}, v{S1+6}')
        A.i(f'v_max_f32 v{TM+2}, v{TM+2}, v{S1+7}')
        A.i(f's_add_u32 s{sT2}, s{sS}, 1')
        sy.wait(A, VFCH, VT_, sT2)
        A.i(f's_lshr_b32 s{sT0}, s81, 2')
        A.i(f's_add_u32 s{sT1}, s{sT0}, {VM:#x}')
        A.i(f's_add_u32 s{sT0}, s{sT0}, {KM:#x}')
        for ks in range(4):
            A.i(f'buffer_load_dwordx4 {vr(KMF+ks*4,4)}, v{VKM}, {WSR}, s{sT0} offen offset:{ks*64} sc1')
        for i in range(4):
            A.i(f'buffer_load_dword v{VMF+2*i}, v{VVM}, {WSR}, s{sT1} offen offset:{i*256} sc1')
            A.i(f'v_mov_b32 v{VMF+2*i+1}, 0')
        for ks in range(4):
            A.i(f's_waitcnt vmcnt({7-ks})')
            c = '0' if ks == 0 else vr(S0, 4)
            A.i(f'v_mfma_f32_16x16x32_bf16 {vr(S0,4)}, {vr(KMF+ks*4,4)}, {vr(QF+ks*4,4)}, {c}')
        score_round(A, [S0, S0 + 1], TM)
        A.i(f'v_max3_f32 v{TM+2}, v{TM+2}, v{S0}, v{S0+1}')
        xlane(A, 'v_max_f32', TM + 2, TM + 3)
        vals = xs + [S0, S0 + 1]
        A.i(f'v_mul_f32 v{TM+2}, s{sLOG2E}, v{TM+2}')
        for a in vals:
            A.i(f'v_fma_f32 v{a}, v{a}, s{sLOG2E}, -v{TM+2}')
        for a in vals:
            A.i(f'v_exp_f32 v{a}, v{a}')
        A.i(f'v_add_f32 v{TM+2}, v{vals[0]}, v{vals[1]}')
        A.i(f'v_add_f32 v{TM+4}, v{vals[2]}, v{vals[3]}')
        for k in range(4, 10, 2):
            A.i(f'v_add_f32 v{TM+2}, v{TM+2}, v{vals[k]}')
            A.i(f'v_add_f32 v{TM+4}, v{TM+4}, v{vals[k+1]}')
        A.i(f'v_add_f32 v{TM+2}, v{TM+2}, v{TM+4}')
        xlane(A, 'v_add_f32', TM + 2, TM + 3)
        A.i(f'v_rcp_f32 v{TM+2}, v{TM+2}')
        for a in vals:
            A.i(f'v_mul_f32 v{a}, v{a}, v{TM+2}')
        for k in range(4):
            A.i(f'v_cvt_pk_bf16_f32 v{PX+k}, v{S1+2*k}, v{S1+2*k+1}')
        A.i(f'v_cvt_pk_bf16_f32 v{PM}, v{S0}, v{S0+1}')
        A.i('s_waitcnt vmcnt(0)')
        for i in range(4):
            p = PX
            A.i(f'v_mfma_f32_16x16x32_bf16 {vr(OD+4*i,4)}, {vr(VF+4*i,4)}, {vr(p,4)}, 0')
        for i in range(4):
            A.i(f'v_mfma_f32_16x16x16_bf16 {vr(OD+4*i,4)}, {vr(VMF+2*i,2)}, {vr(PM,2)}, {vr(OD+4*i,4)}')
        A.i(f's_add_u32 s{sT0}, s81, {OB:#x}')
        for u in range(2):
            for r in range(4):
                A.i(f'v_cvt_pk_bf16_f32 v{PK+u*4+r}, v{OD+8*u+r}, v{OD+8*u+4+r}')
            A.i(f'buffer_store_dwordx4 v[{PK+u*4}:{PK+u*4+3}], v{VOST}, {WSR}, s{sT0} offen offset:{u*2048} sc1')

    t1_loop(A, sy, 'QA', 0, 2, H, make_wait_h(A, sy, VWA, VT_), body, VDMA, VRD, VAB, VT_, VFL)


def natural_units(srd_s, voff, sbase, rs, nks, ntiles, wbase, vsel, tile_stride=32, tile_index=None):
    units = []
    for ks in range(nks):
        for t in range(ntiles):
            for i in range(4):
                r0 = 32 * ks + 2 * i
                idx = tile_index(ks, t) if tile_index else ks * ntiles + t
                units.append((srd_s, voff, sbase, r0 * rs + t * tile_stride, (r0 + 1) * rs + t * tile_stride, 1,
                              [(wbase + idx * 4 + i, 0, f'v{vsel}')]))
    return units


def natural_setup(A, voff, vsel, rs, tmp):
    A.i(f'v_lshrrev_b32 v{tmp}, 4, v0')
    A.i(f's_mov_b32 s{sT0}, {8*rs}')
    A.i(f'v_mul_lo_u32 v{voff}, v{tmp}, s{sT0}')
    A.i(f'v_and_b32 v{tmp}, 14, v0')
    A.i(f'v_lshl_add_u32 v{voff}, v{tmp}, 1, v{voff}')
    A.i(f'v_and_b32 v{tmp}, 1, v0')
    A.i(f'v_cmp_eq_u32 vcc, 1, v{tmp}')
    A.i(f'v_mov_b32 v{vsel}, s{SELLO}')
    A.i(f'v_mov_b32 v{tmp}, s{SELHI}')
    A.i(f'v_cndmask_b32 v{vsel}, v{vsel}, v{tmp}, vcc')


def role_wo(A, sy):
    srd(A, S_A, P_WO, 4096 * 1024)
    VPC, VFL, VFQ, VT_, VLW, VLR, VST = 2, 5, 6, 7, 8, 9, 10
    XF, D, RD = 32, 96, 128
    natural_setup(A, 3, 4, 1024, 5)
    A.i(f's_lshr_b32 s78, s{sR}, 3')
    A.i(f's_and_b32 s79, s{sR}, 7')
    A.i(f's_lshl_b32 s80, s78, 2')
    A.i(f's_add_u32 s80, s80, s{sW}')
    A.i(f's_lshl_b32 s77, s80, 18')
    A.i(f's_lshl_b32 s{sT0}, s79, 7')
    A.i(f's_add_u32 s77, s77, s{sT0}')
    load_weights(A, natural_units(S_A, 3, 77, 1024, 8, 4, 256, 4), 128, 32, 6)
    A.i(f'v_lshrrev_b32 v{VT_}, 4, v0')
    A.i(f'v_lshlrev_b32 v{VPC}, 9, v{VT_}')
    A.i(f'v_and_b32 v{VST}, 15, v0')
    A.i(f'v_lshl_add_u32 v{VPC}, v{VST}, 4, v{VPC}')
    A.i(f'v_lshlrev_b32 v{VST}, 11, v{VST}')
    A.i(f'v_lshl_add_u32 v{VST}, v{VT_}, 4, v{VST}')
    A.i(f's_lshl_b32 s{sT0}, s79, 8')
    A.i(f's_lshl_b32 s{sT1}, s{sW}, 6')
    A.i(f's_add_u32 s{sT0}, s{sT0}, s{sT1}')
    A.i(f's_lshl_b32 s{sT1}, s78, 16')
    A.i(f's_add_u32 s{sT0}, s{sT0}, s{sT1}')
    A.i(f's_add_u32 s81, s{sT0}, {PART:#x}')
    A.i(f's_lshl_b32 s{sT0}, s{sW}, 13')
    A.i(f'v_add_u32 v{VLW}, s{sT0}, v1')
    A.i(f's_lshl_b32 s{sT0}, s{sW}, 11')
    A.i(f'v_add_u32 v{VLR}, s{sT0}, v1')
    A.i(f's_lshl_b32 s{sT0}, s{sR}, 7')
    A.i(f's_add_u32 s{sT0}, s{sT0}, {F_WO:#x}')
    A.i(f'v_mov_b32 v{VFL}, s{sT0}')
    A.i(f'v_and_b32 v{VT_}, 1, v0')
    A.i(f'v_lshlrev_b32 v{VT_}, 8, v{VT_}')
    A.i(f's_lshl_b32 s{sT0}, s80, 9')
    A.i(f's_add_u32 s{sT0}, s{sT0}, {F_QA:#x}')
    A.i(f'v_add_u32 v{VFQ}, s{sT0}, v{VT_}')
    A.i(f's_lshl_b32 s82, s80, 14')
    A.i(f's_add_u32 s82, s82, {OB:#x}')
    A.i(f's_mov_b32 s{sS}, 0')
    Ltop = A.newlabel('WOtop')
    A.label(Ltop)
    if sy.on:
        A.i(f's_and_b32 s{sT0}, s{sS}, 1')
        A.i(f's_lshl_b32 s{sT0}, s{sT0}, 7')
        A.i(f'v_add_u32 v11, s{sT0}, v{VFQ}')
        A.i(f's_add_u32 s{sT2}, s{sS}, 1')
        sy.wait(A, 11, VT_, sT2)
        sy.trace(A, VT_, sS, imm=110, wave=0, lim=40)
    A.i(f's_lshl_b32 s{sT0}, s{sS}, 18')
    A.i(f's_add_u32 s{sT0}, s{sT0}, s82')
    for ks in range(8):
        if ks and (ks & 1) == 0:
            A.i(f's_add_u32 s{sT0}, s{sT0}, 4096')
        for tt in range(2):
            A.i(f'buffer_load_dwordx4 {vr(XF+(ks*2+tt)*4,4)}, v{VPC}, {WSR}, s{sT0} offen offset:{(ks&1)*2048+tt*256} sc1')
    for ks in range(8):
        A.i(f's_waitcnt vmcnt({14-2*ks})')
        for t in range(4):
            for tt in range(2):
                d = vr(D + (t * 2 + tt) * 4, 4)
                c = '0' if ks == 0 else d
                A.i(f'v_mfma_f32_16x16x32_bf16 {d}, {ur(256+(ks*4+t)*4,4)}, {vr(XF+(ks*2+tt)*4,4)}, {c}')
    sy.trace(A, VT_, sS, imm=150, wave=0, lim=40)
    for q in range(8):
        A.i(f'ds_write_b128 v{VLW}, {vr(D+q*4,4)} offset:{q*1024}')
    A.i('s_waitcnt lgkmcnt(0)')
    A.i('s_barrier')
    for u in range(2):
        for w2 in range(4):
            A.i(f'ds_read_b128 {vr(RD+(u*4+w2)*4,4)}, v{VLR} offset:{w2*8192+u*1024}')
    A.i(f's_lshl_b32 s{sT0}, s{sS}, 18')
    A.i(f's_add_u32 s{sT0}, s{sT0}, s81')
    A.i(f's_add_u32 s{sT1}, s{sT0}, {16*2048}')
    for u in range(2):
        A.i(f's_waitcnt lgkmcnt({4-4*u})')
        b = RD + u * 16
        for r in range(4):
            A.i(f'v_add_f32 v{b+r}, v{b+r}, v{b+4+r}')
            A.i(f'v_add_f32 v{b+8+r}, v{b+8+r}, v{b+12+r}')
        for r in range(4):
            A.i(f'v_add_f32 v{b+r}, v{b+r}, v{b+8+r}')
        A.i(f'buffer_store_dwordx4 {vr(b,4)}, v{VST}, {WSR}, s{sT0 if u == 0 else sT1} offen sc1')
    sy.trace(A, VT_, sS, imm=190, wave=0, lim=40)
    if sy.on:
        A.i('s_waitcnt vmcnt(0)')
    A.i('s_barrier')
    if sy.on:
        Ls = A.newlabel('WOpub')
        A.i(f's_cmp_lg_u32 s{sW}, 0')
        A.i(f's_cbranch_scc1 {Ls}')
        A.i(f's_add_u32 s{sT0}, s{sS}, 1')
        sy.publish(A, VFL, VT_, sT0)
        A.label(Ls)
    A.i(f's_add_u32 s{sS}, s{sS}, 1')
    A.i(f's_cmp_lt_u32 s{sS}, 64')
    A.i(f's_cbranch_scc1 {Ltop}')


def role_r(A, sy):
    srd(A, S_A, P_X, 2048 * 1024)
    VFL, VFW, VT_ = 3, 4, 5
    GA, C1, SH, X, T, PK, XR, PT = 8, 16, 24, 32, 40, 52, 56, 64
    A.i('v_lshlrev_b32 v2, 5, v0')
    load_mod8(A, GA, 2)
    load_mod8(A, C1, 4)
    load_mod8(A, SH, 3)
    A.i(f's_and_b32 s78, s{sR}, 7')
    A.i(f's_lshl_b32 s78, s78, 2')
    A.i(f's_add_u32 s78, s78, s{sW}')
    A.i(f's_lshl_b32 s{sT0}, s{sR}, 7')
    A.i(f's_add_u32 s{sT0}, s{sT0}, {F_R:#x}')
    A.i(f'v_mov_b32 v{VFL}, s{sT0}')
    A.i(f'v_and_b32 v{VFW}, 31, v0')
    A.i(f'v_lshlrev_b32 v{VFW}, 7, v{VFW}')
    A.i(f'v_add_u32 v{VFW}, {F_WO:#x}, v{VFW}')
    A.i('s_waitcnt vmcnt(0)')
    one_plus(A, C1, VT_)
    A.i(f's_lshr_b32 s{sS}, s{sR}, 3')
    Ltop = A.newlabel('Rtop')
    A.label(Ltop)
    A.i(f's_lshl_b32 s79, s{sS}, 5')
    A.i(f's_add_u32 s79, s79, s78')
    A.i(f's_lshl_b32 s79, s79, 10')
    A.i(f'buffer_load_dwordx4 {vr(XR,4)}, v1, s[{S_A}:{S_A+3}], s79 offen')
    A.i(f's_add_u32 s{sT2}, s{sS}, 1')
    sy.wait(A, VFW, VT_, sT2)
    A.i(f's_lshl_b32 s{sT0}, s{sS}, 18')
    A.i(f's_lshl_b32 s{sT1}, s78, 11')
    A.i(f's_add_u32 s{sT0}, s{sT0}, s{sT1}')
    A.i(f's_add_u32 s{sT0}, s{sT0}, {PART:#x}')
    for kq in range(4):
        if kq:
            A.i(f's_add_u32 s{sT0}, s{sT0}, 0x10000')
        A.i(f'buffer_load_dwordx4 {vr(PT+kq*8,4)}, v2, {WSR}, s{sT0} offen sc1')
        A.i(f'buffer_load_dwordx4 {vr(PT+kq*8+4,4)}, v2, {WSR}, s{sT0} offen offset:16 sc1')
    A.i('s_waitcnt vmcnt(0)')
    for j in range(8):
        A.i(f'v_add_f32 v{PT+j}, v{PT+j}, v{PT+8+j}')
        A.i(f'v_add_f32 v{PT+16+j}, v{PT+16+j}, v{PT+24+j}')
    for j in range(8):
        A.i(f'v_add_f32 v{PT+j}, v{PT+j}, v{PT+16+j}')
    for j in range(4):
        round2(A, PT + 2 * j, PT + 2 * j + 1, T + j)
    for j in range(8):
        A.i(f'v_mul_f32 v{PT+j}, v{PT+j}, v{GA+j}')
    for j in range(4):
        round2(A, PT + 2 * j, PT + 2 * j + 1, T + j)
    for j in range(4):
        unpack(A, X + 2 * j, X + 2 * j + 1, XR + j)
    for j in range(8):
        A.i(f'v_add_f32 v{X+j}, v{X+j}, v{PT+j}')
    for j in range(4):
        A.i(f'v_cvt_pk_bf16_f32 v{XR+j}, v{X+2*j}, v{X+2*j+1}')
    A.i(f's_add_u32 s{sT0}, s79, {X1:#x}')
    A.i(f'buffer_store_dwordx4 {vr(XR,4)}, v1, {WSR}, s{sT0} offen sc1')
    for j in range(4):
        unpack(A, X + 2 * j, X + 2 * j + 1, XR + j)
    ln_core(A, X, T, C1, SH, PK)
    A.i(f's_add_u32 s{sT0}, s79, {H2:#x}')
    A.i(f'buffer_store_dwordx4 {vr(PK,4)}, v1, {WSR}, s{sT0} offen sc1')
    A.i('s_waitcnt vmcnt(0)')
    if sy.on:
        A.i('s_barrier')
        Ls = A.newlabel('Rpub')
        A.i(f's_cmp_lg_u32 s{sW}, 0')
        A.i(f's_cbranch_scc1 {Ls}')
        A.i(f's_add_u32 s{sT0}, s{sS}, 1')
        sy.publish(A, VFL, VT_, sT0)
        A.label(Ls)
    A.i(f's_add_u32 s{sS}, s{sS}, 2')
    A.i(f's_cmp_lt_u32 s{sS}, 64')
    A.i(f's_cbranch_scc1 {Ltop}')


def role_f1(A, sy):
    srd(A, S_A, P_WG, 512 * 3584)
    srd(A, S_B, P_WU, 512 * 3584)
    VDMA, VRD, VAB, VT_, VFL, VST, VWA = 2, 4, 12, 20, 22, 23, 24
    XF, D, PK, T = 32, 64, 80, 88
    natural_setup(A, 3, 25, 3584, 4)
    A.i(f's_lshl_b32 s77, s{sR}, 7')
    A.i(f's_lshl_b32 s{sT0}, s{sW}, 5')
    A.i(f's_add_u32 s77, s77, s{sT0}')
    ug = natural_units(S_A, 3, 77, 3584, 16, 1, 256, 25, tile_index=lambda ks, t: ks * 2)
    uu = natural_units(S_B, 3, 77, 3584, 16, 1, 256, 25, tile_index=lambda ks, t: ks * 2 + 1)
    load_weights(A, ug + uu, 128, 32, 4)
    t1_setup(A, VDMA, VRD)
    A.i(f's_lshl_b32 s{sT0}, s{sR}, 7')
    A.i(f's_add_u32 s{sT0}, s{sT0}, {F_F1:#x}')
    A.i(f'v_mov_b32 v{VFL}, s{sT0}')
    A.i(f'v_lshrrev_b32 v{VST}, 5, v0')
    A.i(f'v_lshlrev_b32 v{VST}, 9, v{VST}')
    A.i(f'v_and_b32 v{VT_}, 15, v0')
    A.i(f'v_lshl_add_u32 v{VST}, v{VT_}, 4, v{VST}')
    A.i(f'v_bfe_u32 v{VT_}, v0, 4, 1')
    A.i(f'v_lshl_add_u32 v{VST}, v{VT_}, 3, v{VST}')
    A.i(f's_lshl_b32 s77, s{sR}, 12')
    A.i(f's_lshl_b32 s{sT0}, s{sW}, 10')
    A.i(f's_add_u32 s77, s77, s{sT0}')
    A.i(f's_add_u32 s77, s77, {GU:#x}')
    A.i(f's_mov_b32 s{sS}, 0')

    def wait_src(sseg, blocking, Lnot):
        if not sy.on:
            return
        A.i(f's_and_b32 s{sT0}, s{sseg}, 1')
        A.i(f's_lshl_b32 s{sT0}, s{sT0}, 10')
        A.i(f's_add_u32 s{sT0}, s{sT0}, {F_R:#x}')
        A.i(f'v_and_b32 v{VWA}, 7, v0')
        A.i(f'v_lshlrev_b32 v{VWA}, 7, v{VWA}')
        A.i(f'v_add_u32 v{VWA}, s{sT0}, v{VWA}')
        A.i(f's_add_u32 s{sT2}, s{sseg}, 1')
        flag_test(A, sy, VWA, VT_, sT2, blocking, Lnot)

    def body():
        t1_compute(A, VRD, VAB, XF, 256, D, swapped=True)
        g = [D + i for i in range(8)]
        u = [D + 8 + i for i in range(8)]
        for k in range(0, 8, 2):
            round2(A, g[k], g[k + 1], T)
        for k in range(8):
            A.i(f'v_mul_f32 v{T+k}, s{sLOG2E}, v{g[k]}')
        for k in range(8):
            A.i(f'v_exp_f32 v{T+k}, -v{T+k}')
        for k in range(0, 8, 2):
            round2(A, u[k], u[k + 1], PK)
        for k in range(8):
            A.i(f'v_add_f32 v{T+k}, 1.0, v{T+k}')
        for k in range(8):
            A.i(f'v_rcp_f32 v{T+k}, v{T+k}')
        for k in range(8):
            A.i(f'v_mul_f32 v{g[k]}, v{g[k]}, v{T+k}')
        for k in range(0, 8, 2):
            round2(A, g[k], g[k + 1], T)
        for k in range(8):
            A.i(f'v_mul_f32 v{g[k]}, v{g[k]}, v{u[k]}')
        for k in range(4):
            A.i(f'v_cvt_pk_bf16_f32 v{PK+k}, v{g[2*k]}, v{g[2*k+1]}')
        A.i(f's_mul_i32 s{sT0}, s{sS}, 114688')
        A.i(f's_add_u32 s{sT0}, s{sT0}, s77')
        for tt in range(2):
            A.i(f'buffer_store_dwordx2 v[{PK+2*tt}:{PK+2*tt+1}], v{VST}, {WSR}, s{sT0} offen offset:{tt*256} sc1')

    t1_loop(A, sy, 'F1', 0, 1, H2, wait_src, body, VDMA, VRD, VAB, VT_, VFL)


def role_f2(A, sy):
    srd(A, S_A, P_WD, 1792 * 1024)
    srd(A, S_B, P_OUT, 2048 * 1024)
    VPC, VFQ, VT_, VLW, VLR, VST, GB = 2, 6, 7, 8, 9, 10, 12
    XF, D, RD, XR = 32, 144, 160, 176
    lane_woff(A, 3, 1024, 4, 4)
    A.i(f's_mul_i32 s77, s{sW}, {448*1024}')
    A.i(f's_lshl_b32 s{sT0}, s{sR}, 6')
    A.i(f's_add_u32 s77, s77, s{sT0}')
    load_weights(A, paired_units(S_A, 3, 77, 1024, 14, 256), 128, 32, 4)
    A.i(f'v_lshrrev_b32 v{VT_}, 4, v0')
    A.i(f'v_lshlrev_b32 v{VPC}, 9, v{VT_}')
    A.i(f'v_and_b32 v{VST}, 15, v0')
    A.i(f'v_lshl_add_u32 v{VPC}, v{VST}, 4, v{VPC}')
    A.i(f's_and_b32 s78, s{sW}, 1')
    A.i(f's_lshr_b32 s79, s{sW}, 1')
    A.i(f'v_lshlrev_b32 v{VST}, 10, v{VST}')
    A.i(f'v_lshl_add_u32 v{VST}, v{VT_}, 4, v{VST}')
    A.i(f's_lshl_b32 s{sT0}, s78, 14')
    A.i(f's_lshl_b32 s{sT1}, s{sR}, 6')
    A.i(f's_add_u32 s{sT0}, s{sT0}, s{sT1}')
    A.i(f's_lshl_b32 s{sT1}, s79, 3')
    A.i(f's_add_u32 s{sT0}, s{sT0}, s{sT1}')
    A.i(f'v_add_u32 v{VST}, s{sT0}, v{VST}')
    A.i(f'v_lshlrev_b32 v{VT_}, 5, v{VT_}')
    A.i(f's_lshl_b32 s{sT0}, s{sR}, 7')
    A.i(f's_lshl_b32 s{sT1}, s79, 4')
    A.i(f's_add_u32 s{sT0}, s{sT0}, s{sT1}')
    A.i(f's_add_u32 s{sT0}, s{sT0}, {MOD + 5*2048:#x}')
    A.i(f'buffer_load_dwordx4 {vr(GB,4)}, v{VT_}, {WSR}, s{sT0} offen sc1')
    A.i(f's_lshl_b32 s{sT0}, s{sW}, 12')
    A.i(f'v_add_u32 v{VLW}, s{sT0}, v1')
    A.i(f's_lshl_b32 s{sT0}, s78, 10')
    A.i(f's_lshl_b32 s{sT1}, s79, 3')
    A.i(f's_add_u32 s{sT0}, s{sT0}, s{sT1}')
    A.i(f'v_add_u32 v{VLR}, s{sT0}, v1')
    A.i(f'v_and_b32 v{VFQ}, 7, v0')
    A.i(f'v_min_u32 v{VFQ}, 6, v{VFQ}')
    A.i(f'v_lshlrev_b32 v{VFQ}, 7, v{VFQ}')
    A.i(f's_mul_i32 s{sT0}, s{sW}, {7*FL}')
    A.i(f's_add_u32 s{sT0}, s{sT0}, {F_F1:#x}')
    A.i(f'v_add_u32 v{VFQ}, s{sT0}, v{VFQ}')
    A.i(f's_mul_i32 s82, s{sW}, {56*512}')
    A.i(f's_add_u32 s82, s82, {GU:#x}')
    A.i(f's_mov_b32 s{sS}, 0')
    Ltop = A.newlabel('F2top')
    A.label(Ltop)
    A.i(f's_add_u32 s{sT2}, s{sS}, 1')
    sy.wait(A, VFQ, VT_, sT2)
    A.i(f's_mul_i32 s{sT0}, s{sS}, 114688')
    A.i(f's_add_u32 s{sT0}, s{sT0}, s82')
    for ks in range(14):
        if ks and (ks & 1) == 0:
            A.i(f's_add_u32 s{sT0}, s{sT0}, 4096')
        for tt in range(2):
            A.i(f'buffer_load_dwordx4 {vr(XF+(ks*2+tt)*4,4)}, v{VPC}, {WSR}, s{sT0} offen offset:{(ks&1)*2048+tt*256} sc1')
    A.i(f's_lshl_b32 s83, s{sS}, 15')
    A.i(f's_add_u32 s{sT0}, s83, {X1:#x}')
    A.i(f'buffer_load_dwordx2 {vr(XR,2)}, v{VST}, {WSR}, s{sT0} offen sc1')
    for ks in range(14):
        A.i(f's_waitcnt vmcnt({27-2*ks})')
        for t in range(2):
            for tt in range(2):
                d = vr(D + (t * 2 + tt) * 4, 4)
                c = '0' if ks == 0 else d
                A.i(f'v_mfma_f32_16x16x32_bf16 {d}, {ur(256+(ks*2+t)*4,4)}, {vr(XF+(ks*2+tt)*4,4)}, {c}')
    for q in range(4):
        A.i(f'ds_write_b128 v{VLW}, {vr(D+q*4,4)} offset:{q*1024}')
    A.i('s_waitcnt lgkmcnt(0)')
    A.i('s_barrier')
    for t in range(2):
        for w2 in range(4):
            A.i(f'ds_read_b64 {vr(RD+(t*4+w2)*2,2)}, v{VLR} offset:{w2*4096+t*2048}')
    A.i('s_waitcnt vmcnt(0) lgkmcnt(0)')
    A.i('s_barrier')
    for t in range(2):
        b = RD + t * 8
        for r in range(2):
            A.i(f'v_add_f32 v{b+r}, v{b+r}, v{b+2+r}')
            A.i(f'v_add_f32 v{b+4+r}, v{b+4+r}, v{b+6+r}')
        for r in range(2):
            A.i(f'v_add_f32 v{b+r}, v{b+r}, v{b+4+r}')
    f = [RD, RD + 8, RD + 1, RD + 9]
    round2(A, f[0], f[1], VT_)
    round2(A, f[2], f[3], VT_)
    for k in range(4):
        A.i(f'v_mul_f32 v{f[k]}, v{f[k]}, v{GB+k}')
    round2(A, f[0], f[1], VT_)
    round2(A, f[2], f[3], VT_)
    unpack(A, RD + 2, RD + 3, XR)
    unpack(A, RD + 4, RD + 5, XR + 1)
    for k in range(4):
        A.i(f'v_add_f32 v{f[k]}, v{f[k]}, v{RD+2+k}')
    A.i(f'v_cvt_pk_bf16_f32 v{XR}, v{f[0]}, v{f[1]}')
    A.i(f'v_cvt_pk_bf16_f32 v{XR+1}, v{f[2]}, v{f[3]}')
    A.i(f'buffer_store_dwordx2 {vr(XR,2)}, v{VST}, s[{S_B}:{S_B+3}], s83 offen')
    sy.trace(A, VT_, sS, imm=1, wave=0)
    A.i(f's_add_u32 s{sS}, s{sS}, 1')
    A.i(f's_cmp_lt_u32 s{sS}, 64')
    A.i(f's_cbranch_scc1 {Ltop}')


def h_wait_simple(A, sy, sseg, va, vtmp):
    if not sy.on:
        return
    Lok, Lall = A.newlabel('Hok'), A.newlabel('Hall')
    A.i('s_cmp_lg_u32 s87, 0')
    A.i(f's_cbranch_scc1 {Lok}')
    A.i(f's_cmp_ge_u32 s{sseg}, 8')
    A.i(f's_cbranch_scc1 {Lall}')
    h_flag_addr(A, va, sseg, sT0)
    A.i(f's_mov_b32 s{sT2}, 1')
    sy.wait(A, va, vtmp, sT2)
    A.i(f's_branch {Lok}')
    A.label(Lall)
    A.i(f'v_lshlrev_b32 v{va}, 7, v0')
    A.i(f'v_add_u32 v{va}, {F_H:#x}, v{va}')
    A.i(f's_mov_b32 s{sT2}, 8')
    sy.wait(A, va, vtmp, sT2)
    A.i('s_mov_b32 s87, 1')
    A.label(Lok)


def role_kv2(A, sy):
    srd(A, S_A, P_WK, 512 * 8192)
    srd(A, S_B, P_WV, 512 * 8192)
    VDMA, VRD, VAB, VT_, VFL, VST, VWA = 2, 4, 12, 20, 22, 23, 24
    XF, DK, DV, PK = 32, 64, 80, 96
    WKb, WVb = 256, 384
    lane_woff(A, 3, 8192, 4, 4)
    A.i(f's_lshl_b32 s77, s{sR}, 8')
    A.i(f's_lshl_b32 s{sT0}, s{sW}, 6')
    A.i(f's_add_u32 s77, s77, s{sT0}')
    load_weights(A, paired_units(S_A, 3, 77, 8192, 16, WKb) + paired_units(S_B, 3, 77, 8192, 16, WVb), 128, 32, 4)
    t1_setup(A, VDMA, VRD)
    A.i(f's_lshl_b32 s{sT0}, s{sR}, 7')
    A.i(f's_add_u32 s{sT0}, s{sT0}, {F_KV:#x}')
    A.i(f'v_mov_b32 v{VFL}, s{sT0}')
    A.i(f's_lshl_b32 s77, s{sR}, 13')
    A.i(f's_lshl_b32 s{sT0}, s{sW}, 11')
    A.i(f's_add_u32 s77, s77, s{sT0}')
    A.i(f's_add_u32 s77, s77, {KX:#x}')
    A.i(f'v_lshrrev_b32 v{VST}, 4, v0')
    A.i(f'v_lshlrev_b32 v{VST}, 9, v{VST}')
    A.i(f'v_and_b32 v{VT_}, 15, v0')
    A.i(f'v_lshl_add_u32 v{VST}, v{VT_}, 4, v{VST}')
    A.i(f's_mov_b32 s{sS}, 0')
    A.i('s_mov_b32 s87, 0')
    A.i(f's_mov_b32 s72, {XB0}')
    h_wait_simple(A, sy, sS, VWA, VT_)
    A.i(f's_mov_b32 s75, {H:#x}')
    t1_dma(A, VDMA, VT_, 75, 72)
    A.i('s_waitcnt vmcnt(0)')
    Ltop, Lnopf = A.newlabel('KVtop'), A.newlabel('KVnopf')
    A.label(Ltop)
    A.i('s_barrier')
    for k in range(8):
        A.i(f'v_add_u32 v{VAB+k}, s72, v{VRD+k}')

    def rd(ks):
        for tt in range(2):
            A.i(f'ds_read_b128 {vr(XF + (ks & 3) * 8 + tt * 4, 4)}, v{VAB + tt*4 + (ks & 3)} offset:{(ks >> 2) * 256}')
    for ks in range(3):
        rd(ks)
    for ks in range(16):
        if ks + 3 < 16:
            rd(ks + 3)
            A.i('s_waitcnt lgkmcnt(6)')
        else:
            A.i(f's_waitcnt lgkmcnt({2 * (15 - ks)})')
        for t in range(2):
            for tt in range(2):
                x = vr(XF + (ks & 3) * 8 + tt * 4, 4)
                d = vr(DK + (t * 2 + tt) * 4, 4)
                A.i(f'v_mfma_f32_16x16x32_bf16 {d}, {ur(WKb + (ks*2+t)*4, 4)}, {x}, {"0" if ks == 0 else d}')
                d = vr(DV + (t * 2 + tt) * 4, 4)
                A.i(f'v_mfma_f32_16x16x32_bf16 {d}, {x}, {ur(WVb + (ks*2+t)*4, 4)}, {"0" if ks == 0 else d}')
        if ks == 5:
            A.i('s_waitcnt vmcnt(0)')
            A.i('s_barrier')
            if sy.on:
                Ls = A.newlabel('KVpub')
                A.i(f's_cmp_lg_u32 s{sW}, 0')
                A.i(f's_cbranch_scc1 {Ls}')
                sy.publish(A, VFL, VT_, sS)
                A.label(Ls)
            A.i(f's_add_u32 s74, s{sS}, 1')
            A.i('s_cmp_ge_u32 s74, 64')
            A.i(f's_cbranch_scc1 {Lnopf}')
            h_wait_simple(A, sy, 74, VWA, VT_)
            A.i('s_lshl_b32 s75, s74, 15')
            A.i(f's_add_u32 s75, s75, {H:#x}')
            A.i(f's_xor_b32 s76, s72, {XBS}')
            t1_dma(A, VDMA, VT_, 75, 76)
            A.label(Lnopf)
    A.i(f's_lshl_b32 s{sT0}, s{sS}, 18')
    A.i(f's_add_u32 s{sT0}, s{sT0}, s77')
    A.i(f's_add_u32 s{sT1}, s{sT0}, {VT-KX:#x}')
    for tt in range(2):
        for r in range(4):
            A.i(f'v_cvt_pk_bf16_f32 v{PK+tt*4+r}, v{DK+tt*4+r}, v{DK+(2+tt)*4+r}')
        A.i(f'buffer_store_dwordx4 v[{PK+tt*4}:{PK+tt*4+3}], v{VST}, {WSR}, s{sT0} offen offset:{tt*256} sc1')
    for t in range(2):
        for tt in range(2):
            d = DV + (t * 2 + tt) * 4
            A.i(f'v_cvt_pk_bf16_f32 v{PK+8+t*4+tt*2}, v{d}, v{d+1}')
            A.i(f'v_cvt_pk_bf16_f32 v{PK+8+t*4+tt*2+1}, v{d+2}, v{d+3}')
        A.i(f'buffer_store_dwordx4 v[{PK+8+t*4}:{PK+8+t*4+3}], v1, {WSR}, s{sT1} offen offset:{t*1024} sc1')
    A.i(f's_xor_b32 s72, s72, {XBS}')
    A.i(f's_add_u32 s{sS}, s{sS}, 1')
    A.i('s_waitcnt vmcnt(4)')
    A.i(f's_cmp_lt_u32 s{sS}, 64')
    A.i(f's_cbranch_scc1 {Ltop}')
    if sy.on:
        A.i('s_waitcnt vmcnt(0)')
        A.i('s_barrier')
        Ls = A.newlabel('KVpub')
        A.i(f's_cmp_lg_u32 s{sW}, 0')
        A.i(f's_cbranch_scc1 {Ls}')
        sy.publish(A, VFL, VT_, sS)
        A.label(Ls)
```

```python
import sys
from common import *
import roles, chain, post

NAME = 'adaLN_cond__memory_aug_recurrent_mem_tr__swiglu_ffn__prompt'
HEADER = open('cdna_kernels/%s.s.ref' % NAME).read().split('; Override launch')[0]
L_TICK = 163584
LDS_ALL = 163840


def kd(name, vgpr=512, accum=256, sgpr=102):
    return f'''.section .rodata,"a"
.p2align 6
.amdhsa_kernel {name}
  .amdhsa_next_free_vgpr {vgpr}
  .amdhsa_next_free_sgpr {sgpr}
  .amdhsa_accum_offset {accum}
  .amdhsa_group_segment_fixed_size 0
  .amdhsa_kernarg_size 128
  .amdhsa_user_sgpr_count 2
  .amdhsa_user_sgpr_kernarg_segment_ptr 1
  .amdhsa_system_sgpr_workgroup_id_x 1
  .amdhsa_float_denorm_mode_32 3
.end_amdhsa_kernel
.text
'''


def start(A, name):
    A.raw(f'.globl {name}\n.p2align 8\n.type {name},@function\n{name}:')
    A.hist = []


def ticket(A):
    L = A.newlabel('Ltk')
    A.i(f's_getreg_b32 s{sT3}, hwreg(HW_REG_XCC_ID, 0, 4)')
    A.i(f's_and_b32 s{sT3}, s{sT3}, 7')
    A.i(f'v_mov_b32 v2, {L_TICK}')
    A.i(f's_cmp_lg_u32 s{sW}, 0')
    A.i(f's_cbranch_scc1 {L}')
    A.i(f's_lshl_b32 s{sT0}, s{sT3}, 7')
    A.i(f's_add_u32 s{sT0}, s{sT0}, {F_TICKET:#x}')
    A.i('v_mov_b32 v3, 1')
    A.i('s_mov_b64 exec, 1')
    A.i(f'buffer_atomic_add v3, off, {roles.WSR}, s{sT0} sc0')
    A.i('s_waitcnt vmcnt(0)')
    A.i('ds_write_b32 v2, v3')
    A.i('s_mov_b64 exec, -1')
    A.i('s_waitcnt lgkmcnt(0)')
    A.label(L)
    A.i('s_barrier')
    A.i('ds_read_b32 v3, v2')
    A.i('s_waitcnt lgkmcnt(0)')
    A.i(f'v_readfirstlane_b32 s{sT4}, v3')


def build(mode):
    A = Asm()
    launches = []
    kds = []

    def kernel(name, nwg, body, lds, vgpr=512, accum=256):
        start(A, name)
        end = A.newlabel('Lend')
        prologue(A, nwg, end)
        body(end)
        A.label(end)
        A.i('s_endpgm')
        launches.append(f'; @launch kernel={name} grid=({nwg},1,1) block=(256,1,1) lds={lds}')
        kds.append(kd(name, vgpr, accum))

    kernel('init_kernel', 120, lambda end: roles.role_init(A, end), 8192, 128, 128)
    if mode.startswith('cb'):
        sy = Sync(False, trace=True)
        sy.opts = set(mode.split('_')[1:])
        for o in sy.opts:
            if o[0] == 'd' and '=' in o:
                setattr(sy, o.split('=')[0], int(o.split('=')[1]))

        def chain_body(end):
            ticket(A)
            A.i(f's_cmp_lg_u32 s{sT3}, 0')
            A.i(f's_cbranch_scc1 {end}')
            A.i(f's_cmp_ge_u32 s{sT4}, 32')
            A.i(f's_cbranch_scc1 {end}')
            A.i(f's_mov_b32 s{sR}, s{sT4}')
            A.i(f's_lshl_b32 s100, s{sT4}, 10')
            A.i(f's_add_u32 s100, s100, {TRACE:#x}')
            chain.role_chain(A, sy, end)
        kernel('chain_kernel', 256, chain_body, LDS_ALL)
    elif mode == 'multi':
        sy = Sync(False)

        def simple(fn):
            def body(end):
                A.i(f's_mov_b32 s{sR}, s2')
                fn()
            return body
        kernel('ln1_kernel', 64, simple(lambda: roles.role_ln1(A, sy, sR)), 0)
        kernel('k_kernel', 32, simple(lambda: roles.role_kv(A, sy, False)), LDS_ALL)
        kernel('v_kernel', 32, simple(lambda: roles.role_kv(A, sy, True)), LDS_ALL)

        def chain_body(end):
            ticket(A)
            A.i(f's_cmp_lg_u32 s{sT3}, 0')
            A.i(f's_cbranch_scc1 {end}')
            A.i(f's_cmp_ge_u32 s{sT4}, 32')
            A.i(f's_cbranch_scc1 {end}')
            A.i(f's_mov_b32 s{sR}, s{sT4}')
            chain.role_chain(A, sy, end)
        kernel('chain_kernel', 256, chain_body, LDS_ALL)
        kernel('qa_kernel', 64, simple(lambda: roles.role_qa(A, sy)), LDS_ALL)
        kernel('wo_kernel', 32, simple(lambda: roles.role_wo(A, sy)), LDS_ALL)
        kernel('r_kernel', 16, simple(lambda: roles.role_r(A, sy)), 0)
        kernel('f1_kernel', 28, simple(lambda: roles.role_f1(A, sy)), LDS_ALL)
        kernel('f2_kernel', 16, simple(lambda: roles.role_f2(A, sy)), LDS_ALL)
    else:
        sy = Sync(True, trace=mode.startswith('trace'))
        sy.fine = (mode == 'tracefine')

        def main_body(end):
            ticket(A)
            A.i(f's_cmp_ge_u32 s{sT4}, 32')
            A.i(f's_cbranch_scc1 {end}')
            A.i(f's_mov_b32 s{sR}, s{sT4}')
            if sy.tr:
                A.i(f's_lshl_b32 s100, s{sT3}, 5')
                A.i(f's_add_u32 s100, s100, s{sT4}')
                A.i('s_lshl_b32 s100, s100, 10')
                A.i(f's_add_u32 s100, s100, {TRACE:#x}')
                sy.trace(A, 3, None, imm=255, wave=0)
            labs = [A.newlabel('Lx%d' % i) for i in range(8)]
            for x in range(1, 8):
                A.i(f's_cmp_eq_u32 s{sT3}, {x}')
                A.i(f's_cbranch_scc1 {labs[x]}')
            chain.role_chain(A, sy, end)
            A.label(labs[1])
            roles.role_kv2(A, sy)
            A.i(f's_branch {end}')
            A.label(labs[3])
            A.i(f's_add_u32 s{sR}, s{sR}, 32')
            A.label(labs[2])
            roles.role_qa(A, sy)
            A.i(f's_branch {end}')
            A.label(labs[5])
            A.i(f's_add_u32 s{sR}, s{sR}, 32')
            A.label(labs[4])
            A.i(f's_mov_b32 s90, s{sT3}')
            sy.pub_base = 240
            roles.role_ln1(A, sy, sR)
            sy.pub_base = 0
            A.i(f's_and_b32 s{sR}, s{sR}, 31')
            A.i(f's_mov_b32 s{sT3}, s90')
            A.label(labs[6])
            A.label(labs[7])
            A.i(f's_sub_u32 s90, s{sT3}, 4')
            post.role_post(A, sy, 90)
        kernel('main_kernel', 256, main_body, LDS_ALL)
    out = HEADER + '\n'.join(launches) + '\n'
    out += '.amdgcn_target "amdgcn-amd-amdhsa--gfx950"\n.text\n'
    out += A.text()
    out += ''.join(kds)
    return out, A


if __name__ == '__main__':
    mode = sys.argv[1]
    path = sys.argv[2]
    out, A = build(mode)
    open(path, 'w').write(out)
    print('instructions', A.ninstr, 'nop states', A.nops, 'bytes', len(out))
```

```python
from common import *
from roles import load_weights, WSR

L_MEM = 131072
L_KX = 139264
L_VX = 147456
L_OI = 155648
L_QI = L_OI + 2048
L_KI = L_QI + 2304
L_SEL = L_KI + 2304 + 64
L_VI = L_QI
QS = 288

vWV, vL2, vKX, vIDX, vQW, vQR, vPST, vX1, vX2, vVW, vOR, vOW, vLW, vT0 = range(2, 16)
vPF = 0
RA, RB, RC, RD = 16, 48, 80, 112
WK, WV, WQR, WOR = 256, 384, 128, 192
sPC, sPC2, sMC, sFLG, sKVF, sKVS, sOUT, sNX, sDST, sRST, sH1, sFA = range(72, 84)
sHF = 84
sLF = 86
sIO = 88
sSC2 = 90
sRP, sRM = 92, 93
sKS, sVS, sPFA, sPFD = 94, 95, 96, 97
sD2, sNV, sS1 = 65, 71, 3


def emit(A, x):
    if callable(x):
        x()
    else:
        A.i(x)


def mix(A, mf, fill, per=2, start=0):
    fill = list(fill)
    for k, m in enumerate(mf):
        emit(A, m)
        if k >= start:
            for _ in range(per):
                if fill:
                    emit(A, fill.pop(0))
    for f in fill:
        emit(A, f)


def role_chain(A, sy, end, nsteps=64):
    opts = getattr(sy, 'opts', set())
    sH = sR
    srd(A, S_A, P_WQ, 512 * 8192)
    srd(A, S_B, P_WK, 512 * 8192)
    srd(A, S_C, P_WV, 512 * 8192)
    srd(A, S_D, P_WO, 4096 * 1024)
    G, N, G1, TT, TA, TB, WA, WB, LN = 16, 17, 18, 19, 20, 21, 32, 33, 34
    A.i(f'v_mov_b32 v{LN}, v0')
    A.i(f'v_lshrrev_b32 v{G}, 4, v0')
    A.i(f'v_and_b32 v{N}, 15, v0')
    A.i(f'v_and_b32 v{G1}, 1, v{G}')
    A.i(f'v_lshrrev_b32 v{TT}, 5, v0')
    A.i(f'v_lshlrev_b32 v{vPF}, 3, v1')
    A.i(f's_lshl_b32 s{sT0}, s{sW}, 15')
    A.i(f'v_add_u32 v{vWV}, s{sT0}, v1')
    A.i(f'v_add_u32 v{vL2}, {L_MEM}, v1')
    A.i(f's_lshl_b32 s{sT0}, s{sW}, 11')
    A.i(f'v_add_u32 v{vLW}, s{sT0}, v{vL2}')
    A.i(f'v_lshlrev_b32 v{vKX}, 9, v{G}')
    A.i(f'v_lshl_add_u32 v{vKX}, v{N}, 4, v{vKX}')
    A.i(f'v_add_u32 v{vKX}, {L_KX}, v{vKX}')
    A.i(f's_mov_b32 s{sHF}, 0xff00ff00')
    A.i(f's_mov_b32 s{sHF+1}, 0xff00ff00')
    A.i(f's_mov_b32 s{sLF}, 0x00ff00ff')
    A.i(f's_mov_b32 s{sLF+1}, 0x00ff00ff')
    A.i(f's_mov_b32 s{sSC2}, {SCALE:#x}')
    A.i(f's_mov_b32 s{sSC2+1}, {SCALE:#x}')
    A.i(f's_cmp_eq_u32 s{sW}, 3')
    A.i(f's_cselect_b32 s{sIO}, 1, 0')
    A.i(f's_mov_b32 s{sIO+1}, 0')
    A.i(f'v_mov_b32 v{vIDX}, 0x4444')
    A.i(f'v_mov_b32 v{TA}, 0xeeee')
    A.i(f'v_cndmask_b32 v{vIDX}, v{vIDX}, v{TA}, s[{sHF}:{sHF+1}]')
    A.i(f'v_lshlrev_b32 v{TA}, 1, v{G1}')
    A.i(f'v_add_u32 v{TA}, v{TA}, v{TT}')
    A.i(f'v_mul_u32_u24 v{vQW}, {2*QS}, v{TA}')
    A.i(f'v_lshl_add_u32 v{vQW}, v{N}, 2, v{vQW}')
    A.i(f's_lshl_b32 s{sT0}, s{sW}, 6')
    A.i(f's_add_u32 s{sT0}, s{sT0}, {L_QI}')
    A.i(f'v_add_u32 v{vQW}, s{sT0}, v{vQW}')
    A.i(f'v_lshrrev_b32 v{vPST}, 1, v{N}')
    A.i(f'v_lshlrev_b32 v{vPST}, 13, v{vPST}')
    A.i(f'v_lshl_add_u32 v{vPST}, v{G}, 4, v{vPST}')
    A.i(f'v_and_b32 v{TB}, 1, v{N}')
    A.i(f'v_lshl_add_u32 v{vPST}, v{TB}, 6, v{vPST}')
    A.i(f's_lshl_b32 s{sT0}, s{sW}, 16')
    A.i(f's_lshl_b32 s{sT1}, s{sH}, 7')
    A.i(f's_add_u32 s{sT0}, s{sT0}, s{sT1}')
    A.i(f'v_add_u32 v{vPST}, s{sT0}, v{vPST}')
    A.i(f'v_lshlrev_b32 v{vVW}, 8, v{TT}')
    A.i(f'v_lshl_add_u32 v{vVW}, v{N}, 4, v{vVW}')
    A.i(f'v_lshl_add_u32 v{vVW}, v{G1}, 3, v{vVW}')
    A.i(f's_lshl_b32 s{sT0}, s{sW}, 9')
    A.i(f's_add_u32 s{sT0}, s{sT0}, {L_VI}')
    A.i(f'v_add_u32 v{vVW}, s{sT0}, v{vVW}')
    A.i(f'v_and_b32 v{TA}, 7, v{N}')
    A.i(f'v_mul_u32_u24 v{vQR}, {QS}, v{TA}')
    A.i(f'v_lshl_add_u32 v{vQR}, v{G}, 4, v{vQR}')
    A.i(f'v_add_u32 v{vQR}, {L_QI}, v{vQR}')
    A.i(f'v_lshlrev_b32 v{vOR}, 7, v{G}')
    A.i(f'v_lshl_add_u32 v{vOR}, v{TA}, 4, v{vOR}')
    A.i(f'v_add_u32 v{vOR}, {L_OI}, v{vOR}')
    A.i(f's_lshl_b32 s{sT0}, s{sW}, 9')
    A.i(f'v_add_u32 v{vOW}, s{sT0}, v{vOR}')
    A.i(f'v_lshlrev_b32 v{vX1}, 6, v{TB}')
    A.i(f'v_lshl_add_u32 v{vX1}, v{G1}, 4, v{vX1}')
    A.i(f'v_bfe_u32 v{TA}, v{N}, 2, 1')
    A.i(f'v_lshl_add_u32 v{vX1}, v{TA}, 7, v{vX1}')
    A.i(f'v_bfe_u32 v{TA}, v{N}, 1, 1')
    A.i(f'v_lshl_add_u32 v{vX1}, v{TA}, 3, v{vX1}')
    A.i(f's_lshl_b32 s{sT0}, s{sH}, 8')
    A.i(f's_and_b32 s{sT1}, s{sW}, 1')
    A.i(f's_lshl_b32 s{sT2}, s{sT1}, 5')
    A.i(f's_add_u32 s{sT0}, s{sT0}, s{sT2}')
    A.i(f'v_add_u32 v{vX1}, s{sT0}, v{vX1}')
    A.i(f'v_mov_b32 v{vX2}, 0')
    A.i(f's_lshl_b32 s{sH1}, s{sH}, 13')
    A.i(f's_lshl_b32 s{sT2}, s{sT1}, 12')
    A.i(f's_add_u32 s{sH1}, s{sH1}, s{sT2}')
    A.i(f's_lshl_b32 s{sT0}, s{sH}, 7')
    A.i(f's_add_u32 s{sKVF}, s{sT0}, {F_KV:#x}')
    A.i(f's_add_u32 s{sFLG}, s{sT0}, {F_CH:#x}')
    A.i(f's_lshl_b32 s{sT0}, s{sH}, 11')
    A.i(f's_lshr_b32 s{sT2}, s{sW}, 1')
    A.i(f's_lshl_b32 s{sT2}, s{sT2}, 22')
    A.i(f's_add_u32 s{sOUT}, s{sT0}, s{sT2}')
    A.i(f's_lshl_b32 s{sT2}, s{sT1}, 10')
    A.i(f's_add_u32 s{sOUT}, s{sOUT}, s{sT2}')
    A.i(f's_add_u32 s{sOUT}, s{sOUT}, {KM:#x}')
    A.i(f's_lshl_b32 s{sT0}, s{sH}, 13')
    A.i(f's_lshl_b32 s{sT2}, s{sW}, 11')
    A.i(f's_add_u32 s{sRST}, s{sT0}, s{sT2}')
    A.i(f's_add_u32 s{sNX}, s{sRST}, {KX:#x}')
    A.i(f's_add_u32 s{sDST}, s{sT2}, {L_KX}')
    A.i(f's_lshl_b32 s{sPFD}, s{sT1}, 24')
    A.i(f's_sub_u32 s{sPFD}, s{sPFD}, s{sT2}')
    A.i(f's_mov_b32 s{sKVS}, {0 if sy.on else 64}')
    A.i(f's_mov_b32 s{sKS}, 0')
    A.i(f's_mov_b32 s{sVS}, 0')
    A.i(f'v_lshlrev_b32 v{TA}, 1, v{G1}')
    A.i(f'v_add_u32 v{TA}, v{TA}, v{TT}')
    A.i(f'v_lshlrev_b32 v{vX2}, 9, v{TA}')
    A.i(f'v_lshl_add_u32 v{vX2}, v{N}, 2, v{vX2}')
    A.i(f's_lshl_b32 s{sT0}, s{sW}, 6')
    A.i(f'v_add_u32 v{vX2}, s{sT0}, v{vX2}')
    A.i(f'v_add_u32 v{vVW}, {VM-KM-L_VI:#x}, v{vVW}')
    A.i(f's_lshl_b32 s{sOUT}, s{sH}, 11')
    A.i(f's_add_u32 s{sOUT}, s{sOUT}, {KM - 0x10000:#x}')
    for c in range(4):
        A.i(f'v_mov_b32 v{24+c}, 0')
        A.i(f'v_cmp_eq_u32 vcc, {2*c}, v{N}')
        A.i(f'v_mov_b32 v{TA}, 0x3f80')
        A.i(f'v_cndmask_b32 v{24+c}, v{24+c}, v{TA}, vcc')
        A.i(f'v_cmp_eq_u32 vcc, {2*c+1}, v{N}')
        A.i(f'v_mov_b32 v{TA}, 0x3f800000')
        A.i(f'v_cndmask_b32 v{24+c}, v{24+c}, v{TA}, vcc')
    A.i(f'ds_write_b128 v{vL2}, v[24:27] offset:{L_SEL-L_MEM}')
    A.i(f'v_lshrrev_b32 v{TA}, 1, v{G}')
    A.i(f'v_lshlrev_b32 v{WA}, 17, v{TA}')
    A.i(f'v_lshl_add_u32 v{WA}, v{G1}, 15, v{WA}')
    A.i(f'v_lshl_add_u32 v{WA}, v{N}, 2, v{WA}')
    A.i(f'v_lshlrev_b32 v{WB}, 12, v{G}')
    A.i(f'v_lshl_add_u32 v{WB}, v{N}, 4, v{WB}')
    sWA, sWB = sT4, sT5
    A.i(f's_lshl_b32 s{sWA}, s{sH}, 8')
    A.i(f's_lshl_b32 s{sT0}, s{sW}, 6')
    A.i(f's_add_u32 s{sWA}, s{sWA}, s{sT0}')
    A.i(f's_lshl_b32 s{sWB}, s{sH}, 17')
    A.i(f's_lshl_b32 s{sT0}, s{sW}, 8')
    A.i(f's_add_u32 s{sWB}, s{sWB}, s{sT0}')

    sWAp, sWBp = [4, 5, 6, 7], [8, 9, 10, 11]
    A.i(f's_mov_b32 s12, s{P_MEM0}')
    A.i(f's_mov_b32 s13, s{P_MEM0+1}')
    for p in range(4):
        A.i(f's_xor_b32 s{sT0}, s{sW}, {p}')
        A.i(f's_lshl_b32 s{sT1}, s{sT0}, 20')
        A.i(f's_add_u32 s{sWAp[p]}, s{sWA}, s{sT1}')
        A.i(f's_lshl_b32 s{sT1}, s{sT0}, 15')
        A.i(f's_add_u32 s{sWBp[p]}, s{sWB}, s{sT1}')

    def mem_units(srd_s, dst, ks_list):
        u = []
        for ks in ks_list:
            for r in range(8):
                d0 = 64 * (ks & 1) + 32 * (r >> 2) + 8 * (r & 1) + 2 * ((r >> 1) & 1)
                u.append((srd_s, WA, sWAp[ks >> 1], d0 * 8192, (d0 + 1) * 8192, 1,
                          [(dst(ks * 2) + r, 0, f's{SELLO}'), (dst(ks * 2 + 1) + r, 0, f's{SELHI}')]))
        return u

    def o_units(dst, ks_list):
        u = []
        for ks in ks_list:
            for uu in range(4):
                e0 = 16 * (uu >> 1) + 2 * (uu & 1)
                outs = []
                for cg in range(4):
                    for st in range(2):
                        outs.append((dst(ks * 4 + cg) + 2 * uu + st, 2 * st + (cg >> 1),
                                     f's{SELHI if (cg & 1) else SELLO}'))
                u.append((S_D, WB, sWBp[ks], e0 * 1024, (e0 + 1) * 1024, 4, outs))
        return u

    WO_STREAM = [0, 1, 2, 3, 4, 13, 14, 15]
    def spill(first_reg, nfrag, lds_frag0):
        for f in range(nfrag):
            for hq in range(2):
                A.i(f'ds_write_b128 v{vWV}, {vr(first_reg + f*8 + hq*4, 4)} offset:{(lds_frag0 + f)*2048 + hq*1024}')
            A.i('s_waitcnt lgkmcnt(0)')
    def spill_u(first_u, lds_frag):
        for hq in range(2):
            A.i(f'ds_write_b128 v{vWV}, {ur(first_u + hq*4, 4)} offset:{lds_frag*2048 + hq*1024}')
    def o_home(p):
        return (WV + WO_STREAM.index(p) * 8) if p in WO_STREAM else WOR + (p - 5) * 8
    def q_home(f):
        return (WV + 64 + f * 8) if f < 8 else WQR + (f - 8) * 8
    load_weights(A, o_units(o_home, range(4)) + mem_units(S_A, q_home, range(8)) + mem_units(S_B, lambda f: WK + f * 8, range(8)), 48, 32, 22)
    for k in range(8):
        spill_u(WV + k * 8, 8 + k)
        spill_u(WV + 64 + k * 8, k)
        A.i('s_waitcnt lgkmcnt(0)')
    load_weights(A, mem_units(S_C, lambda f: WV + f * 8, range(8)), 48, 32, 22)
    sy.trace(A, vT0, None, imm=101, wave=0)
    srd(A, S_A, 12, 8192)
    A.i(f's_mov_b32 s{sS}, 0')
    A.i(f'v_and_b32 v{vT0}, 7, v{LN}')
    A.i(f'v_lshlrev_b32 v{vT0}, 10, v{vT0}')
    A.i(f'v_lshrrev_b32 v{TA}, 3, v{LN}')
    A.i(f'v_lshl_add_u32 v{vT0}, v{TA}, 4, v{vT0}')
    A.i(f's_lshl_b32 s{sT0}, s{sW}, 8')
    for i in range(2):
        A.i(f'buffer_load_dwordx4 {vr(RA+4*i,4)}, v{vT0}, s[{S_A}:{S_A+3}], s{sT0} offen offset:{i*128}')
    A.i('s_waitcnt vmcnt(0)')
    for i in range(2):
        A.i(f'ds_write_b128 v{vLW}, {vr(RA+4*i,4)} offset:{i*1024}')
    A.i('s_waitcnt lgkmcnt(0)')

    slow = []
    def kv_wait(sseg, r0, r1):
        if sy.on:
            Lok, Lp = A.newlabel('CHkvok'), A.newlabel('CHkvp')
            A.i(f's_cmp_gt_u32 s{sKVS}, s{sseg}')
            A.i(f's_cbranch_scc0 {Lp}')
            A.label(Lok)
            slow.append((Lp, Lok, sseg, r0, r1))

    def kv_dma(which):
        A.i(f's_mov_b32 m0, s{sD2 if which else sDST}')
        for i in range(2):
            A.i(f'buffer_load_dwordx4 v1, {WSR}, s{sNV if which else sNX} offen offset:{i*1024} sc1 lds')

    A.i(f's_add_u32 s{sD2}, s{sDST}, {L_VX-L_KX}')
    A.i(f's_add_u32 s{sNV}, s{sNX}, {VT-KX:#x}')
    kv_wait(sS, 34, 35)
    kv_dma(0)
    kv_dma(1)

    stamps = []
    Lfin = A.newlabel('CHfin')
    Lcut = A.newlabel('CHcut')
    def stamp(name):
        if ('cut' + name) in opts:
            A.i(f's_cmp_eq_u32 s{sS}, {nsteps-1}')
            A.i(f's_cbranch_scc1 {Lfin}')
            A.i(f's_branch {Lcut}')

    prof = 'prof' in opts
    def ts(k):
        if prof:
            A.i(f's_memtime s[{4+2*k}:{5+2*k}]')
    def cnt(k):
        if prof:
            A.i(f's_add_u32 s{28+k}, s{28+k}, 1')
    if prof:
        for k in range(4, 32):
            A.i(f's_mov_b32 s{k}, 0')
    AQ, AK, AV = RD, RD + 8, RD
    MA = RA
    XQ = RB
    S1, S2 = RB + 24, RB + 28
    QF, KR = RC, RC + 16
    S0, PM0, PM1 = RD + 8, RD + 12, RD + 14
    P4, VXF, OP, WD = RC, RC + 4, RC + 12, RC + 16
    OD, OA = RB + 24, RA
    PK = RC
    YS = [RB, RB + 8, RB + 16, RA + 16, RA + 24]

    def frag_read(reg, lf, tag):
        return [lambda: A.ds(f'ds_read_b128 {vr(reg,4)}, v{vWV} offset:{lf*2048}', tag),
                lambda: A.ds(f'ds_read_b128 {vr(reg+4,4)}, v{vWV} offset:{lf*2048+1024}', tag)]

    def pre_step():
        for f in range(8):
            for x in frag_read(XQ + 8 * f, f, 'xq'):
                x()
            A.i(f'v_mov_b64 {vr(RD+2*f,2)}, 0')

    def step_scalars(addr=True):
        A.i(f's_and_b32 s{sT0}, s{sS}, 3')
        A.i(f's_lshl_b32 s{sPC}, s{sT0}, 18')
        A.i(f's_add_u32 s{sPC}, s{sPC}, {XP:#x}')
        A.i(f's_add_u32 s{sPC2}, s{sPC}, 4096')
        A.i(f's_lshl_b32 s{sMC}, s{sT0}, 13')
        A.i(f's_add_u32 s{sMC}, s{sMC}, {XM:#x}')
        A.i(f's_add_u32 s{sT2}, s{sS}, 8')
        A.i(f's_cmp_gt_u32 s{sKVS}, s{sT2}')
        A.i(f's_cselect_b32 s{sFA}, {FLAGS + 8*FL:#x}, s{sKVF}')
        for p in range(1, 4):
            if addr:
                A.i(f'v_xor_b32 v{RA+8*p}, {p << 11:#x}, v{vLW}')
        A.i(f's_add_u32 s{sOUT}, s{sOUT}, 0x10000')
        A.i(f's_add_u32 s{sS1}, s{sS}, 1')
        A.i(f's_min_u32 s{sS1}, s{sS1}, 63')
        A.i(f's_add_u32 s{sT1}, s{sNX}, s{sPFD}')
        A.i(f's_add_u32 s{sNX}, s{sNX}, 0x40000')
        A.i(f's_add_u32 s{sNV}, s{sNV}, 0x40000')
        A.i(f's_add_u32 s{sPFA}, s{sT1}, 0x80000')
        A.i(f's_add_u32 s{sT2}, s{sS}, 2')
        A.i(f's_cmp_gt_u32 s{sKVS}, s{sT2}')
        A.i(f's_cselect_b32 s{sPFA}, s{sPFA}, s{sT1}')
        A.i(f's_add_u32 s{sT0}, s{sS}, 3')
        A.i(f's_and_b32 s{sT0}, s{sT0}, 3')
        A.i(f's_lshl_b32 s{sT0}, s{sT0}, 18')
        A.i(f's_add_u32 s{sT0}, s{sT0}, s{sRST}')
        A.i(f's_add_u32 s{sRP}, s{sT0}, {XP:#x}')
        A.i(f's_xor_b32 s{sRM}, s{sMC}, 0x4000')
        A.i(f's_lshl_b32 s{sT1}, s{sH}, 8')
        A.i(f's_add_u32 s{sRM}, s{sRM}, s{sT1}')

    pre_step()
    step_scalars()
    Ltop = A.newlabel('CHtop')
    if sy.tr and not prof:
        A.i('s_memtime s[4:5]')
    A.i('s_waitcnt vmcnt(0)')
    A.wl_all()
    A.label(Ltop)
    _orig_i = A.i
    def _filt(text):
        for t in text.split('\n'):
            if 'novm' in opts and t.startswith('buffer_') and 's101' not in t:
                continue
            if 'nokv' in opts and ('buffer_store' in t and 'sc1' in t):
                continue
            if 'nodma' in opts and (' lds' in t and 'buffer_load' in t):
                continue
            if 'nopf' in opts and t.startswith('buffer_load_dword v') and 'offen' in t:
                t = t.replace(f's{sPFA}', f's{sMC}')
            if 'plainkv' in opts and ('buffer_store' in t and 'sc1' in t):
                t = t.replace(' sc1', '')
            _orig_i(t)
    A.i = _filt
    def sm(acc, a, w):
        return f'v_smfmac_f32_16x16x64_bf16 {vr(acc,4)}, {vr(a,4)}, {ur(w,8)}, v{vIDX}'
    def wq(f):
        return XQ + 8 * f if f < 8 else WQR + 8 * (f - 8)
    for f in range(4):
        A.i(sm(AQ + 4 * (f & 1), MA + 4 * (f >> 1), wq(f)))
    A.i('s_waitcnt lgkmcnt(0)')
    A.i('s_barrier')
    stamp('Ba')
    ts(4)
    Lxo = A.newlabel('CHxo')
    if 'xonly' in opts:
        A.i(f's_cmp_eq_u32 s{sS}, {nsteps-1}')
        A.i(f's_cbranch_scc1 {Lfin}')
        A.i(f'v_mov_b64 {vr(RC+4,2)}, -1')
        A.i(f'v_mov_b64 {vr(RC+6,2)}, -1')
        A.i(f'buffer_store_dwordx4 {vr(RC+4,4)}, v1, {WSR}, s{sRP} offen')
        A.i(f'buffer_store_dwordx4 {vr(RC+4,4)}, v1, {WSR}, s{sRP} offen offset:1024')
        A.i('s_mov_b64 exec, 0xffff')
        A.i(f'buffer_store_dwordx4 {vr(RC+4,4)}, v1, {WSR}, s{sRM} offen')
        A.i('s_mov_b64 exec, -1')
        for r in range(0, 16, 2):
            A.i(f'v_mov_b64 {vr(RC+16+r,2)}, 0')
        for _ in range(getattr(sy, 'dx', 16)):
            A.i('s_nop 15')
        A.i(f's_branch {Lxo}')
    for p in range(1, 4):
        A.ds(f'ds_read_b128 {vr(MA+8*p+4,4)}, v{RA+8*p} offset:1024', ('ma', 2 * p + 1))
        A.ds(f'ds_read_b128 {vr(MA+8*p,4)}, v{RA+8*p}', ('ma', 2 * p))
    for f in range(2):
        A.i(sm(AK + 4 * (f & 1), MA + 4 * (f >> 1), WK + f * 8))
    A.i(f'buffer_load_dword v{vT0}, v{vPF}, {WSR}, s{sPFA} offen sc1')
    if sy.on:
        A.i(f'buffer_load_dword v{vT0}, off, {WSR}, s{sFA} sc1')
    for f in range(2, 4):
        A.i(sm(AK + 4 * (f & 1), MA + 4 * (f >> 1), WK + f * 8))
    def kx_read(j):
        A.ds(f'ds_read_b128 {vr(KR+(j&3)*4,4)}, v{vKX} offset:{(j>>1)*2048+(j&1)*256}', ('kx', j))
    mf = []
    for ks in range(2, 8):
        if ks in (2, 4, 6):
            mf.append(lambda ks=ks: (A.wl(('ma', ks)), A.i(sm(AQ, MA + 4 * ks, wq(ks * 2)))))
        else:
            mf.append(sm(AQ, MA + 4 * ks, wq(ks * 2)))
        mf.append(sm(AQ + 4, MA + 4 * ks, wq(ks * 2 + 1)))
    fill = []
    for k in range(3):
        fill += frag_read(YS[k], 8 + k, ('y', k))
    fill += [lambda j=j: kx_read(j) for j in range(2)]
    mix(A, mf, fill, per=1, start=4)
    stamp('Qdone')

    def fold_qk(acc, off, t0, t1):
        f = []
        for t in range(2):
            f.append(f'v_permlane32_swap_b32 v{acc+4*t}, v{acc+4*t+2}')
            f.append(f'v_permlane32_swap_b32 v{acc+4*t+1}, v{acc+4*t+3}')
        for t in range(2):
            f.append(f'v_pk_add_f32 {vr(acc+4*t,2)}, {vr(acc+4*t,2)}, {vr(acc+4*t+2,2)}')
        f.append(f'v_cvt_pk_bf16_f32 v{t0}, v{acc}, v{acc+4}')
        f.append(f'v_cvt_pk_bf16_f32 v{t1}, v{acc+1}, v{acc+5}')
        f.append(lambda: A.ds(f'ds_write2_b32 v{vQW}, v{t0}, v{t1} offset0:0 offset1:{QS//4}', 'w') if off == 0 else
                 (A.ds(f'ds_write_b32 v{vQW}, v{t0} offset:{off}', 'w'), A.ds(f'ds_write_b32 v{vQW}, v{t1} offset:{off+QS}', 'w')))
        return f

    mf = []
    for ks in range(2, 8):
        mf.append(sm(AK, MA + 4 * ks, WK + (ks * 2) * 8))
        mf.append(sm(AK + 4, MA + 4 * ks, WK + (ks * 2 + 1) * 8))
    mix(A, mf[:3], [lambda j=j: kx_read(j) for j in range(2, 4)], per=1)
    mix(A, mf[3:8], fold_qk(AQ, 0, AQ + 2, AQ + 3), per=2)
    mix(A, mf[8:11], [f'v_mov_b64 {vr(AV+r,2)}, 0' for r in (0, 4, 6)], per=1)
    A.wl('w')
    A.i('s_barrier')
    stamp('Bb')
    emit(A, mf[11])
    for ks in range(4):
        A.ds(f'ds_read_b128 {vr(QF+4*ks,4)}, v{vQR} offset:{ks*64}', ('q', ks))
    A.i(f'v_mov_b64 {vr(AV+2,2)}, 0')
    if sy.on:
        A.i(f'v_mov_b32 v{S2}, s{sS}')
        A.i(f's_mov_b64 exec, s[{sIO}:{sIO+1}]')
        A.i(f'buffer_store_dword v{S2}, off, {WSR}, s{sFLG} sc1')
        A.i('s_mov_b64 exec, -1')
    early = False
    tag = False
    stamp('Kdone')

    vstate = {'f': 0}
    def vstep():
        f = 15 - vstate['f']
        ks, t = f >> 1, f & 1
        A.i(sm(AV + 4 * t, MA + 4 * ks, WV + f * 8))
        vstate['f'] += 1

    def smx(j):
        ks, kt = j >> 1, j & 1
        S = S2 if kt else S1
        c = '0' if ks == 0 else vr(S, 4)
        def f():
            A.wl(('kx', j))
            A.wl(('q', ks))
            A.i(f'v_mfma_f32_16x16x32_bf16 {vr(S,4)}, {vr(KR+(j&3)*4,4)}, {vr(QF+4*ks,4)}, {c}')
            if j + 4 < 8:
                kx_read(j + 4)
        return f
    for x in fold_qk(AK, L_KI - L_QI, AK + 2, AK + 3):
        emit(A, x)
    if early:
        A.i(f'buffer_store_dwordx4 {vr(S2,4)}, v1, {WSR}, s{sRP} offen offset:1024')
        A.i('s_mov_b64 exec, 0xffff')
        A.i(f'buffer_store_dwordx4 {vr(S2,4)}, v1, {WSR}, s{sRM} offen')
        A.i('s_mov_b64 exec, -1')
    A.wl(('q', 3))
    for j in range(4):
        smx(j)()
    A.wl('w')
    A.i('s_barrier')
    stamp('Bc')
    vstep()
    A.i(f'buffer_store_dword v{AK+2}, v{vX2}, {WSR}, s{sOUT} offen sc1')
    A.i(f'buffer_store_dword v{AK+3}, v{vX2}, {WSR}, s{sOUT} offen offset:256 sc1')
    A.wl(('kx', 7))
    for j in range(4, 8):
        smx(j)()
        A.ds(f'ds_read_b128 {vr(KR+4*(j-4),4)}, v{vQR} offset:{L_KI-L_QI+(j-4)*64}', ('km', j - 4))
    SX = S1
    T0, T1, T2 = S2, S2 + 1, S0 + 2
    def r1(a):
        return f'v_cvt_pk_bf16_f32 v{a}, 0, v{a}'
    vstep()
    A.i(f'v_mov_b64 {vr(PM0,2)}, 0')
    vstep()
    A.i(f'v_mov_b64 {vr(PM1,2)}, 0')
    fx = [f'v_cndmask_b32 v{S1+r}, v{S1+r}, v{S2+r}, s[{sHF}:{sHF+1}]' for r in range(4)]
    fx += [r1(SX + r) for r in range(4)]
    fx += [f'v_mul_f32 v{SX+r}, s{sSCALE}, v{SX+r}' for r in range(4)]
    fx += [r1(SX + r) for r in range(4)]
    fx += [f'v_max3_f32 v{T0}, v{SX}, v{SX+1}, v{SX+2}']
    s0 = []
    for ks in range(4):
        c = '0' if ks == 0 else vr(S0, 4)
        s0.append(lambda ks=ks, c=c: (A.wl(('km', ks if ks != 1 else 3)), A.i(f'v_mfma_f32_16x16x32_bf16 {vr(S0,4)}, {vr(KR+4*ks,4)}, {vr(QF+4*ks,4)}, {c}')))
    mix(A, s0, fx[:8], per=2)
    stamp('S0')
    for t in range(2):
        A.ds(f'ds_read_b128 {vr(VXF+4*t,4)}, v{vLW} offset:{L_VX-L_MEM+t*1024}', ('vx', t))
    for x in fx[8:]:
        emit(A, x)
    wz = [f'v_mov_b64 {vr(WD+r,2)}, 0' for r in range(0, 16, 2)]
    f = [f'v_cndmask_b32 v{S0}, v{S0}, v{S0+2}, s[{sHF}:{sHF+1}]', f'v_cndmask_b32 v{S0+1}, v{S0+1}, v{S0+3}, s[{sHF}:{sHF+1}]',
         r1(S0), r1(S0 + 1), f'v_mul_f32 v{S0}, s{sSCALE}, v{S0}', f'v_mul_f32 v{S0+1}, s{sSCALE}, v{S0+1}', r1(S0), r1(S0 + 1),
         f'v_max3_f32 v{T1}, v{SX+3}, v{S0}, v{S0+1}', f'v_max_f32 v{T0}, v{T0}, v{T1}',
         vstep, wz[0],
         f'v_max_f32_dpp v{T0}, v{T0}, v{T0} row_ror:8 row_mask:0xf bank_mask:0xf',
         f'v_mov_b32 v{T1}, v{T0}', vstep, wz[1], f'v_permlane32_swap_b32 v{T0}, v{T1}', f'v_max_f32 v{T0}, v{T0}, v{T1}',
         f'v_mov_b32 v{T1}, v{T0}', vstep, wz[2], f'v_permlane16_swap_b32 v{T0}, v{T1}', f'v_max_f32 v{T0}, v{T0}, v{T1}',
         f'v_mul_f32 v{T0}, s{sLOG2E}, v{T0}']
    vals = [SX, SX + 1, SX + 2, SX + 3, S0, S0 + 1]
    for a in vals:
        f += [f'v_fma_f32 v{a}, v{a}, s{sLOG2E}, -v{T0}', vstep]
    yr = frag_read(YS[3], 8 + 3, ('y', 3)) + frag_read(YS[4], 8 + 4, ('y', 4))
    f += [yr[0], vstep]
    f += [f'v_exp_f32 v{a}, v{a}' for a in vals]
    f += [f'v_pk_add_f32 {vr(T0,2)}, {vr(SX,2)}, {vr(SX+2,2)}', f'v_add_f32 v{T2}, v{S0}, v{S0+1}', f'v_add_f32 v{T0}, v{T0}, v{T1}',
          f'v_fma_f32 v{T0}, v{T2}, 0.5, v{T0}', vstep, wz[3],
          f'v_add_f32_dpp v{T0}, v{T0}, v{T0} row_ror:8 row_mask:0xf bank_mask:0xf',
          f'v_mov_b32 v{T1}, v{T0}', vstep, wz[4], f'v_permlane32_swap_b32 v{T0}, v{T1}', f'v_add_f32 v{T0}, v{T0}, v{T1}',
          f'v_mov_b32 v{T1}, v{T0}', vstep, wz[5], f'v_permlane16_swap_b32 v{T0}, v{T1}', f'v_add_f32 v{T0}, v{T0}, v{T1}',
          f'v_rcp_f32 v{T0}, v{T0}', yr[1]]
    f += [f'v_pk_mul_f32 {vr(a,2)}, {vr(a,2)}, {vr(T0,2)} op_sel_hi:[1,0]' for a in (SX, SX + 2, S0)]
    f += [f'v_cvt_pk_bf16_f32 v{P4}, v{SX}, v{SX+1}', f'v_cvt_pk_bf16_f32 v{P4+1}, v{SX+2}, v{SX+3}',
          f'v_cvt_pk_bf16_f32 v{T2}, v{S0}, v{S0+1}',
          f'v_mov_b32_dpp v{P4+2}, v{P4} row_ror:8 row_mask:0xf bank_mask:0xf',
          f'v_mov_b32_dpp v{P4+3}, v{P4+1} row_ror:8 row_mask:0xf bank_mask:0xf']
    for x in f:
        emit(A, x)
    assert vstate['f'] == 16, vstate
    pmv = [f'v_mov_b32_dpp v{PM0}, v{T2} quad_perm:[0,1,2,3] row_mask:0x3 bank_mask:0xf',
           f'v_mov_b32_dpp v{PM0+1}, v{T2} row_ror:8 row_mask:0x3 bank_mask:0xf',
           f'v_mov_b32_dpp v{PM1}, v{T2} quad_perm:[0,1,2,3] row_mask:0xc bank_mask:0xf',
           f'v_mov_b32_dpp v{PM1+1}, v{T2} row_ror:8 row_mask:0xc bank_mask:0xf']
    g = [f'v_permlane32_swap_b32 v{AV+r}, v{AV+4+r}' for r in range(4)]
    g += [f'v_pk_add_f32 {vr(AV,2)}, {vr(AV,2)}, {vr(AV+4,2)}', f'v_pk_add_f32 {vr(AV+2,2)}, {vr(AV+2,2)}, {vr(AV+6,2)}']
    g += [f'v_cvt_pk_bf16_f32 v{AV+4}, v{AV}, v{AV+1}', f'v_cvt_pk_bf16_f32 v{AV+5}, v{AV+2}, v{AV+3}']
    stamp('P')
    for x in g[:2]:
        emit(A, x)
    A.wl(('vx', 1))
    A.i(f'v_mfma_f32_16x16x32_bf16 {vr(OD,4)}, {vr(VXF,4)}, {vr(P4,4)}, 0')
    for x in g[2:4]:
        emit(A, x)
    A.i(f'v_mfma_f32_16x16x32_bf16 {vr(OD+4,4)}, {vr(VXF+4,4)}, {vr(P4,4)}, 0')
    for x in g[4:] + pmv:
        emit(A, x)
    A.i(f'v_mfma_f32_16x16x16_bf16 {vr(OD,4)}, {vr(AV+4,2)}, {vr(PM0,2)}, {vr(OD,4)}')
    A.i(f'v_mfma_f32_16x16x16_bf16 {vr(OD+4,4)}, {vr(AV+4,2)}, {vr(PM1,2)}, {vr(OD+4,4)}')
    A.i(f'buffer_store_dwordx2 {vr(AV+4,2)}, v{vVW}, {WSR}, s{sOUT} offen sc1')
    kv_wait(sS1, RC + 4, RC + 5)
    kv_dma(1)
    SEN = RC + 4
    for x in [yr[2], yr[3], wz[6], wz[7]] + ([] if early else [f'v_mov_b64 {vr(SEN,2)}, -1', f'v_mov_b64 {vr(SEN+2,2)}, -1']):
        emit(A, x)
    for p in range(1, 4):
        A.i(f'v_xor_b32 v{OA+4*p}, {p << 9:#x}, v{vOW}')
    for c in range(4):
        A.i(f'v_cvt_pk_bf16_f32 v{OP+c}, v{OD+c}, v{OD+4+c}')
    A.i(f's_mov_b64 exec, s[{sLF}:{sLF+1}]')
    A.ds(f'ds_write_b128 v{vOW}, {vr(OP,4)}', 'w')
    A.i('s_mov_b64 exec, -1')
    for c in range(4):
        A.i(f'v_mov_b32_dpp v{OP+c}, v{OP+c} row_ror:8 row_mask:0xf bank_mask:0xc')
    A.i(f'buffer_store_dwordx4 {vr(SEN,4)}, v1, {WSR}, s{sRP} offen')
    A.i(f's_cmp_eq_u32 s{sS}, {nsteps-1}')
    def wo_step(p):
        ks, cg = p >> 2, p & 3
        if p == 4:
            A.wl(('o', 1))
        if p == 8:
            A.wl(('o', 3))
        if p < 5:
            w = YS[p]
        elif p < 13:
            w = WOR + (p - 5) * 8
        else:
            w = YS[p - 13]
            if p == 13:
                A.wl(('y', 15))
        A.i(sm(WD + 4 * cg, OP if ks == 0 else OA + 4 * ks, w))
    wo_step(0)
    wo_step(1)
    A.wl_all()
    A.i('s_barrier')
    for ks in range(1, 4):
        A.ds(f'ds_read_b128 {vr(OA+4*ks,4)}, v{OA+4*ks}', ('o', ks))
    A.i(f's_cbranch_scc1 {Lfin}')
    wo_step(2)
    A.i(f'buffer_store_dwordx4 {vr(SEN,4)}, v1, {WSR}, s{sRP} offen offset:1024')
    wo_step(3)
    A.i('s_mov_b64 exec, 0xffff')
    A.i(f'buffer_store_dwordx4 {vr(SEN,4)}, v1, {WSR}, s{sRM} offen')
    A.i('s_mov_b64 exec, -1')
    kv_dma(0)
    stamp('Bd')
    yy = []
    for k in range(3):
        yy += frag_read(YS[k], 8 + 5 + k, ('y', 13 + k))
    for p in range(4, 16):
        wo_step(p)
        if yy:
            yy.pop(0)()
    if 'xonly' in opts:
        A.label(Lxo)
    for r in range(4):
        A.i(f'v_cvt_pk_bf16_f32 v{PK+2*r}, v{WD+r}, v{WD+4+r}')
        if tag:
            A.i(f'v_and_or_b32 v{PK+2*r}, v{PK+2*r}, -2, s{sFA}')
    for r in range(4):
        A.i(f'v_cvt_pk_bf16_f32 v{PK+2*r+1}, v{WD+8+r}, v{WD+12+r}')
        if tag:
            A.i(f'v_and_or_b32 v{PK+2*r+1}, v{PK+2*r+1}, -2, s{sFA}')
        if r == 1:
            A.i(f'buffer_store_dwordx4 {vr(PK,4)}, v{vPST}, {WSR}, s{sPC} offen')
    A.i(f'buffer_store_dwordx4 {vr(PK+4,4)}, v{vPST}, {WSR}, s{sPC2} offen')
    stamp('Wo')
    if prof:
        ts(5)
        A.i('s_waitcnt lgkmcnt(0)')
        for k in range(5):
            A.i(f's_sub_u32 s{sT0}, s{4+2*(k+1)}, s{4+2*k}')
            A.i(f's_cmp_gt_u32 s{sS}, 4')
            A.i(f's_cselect_b32 s{sT0}, s{sT0}, 0')
            A.i(f's_add_u32 s{20+k}, s{20+k}, s{sT0}')
        A.i('s_mov_b32 s4, s14')
    SELR, RS, HA, IMG = RA + 16, RA + 20, RA, RA + 28
    Lbe = A.newlabel('CHbe')
    A.ds(f'ds_read_b128 {vr(SELR,4)}, v{vL2} offset:{L_SEL-L_MEM}', 'sel')
    if sy.on:
        A.i('s_waitcnt vmcnt(12)')
        A.i(f'v_readfirstlane_b32 s{sT0}, v{vT0}')
        A.i(f's_max_u32 s{sKVS}, s{sKVS}, s{sT0}')
    sy.trace(A, RD, sS, imm=0, wave=3)
    pre_step()
    A.i(f's_add_u32 s{sT5}, s{sPC}, s{sH1}')
    A.i(f's_lshl_b32 s{sT3}, s{sW}, 11')
    A.i(f's_add_u32 s{sT3}, s{sT3}, s{sMC}')
    A.i(f's_mov_b32 s{sT4}, s{sMC}')

    CT = RA + 26
    def chain_max(H, n):
        A.i(f'v_max3_u32 v{CT}, v{H}, v{H+1}, v{H+2}')
        for k in range(3, n - 1, 2):
            A.i(f'v_max3_u32 v{CT}, v{CT}, v{H+k}, v{H+k+1}')
        A.i(f'v_max_u32 v{CT}, v{CT}, v{H+n-1}')
    KF = getattr(sy, 'dk', 2)

    A.wl_all()
    A.i(f's_cmp_ge_u32 s{sW}, 2')
    A.i(f's_cbranch_scc1 {Lbe}')
    for _ in range(getattr(sy, 'd1', 2)):
        A.i('s_nop 15')
    Lp1, Lok1 = A.newlabel('CHp1'), A.newlabel('CHok1')
    def h1_loads():
        for L in range(4):
            A.i(f'buffer_load_dwordx4 {vr(HA+4*L,4)}, v1, {WSR}, s{sT5} offen offset:{L*1024} sc1')
    def h1_mfma(waits):
        for L in range(4):
            if waits:
                A.i(f's_waitcnt vmcnt({3-L})')
            c = '0' if L == 0 else vr(RS, 4)
            A.i(f'v_mfma_f32_16x16x32_bf16 {vr(RS,4)}, {vr(SELR,4)}, {vr(HA+4*L,4)}, {c}')
    h1_loads()
    h1_mfma(True)
    chain_max(HA, 16)
    A.i(f'v_cmpx_eq_u32 vcc, -1, v{CT}')
    A.i(f's_cbranch_execz {Lok1}')
    if 'nox' not in opts:
        A.label(Lp1)
        cnt(0)
        h1_loads()
        A.i(f's_waitcnt vmcnt({4*KF})')
        chain_max(HA, 16)
        A.i(f'v_cmpx_eq_u32 vcc, -1, v{CT}')
        A.i(f's_cbranch_execnz {Lp1}')
    A.i('s_mov_b64 exec, -1')
    h1_mfma(False)
    A.label(Lok1)
    A.i('s_mov_b64 exec, -1')
    for r in range(4):
        A.i(f'v_add_f32_dpp v{RS+r}, v{RS+r}, v{RS+r} row_ror:8 row_mask:0xf bank_mask:0xf')
    A.i('s_mov_b64 exec, 0x00ff00ff')
    A.i(f'v_cvt_pk_bf16_f32 v{RS}, v{RS}, v{RS+1}')
    A.i(f'v_cvt_pk_bf16_f32 v{RS+1}, v{RS+2}, v{RS+3}')
    A.i(f'buffer_store_dwordx2 {vr(RS,2)}, v{vX1}, {WSR}, s{sT4} offen')
    A.i('s_mov_b64 exec, -1')
    A.label(Lbe)
    ts(1)
    A.i('s_barrier')
    ts(2)
    A.i(f's_add_u32 s{sS}, s{sS}, 1')
    step_scalars(addr=False)
    for _ in range(getattr(sy, 'd2', 1)):
        A.i('s_nop 15')
    Lp2, Lok2 = A.newlabel('CHp2'), A.newlabel('CHok2')
    def h2_loads():
        for i in range(2):
            A.i(f'buffer_load_dwordx4 {vr(HA+4*i,4)}, v1, {WSR}, s{sT3} offen offset:{i*1024} sc1')
    h2_loads()
    for i in range(2):
        A.i(f's_waitcnt vmcnt({1-i})')
        A.i(f'ds_write_b128 v{vLW}, {vr(HA+4*i,4)} offset:{i*1024}')
    chain_max(HA, 8)
    for p in range(1, 4):
        A.i(f'v_xor_b32 v{RA+8*p}, {p << 11:#x}, v{vLW}')
    A.i(f'v_cmpx_eq_u32 vcc, -1, v{CT}')
    A.i(f's_cbranch_execz {Lok2}')
    if 'nox' not in opts:
        A.i(f's_mov_b64 s[40:41], exec')
        A.label(Lp2)
        cnt(1)
        h2_loads()
        A.i(f's_waitcnt vmcnt({2*KF})')
        chain_max(HA, 8)
        A.i(f'v_cmpx_eq_u32 vcc, -1, v{CT}')
        A.i(f's_cbranch_execnz {Lp2}')
        A.i('s_mov_b64 exec, s[40:41]')
        for i in range(2):
            A.i(f'ds_write_b128 v{vLW}, {vr(HA+4*i,4)} offset:{i*1024}')
    A.label(Lok2)
    A.i('s_mov_b64 exec, -1')
    ts(3)
    A.i(f's_branch {Ltop}')
    A.label(Lcut)
    A.i(f's_add_u32 s{sS}, s{sS}, 1')
    sy.trace(A, RD, sS, imm=0, wave=3)
    A.wl_all()
    A.i(f's_branch {Ltop}')
    A.i = _orig_i
    A.label(Lfin)
    if sy.tr and not prof:
        A.i('s_memtime s[6:7]')
        A.i('s_waitcnt lgkmcnt(0)')
        A.i('s_sub_u32 s6, s6, s4')
        A.i(f'v_mov_b32 v{vT0}, s6')
        A.i(f'buffer_store_dword v{vT0}, off, {WSR}, s100 offset:{120*4}')
    if prof:
        A.i(f's_lshl_b32 s101, s{sW}, 6')
        A.i('s_add_u32 s101, s101, s100')
        A.i('s_mov_b64 exec, 1')
        for k in range(10):
            A.i(f'v_mov_b32 v{vT0}, s{20+k}')
            A.i(f'buffer_store_dword v{vT0}, off, {WSR}, s101 offset:{512+4*k}')
        A.i('s_mov_b64 exec, -1')
    if sy.on:
        A.i('s_waitcnt vmcnt(0)')
        A.i('s_barrier')
        A.i(f's_add_u32 s{sT0}, s{sS}, 1')
        A.i(f'v_mov_b32 v{vT0}, s{sT0}')
        A.i(f's_mov_b64 exec, s[{sIO}:{sIO+1}]')
        A.i(f'buffer_store_dword v{vT0}, off, {WSR}, s{sFLG} sc1')
        A.i('s_mov_b64 exec, -1')
    A.i(f's_branch {end}')
    for Lp, Lok, sseg, r0, r1 in slow:
        A.label(Lp)
        A.i(f'buffer_load_dword v{r0}, off, {WSR}, s{sKVF} sc1')
        A.i('s_waitcnt vmcnt(0)')
        A.i(f'v_readfirstlane_b32 s{sKVS}, v{r0}')
        A.i(f's_cmp_gt_u32 s{sKVS}, s{sseg}')
        A.i(f's_cbranch_scc1 {Lok}')
        A.i(f's_branch {Lp}')
```

```python
from common import *

WSR = f's[{S_WS}:{S_WS+3}]'


def load_weights(A, units, tmp0, batch_regs, ptmp):
    ring = 2 * batch_regs
    GR = 8
    ngroups = ring // GR
    groups = []
    cur, used = [], 0
    for u in units:
        w = u[5]
        if used + 2 * w > GR:
            groups.append(cur)
            cur, used = [], 0
        cur.append((u, used))
        used += 2 * w
    if cur:
        groups.append(cur)

    def issue(gi):
        base = tmp0 + (gi % ngroups) * GR
        for (srd_s, voff, sbase, off0, off1, w, outs), at in groups[gi]:
            for k, off in enumerate((off0, off1)):
                A.i(f's_add_u32 s{sT0}, s{sbase}, {off:#x}')
                mn = {1: 'buffer_load_dword', 2: 'buffer_load_dwordx2', 4: 'buffer_load_dwordx4'}[w]
                A.i(f'{mn} {vr(base + at + k * w, w)}, v{voff}, s[{srd_s}:{srd_s+3}], s{sT0} offen')

    depth = ngroups - 1
    for gi in range(min(depth, len(groups))):
        issue(gi)
    for gi in range(len(groups)):
        if gi + depth < len(groups):
            issue(gi + depth)
        younger = sum(2 * len(groups[k]) for k in range(gi + 1, min(gi + depth + 1, len(groups))))
        A.i(f's_waitcnt vmcnt({min(younger, 63)})')
        base = tmp0 + (gi % ngroups) * GR
        for (srd_s, voff, sbase, off0, off1, w, outs), at in groups[gi]:
            for n, (dst, dw, sel) in enumerate(outs):
                perm_to(A, dst, base + at + w + dw, base + at + dw, sel, ptmp + (n & 1))


def role_init(A, end):
    Lfill = A.newlabel('Lfill')
    A.i(f's_cmp_ge_u32 s2, 48')
    A.i(f's_cbranch_scc1 {Lfill}')
    srd(A, S_A, P_C, 1024)
    srd(A, S_B, P_WMOD, 512 * 6144)
    A.i(f's_lshl_b32 s{sT0}, s{sW}, 6')
    A.i(f'v_add_u32 v2, s{sT0}, v0')
    A.i('v_and_b32 v3, 7, v2')
    A.i('v_lshrrev_b32 v4, 3, v2')
    A.i('v_lshlrev_b32 v5, 5, v4')
    A.i(f'buffer_load_dwordx4 v[8:11], v5, s[{S_A}:{S_A+3}], 0 offen')
    A.i(f'buffer_load_dwordx4 v[12:15], v5, s[{S_A}:{S_A+3}], 0 offen offset:16')
    A.i(f's_mov_b32 s{sT1}, {16*6144}')
    A.i(f'v_mul_lo_u32 v6, v4, s{sT1}')
    A.i('v_lshl_add_u32 v6, v3, 4, v6')
    A.i(f's_lshl_b32 s{sT1}, s2, 7')
    for i in range(16):
        A.i(f's_add_u32 s{sT0}, s{sT1}, {i*6144}')
        A.i(f'buffer_load_dwordx4 v[{64+4*i}:{67+4*i}], v6, s[{S_B}:{S_B+3}], s{sT0} offen')
    A.i('s_waitcnt vmcnt(16)')
    for i in range(8):
        unpack(A, 16 + 2 * i, 17 + 2 * i, 8 + i)
    for i in range(16):
        A.i(f'v_mul_f32 v{32+i}, s{sLOG2E}, v{16+i}')
    for i in range(16):
        A.i(f'v_exp_f32 v{32+i}, -v{32+i}')
    for i in range(16):
        A.i(f'v_add_f32 v{32+i}, 1.0, v{32+i}')
    for i in range(16):
        A.i(f'v_rcp_f32 v{32+i}, v{32+i}')
    for i in range(16):
        A.i(f'v_mul_f32 v{16+i}, v{16+i}, v{32+i}')
    for i in range(8):
        round2(A, 16 + 2 * i, 17 + 2 * i, 48)
    for j in range(8):
        A.i(f'v_mov_b32 v{32+j}, 0')
    for i in range(16):
        A.i(f's_waitcnt vmcnt({15-i})')
        for d in range(4):
            unpack(A, 48, 49, 64 + 4 * i + d)
            A.i(f'v_fmac_f32 v{32+2*d}, v{16+i}, v48')
            A.i(f'v_fmac_f32 v{33+2*d}, v{16+i}, v49')
    A.i('v_lshlrev_b32 v5, 8, v4')
    A.i('v_lshl_add_u32 v5, v3, 5, v5')
    A.i('ds_write_b128 v5, v[32:35]')
    A.i('ds_write_b128 v5, v[36:39] offset:16')
    A.i('s_waitcnt lgkmcnt(0)')
    A.i('s_barrier')
    A.i(f's_cmp_lg_u32 s{sW}, 0')
    A.i(f's_cbranch_scc1 {end}')
    A.i('v_lshlrev_b32 v5, 2, v0')
    for i in range(32):
        A.i(f'ds_read_b32 v{64+i}, v5 offset:{i*256}')
        if i == 14 or i == 29:
            A.i('s_waitcnt lgkmcnt(0)')
    A.i('s_waitcnt lgkmcnt(0)')
    for st in (16, 8, 4, 2, 1):
        for i in range(st):
            A.i(f'v_add_f32 v{64+i}, v{64+i}, v{64+st+i}')
    A.i('v_cvt_pk_bf16_f32 v64, v64, v64')
    A.i('v_lshlrev_b32 v64, 16, v64')
    A.i(f's_lshl_b32 s{sT0}, s2, 8')
    A.i(f's_add_u32 s{sT0}, s{sT0}, {MOD:#x}')
    A.i(f'buffer_store_dword v64, v5, {WSR}, s{sT0} offen')
    A.i(f's_branch {end}')
    A.label(Lfill)
    A.i(f's_sub_u32 s{sT0}, s2, 48')
    A.i(f's_lshl_b32 s{sT1}, s{sT0}, 14')
    A.i(f's_add_u32 s{sT2}, s{sT1}, {XM:#x}')
    A.i(f's_add_u32 s{sT3}, s{sT1}, {FLAGS - 66*16384:#x}')
    A.i(f's_cmp_lt_u32 s{sT0}, 66')
    A.i(f's_cselect_b32 s{sT2}, s{sT2}, s{sT3}')
    A.i(f's_cselect_b32 s{sT3}, -1, 0')
    A.i(f's_lshl_b32 s{sT1}, s{sW}, 12')
    A.i(f's_add_u32 s{sT2}, s{sT2}, s{sT1}')
    for i in range(4):
        A.i(f'v_mov_b32 v{4+i}, s{sT3}')
    for i in range(4):
        A.i(f'buffer_store_dwordx4 v[4:7], v1, {WSR}, s{sT2} offen offset:{i*1024}')
    A.i(f's_branch {end}')


def load_mod8(A, dst, which):
    A.i(f's_mov_b32 s{sT0}, {MOD + which*2048:#x}')
    A.i(f'buffer_load_dwordx4 v[{dst}:{dst+3}], v2, {WSR}, s{sT0} offen sc1')
    A.i(f'buffer_load_dwordx4 v[{dst+4}:{dst+7}], v2, {WSR}, s{sT0} offen offset:16 sc1')


def one_plus(A, c, tmp):
    for j in range(8):
        A.i(f'v_add_f32 v{c+j}, 1.0, v{c+j}')
    for j in range(4):
        round2(A, c + 2 * j, c + 2 * j + 1, tmp)


def ln_core(A, x, t, c1, sh, out):
    A.i(f'v_add_f32 v{t}, v{x}, v{x+1}')
    A.i(f'v_add_f32 v{t+1}, v{x+2}, v{x+3}')
    A.i(f'v_add_f32 v{t+2}, v{x+4}, v{x+5}')
    A.i(f'v_add_f32 v{t+3}, v{x+6}, v{x+7}')
    A.i(f'v_add_f32 v{t}, v{t}, v{t+1}')
    A.i(f'v_add_f32 v{t+2}, v{t+2}, v{t+3}')
    A.i(f'v_add_f32 v{t}, v{t}, v{t+2}')
    wave_sum(A, t, sT4)
    A.i(f'v_mov_b32 v{t+8}, 0x3b000000')
    A.i(f'v_mul_f32 v{t+9}, s{sT4}, v{t+8}')
    for j in range(8):
        A.i(f'v_sub_f32 v{t+j}, v{x+j}, v{t+9}')
    A.i(f'v_mul_f32 v{t}, v{t}, v{t}')
    A.i(f'v_mul_f32 v{t+1}, v{t+1}, v{t+1}')
    for j in range(2, 8):
        A.i(f'v_fmac_f32 v{t+(j&1)}, v{t+j}, v{t+j}')
    A.i(f'v_add_f32 v{t}, v{t}, v{t+1}')
    wave_sum(A, t, sT4)
    A.i(f'v_mul_f32 v{t+8}, s{sT4}, v{t+8}')
    round2(A, t + 8, t + 9, t)
    A.i(f'v_add_f32 v{t+8}, 0x3727c5ac, v{t+8}')
    A.i(f'v_cvt_pk_bf16_f32 v{t+8}, v{t+8}, v{t+8}')
    A.i(f'v_lshlrev_b32 v{t+8}, 16, v{t+8}')
    A.i(f'v_sqrt_f32 v{t+8}, v{t+8}')
    A.i(f'v_cvt_pk_bf16_f32 v{t+8}, v{t+8}, v{t+8}')
    A.i(f'v_lshlrev_b32 v{t+8}, 16, v{t+8}')
    A.i(f'v_rcp_f32 v{t+8}, v{t+8}')
    for j in range(8):
        A.i(f'v_sub_f32 v{x+j}, v{x+j}, v{t+9}')
    for j in range(4):
        round2(A, x + 2 * j, x + 2 * j + 1, t + j)
    for j in range(8):
        A.i(f'v_mul_f32 v{x+j}, v{x+j}, v{t+8}')
    for j in range(4):
        round2(A, x + 2 * j, x + 2 * j + 1, t + j)
    for j in range(8):
        A.i(f'v_mul_f32 v{x+j}, v{x+j}, v{c1+j}')
    for j in range(4):
        round2(A, x + 2 * j, x + 2 * j + 1, t + j)
    for j in range(8):
        A.i(f'v_add_f32 v{x+j}, v{x+j}, v{sh+j}')
    for j in range(4):
        A.i(f'v_cvt_pk_bf16_f32 v{out+j}, v{x+2*j}, v{x+2*j+1}')


def role_ln1(A, sy, sidx):
    srd(A, S_A, P_X, 2048 * 1024)
    A.i('v_lshlrev_b32 v2, 5, v0')
    A.i(f's_lshl_b32 s{sT1}, s{sidx}, 2')
    A.i(f's_add_u32 s{sT1}, s{sT1}, s{sW}')
    A.i(f's_lshl_b32 s{sT1}, s{sT1}, 10')
    load_mod8(A, 8, 1)
    load_mod8(A, 16, 0)
    for q in range(8):
        A.i(f's_add_u32 s{sT0}, s{sT1}, {q*256*1024:#x}')
        A.i(f'buffer_load_dwordx4 v[{64+4*q}:{67+4*q}], v1, s[{S_A}:{S_A+3}], s{sT0} offen')
    A.i(f's_lshl_b32 s{sT0}, s{sidx}, 7')
    A.i(f's_add_u32 s{sT0}, s{sT0}, {F_H:#x}')
    A.i(f'v_mov_b32 v3, s{sT0}')
    A.i('s_waitcnt vmcnt(8)')
    one_plus(A, 8, 4)
    for q in range(8):
        if q == 0:
            A.i('s_waitcnt vmcnt(7)')
        elif q == 1:
            A.i('s_waitcnt vmcnt(0)')
        for j in range(4):
            unpack(A, 24 + 2 * j, 25 + 2 * j, 64 + 4 * q + j)
        ln_core(A, 24, 32, 8, 16, 44 + 4 * (q & 1))
        A.i(f's_add_u32 s{sT0}, s{sT1}, {H + q*256*1024:#x}')
        A.i(f'buffer_store_dwordx4 v[{44+4*(q&1)}:{47+4*(q&1)}], v1, {WSR}, s{sT0} offen sc1')
        if sy.on and q in (0, 3, 7):
            A.i('s_waitcnt vmcnt(0)')
            A.i('s_barrier')
            Ls = A.newlabel('Lln')
            A.i(f's_cmp_lg_u32 s{sW}, 0')
            A.i(f's_cbranch_scc1 {Ls}')
            A.i(f's_mov_b32 s{sT0}, {q+1}')
            sy.publish(A, 3, 4, sT0)
            A.label(Ls)


XB0 = 0
XBS = 32768


def t1_setup(A, vdma, vrd, swap_odd=False):
    A.i(f's_and_b32 s{sT0}, s{sW}, 1')
    A.i(f's_lshl_b32 s{sT1}, s{sT0}, 7')
    A.i(f'v_xor_b32 v{vdma}, s{sT1}, v1')
    A.i(f'v_and_b32 v{vrd+7}, 15, v0')
    A.i(f'v_lshrrev_b32 v{vrd+6}, 4, v0')
    A.i(f'v_xor_b32 v{vrd+6}, v{vrd+6}, v{vrd+7}')
    A.i(f'v_lshlrev_b32 v{vrd+6}, 4, v{vrd+6}')
    A.i(f'v_lshl_or_b32 v{vrd+7}, v{vrd+7}, 10, v{vrd+6}')
    if swap_odd:
        A.i(f's_lshl_b32 s{sT1}, s{sT0}, 14')
        A.i(f'v_xor_b32 v{vrd+7}, s{sT1}, v{vrd+7}')
    for k in range(4):
        A.i(f'v_xor_b32 v{vrd+k}, {k*64}, v{vrd+7}')
    for k in range(3, -1, -1):
        A.i(f'v_xor_b32 v{vrd+4+k}, 0x4000, v{vrd+k}')


def t1_dma(A, vdma, vtmp, ssrc, sbuf):
    A.i(f's_lshl_b32 s{sT0}, s{sW}, 13')
    A.i(f's_add_u32 s{sT1}, s{sT0}, s{ssrc}')
    A.i(f's_add_u32 s{sT0}, s{sT0}, s{sbuf}')
    A.i(f's_mov_b32 m0, s{sT0}')
    for i in range(8):
        if i == 4:
            A.i(f's_add_u32 s{sT0}, s{sT0}, 4096')
            A.i(f's_add_u32 s{sT1}, s{sT1}, 4096')
            A.i(f's_mov_b32 m0, s{sT0}')
        A.i(f'v_xor_b32 v{vtmp+(i&1)}, {i*16}, v{vdma}')
        A.i(f'buffer_load_dwordx4 v{vtmp+(i&1)}, {WSR}, s{sT1} offen offset:{(i&3)*1024} sc1 lds')


def t1_compute(A, vrd, vabuf, xf, wbase, dbase, swapped, mid=None):
    def rd(ks):
        for tt in range(2):
            A.i(f'ds_read_b128 {vr(xf + (ks & 3) * 8 + tt * 4, 4)}, v{vabuf + tt*4 + (ks & 3)} offset:{(ks >> 2) * 256}')
    for ks in range(3):
        rd(ks)
    for ks in range(16):
        if ks + 3 < 16:
            rd(ks + 3)
            A.i('s_waitcnt lgkmcnt(6)')
        else:
            A.i(f's_waitcnt lgkmcnt({2 * (15 - ks)})')
        for t in range(2):
            for tt in range(2):
                d = ur(dbase + (t * 2 + tt) * 4, 4)
                w = ur(wbase + (ks * 2 + t) * 4, 4)
                x = vr(xf + (ks & 3) * 8 + tt * 4, 4)
                c = '0' if ks == 0 else d
                if swapped:
                    A.i(f'v_mfma_f32_16x16x32_bf16 {d}, {w}, {x}, {c}')
                else:
                    A.i(f'v_mfma_f32_16x16x32_bf16 {d}, {x}, {w}, {c}')
        if mid is not None:
            mid(ks)


def paired_units(srd_s, voff, sbase, rs, nks, wbase):
    units = []
    for ks in range(nks):
        for i in range(4):
            r0 = 32 * ks + 2 * i
            units.append((srd_s, voff, sbase, r0 * rs, (r0 + 1) * rs, 1,
                          [(wbase + (ks * 2 + 0) * 4 + i, 0, f's{SELLO}'), (wbase + (ks * 2 + 1) * 4 + i, 0, f's{SELHI}')]))
    return units


def lane_woff(A, dst, rs, colbytes, tmp):
    A.i(f'v_lshrrev_b32 v{tmp}, 4, v0')
    A.i(f's_mov_b32 s{sT0}, {8*rs}')
    A.i(f'v_mul_lo_u32 v{dst}, v{tmp}, s{sT0}')
    A.i(f'v_and_b32 v{tmp}, 15, v0')
    A.i(f'v_mul_u32_u24 v{tmp}, {colbytes}, v{tmp}')
    A.i(f'v_add_u32 v{dst}, v{dst}, v{tmp}')


def h_flag_addr(A, vdst, sseg, stmp):
    A.i(f's_and_b32 s{stmp}, s{sseg}, 7')
    A.i(f's_lshl_b32 s{stmp}, s{stmp}, 10')
    A.i(f's_add_u32 s{stmp}, s{stmp}, {F_H:#x}')
    A.i(f'v_and_b32 v{vdst}, 7, v0')
    A.i(f'v_lshlrev_b32 v{vdst}, 7, v{vdst}')
    A.i(f'v_add_u32 v{vdst}, s{stmp}, v{vdst}')


def t1_loop(A, sy, name, seg0, segstep, src_base, wait_src, body, vdma, vrd, vab, vtmp, vflag):
    Ltop, Lhave, Lnopf, Lend = (A.newlabel(name + x) for x in ('top', 'have', 'nopf', 'end'))
    A.i(f's_mov_b32 s72, {XB0}')
    A.i('s_mov_b32 s73, 0')
    A.label(Ltop)
    A.i('s_cmp_lg_u32 s73, 0')
    A.i(f's_cbranch_scc1 {Lhave}')
    wait_src(sS, True, None)
    A.i(f's_lshl_b32 s75, s{sS}, 15')
    A.i(f's_add_u32 s75, s75, {src_base:#x}')
    t1_dma(A, vdma, vtmp, 75, 72)
    A.label(Lhave)
    A.i('s_waitcnt vmcnt(0)')
    A.i('s_barrier')
    for k in range(8):
        A.i(f'v_add_u32 v{vab+k}, s72, v{vrd+k}')
    A.i('s_mov_b32 s73, 0')
    A.i(f's_add_u32 s74, s{sS}, {segstep}')
    A.i('s_cmp_ge_u32 s74, 64')
    A.i(f's_cbranch_scc1 {Lnopf}')
    wait_src(74, False, Lnopf)
    A.i('s_lshl_b32 s75, s74, 15')
    A.i(f's_add_u32 s75, s75, {src_base:#x}')
    A.i(f's_xor_b32 s76, s72, {XBS}')
    t1_dma(A, vdma, vtmp, 75, 76)
    A.i('s_mov_b32 s73, 1')
    A.label(Lnopf)
    body()
    if sy.on:
        A.i('s_waitcnt vmcnt(0)')
    A.i('s_barrier')
    if sy.on:
        Ls = A.newlabel(name + 'pub')
        A.i(f's_cmp_lg_u32 s{sW}, 0')
        A.i(f's_cbranch_scc1 {Ls}')
        A.i(f's_add_u32 s{sT0}, s{sS}, 1')
        sy.publish(A, vflag, vtmp, sT0)
        A.label(Ls)
    A.i(f's_xor_b32 s72, s72, {XBS}')
    A.i(f's_add_u32 s{sS}, s{sS}, {segstep}')
    A.i(f's_cmp_lt_u32 s{sS}, 64')
    A.i(f's_cbranch_scc1 {Ltop}')
    A.label(Lend)


def flag_test(A, sy, vaddr, vtmp, sneed, blocking, Lnot):
    if not sy.on:
        return
    if blocking:
        sy.wait(A, vaddr, vtmp, sneed)
    else:
        A.i(f'buffer_load_dword v{vtmp}, v{vaddr}, {WSR}, 0 offen sc1')
        A.i('s_waitcnt vmcnt(0)')
        A.i(f'v_cmp_le_u32 vcc, s{sneed}, v{vtmp}')
        A.i('s_cmp_eq_u64 vcc, exec')
        A.i(f's_cbranch_scc0 {Lnot}')


def make_wait_h(A, sy, va, vtmp):
    def wait_src(sseg, blocking, Lnot):
        if not sy.on:
            return
        h_flag_addr(A, va, sseg, sT0)
        A.i(f's_lshr_b32 s{sT2}, s{sseg}, 3')
        A.i(f's_add_u32 s{sT2}, s{sT2}, 1')
        flag_test(A, sy, va, vtmp, sT2, blocking, Lnot)
    return wait_src


def role_kv(A, sy, is_v):
    name = 'V' if is_v else 'K'
    srd(A, S_A, P_WV if is_v else P_WK, 512 * 8192)
    VDMA, VRD, VAB, VT_, VFL, VST, VWA = 2, 4, 12, 20, 22, 23, 24
    XF, D, PK = 32, 64, 80
    lane_woff(A, 3, 8192, 4, 4)
    A.i(f's_lshl_b32 s77, s{sR}, 8')
    A.i(f's_lshl_b32 s{sT0}, s{sW}, 6')
    A.i(f's_add_u32 s77, s77, s{sT0}')
    load_weights(A, paired_units(S_A, 3, 77, 8192, 16, 256), 128, 32, 4)
    t1_setup(A, VDMA, VRD)
    A.i(f's_lshl_b32 s{sT0}, s{sR}, 7')
    A.i(f's_add_u32 s{sT0}, s{sT0}, {F_KV + (32*FL if is_v else 0):#x}')
    A.i(f'v_mov_b32 v{VFL}, s{sT0}')
    if is_v:
        A.i(f's_lshl_b32 s77, s{sR}, 13')
        A.i(f's_lshl_b32 s{sT0}, s{sW}, 11')
        A.i(f's_add_u32 s77, s77, s{sT0}')
        A.i(f's_add_u32 s77, s77, {VT:#x}')
        A.i(f'v_mov_b32 v{VST}, v1')
    else:
        A.i(f's_lshl_b32 s77, s{sR}, 13')
        A.i(f's_lshl_b32 s{sT0}, s{sW}, 11')
        A.i(f's_add_u32 s77, s77, s{sT0}')
        A.i(f's_add_u32 s77, s77, {KX:#x}')
        A.i(f'v_lshrrev_b32 v{VST}, 4, v0')
        A.i(f'v_lshlrev_b32 v{VST}, 9, v{VST}')
        A.i(f'v_and_b32 v{VT_}, 15, v0')
        A.i(f'v_lshl_add_u32 v{VST}, v{VT_}, 4, v{VST}')
    A.i(f's_mov_b32 s{sS}, 0')

    def body():
        t1_compute(A, VRD, VAB, XF, 256, D, swapped=not is_v)
        A.i(f's_lshl_b32 s{sT0}, s{sS}, 18')
        A.i(f's_add_u32 s{sT0}, s{sT0}, s77')
        if is_v:
            for t in range(2):
                for tt in range(2):
                    d = D + (t * 2 + tt) * 4
                    A.i(f'v_cvt_pk_bf16_f32 v{PK+t*4+tt*2}, v{d}, v{d+1}')
                    A.i(f'v_cvt_pk_bf16_f32 v{PK+t*4+tt*2+1}, v{d+2}, v{d+3}')
                A.i(f'buffer_store_dwordx4 v[{PK+t*4}:{PK+t*4+3}], v{VST}, {WSR}, s{sT0} offen offset:{t*1024} sc1')
        else:
            for tt in range(2):
                for r in range(4):
                    A.i(f'v_cvt_pk_bf16_f32 v{PK+tt*4+r}, v{D+tt*4+r}, v{D+(2+tt)*4+r}')
                A.i(f'buffer_store_dwordx4 v[{PK+tt*4}:{PK+tt*4+3}], v{VST}, {WSR}, s{sT0} offen offset:{tt*256} sc1')

    t1_loop(A, sy, name, 0, 1, H, make_wait_h(A, sy, VWA, VT_), body, VDMA, VRD, VAB, VT_, VFL)


def score_round(A, regs, tmp):
    for a, b in zip(regs[0::2], regs[1::2]):
        round2(A, a, b, tmp)
    for a in regs:
        A.i(f'v_mul_f32 v{a}, s{sSCALE}, v{a}')
    for a, b in zip(regs[0::2], regs[1::2]):
        round2(A, a, b, tmp)


def xlane(A, op, v, t):
    A.i(f'v_mov_b32 v{t}, v{v}')
    A.i(f'v_permlane32_swap_b32 v{v}, v{t}')
    A.i(f'{op} v{v}, v{v}, v{t}')
    A.i(f'v_mov_b32 v{t}, v{v}')
    A.i(f'v_permlane16_swap_b32 v{v}, v{t}')
    A.i(f'{op} v{v}, v{v}, v{t}')


QIMG = 65536


def role_qa(A, sy):
    srd(A, S_A, P_WQ, 512 * 8192)
    VDMA, VRD, VAB, VT_, VFL, VWA = 2, 4, 12, 20, 22, 24
    VQW, VQR, VKX, VKM, VVM, VOST, VFKV, VFCH = 23, 25, 26, 27, 28, 29, 30, 31
    XF, D, PK = 32, 64, 80
    KF, VF, QF, KMF, VMF = 96, 128, 144, 160, 176
    S1, S2, S0, PX, PY, PM, OD, TM = 184, 188, 192, 196, 200, 204, 208, 224
    sH = 78
    A.i(f's_lshr_b32 s{sH}, s{sR}, 1')
    lane_woff(A, 3, 8192, 4, 4)
    A.i(f's_lshl_b32 s77, s{sH}, 8')
    A.i(f's_lshl_b32 s{sT0}, s{sW}, 6')
    A.i(f's_add_u32 s77, s77, s{sT0}')
    load_weights(A, paired_units(S_A, 3, 77, 8192, 16, 256), 128, 32, 4)
    t1_setup(A, VDMA, VRD)
    A.i(f's_lshl_b32 s{sT0}, s{sR}, 7')
    A.i(f's_add_u32 s{sT0}, s{sT0}, {F_QA:#x}')
    A.i(f'v_mov_b32 v{VFL}, s{sT0}')
    A.i(f'v_lshrrev_b32 v{TM}, 4, v0')
    A.i(f'v_and_b32 v{TM+1}, 15, v0')
    A.i(f'v_lshlrev_b32 v{VKX}, 9, v{TM}')
    A.i(f'v_lshl_add_u32 v{VKX}, v{TM+1}, 4, v{VKX}')
    A.i(f's_lshl_b32 s{sT0}, s{sW}, 11')
    A.i(f's_add_u32 s{sT0}, s{sT0}, {QIMG}')
    A.i(f'v_add_u32 v{VQW}, s{sT0}, v{VKX}')
    A.i(f's_and_b32 s79, s{sW}, 1')
    A.i(f's_lshr_b32 s80, s{sW}, 1')
    A.i(f's_lshl_b32 s{sT0}, s79, 8')
    A.i(f's_add_u32 s{sT1}, s{sT0}, {QIMG}')
    A.i(f'v_add_u32 v{VQR}, s{sT1}, v{VKX}')
    A.i(f's_lshl_b32 s{sT1}, s80, 12')
    A.i(f's_add_u32 s{sT1}, s{sT1}, s{sT0}')
    A.i(f'v_add_u32 v{VOST}, s{sT1}, v{VKX}')
    A.i(f'v_lshrrev_b32 v{TM+2}, 2, v{TM+1}')
    A.i(f'v_and_b32 v{TM+3}, 1, v{TM+1}')
    A.i(f'v_lshl_add_u32 v{TM+2}, v{TM+2}, 1, v{TM+3}')
    A.i(f'v_lshlrev_b32 v{TM+2}, 8, v{TM+2}')
    A.i(f'v_lshl_add_u32 v{VKM}, v{TM}, 4, v{TM+2}')
    A.i(f'v_lshlrev_b32 v{VVM}, 4, v{TM+1}')
    A.i(f'v_lshl_add_u32 v{VVM}, v{TM}, 2, v{VVM}')
    A.i(f's_lshl_b32 s{sT0}, s80, 10')
    A.i(f'v_add_u32 v{VVM}, s{sT0}, v{VVM}')
    A.i(f'v_and_b32 v{TM+2}, 1, v0')
    A.i(f'v_lshlrev_b32 v{TM+2}, 12, v{TM+2}')
    A.i(f's_lshl_b32 s{sT0}, s{sH}, 7')
    A.i(f's_add_u32 s{sT1}, s{sT0}, {F_KV:#x}')
    A.i(f'v_mov_b32 v{VFKV}, s{sT1}')
    A.i(f's_add_u32 s{sT1}, s{sT0}, {F_CH:#x}')
    A.i(f'v_mov_b32 v{VFCH}, s{sT1}')
    A.i(f's_lshl_b32 s{sT0}, s79, 4')
    A.i(f'v_lshlrev_b32 v{TM+2}, 2, v{TM}')
    A.i(f'v_sub_u32 v{TM+2}, v{TM+1}, v{TM+2}')
    A.i(f'v_add_u32 v{TM+2}, s{sT0}, v{TM+2}')
    for i in range(8):
        A.i(f'v_cmp_le_i32 s[{82+2*i}:{83+2*i}], {16*(i>>2)+(i&3)}, v{TM+2}')
    A.i(f'v_mov_b32 v{PM+1}, 0')
    A.i(f's_and_b32 s{sS}, s{sR}, 1')

    def body():
        A.i(f's_add_u32 s{sT2}, s{sS}, 1')
        sy.wait(A, VFKV, VT_, sT2)
        A.i(f's_lshl_b32 s81, s{sS}, 18')
        A.i(f's_lshl_b32 s{sT0}, s{sH}, 13')
        A.i(f's_add_u32 s81, s81, s{sT0}')
        A.i(f's_add_u32 s{sT0}, s81, {KX:#x}')
        A.i(f's_add_u32 s{sT1}, s{sT0}, 4096')
        for kt in range(2):
            for ks in range(4):
                so = sT0 if ks < 2 else sT1
                A.i(f'buffer_load_dwordx4 {vr(KF+(kt*4+ks)*4,4)}, v{VKX}, {WSR}, s{so} offen offset:{(ks&1)*2048+kt*256} sc1')
        A.i(f's_lshl_b32 s{sT0}, s80, 12')
        A.i(f's_add_u32 s{sT0}, s{sT0}, s81')
        A.i(f's_add_u32 s{sT0}, s{sT0}, {VT:#x}')
        for i in range(4):
            A.i(f'buffer_load_dwordx4 {vr(VF+i*4,4)}, v1, {WSR}, s{sT0} offen offset:{i*1024} sc1')
        t1_compute(A, VRD, VAB, XF, 256, D, swapped=True)
        for tt in range(2):
            for r in range(4):
                A.i(f'v_cvt_pk_bf16_f32 v{PK+tt*4+r}, v{D+tt*4+r}, v{D+(2+tt)*4+r}')
            A.i(f'ds_write_b128 v{VQW}, v[{PK+tt*4}:{PK+tt*4+3}] offset:{tt*256}')
        A.i('s_waitcnt lgkmcnt(0)')
        A.i('s_barrier')
        for ks in range(4):
            A.i(f'ds_read_b128 {vr(QF+ks*4,4)}, v{VQR} offset:{ks*2048}')
        A.i('s_waitcnt vmcnt(0) lgkmcnt(0)')
        for kt, S in ((0, S1), (1, S2)):
            for ks in range(4):
                c = '0' if ks == 0 else vr(S, 4)
                A.i(f'v_mfma_f32_16x16x32_bf16 {vr(S,4)}, {vr(KF+(kt*4+ks)*4,4)}, {vr(QF+ks*4,4)}, {c}')
        xs = [S1 + i for i in range(8)]
        score_round(A, xs, TM)
        A.i(f'v_mov_b32 v{TM}, 0xce6e6b28')
        for i in range(8):
            A.i(f'v_cndmask_b32 v{S1+i}, v{TM}, v{S1+i}, s[{82+2*i}:{83+2*i}]')
        A.i(f'v_max3_f32 v{TM+2}, v{S1}, v{S1+1}, v{S1+2}')
        A.i(f'v_max3_f32 v{TM+2}, v{TM+2}, v{S1+3}, v{S1+4}')
        A.i(f'v_max3_f32 v{TM+2}, v{TM+2}, v{S1+5}, v{S1+6}')
        A.i(f'v_max_f32 v{TM+2}, v{TM+2}, v{S1+7}')
        A.i(f's_add_u32 s{sT2}, s{sS}, 1')
        sy.wait(A, VFCH, VT_, sT2)
        A.i(f's_lshr_b32 s{sT0}, s81, 2')
        A.i(f's_add_u32 s{sT1}, s{sT0}, {VM:#x}')
        A.i(f's_add_u32 s{sT0}, s{sT0}, {KM:#x}')
        for ks in range(4):
            A.i(f'buffer_load_dwordx4 {vr(KMF+ks*4,4)}, v{VKM}, {WSR}, s{sT0} offen offset:{ks*64} sc1')
        for i in range(4):
            A.i(f'buffer_load_dword v{VMF+2*i}, v{VVM}, {WSR}, s{sT1} offen offset:{i*256} sc1')
            A.i(f'v_mov_b32 v{VMF+2*i+1}, 0')
        for ks in range(4):
            A.i(f's_waitcnt vmcnt({7-ks})')
            c = '0' if ks == 0 else vr(S0, 4)
            A.i(f'v_mfma_f32_16x16x32_bf16 {vr(S0,4)}, {vr(KMF+ks*4,4)}, {vr(QF+ks*4,4)}, {c}')
        score_round(A, [S0, S0 + 1], TM)
        A.i(f'v_max3_f32 v{TM+2}, v{TM+2}, v{S0}, v{S0+1}')
        xlane(A, 'v_max_f32', TM + 2, TM + 3)
        vals = xs + [S0, S0 + 1]
        A.i(f'v_mul_f32 v{TM+2}, s{sLOG2E}, v{TM+2}')
        for a in vals:
            A.i(f'v_fma_f32 v{a}, v{a}, s{sLOG2E}, -v{TM+2}')
        for a in vals:
            A.i(f'v_exp_f32 v{a}, v{a}')
        A.i(f'v_add_f32 v{TM+2}, v{vals[0]}, v{vals[1]}')
        A.i(f'v_add_f32 v{TM+4}, v{vals[2]}, v{vals[3]}')
        for k in range(4, 10, 2):
            A.i(f'v_add_f32 v{TM+2}, v{TM+2}, v{vals[k]}')
            A.i(f'v_add_f32 v{TM+4}, v{TM+4}, v{vals[k+1]}')
        A.i(f'v_add_f32 v{TM+2}, v{TM+2}, v{TM+4}')
        xlane(A, 'v_add_f32', TM + 2, TM + 3)
        A.i(f'v_rcp_f32 v{TM+2}, v{TM+2}')
        for a in vals:
            A.i(f'v_mul_f32 v{a}, v{a}, v{TM+2}')
        for k in range(4):
            A.i(f'v_cvt_pk_bf16_f32 v{PX+k}, v{S1+2*k}, v{S1+2*k+1}')
        A.i(f'v_cvt_pk_bf16_f32 v{PM}, v{S0}, v{S0+1}')
        A.i('s_waitcnt vmcnt(0)')
        for i in range(4):
            p = PX
            A.i(f'v_mfma_f32_16x16x32_bf16 {vr(OD+4*i,4)}, {vr(VF+4*i,4)}, {vr(p,4)}, 0')
        for i in range(4):
            A.i(f'v_mfma_f32_16x16x16_bf16 {vr(OD+4*i,4)}, {vr(VMF+2*i,2)}, {vr(PM,2)}, {vr(OD+4*i,4)}')
        A.i(f's_add_u32 s{sT0}, s81, {OB:#x}')
        for u in range(2):
            for r in range(4):
                A.i(f'v_cvt_pk_bf16_f32 v{PK+u*4+r}, v{OD+8*u+r}, v{OD+8*u+4+r}')
            A.i(f'buffer_store_dwordx4 v[{PK+u*4}:{PK+u*4+3}], v{VOST}, {WSR}, s{sT0} offen offset:{u*2048} sc1')

    t1_loop(A, sy, 'QA', 0, 2, H, make_wait_h(A, sy, VWA, VT_), body, VDMA, VRD, VAB, VT_, VFL)


def natural_units(srd_s, voff, sbase, rs, nks, ntiles, wbase, vsel, tile_stride=32, tile_index=None):
    units = []
    for ks in range(nks):
        for t in range(ntiles):
            for i in range(4):
                r0 = 32 * ks + 2 * i
                idx = tile_index(ks, t) if tile_index else ks * ntiles + t
                units.append((srd_s, voff, sbase, r0 * rs + t * tile_stride, (r0 + 1) * rs + t * tile_stride, 1,
                              [(wbase + idx * 4 + i, 0, f'v{vsel}')]))
    return units


def natural_setup(A, voff, vsel, rs, tmp):
    A.i(f'v_lshrrev_b32 v{tmp}, 4, v0')
    A.i(f's_mov_b32 s{sT0}, {8*rs}')
    A.i(f'v_mul_lo_u32 v{voff}, v{tmp}, s{sT0}')
    A.i(f'v_and_b32 v{tmp}, 14, v0')
    A.i(f'v_lshl_add_u32 v{voff}, v{tmp}, 1, v{voff}')
    A.i(f'v_and_b32 v{tmp}, 1, v0')
    A.i(f'v_cmp_eq_u32 vcc, 1, v{tmp}')
    A.i(f'v_mov_b32 v{vsel}, s{SELLO}')
    A.i(f'v_mov_b32 v{tmp}, s{SELHI}')
    A.i(f'v_cndmask_b32 v{vsel}, v{vsel}, v{tmp}, vcc')


def role_wo(A, sy):
    srd(A, S_A, P_WO, 4096 * 1024)
    VPC, VFL, VFQ, VT_, VLW, VLR, VST = 2, 5, 6, 7, 8, 9, 10
    XF, D, RD = 32, 96, 128
    natural_setup(A, 3, 4, 1024, 5)
    A.i(f's_lshr_b32 s78, s{sR}, 3')
    A.i(f's_and_b32 s79, s{sR}, 7')
    A.i(f's_lshl_b32 s80, s78, 2')
    A.i(f's_add_u32 s80, s80, s{sW}')
    A.i(f's_lshl_b32 s77, s80, 18')
    A.i(f's_lshl_b32 s{sT0}, s79, 7')
    A.i(f's_add_u32 s77, s77, s{sT0}')
    load_weights(A, natural_units(S_A, 3, 77, 1024, 8, 4, 256, 4), 128, 32, 6)
    A.i(f'v_lshrrev_b32 v{VT_}, 4, v0')
    A.i(f'v_lshlrev_b32 v{VPC}, 9, v{VT_}')
    A.i(f'v_and_b32 v{VST}, 15, v0')
    A.i(f'v_lshl_add_u32 v{VPC}, v{VST}, 4, v{VPC}')
    A.i(f'v_lshlrev_b32 v{VST}, 11, v{VST}')
    A.i(f'v_lshl_add_u32 v{VST}, v{VT_}, 4, v{VST}')
    A.i(f's_lshl_b32 s{sT0}, s79, 8')
    A.i(f's_lshl_b32 s{sT1}, s{sW}, 6')
    A.i(f's_add_u32 s{sT0}, s{sT0}, s{sT1}')
    A.i(f's_lshl_b32 s{sT1}, s78, 16')
    A.i(f's_add_u32 s{sT0}, s{sT0}, s{sT1}')
    A.i(f's_add_u32 s81, s{sT0}, {PART:#x}')
    A.i(f's_lshl_b32 s{sT0}, s{sW}, 13')
    A.i(f'v_add_u32 v{VLW}, s{sT0}, v1')
    A.i(f's_lshl_b32 s{sT0}, s{sW}, 11')
    A.i(f'v_add_u32 v{VLR}, s{sT0}, v1')
    A.i(f's_lshl_b32 s{sT0}, s{sR}, 7')
    A.i(f's_add_u32 s{sT0}, s{sT0}, {F_WO:#x}')
    A.i(f'v_mov_b32 v{VFL}, s{sT0}')
    A.i(f'v_and_b32 v{VT_}, 1, v0')
    A.i(f'v_lshlrev_b32 v{VT_}, 8, v{VT_}')
    A.i(f's_lshl_b32 s{sT0}, s80, 9')
    A.i(f's_add_u32 s{sT0}, s{sT0}, {F_QA:#x}')
    A.i(f'v_add_u32 v{VFQ}, s{sT0}, v{VT_}')
    A.i(f's_lshl_b32 s82, s80, 14')
    A.i(f's_add_u32 s82, s82, {OB:#x}')
    A.i(f's_mov_b32 s{sS}, 0')
    Ltop = A.newlabel('WOtop')
    A.label(Ltop)
    if sy.on:
        A.i(f's_and_b32 s{sT0}, s{sS}, 1')
        A.i(f's_lshl_b32 s{sT0}, s{sT0}, 7')
        A.i(f'v_add_u32 v11, s{sT0}, v{VFQ}')
        A.i(f's_add_u32 s{sT2}, s{sS}, 1')
        sy.wait(A, 11, VT_, sT2)
        sy.trace(A, VT_, sS, imm=110, wave=0, lim=40)
    A.i(f's_lshl_b32 s{sT0}, s{sS}, 18')
    A.i(f's_add_u32 s{sT0}, s{sT0}, s82')
    for ks in range(8):
        if ks and (ks & 1) == 0:
            A.i(f's_add_u32 s{sT0}, s{sT0}, 4096')
        for tt in range(2):
            A.i(f'buffer_load_dwordx4 {vr(XF+(ks*2+tt)*4,4)}, v{VPC}, {WSR}, s{sT0} offen offset:{(ks&1)*2048+tt*256} sc1')
    for ks in range(8):
        A.i(f's_waitcnt vmcnt({14-2*ks})')
        for t in range(4):
            for tt in range(2):
                d = vr(D + (t * 2 + tt) * 4, 4)
                c = '0' if ks == 0 else d
                A.i(f'v_mfma_f32_16x16x32_bf16 {d}, {ur(256+(ks*4+t)*4,4)}, {vr(XF+(ks*2+tt)*4,4)}, {c}')
    sy.trace(A, VT_, sS, imm=150, wave=0, lim=40)
    for q in range(8):
        A.i(f'ds_write_b128 v{VLW}, {vr(D+q*4,4)} offset:{q*1024}')
    A.i('s_waitcnt lgkmcnt(0)')
    A.i('s_barrier')
    for u in range(2):
        for w2 in range(4):
            A.i(f'ds_read_b128 {vr(RD+(u*4+w2)*4,4)}, v{VLR} offset:{w2*8192+u*1024}')
    A.i(f's_lshl_b32 s{sT0}, s{sS}, 18')
    A.i(f's_add_u32 s{sT0}, s{sT0}, s81')
    A.i(f's_add_u32 s{sT1}, s{sT0}, {16*2048}')
    for u in range(2):
        A.i(f's_waitcnt lgkmcnt({4-4*u})')
        b = RD + u * 16
        for r in range(4):
            A.i(f'v_add_f32 v{b+r}, v{b+r}, v{b+4+r}')
            A.i(f'v_add_f32 v{b+8+r}, v{b+8+r}, v{b+12+r}')
        for r in range(4):
            A.i(f'v_add_f32 v{b+r}, v{b+r}, v{b+8+r}')
        A.i(f'buffer_store_dwordx4 {vr(b,4)}, v{VST}, {WSR}, s{sT0 if u == 0 else sT1} offen sc1')
    sy.trace(A, VT_, sS, imm=190, wave=0, lim=40)
    if sy.on:
        A.i('s_waitcnt vmcnt(0)')
    A.i('s_barrier')
    if sy.on:
        Ls = A.newlabel('WOpub')
        A.i(f's_cmp_lg_u32 s{sW}, 0')
        A.i(f's_cbranch_scc1 {Ls}')
        A.i(f's_add_u32 s{sT0}, s{sS}, 1')
        sy.publish(A, VFL, VT_, sT0)
        A.label(Ls)
    A.i(f's_add_u32 s{sS}, s{sS}, 1')
    A.i(f's_cmp_lt_u32 s{sS}, 64')
    A.i(f's_cbranch_scc1 {Ltop}')


def role_r(A, sy):
    srd(A, S_A, P_X, 2048 * 1024)
    VFL, VFW, VT_ = 3, 4, 5
    GA, C1, SH, X, T, PK, XR, PT = 8, 16, 24, 32, 40, 52, 56, 64
    A.i('v_lshlrev_b32 v2, 5, v0')
    load_mod8(A, GA, 2)
    load_mod8(A, C1, 4)
    load_mod8(A, SH, 3)
    A.i(f's_and_b32 s78, s{sR}, 7')
    A.i(f's_lshl_b32 s78, s78, 2')
    A.i(f's_add_u32 s78, s78, s{sW}')
    A.i(f's_lshl_b32 s{sT0}, s{sR}, 7')
    A.i(f's_add_u32 s{sT0}, s{sT0}, {F_R:#x}')
    A.i(f'v_mov_b32 v{VFL}, s{sT0}')
    A.i(f'v_and_b32 v{VFW}, 31, v0')
    A.i(f'v_lshlrev_b32 v{VFW}, 7, v{VFW}')
    A.i(f'v_add_u32 v{VFW}, {F_WO:#x}, v{VFW}')
    A.i('s_waitcnt vmcnt(0)')
    one_plus(A, C1, VT_)
    A.i(f's_lshr_b32 s{sS}, s{sR}, 3')
    Ltop = A.newlabel('Rtop')
    A.label(Ltop)
    A.i(f's_lshl_b32 s79, s{sS}, 5')
    A.i(f's_add_u32 s79, s79, s78')
    A.i(f's_lshl_b32 s79, s79, 10')
    A.i(f'buffer_load_dwordx4 {vr(XR,4)}, v1, s[{S_A}:{S_A+3}], s79 offen')
    A.i(f's_add_u32 s{sT2}, s{sS}, 1')
    sy.wait(A, VFW, VT_, sT2)
    A.i(f's_lshl_b32 s{sT0}, s{sS}, 18')
    A.i(f's_lshl_b32 s{sT1}, s78, 11')
    A.i(f's_add_u32 s{sT0}, s{sT0}, s{sT1}')
    A.i(f's_add_u32 s{sT0}, s{sT0}, {PART:#x}')
    for kq in range(4):
        if kq:
            A.i(f's_add_u32 s{sT0}, s{sT0}, 0x10000')
        A.i(f'buffer_load_dwordx4 {vr(PT+kq*8,4)}, v2, {WSR}, s{sT0} offen sc1')
        A.i(f'buffer_load_dwordx4 {vr(PT+kq*8+4,4)}, v2, {WSR}, s{sT0} offen offset:16 sc1')
    A.i('s_waitcnt vmcnt(0)')
    for j in range(8):
        A.i(f'v_add_f32 v{PT+j}, v{PT+j}, v{PT+8+j}')
        A.i(f'v_add_f32 v{PT+16+j}, v{PT+16+j}, v{PT+24+j}')
    for j in range(8):
        A.i(f'v_add_f32 v{PT+j}, v{PT+j}, v{PT+16+j}')
    for j in range(4):
        round2(A, PT + 2 * j, PT + 2 * j + 1, T + j)
    for j in range(8):
        A.i(f'v_mul_f32 v{PT+j}, v{PT+j}, v{GA+j}')
    for j in range(4):
        round2(A, PT + 2 * j, PT + 2 * j + 1, T + j)
    for j in range(4):
        unpack(A, X + 2 * j, X + 2 * j + 1, XR + j)
    for j in range(8):
        A.i(f'v_add_f32 v{X+j}, v{X+j}, v{PT+j}')
    for j in range(4):
        A.i(f'v_cvt_pk_bf16_f32 v{XR+j}, v{X+2*j}, v{X+2*j+1}')
    A.i(f's_add_u32 s{sT0}, s79, {X1:#x}')
    A.i(f'buffer_store_dwordx4 {vr(XR,4)}, v1, {WSR}, s{sT0} offen sc1')
    for j in range(4):
        unpack(A, X + 2 * j, X + 2 * j + 1, XR + j)
    ln_core(A, X, T, C1, SH, PK)
    A.i(f's_add_u32 s{sT0}, s79, {H2:#x}')
    A.i(f'buffer_store_dwordx4 {vr(PK,4)}, v1, {WSR}, s{sT0} offen sc1')
    A.i('s_waitcnt vmcnt(0)')
    if sy.on:
        A.i('s_barrier')
        Ls = A.newlabel('Rpub')
        A.i(f's_cmp_lg_u32 s{sW}, 0')
        A.i(f's_cbranch_scc1 {Ls}')
        A.i(f's_add_u32 s{sT0}, s{sS}, 1')
        sy.publish(A, VFL, VT_, sT0)
        A.label(Ls)
    A.i(f's_add_u32 s{sS}, s{sS}, 2')
    A.i(f's_cmp_lt_u32 s{sS}, 64')
    A.i(f's_cbranch_scc1 {Ltop}')


def role_f1(A, sy):
    srd(A, S_A, P_WG, 512 * 3584)
    srd(A, S_B, P_WU, 512 * 3584)
    VDMA, VRD, VAB, VT_, VFL, VST, VWA = 2, 4, 12, 20, 22, 23, 24
    XF, D, PK, T = 32, 64, 80, 88
    natural_setup(A, 3, 25, 3584, 4)
    A.i(f's_lshl_b32 s77, s{sR}, 7')
    A.i(f's_lshl_b32 s{sT0}, s{sW}, 5')
    A.i(f's_add_u32 s77, s77, s{sT0}')
    ug = natural_units(S_A, 3, 77, 3584, 16, 1, 256, 25, tile_index=lambda ks, t: ks * 2)
    uu = natural_units(S_B, 3, 77, 3584, 16, 1, 256, 25, tile_index=lambda ks, t: ks * 2 + 1)
    load_weights(A, ug + uu, 128, 32, 4)
    t1_setup(A, VDMA, VRD)
    A.i(f's_lshl_b32 s{sT0}, s{sR}, 7')
    A.i(f's_add_u32 s{sT0}, s{sT0}, {F_F1:#x}')
    A.i(f'v_mov_b32 v{VFL}, s{sT0}')
    A.i(f'v_lshrrev_b32 v{VST}, 5, v0')
    A.i(f'v_lshlrev_b32 v{VST}, 9, v{VST}')
    A.i(f'v_and_b32 v{VT_}, 15, v0')
    A.i(f'v_lshl_add_u32 v{VST}, v{VT_}, 4, v{VST}')
    A.i(f'v_bfe_u32 v{VT_}, v0, 4, 1')
    A.i(f'v_lshl_add_u32 v{VST}, v{VT_}, 3, v{VST}')
    A.i(f's_lshl_b32 s77, s{sR}, 12')
    A.i(f's_lshl_b32 s{sT0}, s{sW}, 10')
    A.i(f's_add_u32 s77, s77, s{sT0}')
    A.i(f's_add_u32 s77, s77, {GU:#x}')
    A.i(f's_mov_b32 s{sS}, 0')

    def wait_src(sseg, blocking, Lnot):
        if not sy.on:
            return
        A.i(f's_and_b32 s{sT0}, s{sseg}, 1')
        A.i(f's_lshl_b32 s{sT0}, s{sT0}, 10')
        A.i(f's_add_u32 s{sT0}, s{sT0}, {F_R:#x}')
        A.i(f'v_and_b32 v{VWA}, 7, v0')
        A.i(f'v_lshlrev_b32 v{VWA}, 7, v{VWA}')
        A.i(f'v_add_u32 v{VWA}, s{sT0}, v{VWA}')
        A.i(f's_add_u32 s{sT2}, s{sseg}, 1')
        flag_test(A, sy, VWA, VT_, sT2, blocking, Lnot)

    def body():
        t1_compute(A, VRD, VAB, XF, 256, D, swapped=True)
        g = [D + i for i in range(8)]
        u = [D + 8 + i for i in range(8)]
        for k in range(0, 8, 2):
            round2(A, g[k], g[k + 1], T)
        for k in range(8):
            A.i(f'v_mul_f32 v{T+k}, s{sLOG2E}, v{g[k]}')
        for k in range(8):
            A.i(f'v_exp_f32 v{T+k}, -v{T+k}')
        for k in range(0, 8, 2):
            round2(A, u[k], u[k + 1], PK)
        for k in range(8):
            A.i(f'v_add_f32 v{T+k}, 1.0, v{T+k}')
        for k in range(8):
            A.i(f'v_rcp_f32 v{T+k}, v{T+k}')
        for k in range(8):
            A.i(f'v_mul_f32 v{g[k]}, v{g[k]}, v{T+k}')
        for k in range(0, 8, 2):
            round2(A, g[k], g[k + 1], T)
        for k in range(8):
            A.i(f'v_mul_f32 v{g[k]}, v{g[k]}, v{u[k]}')
        for k in range(4):
            A.i(f'v_cvt_pk_bf16_f32 v{PK+k}, v{g[2*k]}, v{g[2*k+1]}')
        A.i(f's_mul_i32 s{sT0}, s{sS}, 114688')
        A.i(f's_add_u32 s{sT0}, s{sT0}, s77')
        for tt in range(2):
            A.i(f'buffer_store_dwordx2 v[{PK+2*tt}:{PK+2*tt+1}], v{VST}, {WSR}, s{sT0} offen offset:{tt*256} sc1')

    t1_loop(A, sy, 'F1', 0, 1, H2, wait_src, body, VDMA, VRD, VAB, VT_, VFL)


def role_f2(A, sy):
    srd(A, S_A, P_WD, 1792 * 1024)
    srd(A, S_B, P_OUT, 2048 * 1024)
    VPC, VFQ, VT_, VLW, VLR, VST, GB = 2, 6, 7, 8, 9, 10, 12
    XF, D, RD, XR = 32, 144, 160, 176
    lane_woff(A, 3, 1024, 4, 4)
    A.i(f's_mul_i32 s77, s{sW}, {448*1024}')
    A.i(f's_lshl_b32 s{sT0}, s{sR}, 6')
    A.i(f's_add_u32 s77, s77, s{sT0}')
    load_weights(A, paired_units(S_A, 3, 77, 1024, 14, 256), 128, 32, 4)
    A.i(f'v_lshrrev_b32 v{VT_}, 4, v0')
    A.i(f'v_lshlrev_b32 v{VPC}, 9, v{VT_}')
    A.i(f'v_and_b32 v{VST}, 15, v0')
    A.i(f'v_lshl_add_u32 v{VPC}, v{VST}, 4, v{VPC}')
    A.i(f's_and_b32 s78, s{sW}, 1')
    A.i(f's_lshr_b32 s79, s{sW}, 1')
    A.i(f'v_lshlrev_b32 v{VST}, 10, v{VST}')
    A.i(f'v_lshl_add_u32 v{VST}, v{VT_}, 4, v{VST}')
    A.i(f's_lshl_b32 s{sT0}, s78, 14')
    A.i(f's_lshl_b32 s{sT1}, s{sR}, 6')
    A.i(f's_add_u32 s{sT0}, s{sT0}, s{sT1}')
    A.i(f's_lshl_b32 s{sT1}, s79, 3')
    A.i(f's_add_u32 s{sT0}, s{sT0}, s{sT1}')
    A.i(f'v_add_u32 v{VST}, s{sT0}, v{VST}')
    A.i(f'v_lshlrev_b32 v{VT_}, 5, v{VT_}')
    A.i(f's_lshl_b32 s{sT0}, s{sR}, 7')
    A.i(f's_lshl_b32 s{sT1}, s79, 4')
    A.i(f's_add_u32 s{sT0}, s{sT0}, s{sT1}')
    A.i(f's_add_u32 s{sT0}, s{sT0}, {MOD + 5*2048:#x}')
    A.i(f'buffer_load_dwordx4 {vr(GB,4)}, v{VT_}, {WSR}, s{sT0} offen sc1')
    A.i(f's_lshl_b32 s{sT0}, s{sW}, 12')
    A.i(f'v_add_u32 v{VLW}, s{sT0}, v1')
    A.i(f's_lshl_b32 s{sT0}, s78, 10')
    A.i(f's_lshl_b32 s{sT1}, s79, 3')
    A.i(f's_add_u32 s{sT0}, s{sT0}, s{sT1}')
    A.i(f'v_add_u32 v{VLR}, s{sT0}, v1')
    A.i(f'v_and_b32 v{VFQ}, 7, v0')
    A.i(f'v_min_u32 v{VFQ}, 6, v{VFQ}')
    A.i(f'v_lshlrev_b32 v{VFQ}, 7, v{VFQ}')
    A.i(f's_mul_i32 s{sT0}, s{sW}, {7*FL}')
    A.i(f's_add_u32 s{sT0}, s{sT0}, {F_F1:#x}')
    A.i(f'v_add_u32 v{VFQ}, s{sT0}, v{VFQ}')
    A.i(f's_mul_i32 s82, s{sW}, {56*512}')
    A.i(f's_add_u32 s82, s82, {GU:#x}')
    A.i(f's_mov_b32 s{sS}, 0')
    Ltop = A.newlabel('F2top')
    A.label(Ltop)
    A.i(f's_add_u32 s{sT2}, s{sS}, 1')
    sy.wait(A, VFQ, VT_, sT2)
    A.i(f's_mul_i32 s{sT0}, s{sS}, 114688')
    A.i(f's_add_u32 s{sT0}, s{sT0}, s82')
    for ks in range(14):
        if ks and (ks & 1) == 0:
            A.i(f's_add_u32 s{sT0}, s{sT0}, 4096')
        for tt in range(2):
            A.i(f'buffer_load_dwordx4 {vr(XF+(ks*2+tt)*4,4)}, v{VPC}, {WSR}, s{sT0} offen offset:{(ks&1)*2048+tt*256} sc1')
    A.i(f's_lshl_b32 s83, s{sS}, 15')
    A.i(f's_add_u32 s{sT0}, s83, {X1:#x}')
    A.i(f'buffer_load_dwordx2 {vr(XR,2)}, v{VST}, {WSR}, s{sT0} offen sc1')
    for ks in range(14):
        A.i(f's_waitcnt vmcnt({27-2*ks})')
        for t in range(2):
            for tt in range(2):
                d = vr(D + (t * 2 + tt) * 4, 4)
                c = '0' if ks == 0 else d
                A.i(f'v_mfma_f32_16x16x32_bf16 {d}, {ur(256+(ks*2+t)*4,4)}, {vr(XF+(ks*2+tt)*4,4)}, {c}')
    for q in range(4):
        A.i(f'ds_write_b128 v{VLW}, {vr(D+q*4,4)} offset:{q*1024}')
    A.i('s_waitcnt lgkmcnt(0)')
    A.i('s_barrier')
    for t in range(2):
        for w2 in range(4):
            A.i(f'ds_read_b64 {vr(RD+(t*4+w2)*2,2)}, v{VLR} offset:{w2*4096+t*2048}')
    A.i('s_waitcnt vmcnt(0) lgkmcnt(0)')
    A.i('s_barrier')
    for t in range(2):
        b = RD + t * 8
        for r in range(2):
            A.i(f'v_add_f32 v{b+r}, v{b+r}, v{b+2+r}')
            A.i(f'v_add_f32 v{b+4+r}, v{b+4+r}, v{b+6+r}')
        for r in range(2):
            A.i(f'v_add_f32 v{b+r}, v{b+r}, v{b+4+r}')
    f = [RD, RD + 8, RD + 1, RD + 9]
    round2(A, f[0], f[1], VT_)
    round2(A, f[2], f[3], VT_)
    for k in range(4):
        A.i(f'v_mul_f32 v{f[k]}, v{f[k]}, v{GB+k}')
    round2(A, f[0], f[1], VT_)
    round2(A, f[2], f[3], VT_)
    unpack(A, RD + 2, RD + 3, XR)
    unpack(A, RD + 4, RD + 5, XR + 1)
    for k in range(4):
        A.i(f'v_add_f32 v{f[k]}, v{f[k]}, v{RD+2+k}')
    A.i(f'v_cvt_pk_bf16_f32 v{XR}, v{f[0]}, v{f[1]}')
    A.i(f'v_cvt_pk_bf16_f32 v{XR+1}, v{f[2]}, v{f[3]}')
    A.i(f'buffer_store_dwordx2 {vr(XR,2)}, v{VST}, s[{S_B}:{S_B+3}], s83 offen')
    sy.trace(A, VT_, sS, imm=1, wave=0)
    A.i(f's_add_u32 s{sS}, s{sS}, 1')
    A.i(f's_cmp_lt_u32 s{sS}, 64')
    A.i(f's_cbranch_scc1 {Ltop}')


def h_wait_simple(A, sy, sseg, va, vtmp):
    if not sy.on:
        return
    Lok, Lall = A.newlabel('Hok'), A.newlabel('Hall')
    A.i('s_cmp_lg_u32 s87, 0')
    A.i(f's_cbranch_scc1 {Lok}')
    A.i(f's_cmp_ge_u32 s{sseg}, 8')
    A.i(f's_cbranch_scc1 {Lall}')
    h_flag_addr(A, va, sseg, sT0)
    A.i(f's_mov_b32 s{sT2}, 1')
    sy.wait(A, va, vtmp, sT2)
    A.i(f's_branch {Lok}')
    A.label(Lall)
    A.i(f'v_lshlrev_b32 v{va}, 7, v0')
    A.i(f'v_add_u32 v{va}, {F_H:#x}, v{va}')
    A.i(f's_mov_b32 s{sT2}, 8')
    sy.wait(A, va, vtmp, sT2)
    A.i('s_mov_b32 s87, 1')
    A.label(Lok)


def role_kv2(A, sy):
    srd(A, S_A, P_WK, 512 * 8192)
    srd(A, S_B, P_WV, 512 * 8192)
    VDMA, VRD, VAB, VT_, VFL, VST, VWA = 2, 4, 12, 20, 22, 23, 24
    XF, DK, DV, PK = 32, 64, 80, 96
    WKb, WVb = 256, 384
    lane_woff(A, 3, 8192, 4, 4)
    A.i(f's_lshl_b32 s77, s{sR}, 8')
    A.i(f's_lshl_b32 s{sT0}, s{sW}, 6')
    A.i(f's_add_u32 s77, s77, s{sT0}')
    load_weights(A, paired_units(S_A, 3, 77, 8192, 16, WKb) + paired_units(S_B, 3, 77, 8192, 16, WVb), 128, 32, 4)
    t1_setup(A, VDMA, VRD)
    A.i(f's_lshl_b32 s{sT0}, s{sR}, 7')
    A.i(f's_add_u32 s{sT0}, s{sT0}, {F_KV:#x}')
    A.i(f'v_mov_b32 v{VFL}, s{sT0}')
    A.i(f's_lshl_b32 s77, s{sR}, 13')
    A.i(f's_lshl_b32 s{sT0}, s{sW}, 11')
    A.i(f's_add_u32 s77, s77, s{sT0}')
    A.i(f's_add_u32 s77, s77, {KX:#x}')
    A.i(f'v_lshrrev_b32 v{VST}, 4, v0')
    A.i(f'v_lshlrev_b32 v{VST}, 9, v{VST}')
    A.i(f'v_and_b32 v{VT_}, 15, v0')
    A.i(f'v_lshl_add_u32 v{VST}, v{VT_}, 4, v{VST}')
    A.i(f's_mov_b32 s{sS}, 0')
    A.i('s_mov_b32 s87, 0')
    A.i(f's_mov_b32 s72, {XB0}')
    h_wait_simple(A, sy, sS, VWA, VT_)
    A.i(f's_mov_b32 s75, {H:#x}')
    t1_dma(A, VDMA, VT_, 75, 72)
    A.i('s_waitcnt vmcnt(0)')
    Ltop, Lnopf = A.newlabel('KVtop'), A.newlabel('KVnopf')
    A.label(Ltop)
    A.i('s_barrier')
    for k in range(8):
        A.i(f'v_add_u32 v{VAB+k}, s72, v{VRD+k}')

    def rd(ks):
        for tt in range(2):
            A.i(f'ds_read_b128 {vr(XF + (ks & 3) * 8 + tt * 4, 4)}, v{VAB + tt*4 + (ks & 3)} offset:{(ks >> 2) * 256}')
    for ks in range(3):
        rd(ks)
    for ks in range(16):
        if ks + 3 < 16:
            rd(ks + 3)
            A.i('s_waitcnt lgkmcnt(6)')
        else:
            A.i(f's_waitcnt lgkmcnt({2 * (15 - ks)})')
        for t in range(2):
            for tt in range(2):
                x = vr(XF + (ks & 3) * 8 + tt * 4, 4)
                d = vr(DK + (t * 2 + tt) * 4, 4)
                A.i(f'v_mfma_f32_16x16x32_bf16 {d}, {ur(WKb + (ks*2+t)*4, 4)}, {x}, {"0" if ks == 0 else d}')
                d = vr(DV + (t * 2 + tt) * 4, 4)
                A.i(f'v_mfma_f32_16x16x32_bf16 {d}, {x}, {ur(WVb + (ks*2+t)*4, 4)}, {"0" if ks == 0 else d}')
        if ks == 5:
            A.i('s_waitcnt vmcnt(0)')
            A.i('s_barrier')
            if sy.on:
                Ls = A.newlabel('KVpub')
                A.i(f's_cmp_lg_u32 s{sW}, 0')
                A.i(f's_cbranch_scc1 {Ls}')
                sy.publish(A, VFL, VT_, sS)
                A.label(Ls)
            A.i(f's_add_u32 s74, s{sS}, 1')
            A.i('s_cmp_ge_u32 s74, 64')
            A.i(f's_cbranch_scc1 {Lnopf}')
            h_wait_simple(A, sy, 74, VWA, VT_)
            A.i('s_lshl_b32 s75, s74, 15')
            A.i(f's_add_u32 s75, s75, {H:#x}')
            A.i(f's_xor_b32 s76, s72, {XBS}')
            t1_dma(A, VDMA, VT_, 75, 76)
            A.label(Lnopf)
    A.i(f's_lshl_b32 s{sT0}, s{sS}, 18')
    A.i(f's_add_u32 s{sT0}, s{sT0}, s77')
    A.i(f's_add_u32 s{sT1}, s{sT0}, {VT-KX:#x}')
    for tt in range(2):
        for r in range(4):
            A.i(f'v_cvt_pk_bf16_f32 v{PK+tt*4+r}, v{DK+tt*4+r}, v{DK+(2+tt)*4+r}')
        A.i(f'buffer_store_dwordx4 v[{PK+tt*4}:{PK+tt*4+3}], v{VST}, {WSR}, s{sT0} offen offset:{tt*256} sc1')
    for t in range(2):
        for tt in range(2):
            d = DV + (t * 2 + tt) * 4
            A.i(f'v_cvt_pk_bf16_f32 v{PK+8+t*4+tt*2}, v{d}, v{d+1}')
            A.i(f'v_cvt_pk_bf16_f32 v{PK+8+t*4+tt*2+1}, v{d+2}, v{d+3}')
        A.i(f'buffer_store_dwordx4 v[{PK+8+t*4}:{PK+8+t*4+3}], v1, {WSR}, s{sT1} offen offset:{t*1024} sc1')
    A.i(f's_xor_b32 s72, s72, {XBS}')
    A.i(f's_add_u32 s{sS}, s{sS}, 1')
    A.i('s_waitcnt vmcnt(4)')
    A.i(f's_cmp_lt_u32 s{sS}, 64')
    A.i(f's_cbranch_scc1 {Ltop}')
    if sy.on:
        A.i('s_waitcnt vmcnt(0)')
        A.i('s_barrier')
        Ls = A.newlabel('KVpub')
        A.i(f's_cmp_lg_u32 s{sW}, 0')
        A.i(f's_cbranch_scc1 {Ls}')
        sy.publish(A, VFL, VT_, sS)
        A.label(Ls)
```

```python
import sys
from common import *
import roles, chain, post

NAME = 'adaLN_cond__memory_aug_recurrent_mem_tr__swiglu_ffn__prompt'
HEADER = open('cdna_kernels/%s.s.ref' % NAME).read().split('; Override launch')[0]
L_TICK = 163584
LDS_ALL = 163840


def kd(name, vgpr=512, accum=256, sgpr=102):
    return f'''.section .rodata,"a"
.p2align 6
.amdhsa_kernel {name}
  .amdhsa_next_free_vgpr {vgpr}
  .amdhsa_next_free_sgpr {sgpr}
  .amdhsa_accum_offset {accum}
  .amdhsa_group_segment_fixed_size 0
  .amdhsa_kernarg_size 128
  .amdhsa_user_sgpr_count 2
  .amdhsa_user_sgpr_kernarg_segment_ptr 1
  .amdhsa_system_sgpr_workgroup_id_x 1
  .amdhsa_float_denorm_mode_32 3
.end_amdhsa_kernel
.text
'''


def start(A, name):
    A.raw(f'.globl {name}\n.p2align 8\n.type {name},@function\n{name}:')
    A.hist = []


def ticket(A):
    L = A.newlabel('Ltk')
    A.i(f's_getreg_b32 s{sT3}, hwreg(HW_REG_XCC_ID, 0, 4)')
    A.i(f's_and_b32 s{sT3}, s{sT3}, 7')
    A.i(f'v_mov_b32 v2, {L_TICK}')
    A.i(f's_cmp_lg_u32 s{sW}, 0')
    A.i(f's_cbranch_scc1 {L}')
    A.i(f's_lshl_b32 s{sT0}, s{sT3}, 7')
    A.i(f's_add_u32 s{sT0}, s{sT0}, {F_TICKET:#x}')
    A.i('v_mov_b32 v3, 1')
    A.i('s_mov_b64 exec, 1')
    A.i(f'buffer_atomic_add v3, off, {roles.WSR}, s{sT0} sc0')
    A.i('s_waitcnt vmcnt(0)')
    A.i('ds_write_b32 v2, v3')
    A.i('s_mov_b64 exec, -1')
    A.i('s_waitcnt lgkmcnt(0)')
    A.label(L)
    A.i('s_barrier')
    A.i('ds_read_b32 v3, v2')
    A.i('s_waitcnt lgkmcnt(0)')
    A.i(f'v_readfirstlane_b32 s{sT4}, v3')


def build(mode):
    A = Asm()
    launches = []
    kds = []

    def kernel(name, nwg, body, lds, vgpr=512, accum=256):
        start(A, name)
        end = A.newlabel('Lend')
        prologue(A, nwg, end)
        body(end)
        A.label(end)
        A.i('s_endpgm')
        launches.append(f'; @launch kernel={name} grid=({nwg},1,1) block=(256,1,1) lds={lds}')
        kds.append(kd(name, vgpr, accum))

    kernel('init_kernel', 120, lambda end: roles.role_init(A, end), 8192, 128, 128)
    if mode.startswith('cb'):
        sy = Sync(False, trace=True)
        sy.opts = set(mode.split('_')[1:])
        for o in sy.opts:
            if o[0] == 'd' and '=' in o:
                setattr(sy, o.split('=')[0], int(o.split('=')[1]))

        def chain_body(end):
            ticket(A)
            A.i(f's_cmp_lg_u32 s{sT3}, 0')
            A.i(f's_cbranch_scc1 {end}')
            A.i(f's_cmp_ge_u32 s{sT4}, 32')
            A.i(f's_cbranch_scc1 {end}')
            A.i(f's_mov_b32 s{sR}, s{sT4}')
            A.i(f's_lshl_b32 s100, s{sT4}, 10')
            A.i(f's_add_u32 s100, s100, {TRACE:#x}')
            chain.role_chain(A, sy, end)
        kernel('chain_kernel', 256, chain_body, LDS_ALL)
    elif mode == 'multi':
        sy = Sync(False)

        def simple(fn):
            def body(end):
                A.i(f's_mov_b32 s{sR}, s2')
                fn()
            return body
        kernel('ln1_kernel', 64, simple(lambda: roles.role_ln1(A, sy, sR)), 0)
        kernel('k_kernel', 32, simple(lambda: roles.role_kv(A, sy, False)), LDS_ALL)
        kernel('v_kernel', 32, simple(lambda: roles.role_kv(A, sy, True)), LDS_ALL)

        def chain_body(end):
            ticket(A)
            A.i(f's_cmp_lg_u32 s{sT3}, 0')
            A.i(f's_cbranch_scc1 {end}')
            A.i(f's_cmp_ge_u32 s{sT4}, 32')
            A.i(f's_cbranch_scc1 {end}')
            A.i(f's_mov_b32 s{sR}, s{sT4}')
            chain.role_chain(A, sy, end)
        kernel('chain_kernel', 256, chain_body, LDS_ALL)
        kernel('qa_kernel', 64, simple(lambda: roles.role_qa(A, sy)), LDS_ALL)
        kernel('wo_kernel', 32, simple(lambda: roles.role_wo(A, sy)), LDS_ALL)
        kernel('r_kernel', 16, simple(lambda: roles.role_r(A, sy)), 0)
        kernel('f1_kernel', 28, simple(lambda: roles.role_f1(A, sy)), LDS_ALL)
        kernel('f2_kernel', 16, simple(lambda: roles.role_f2(A, sy)), LDS_ALL)
    else:
        sy = Sync(True, trace=mode.startswith('trace'))
        sy.opts = set(mode.split('_')[1:])
        for o in sy.opts:
            if o[0] == 'd' and '=' in o:
                setattr(sy, o.split('=')[0], int(o.split('=')[1]))

        def main_body(end):
            ticket(A)
            A.i(f's_cmp_ge_u32 s{sT4}, 32')
            A.i(f's_cbranch_scc1 {end}')
            A.i(f's_mov_b32 s{sR}, s{sT4}')
            if sy.tr:
                A.i(f's_lshl_b32 s100, s{sT3}, 5')
                A.i(f's_add_u32 s100, s100, s{sT4}')
                A.i('s_lshl_b32 s100, s100, 10')
                A.i(f's_add_u32 s100, s100, {TRACE:#x}')
                sy.trace(A, 3, None, imm=255, wave=0)
            labs = [A.newlabel('Lx%d' % i) for i in range(8)]
            for x in range(1, 8):
                A.i(f's_cmp_eq_u32 s{sT3}, {x}')
                A.i(f's_cbranch_scc1 {labs[x]}')
            chain.role_chain(A, sy, end)
            A.label(labs[1])
            roles.role_kv2(A, sy)
            A.i(f's_branch {end}')
            A.label(labs[3])
            A.i(f's_add_u32 s{sR}, s{sR}, 32')
            A.label(labs[2])
            roles.role_qa(A, sy)
            A.i(f's_branch {end}')
            A.label(labs[5])
            A.i(f's_add_u32 s{sR}, s{sR}, 32')
            A.label(labs[4])
            A.i(f's_mov_b32 s90, s{sT3}')
            sy.pub_base = 240
            roles.role_ln1(A, sy, sR)
            sy.pub_base = 0
            A.i(f's_and_b32 s{sR}, s{sR}, 31')
            A.i(f's_mov_b32 s{sT3}, s90')
            A.label(labs[6])
            A.label(labs[7])
            A.i(f's_sub_u32 s90, s{sT3}, 4')
            post.role_post(A, sy, 90)
        kernel('main_kernel', 256, main_body, LDS_ALL)
    out = HEADER + '\n'.join(launches) + '\n'
    out += '.amdgcn_target "amdgcn-amd-amdhsa--gfx950"\n.text\n'
    out += A.text()
    out += ''.join(kds)
    return out, A


if __name__ == '__main__':
    mode = sys.argv[1]
    path = sys.argv[2]
    out, A = build(mode)
    open(path, 'w').write(out)
    print('instructions', A.ninstr, 'nop states', A.nops, 'bytes', len(out))
```

```python
from common import *
from roles import load_weights, WSR

L_MEM = 131072
L_KX = 139264
L_VX = 147456
L_OI = 155648
L_QI = L_OI + 2048
L_KI = L_QI + 2304
L_SEL = L_KI + 2304 + 64
L_VI = L_QI
QS = 288

vWV, vL2, vKX, vIDX, vQW, vQR, vPST, vX1, vX2, vVW, vOR, vOW, vLW, vT0 = range(2, 16)
vPF = 0
RA, RB, RC, RD = 16, 48, 80, 112
WK, WV, WQR, WOR = 256, 384, 128, 192
sPC, sPC2, sMC, sFLG, sKVF, sKVS, sOUT, sNX, sDST, sRST, sH1, sFA = range(72, 84)
sHF = 84
sLF = 86
sIO = 88
sSC2 = 90
sRP, sRM = 92, 93
sKS, sVS, sPFA, sPFD = 94, 95, 96, 97
sD2, sNV, sS1 = 65, 71, 3


def emit(A, x):
    if callable(x):
        x()
    else:
        A.i(x)


def mix(A, mf, fill, per=2, start=0):
    fill = list(fill)
    for k, m in enumerate(mf):
        emit(A, m)
        if k >= start:
            for _ in range(per):
                if fill:
                    emit(A, fill.pop(0))
    for f in fill:
        emit(A, f)


def role_chain(A, sy, end, nsteps=64):
    opts = getattr(sy, 'opts', set())
    sH = sR
    srd(A, S_A, P_WQ, 512 * 8192)
    srd(A, S_B, P_WK, 512 * 8192)
    srd(A, S_C, P_WV, 512 * 8192)
    srd(A, S_D, P_WO, 4096 * 1024)
    G, N, G1, TT, TA, TB, WA, WB, LN = 16, 17, 18, 19, 20, 21, 32, 33, 34
    A.i(f'v_mov_b32 v{LN}, v0')
    A.i(f'v_lshrrev_b32 v{G}, 4, v0')
    A.i(f'v_and_b32 v{N}, 15, v0')
    A.i(f'v_and_b32 v{G1}, 1, v{G}')
    A.i(f'v_lshrrev_b32 v{TT}, 5, v0')
    A.i(f'v_lshlrev_b32 v{vPF}, 3, v1')
    A.i(f's_lshl_b32 s{sT0}, s{sW}, 15')
    A.i(f'v_add_u32 v{vWV}, s{sT0}, v1')
    A.i(f'v_add_u32 v{vL2}, {L_MEM}, v1')
    A.i(f's_lshl_b32 s{sT0}, s{sW}, 11')
    A.i(f'v_add_u32 v{vLW}, s{sT0}, v{vL2}')
    A.i(f'v_lshlrev_b32 v{vKX}, 9, v{G}')
    A.i(f'v_lshl_add_u32 v{vKX}, v{N}, 4, v{vKX}')
    A.i(f'v_add_u32 v{vKX}, {L_KX}, v{vKX}')
    A.i(f's_mov_b32 s{sHF}, 0xff00ff00')
    A.i(f's_mov_b32 s{sHF+1}, 0xff00ff00')
    A.i(f's_mov_b32 s{sLF}, 0x00ff00ff')
    A.i(f's_mov_b32 s{sLF+1}, 0x00ff00ff')
    A.i(f's_mov_b32 s{sSC2}, {SCALE:#x}')
    A.i(f's_mov_b32 s{sSC2+1}, {SCALE:#x}')
    A.i(f's_cmp_eq_u32 s{sW}, 3')
    A.i(f's_cselect_b32 s{sIO}, 1, 0')
    A.i(f's_mov_b32 s{sIO+1}, 0')
    A.i(f'v_mov_b32 v{vIDX}, 0x4444')
    A.i(f'v_mov_b32 v{TA}, 0xeeee')
    A.i(f'v_cndmask_b32 v{vIDX}, v{vIDX}, v{TA}, s[{sHF}:{sHF+1}]')
    A.i(f'v_lshlrev_b32 v{TA}, 1, v{G1}')
    A.i(f'v_add_u32 v{TA}, v{TA}, v{TT}')
    A.i(f'v_mul_u32_u24 v{vQW}, {2*QS}, v{TA}')
    A.i(f'v_lshl_add_u32 v{vQW}, v{N}, 2, v{vQW}')
    A.i(f's_lshl_b32 s{sT0}, s{sW}, 6')
    A.i(f's_add_u32 s{sT0}, s{sT0}, {L_QI}')
    A.i(f'v_add_u32 v{vQW}, s{sT0}, v{vQW}')
    A.i(f'v_lshrrev_b32 v{vPST}, 1, v{N}')
    A.i(f'v_lshlrev_b32 v{vPST}, 13, v{vPST}')
    A.i(f'v_lshl_add_u32 v{vPST}, v{G}, 4, v{vPST}')
    A.i(f'v_and_b32 v{TB}, 1, v{N}')
    A.i(f'v_lshl_add_u32 v{vPST}, v{TB}, 6, v{vPST}')
    A.i(f's_lshl_b32 s{sT0}, s{sW}, 16')
    A.i(f's_lshl_b32 s{sT1}, s{sH}, 7')
    A.i(f's_add_u32 s{sT0}, s{sT0}, s{sT1}')
    A.i(f'v_add_u32 v{vPST}, s{sT0}, v{vPST}')
    A.i(f'v_lshlrev_b32 v{vVW}, 8, v{TT}')
    A.i(f'v_lshl_add_u32 v{vVW}, v{N}, 4, v{vVW}')
    A.i(f'v_lshl_add_u32 v{vVW}, v{G1}, 3, v{vVW}')
    A.i(f's_lshl_b32 s{sT0}, s{sW}, 9')
    A.i(f's_add_u32 s{sT0}, s{sT0}, {L_VI}')
    A.i(f'v_add_u32 v{vVW}, s{sT0}, v{vVW}')
    A.i(f'v_and_b32 v{TA}, 7, v{N}')
    A.i(f'v_mul_u32_u24 v{vQR}, {QS}, v{TA}')
    A.i(f'v_lshl_add_u32 v{vQR}, v{G}, 4, v{vQR}')
    A.i(f'v_add_u32 v{vQR}, {L_QI}, v{vQR}')
    A.i(f'v_lshlrev_b32 v{vOR}, 7, v{G}')
    A.i(f'v_lshl_add_u32 v{vOR}, v{TA}, 4, v{vOR}')
    A.i(f'v_add_u32 v{vOR}, {L_OI}, v{vOR}')
    A.i(f's_lshl_b32 s{sT0}, s{sW}, 9')
    A.i(f'v_add_u32 v{vOW}, s{sT0}, v{vOR}')
    A.i(f'v_lshlrev_b32 v{vX1}, 6, v{TB}')
    A.i(f'v_lshl_add_u32 v{vX1}, v{G1}, 4, v{vX1}')
    A.i(f'v_bfe_u32 v{TA}, v{N}, 2, 1')
    A.i(f'v_lshl_add_u32 v{vX1}, v{TA}, 7, v{vX1}')
    A.i(f'v_bfe_u32 v{TA}, v{N}, 1, 1')
    A.i(f'v_lshl_add_u32 v{vX1}, v{TA}, 3, v{vX1}')
    A.i(f's_lshl_b32 s{sT0}, s{sH}, 8')
    A.i(f's_and_b32 s{sT1}, s{sW}, 1')
    A.i(f's_lshl_b32 s{sT2}, s{sT1}, 5')
    A.i(f's_add_u32 s{sT0}, s{sT0}, s{sT2}')
    A.i(f'v_add_u32 v{vX1}, s{sT0}, v{vX1}')
    A.i(f'v_mov_b32 v{vX2}, 0')
    A.i(f's_lshl_b32 s{sH1}, s{sH}, 13')
    A.i(f's_lshl_b32 s{sT2}, s{sT1}, 12')
    A.i(f's_add_u32 s{sH1}, s{sH1}, s{sT2}')
    A.i(f's_lshl_b32 s{sT0}, s{sH}, 7')
    A.i(f's_add_u32 s{sKVF}, s{sT0}, {F_KV:#x}')
    A.i(f's_add_u32 s{sFLG}, s{sT0}, {F_CH:#x}')
    A.i(f's_lshl_b32 s{sT0}, s{sH}, 11')
    A.i(f's_lshr_b32 s{sT2}, s{sW}, 1')
    A.i(f's_lshl_b32 s{sT2}, s{sT2}, 22')
    A.i(f's_add_u32 s{sOUT}, s{sT0}, s{sT2}')
    A.i(f's_lshl_b32 s{sT2}, s{sT1}, 10')
    A.i(f's_add_u32 s{sOUT}, s{sOUT}, s{sT2}')
    A.i(f's_add_u32 s{sOUT}, s{sOUT}, {KM:#x}')
    A.i(f's_lshl_b32 s{sT0}, s{sH}, 13')
    A.i(f's_lshl_b32 s{sT2}, s{sW}, 11')
    A.i(f's_add_u32 s{sRST}, s{sT0}, s{sT2}')
    A.i(f's_add_u32 s{sNX}, s{sRST}, {KX:#x}')
    A.i(f's_add_u32 s{sDST}, s{sT2}, {L_KX}')
    A.i(f's_lshl_b32 s{sPFD}, s{sT1}, 24')
    A.i(f's_sub_u32 s{sPFD}, s{sPFD}, s{sT2}')
    A.i(f's_mov_b32 s{sKVS}, {0 if sy.on else 64}')
    A.i(f's_mov_b32 s{sKS}, 0')
    A.i(f's_mov_b32 s{sVS}, 0')
    A.i(f'v_lshlrev_b32 v{TA}, 1, v{G1}')
    A.i(f'v_add_u32 v{TA}, v{TA}, v{TT}')
    A.i(f'v_lshlrev_b32 v{vX2}, 9, v{TA}')
    A.i(f'v_lshl_add_u32 v{vX2}, v{N}, 2, v{vX2}')
    A.i(f's_lshl_b32 s{sT0}, s{sW}, 6')
    A.i(f'v_add_u32 v{vX2}, s{sT0}, v{vX2}')
    A.i(f'v_add_u32 v{vVW}, {VM-KM-L_VI:#x}, v{vVW}')
    A.i(f's_lshl_b32 s{sOUT}, s{sH}, 11')
    A.i(f's_add_u32 s{sOUT}, s{sOUT}, {KM - 0x10000:#x}')
    for c in range(4):
        A.i(f'v_mov_b32 v{24+c}, 0')
        A.i(f'v_cmp_eq_u32 vcc, {2*c}, v{N}')
        A.i(f'v_mov_b32 v{TA}, 0x3f80')
        A.i(f'v_cndmask_b32 v{24+c}, v{24+c}, v{TA}, vcc')
        A.i(f'v_cmp_eq_u32 vcc, {2*c+1}, v{N}')
        A.i(f'v_mov_b32 v{TA}, 0x3f800000')
        A.i(f'v_cndmask_b32 v{24+c}, v{24+c}, v{TA}, vcc')
    A.i(f'ds_write_b128 v{vL2}, v[24:27] offset:{L_SEL-L_MEM}')
    single = getattr(sy, 'single', False)
    if single:
        for i in range(4):
            A.i(f'v_mov_b32 v{24+i}, -1')
        A.i(f's_lshl_b32 s{sT0}, s{sW}, 18')
        A.i(f's_lshl_b32 s{sT1}, s{sH}, 13')
        A.i(f's_add_u32 s{sT0}, s{sT0}, s{sT1}')
        A.i(f's_add_u32 s{sT0}, s{sT0}, {XP:#x}')
        A.i(f's_add_u32 s{sT1}, s{sT0}, 4096')
        for i in range(8):
            A.i(f'buffer_store_dwordx4 v[24:27], v1, {WSR}, s{sT0 if i < 4 else sT1} offen offset:{(i&3)*1024}')
        A.i(f's_lshl_b32 s{sT0}, s{sW}, 13')
        A.i(f's_lshl_b32 s{sT1}, s{sH}, 8')
        A.i(f's_add_u32 s{sT0}, s{sT0}, s{sT1}')
        A.i(f's_add_u32 s{sT0}, s{sT0}, {XM:#x}')
        A.i('s_mov_b64 exec, 0xffff')
        A.i(f'buffer_store_dwordx4 v[24:27], v1, {WSR}, s{sT0} offen')
        A.i('s_mov_b64 exec, -1')
    A.i(f'v_lshrrev_b32 v{TA}, 1, v{G}')
    A.i(f'v_lshlrev_b32 v{WA}, 17, v{TA}')
    A.i(f'v_lshl_add_u32 v{WA}, v{G1}, 15, v{WA}')
    A.i(f'v_lshl_add_u32 v{WA}, v{N}, 2, v{WA}')
    A.i(f'v_lshlrev_b32 v{WB}, 12, v{G}')
    A.i(f'v_lshl_add_u32 v{WB}, v{N}, 4, v{WB}')
    sWA, sWB = sT4, sT5
    A.i(f's_lshl_b32 s{sWA}, s{sH}, 8')
    A.i(f's_lshl_b32 s{sT0}, s{sW}, 6')
    A.i(f's_add_u32 s{sWA}, s{sWA}, s{sT0}')
    A.i(f's_lshl_b32 s{sWB}, s{sH}, 17')
    A.i(f's_lshl_b32 s{sT0}, s{sW}, 8')
    A.i(f's_add_u32 s{sWB}, s{sWB}, s{sT0}')

    sWAp, sWBp = [4, 5, 6, 7], [8, 9, 10, 11]
    A.i(f's_mov_b32 s12, s{P_MEM0}')
    A.i(f's_mov_b32 s13, s{P_MEM0+1}')
    for p in range(4):
        A.i(f's_xor_b32 s{sT0}, s{sW}, {p}')
        A.i(f's_lshl_b32 s{sT1}, s{sT0}, 20')
        A.i(f's_add_u32 s{sWAp[p]}, s{sWA}, s{sT1}')
        A.i(f's_lshl_b32 s{sT1}, s{sT0}, 15')
        A.i(f's_add_u32 s{sWBp[p]}, s{sWB}, s{sT1}')

    def mem_units(srd_s, dst, ks_list):
        u = []
        for ks in ks_list:
            for r in range(8):
                d0 = 64 * (ks & 1) + 32 * (r >> 2) + 8 * (r & 1) + 2 * ((r >> 1) & 1)
                u.append((srd_s, WA, sWAp[ks >> 1], d0 * 8192, (d0 + 1) * 8192, 1,
                          [(dst(ks * 2) + r, 0, f's{SELLO}'), (dst(ks * 2 + 1) + r, 0, f's{SELHI}')]))
        return u

    def o_units(dst, ks_list):
        u = []
        for ks in ks_list:
            for uu in range(4):
                e0 = 16 * (uu >> 1) + 2 * (uu & 1)
                outs = []
                for cg in range(4):
                    for st in range(2):
                        outs.append((dst(ks * 4 + cg) + 2 * uu + st, 2 * st + (cg >> 1),
                                     f's{SELHI if (cg & 1) else SELLO}'))
                u.append((S_D, WB, sWBp[ks], e0 * 1024, (e0 + 1) * 1024, 4, outs))
        return u

    WO_STREAM = [0, 1, 2, 3, 4, 13, 14, 15]
    def spill(first_reg, nfrag, lds_frag0):
        for f in range(nfrag):
            for hq in range(2):
                A.i(f'ds_write_b128 v{vWV}, {vr(first_reg + f*8 + hq*4, 4)} offset:{(lds_frag0 + f)*2048 + hq*1024}')
            A.i('s_waitcnt lgkmcnt(0)')
    def spill_u(first_u, lds_frag):
        for hq in range(2):
            A.i(f'ds_write_b128 v{vWV}, {ur(first_u + hq*4, 4)} offset:{lds_frag*2048 + hq*1024}')
    def o_home(p):
        return (WV + WO_STREAM.index(p) * 8) if p in WO_STREAM else WOR + (p - 5) * 8
    def q_home(f):
        return (WV + 64 + f * 8) if f < 8 else WQR + (f - 8) * 8
    load_weights(A, o_units(o_home, range(4)) + mem_units(S_A, q_home, range(8)) + mem_units(S_B, lambda f: WK + f * 8, range(8)), 48, 32, 22)
    for k in range(8):
        spill_u(WV + k * 8, 8 + k)
        spill_u(WV + 64 + k * 8, k)
        A.i('s_waitcnt lgkmcnt(0)')
    if single:
        ready_wait(A, 24, 25)
        A.i('s_barrier')
        A.i(f's_lshl_b32 s{sT0}, s{sH}, 7')
        A.i(f's_add_u32 s{sT0}, s{sT0}, {F_CI:#x}')
        A.i('v_mov_b32 v24, 1')
        A.i(f's_mov_b64 exec, s[{sIO}:{sIO+1}]')
        A.i(f'buffer_store_dword v24, off, {WSR}, s{sT0}')
        A.i('s_mov_b64 exec, -1')
    load_weights(A, mem_units(S_C, lambda f: WV + f * 8, range(8)), 48, 32, 22)
    if single:
        A.i(f'v_and_b32 v24, 31, v{LN}')
        A.i('v_lshlrev_b32 v24, 7, v24')
        A.i(f'v_add_u32 v24, {F_CI:#x}, v24')
        A.i(f's_mov_b32 s{sT2}, 1')
        sy.wait(A, 24, 25, sT2)
    sy.trace(A, vT0, None, imm=101, wave=0)
    srd(A, S_A, 12, 8192)
    A.i(f's_mov_b32 s{sS}, 0')
    A.i(f'v_and_b32 v{vT0}, 7, v{LN}')
    A.i(f'v_lshlrev_b32 v{vT0}, 10, v{vT0}')
    A.i(f'v_lshrrev_b32 v{TA}, 3, v{LN}')
    A.i(f'v_lshl_add_u32 v{vT0}, v{TA}, 4, v{vT0}')
    A.i(f's_lshl_b32 s{sT0}, s{sW}, 8')
    for i in range(2):
        A.i(f'buffer_load_dwordx4 {vr(RA+4*i,4)}, v{vT0}, s[{S_A}:{S_A+3}], s{sT0} offen offset:{i*128}')
    A.i('s_waitcnt vmcnt(0)')
    for i in range(2):
        A.i(f'ds_write_b128 v{vLW}, {vr(RA+4*i,4)} offset:{i*1024}')
    A.i('s_waitcnt lgkmcnt(0)')

    slow = []
    def kv_wait(sseg, r0, r1):
        if sy.on:
            Lok, Lp = A.newlabel('CHkvok'), A.newlabel('CHkvp')
            A.i(f's_cmp_gt_u32 s{sKVS}, s{sseg}')
            A.i(f's_cbranch_scc0 {Lp}')
            A.label(Lok)
            slow.append((Lp, Lok, sseg, r0, r1))

    def kv_dma(which):
        A.i(f's_mov_b32 m0, s{sD2 if which else sDST}')
        for i in range(2):
            A.i(f'buffer_load_dwordx4 v1, {WSR}, s{sNV if which else sNX} offen offset:{i*1024} sc1 lds')

    A.i(f's_add_u32 s{sD2}, s{sDST}, {L_VX-L_KX}')
    A.i(f's_add_u32 s{sNV}, s{sNX}, {VT-KX:#x}')
    kv_wait(sS, 34, 35)
    kv_dma(0)
    kv_dma(1)

    stamps = []
    Lfin = A.newlabel('CHfin')
    Lcut = A.newlabel('CHcut')
    def stamp(name):
        if ('cut' + name) in opts:
            A.i(f's_cmp_eq_u32 s{sS}, {nsteps-1}')
            A.i(f's_cbranch_scc1 {Lfin}')
            A.i(f's_branch {Lcut}')

    prof = 'prof' in opts
    def ts(k):
        if prof:
            A.i(f's_memtime s[{4+2*k}:{5+2*k}]')
    def cnt(k):
        if prof:
            A.i(f's_add_u32 s{28+k}, s{28+k}, 1')
    if prof:
        for k in range(4, 32):
            A.i(f's_mov_b32 s{k}, 0')
    AQ, AK, AV = RD, RD + 8, RD
    MA = RA
    XQ = RB
    S1, S2 = RB + 24, RB + 28
    QF, KR = RC, RC + 16
    S0, PM0, PM1 = RD + 8, RD + 12, RD + 14
    P4, VXF, OP, WD = RC, RC + 4, RC + 12, RC + 16
    OD, OA = RB + 24, RA
    PK = RC
    YS = [RB, RB + 8, RB + 16, RA + 16, RA + 24]

    def frag_read(reg, lf, tag):
        return [lambda: A.ds(f'ds_read_b128 {vr(reg,4)}, v{vWV} offset:{lf*2048}', tag),
                lambda: A.ds(f'ds_read_b128 {vr(reg+4,4)}, v{vWV} offset:{lf*2048+1024}', tag)]

    def pre_step():
        for f in range(8):
            for x in frag_read(XQ + 8 * f, f, 'xq'):
                x()
            A.i(f'v_mov_b64 {vr(RD+2*f,2)}, 0')

    def step_scalars(addr=True):
        A.i(f's_and_b32 s{sT0}, s{sS}, 3')
        A.i(f's_lshl_b32 s{sPC}, s{sT0}, 18')
        A.i(f's_add_u32 s{sPC}, s{sPC}, {XP:#x}')
        A.i(f's_add_u32 s{sPC2}, s{sPC}, 4096')
        A.i(f's_lshl_b32 s{sMC}, s{sT0}, 13')
        A.i(f's_add_u32 s{sMC}, s{sMC}, {XM:#x}')
        A.i(f's_add_u32 s{sT2}, s{sS}, 8')
        A.i(f's_cmp_gt_u32 s{sKVS}, s{sT2}')
        A.i(f's_cselect_b32 s{sFA}, {FLAGS + 8*FL:#x}, s{sKVF}')
        for p in range(1, 4):
            if addr:
                A.i(f'v_xor_b32 v{RA+8*p}, {p << 11:#x}, v{vLW}')
        A.i(f's_add_u32 s{sOUT}, s{sOUT}, 0x10000')
        A.i(f's_add_u32 s{sS1}, s{sS}, 1')
        A.i(f's_min_u32 s{sS1}, s{sS1}, 63')
        A.i(f's_add_u32 s{sT1}, s{sNX}, s{sPFD}')
        A.i(f's_add_u32 s{sNX}, s{sNX}, 0x40000')
        A.i(f's_add_u32 s{sNV}, s{sNV}, 0x40000')
        A.i(f's_add_u32 s{sPFA}, s{sT1}, 0x80000')
        A.i(f's_add_u32 s{sT2}, s{sS}, 2')
        A.i(f's_cmp_gt_u32 s{sKVS}, s{sT2}')
        A.i(f's_cselect_b32 s{sPFA}, s{sPFA}, s{sT1}')
        A.i(f's_add_u32 s{sT0}, s{sS}, 3')
        A.i(f's_and_b32 s{sT0}, s{sT0}, 3')
        A.i(f's_lshl_b32 s{sT0}, s{sT0}, 18')
        A.i(f's_add_u32 s{sT0}, s{sT0}, s{sRST}')
        A.i(f's_add_u32 s{sRP}, s{sT0}, {XP:#x}')
        A.i(f's_xor_b32 s{sRM}, s{sMC}, 0x4000')
        A.i(f's_lshl_b32 s{sT1}, s{sH}, 8')
        A.i(f's_add_u32 s{sRM}, s{sRM}, s{sT1}')

    pre_step()
    step_scalars()
    Ltop = A.newlabel('CHtop')
    if sy.tr and not prof:
        A.i('s_memtime s[4:5]')
    A.i('s_waitcnt vmcnt(0)')
    A.wl_all()
    A.label(Ltop)
    _orig_i = A.i
    def _filt(text):
        for t in text.split('\n'):
            if 'novm' in opts and t.startswith('buffer_') and 's101' not in t:
                continue
            if 'nokv' in opts and ('buffer_store' in t and 'sc1' in t):
                continue
            if 'nodma' in opts and (' lds' in t and 'buffer_load' in t):
                continue
            if 'nopf' in opts and t.startswith('buffer_load_dword v') and 'offen' in t:
                t = t.replace(f's{sPFA}', f's{sMC}')
            if 'plainkv' in opts and ('buffer_store' in t and 'sc1' in t):
                t = t.replace(' sc1', '')
            _orig_i(t)
    A.i = _filt
    def sm(acc, a, w):
        return f'v_smfmac_f32_16x16x64_bf16 {vr(acc,4)}, {vr(a,4)}, {ur(w,8)}, v{vIDX}'
    def wq(f):
        return XQ + 8 * f if f < 8 else WQR + 8 * (f - 8)
    for f in range(4):
        A.i(sm(AQ + 4 * (f & 1), MA + 4 * (f >> 1), wq(f)))
    A.i('s_waitcnt lgkmcnt(0)')
    A.i('s_barrier')
    stamp('Ba')
    ts(4)
    Lxo = A.newlabel('CHxo')
    if 'xonly' in opts:
        A.i(f's_cmp_eq_u32 s{sS}, {nsteps-1}')
        A.i(f's_cbranch_scc1 {Lfin}')
        A.i(f'v_mov_b64 {vr(RC+4,2)}, -1')
        A.i(f'v_mov_b64 {vr(RC+6,2)}, -1')
        A.i(f'buffer_store_dwordx4 {vr(RC+4,4)}, v1, {WSR}, s{sRP} offen')
        A.i(f'buffer_store_dwordx4 {vr(RC+4,4)}, v1, {WSR}, s{sRP} offen offset:1024')
        A.i('s_mov_b64 exec, 0xffff')
        A.i(f'buffer_store_dwordx4 {vr(RC+4,4)}, v1, {WSR}, s{sRM} offen')
        A.i('s_mov_b64 exec, -1')
        for r in range(0, 16, 2):
            A.i(f'v_mov_b64 {vr(RC+16+r,2)}, 0')
        for _ in range(getattr(sy, 'dx', 16)):
            A.i('s_nop 15')
        A.i(f's_branch {Lxo}')
    for p in range(1, 4):
        A.ds(f'ds_read_b128 {vr(MA+8*p+4,4)}, v{RA+8*p} offset:1024', ('ma', 2 * p + 1))
        A.ds(f'ds_read_b128 {vr(MA+8*p,4)}, v{RA+8*p}', ('ma', 2 * p))
    for f in range(2):
        A.i(sm(AK + 4 * (f & 1), MA + 4 * (f >> 1), WK + f * 8))
    A.i(f'buffer_load_dword v{vT0}, v{vPF}, {WSR}, s{sPFA} offen sc1')
    if sy.on:
        A.i(f'buffer_load_dword v{vT0}, off, {WSR}, s{sFA} sc1')
    for f in range(2, 4):
        A.i(sm(AK + 4 * (f & 1), MA + 4 * (f >> 1), WK + f * 8))
    def kx_read(j):
        A.ds(f'ds_read_b128 {vr(KR+(j&3)*4,4)}, v{vKX} offset:{(j>>1)*2048+(j&1)*256}', ('kx', j))
    mf = []
    for ks in range(2, 8):
        if ks in (2, 4, 6):
            mf.append(lambda ks=ks: (A.wl(('ma', ks)), A.i(sm(AQ, MA + 4 * ks, wq(ks * 2)))))
        else:
            mf.append(sm(AQ, MA + 4 * ks, wq(ks * 2)))
        mf.append(sm(AQ + 4, MA + 4 * ks, wq(ks * 2 + 1)))
    fill = []
    for k in range(3):
        fill += frag_read(YS[k], 8 + k, ('y', k))
    fill += [lambda j=j: kx_read(j) for j in range(2)]
    mix(A, mf, fill, per=1, start=4)
    stamp('Qdone')

    def fold_qk(acc, off, t0, t1):
        f = []
        for t in range(2):
            f.append(f'v_permlane32_swap_b32 v{acc+4*t}, v{acc+4*t+2}')
            f.append(f'v_permlane32_swap_b32 v{acc+4*t+1}, v{acc+4*t+3}')
        for t in range(2):
            f.append(f'v_pk_add_f32 {vr(acc+4*t,2)}, {vr(acc+4*t,2)}, {vr(acc+4*t+2,2)}')
        f.append(f'v_cvt_pk_bf16_f32 v{t0}, v{acc}, v{acc+4}')
        f.append(f'v_cvt_pk_bf16_f32 v{t1}, v{acc+1}, v{acc+5}')
        f.append(lambda: A.ds(f'ds_write2_b32 v{vQW}, v{t0}, v{t1} offset0:0 offset1:{QS//4}', 'w') if off == 0 else
                 (A.ds(f'ds_write_b32 v{vQW}, v{t0} offset:{off}', 'w'), A.ds(f'ds_write_b32 v{vQW}, v{t1} offset:{off+QS}', 'w')))
        return f

    mf = []
    for ks in range(2, 8):
        mf.append(sm(AK, MA + 4 * ks, WK + (ks * 2) * 8))
        mf.append(sm(AK + 4, MA + 4 * ks, WK + (ks * 2 + 1) * 8))
    mix(A, mf[:3], [lambda j=j: kx_read(j) for j in range(2, 4)], per=1)
    mix(A, mf[3:8], fold_qk(AQ, 0, AQ + 2, AQ + 3), per=2)
    mix(A, mf[8:11], [f'v_mov_b64 {vr(AV+r,2)}, 0' for r in (0, 4, 6)], per=1)
    A.wl('w')
    A.i('s_barrier')
    stamp('Bb')
    emit(A, mf[11])
    for ks in range(4):
        A.ds(f'ds_read_b128 {vr(QF+4*ks,4)}, v{vQR} offset:{ks*64}', ('q', ks))
    A.i(f'v_mov_b64 {vr(AV+2,2)}, 0')
    if sy.on:
        A.i(f'v_mov_b32 v{S2}, s{sS}')
        A.i(f's_mov_b64 exec, s[{sIO}:{sIO+1}]')
        A.i(f'buffer_store_dword v{S2}, off, {WSR}, s{sFLG} sc1')
        A.i('s_mov_b64 exec, -1')
    early = False
    tag = False
    stamp('Kdone')

    vstate = {'f': 0}
    def vstep():
        f = 15 - vstate['f']
        ks, t = f >> 1, f & 1
        A.i(sm(AV + 4 * t, MA + 4 * ks, WV + f * 8))
        vstate['f'] += 1

    def smx(j):
        ks, kt = j >> 1, j & 1
        S = S2 if kt else S1
        c = '0' if ks == 0 else vr(S, 4)
        def f():
            A.wl(('kx', j))
            A.wl(('q', ks))
            A.i(f'v_mfma_f32_16x16x32_bf16 {vr(S,4)}, {vr(KR+(j&3)*4,4)}, {vr(QF+4*ks,4)}, {c}')
            if j + 4 < 8:
                kx_read(j + 4)
        return f
    for x in fold_qk(AK, L_KI - L_QI, AK + 2, AK + 3):
        emit(A, x)
    if early:
        A.i(f'buffer_store_dwordx4 {vr(S2,4)}, v1, {WSR}, s{sRP} offen offset:1024')
        A.i('s_mov_b64 exec, 0xffff')
        A.i(f'buffer_store_dwordx4 {vr(S2,4)}, v1, {WSR}, s{sRM} offen')
        A.i('s_mov_b64 exec, -1')
    A.wl(('q', 3))
    for j in range(4):
        smx(j)()
    A.wl('w')
    A.i('s_barrier')
    stamp('Bc')
    vstep()
    A.i(f'buffer_store_dword v{AK+2}, v{vX2}, {WSR}, s{sOUT} offen sc1')
    A.i(f'buffer_store_dword v{AK+3}, v{vX2}, {WSR}, s{sOUT} offen offset:256 sc1')
    A.wl(('kx', 7))
    for j in range(4, 8):
        smx(j)()
        A.ds(f'ds_read_b128 {vr(KR+4*(j-4),4)}, v{vQR} offset:{L_KI-L_QI+(j-4)*64}', ('km', j - 4))
    SX = S1
    T0, T1, T2 = S2, S2 + 1, S0 + 2
    def r1(a):
        return f'v_cvt_pk_bf16_f32 v{a}, 0, v{a}'
    vstep()
    A.i(f'v_mov_b64 {vr(PM0,2)}, 0')
    vstep()
    A.i(f'v_mov_b64 {vr(PM1,2)}, 0')
    fx = [f'v_cndmask_b32 v{S1+r}, v{S1+r}, v{S2+r}, s[{sHF}:{sHF+1}]' for r in range(4)]
    fx += [r1(SX + r) for r in range(4)]
    fx += [f'v_mul_f32 v{SX+r}, s{sSCALE}, v{SX+r}' for r in range(4)]
    fx += [r1(SX + r) for r in range(4)]
    fx += [f'v_max3_f32 v{T0}, v{SX}, v{SX+1}, v{SX+2}']
    s0 = []
    for ks in range(4):
        c = '0' if ks == 0 else vr(S0, 4)
        s0.append(lambda ks=ks, c=c: (A.wl(('km', ks if ks != 1 else 3)), A.i(f'v_mfma_f32_16x16x32_bf16 {vr(S0,4)}, {vr(KR+4*ks,4)}, {vr(QF+4*ks,4)}, {c}')))
    mix(A, s0, fx[:8], per=2)
    stamp('S0')
    for t in range(2):
        A.ds(f'ds_read_b128 {vr(VXF+4*t,4)}, v{vLW} offset:{L_VX-L_MEM+t*1024}', ('vx', t))
    for x in fx[8:]:
        emit(A, x)
    wz = [f'v_mov_b64 {vr(WD+r,2)}, 0' for r in range(0, 16, 2)]
    f = [f'v_cndmask_b32 v{S0}, v{S0}, v{S0+2}, s[{sHF}:{sHF+1}]', f'v_cndmask_b32 v{S0+1}, v{S0+1}, v{S0+3}, s[{sHF}:{sHF+1}]',
         r1(S0), r1(S0 + 1), f'v_mul_f32 v{S0}, s{sSCALE}, v{S0}', f'v_mul_f32 v{S0+1}, s{sSCALE}, v{S0+1}', r1(S0), r1(S0 + 1),
         f'v_max3_f32 v{T1}, v{SX+3}, v{S0}, v{S0+1}', f'v_max_f32 v{T0}, v{T0}, v{T1}',
         vstep, wz[0],
         f'v_max_f32_dpp v{T0}, v{T0}, v{T0} row_ror:8 row_mask:0xf bank_mask:0xf',
         f'v_mov_b32 v{T1}, v{T0}', vstep, wz[1], f'v_permlane32_swap_b32 v{T0}, v{T1}', f'v_max_f32 v{T0}, v{T0}, v{T1}',
         f'v_mov_b32 v{T1}, v{T0}', vstep, wz[2], f'v_permlane16_swap_b32 v{T0}, v{T1}', f'v_max_f32 v{T0}, v{T0}, v{T1}',
         f'v_mul_f32 v{T0}, s{sLOG2E}, v{T0}']
    vals = [SX, SX + 1, SX + 2, SX + 3, S0, S0 + 1]
    for a in vals:
        f += [f'v_fma_f32 v{a}, v{a}, s{sLOG2E}, -v{T0}', vstep]
    yr = frag_read(YS[3], 8 + 3, ('y', 3)) + frag_read(YS[4], 8 + 4, ('y', 4))
    f += [yr[0], vstep]
    f += [f'v_exp_f32 v{a}, v{a}' for a in vals]
    f += [f'v_pk_add_f32 {vr(T0,2)}, {vr(SX,2)}, {vr(SX+2,2)}', f'v_add_f32 v{T2}, v{S0}, v{S0+1}', f'v_add_f32 v{T0}, v{T0}, v{T1}',
          f'v_fma_f32 v{T0}, v{T2}, 0.5, v{T0}', vstep, wz[3],
          f'v_add_f32_dpp v{T0}, v{T0}, v{T0} row_ror:8 row_mask:0xf bank_mask:0xf',
          f'v_mov_b32 v{T1}, v{T0}', vstep, wz[4], f'v_permlane32_swap_b32 v{T0}, v{T1}', f'v_add_f32 v{T0}, v{T0}, v{T1}',
          f'v_mov_b32 v{T1}, v{T0}', vstep, wz[5], f'v_permlane16_swap_b32 v{T0}, v{T1}', f'v_add_f32 v{T0}, v{T0}, v{T1}',
          f'v_rcp_f32 v{T0}, v{T0}', yr[1]]
    f += [f'v_pk_mul_f32 {vr(a,2)}, {vr(a,2)}, {vr(T0,2)} op_sel_hi:[1,0]' for a in (SX, SX + 2, S0)]
    f += [f'v_cvt_pk_bf16_f32 v{P4}, v{SX}, v{SX+1}', f'v_cvt_pk_bf16_f32 v{P4+1}, v{SX+2}, v{SX+3}',
          f'v_cvt_pk_bf16_f32 v{T2}, v{S0}, v{S0+1}',
          f'v_mov_b32_dpp v{P4+2}, v{P4} row_ror:8 row_mask:0xf bank_mask:0xf',
          f'v_mov_b32_dpp v{P4+3}, v{P4+1} row_ror:8 row_mask:0xf bank_mask:0xf']
    for x in f:
        emit(A, x)
    assert vstate['f'] == 16, vstate
    pmv = [f'v_mov_b32_dpp v{PM0}, v{T2} quad_perm:[0,1,2,3] row_mask:0x3 bank_mask:0xf',
           f'v_mov_b32_dpp v{PM0+1}, v{T2} row_ror:8 row_mask:0x3 bank_mask:0xf',
           f'v_mov_b32_dpp v{PM1}, v{T2} quad_perm:[0,1,2,3] row_mask:0xc bank_mask:0xf',
           f'v_mov_b32_dpp v{PM1+1}, v{T2} row_ror:8 row_mask:0xc bank_mask:0xf']
    g = [f'v_permlane32_swap_b32 v{AV+r}, v{AV+4+r}' for r in range(4)]
    g += [f'v_pk_add_f32 {vr(AV,2)}, {vr(AV,2)}, {vr(AV+4,2)}', f'v_pk_add_f32 {vr(AV+2,2)}, {vr(AV+2,2)}, {vr(AV+6,2)}']
    g += [f'v_cvt_pk_bf16_f32 v{AV+4}, v{AV}, v{AV+1}', f'v_cvt_pk_bf16_f32 v{AV+5}, v{AV+2}, v{AV+3}']
    stamp('P')
    for x in g[:2]:
        emit(A, x)
    A.wl(('vx', 1))
    A.i(f'v_mfma_f32_16x16x32_bf16 {vr(OD,4)}, {vr(VXF,4)}, {vr(P4,4)}, 0')
    for x in g[2:4]:
        emit(A, x)
    A.i(f'v_mfma_f32_16x16x32_bf16 {vr(OD+4,4)}, {vr(VXF+4,4)}, {vr(P4,4)}, 0')
    for x in g[4:] + pmv:
        emit(A, x)
    A.i(f'v_mfma_f32_16x16x16_bf16 {vr(OD,4)}, {vr(AV+4,2)}, {vr(PM0,2)}, {vr(OD,4)}')
    A.i(f'v_mfma_f32_16x16x16_bf16 {vr(OD+4,4)}, {vr(AV+4,2)}, {vr(PM1,2)}, {vr(OD+4,4)}')
    A.i(f'buffer_store_dwordx2 {vr(AV+4,2)}, v{vVW}, {WSR}, s{sOUT} offen sc1')
    kv_wait(sS1, RC + 4, RC + 5)
    kv_dma(1)
    SEN = RC + 4
    for x in [yr[2], yr[3], wz[6], wz[7]] + ([] if early else [f'v_mov_b64 {vr(SEN,2)}, -1', f'v_mov_b64 {vr(SEN+2,2)}, -1']):
        emit(A, x)
    for p in range(1, 4):
        A.i(f'v_xor_b32 v{OA+4*p}, {p << 9:#x}, v{vOW}')
    for c in range(4):
        A.i(f'v_cvt_pk_bf16_f32 v{OP+c}, v{OD+c}, v{OD+4+c}')
    A.i(f's_mov_b64 exec, s[{sLF}:{sLF+1}]')
    A.ds(f'ds_write_b128 v{vOW}, {vr(OP,4)}', 'w')
    A.i('s_mov_b64 exec, -1')
    for c in range(4):
        A.i(f'v_mov_b32_dpp v{OP+c}, v{OP+c} row_ror:8 row_mask:0xf bank_mask:0xc')
    A.i(f'buffer_store_dwordx4 {vr(SEN,4)}, v1, {WSR}, s{sRP} offen')
    A.i(f's_cmp_eq_u32 s{sS}, {nsteps-1}')
    def wo_step(p):
        ks, cg = p >> 2, p & 3
        if p == 4:
            A.wl(('o', 1))
        if p == 8:
            A.wl(('o', 3))
        if p < 5:
            w = YS[p]
        elif p < 13:
            w = WOR + (p - 5) * 8
        else:
            w = YS[p - 13]
            if p == 13:
                A.wl(('y', 15))
        A.i(sm(WD + 4 * cg, OP if ks == 0 else OA + 4 * ks, w))
    wo_step(0)
    wo_step(1)
    A.wl_all()
    A.i('s_barrier')
    for ks in range(1, 4):
        A.ds(f'ds_read_b128 {vr(OA+4*ks,4)}, v{OA+4*ks}', ('o', ks))
    A.i(f's_cbranch_scc1 {Lfin}')
    wo_step(2)
    A.i(f'buffer_store_dwordx4 {vr(SEN,4)}, v1, {WSR}, s{sRP} offen offset:1024')
    wo_step(3)
    A.i('s_mov_b64 exec, 0xffff')
    A.i(f'buffer_store_dwordx4 {vr(SEN,4)}, v1, {WSR}, s{sRM} offen')
    A.i('s_mov_b64 exec, -1')
    kv_dma(0)
    stamp('Bd')
    yy = []
    for k in range(3):
        yy += frag_read(YS[k], 8 + 5 + k, ('y', 13 + k))
    for p in range(4, 16):
        wo_step(p)
        if yy:
            yy.pop(0)()
    if 'xonly' in opts:
        A.label(Lxo)
    for r in range(4):
        A.i(f'v_cvt_pk_bf16_f32 v{PK+2*r}, v{WD+r}, v{WD+4+r}')
        if tag:
            A.i(f'v_and_or_b32 v{PK+2*r}, v{PK+2*r}, -2, s{sFA}')
    for r in range(4):
        A.i(f'v_cvt_pk_bf16_f32 v{PK+2*r+1}, v{WD+8+r}, v{WD+12+r}')
        if tag:
            A.i(f'v_and_or_b32 v{PK+2*r+1}, v{PK+2*r+1}, -2, s{sFA}')
        if r == 1:
            A.i(f'buffer_store_dwordx4 {vr(PK,4)}, v{vPST}, {WSR}, s{sPC} offen')
    A.i(f'buffer_store_dwordx4 {vr(PK+4,4)}, v{vPST}, {WSR}, s{sPC2} offen')
    stamp('Wo')
    if prof:
        ts(5)
        A.i('s_waitcnt lgkmcnt(0)')
        for k in range(5):
            A.i(f's_sub_u32 s{sT0}, s{4+2*(k+1)}, s{4+2*k}')
            A.i(f's_cmp_gt_u32 s{sS}, 4')
            A.i(f's_cselect_b32 s{sT0}, s{sT0}, 0')
            A.i(f's_add_u32 s{20+k}, s{20+k}, s{sT0}')
        A.i('s_mov_b32 s4, s14')
    SELR, RS, HA, IMG = RA + 16, RA + 20, RA, RA + 28
    Lbe = A.newlabel('CHbe')
    A.ds(f'ds_read_b128 {vr(SELR,4)}, v{vL2} offset:{L_SEL-L_MEM}', 'sel')
    if sy.on:
        A.i('s_waitcnt vmcnt(12)')
        A.i(f'v_readfirstlane_b32 s{sT0}, v{vT0}')
        A.i(f's_max_u32 s{sKVS}, s{sKVS}, s{sT0}')
    sy.trace(A, RD, sS, imm=0, wave=3)
    pre_step()
    A.i(f's_add_u32 s{sT5}, s{sPC}, s{sH1}')
    A.i(f's_lshl_b32 s{sT3}, s{sW}, 11')
    A.i(f's_add_u32 s{sT3}, s{sT3}, s{sMC}')
    A.i(f's_mov_b32 s{sT4}, s{sMC}')

    CT = RA + 26
    def chain_max(H, n):
        A.i(f'v_max3_u32 v{CT}, v{H}, v{H+1}, v{H+2}')
        for k in range(3, n - 1, 2):
            A.i(f'v_max3_u32 v{CT}, v{CT}, v{H+k}, v{H+k+1}')
        A.i(f'v_max_u32 v{CT}, v{CT}, v{H+n-1}')
    KF = getattr(sy, 'dk', 2)

    A.wl_all()
    A.i(f's_cmp_ge_u32 s{sW}, 2')
    A.i(f's_cbranch_scc1 {Lbe}')
    for _ in range(getattr(sy, 'd1', 2)):
        A.i('s_nop 15')
    Lp1, Lok1 = A.newlabel('CHp1'), A.newlabel('CHok1')
    def h1_loads():
        for L in range(4):
            A.i(f'buffer_load_dwordx4 {vr(HA+4*L,4)}, v1, {WSR}, s{sT5} offen offset:{L*1024} sc1')
    def h1_mfma(waits):
        for L in range(4):
            if waits:
                A.i(f's_waitcnt vmcnt({3-L})')
            c = '0' if L == 0 else vr(RS, 4)
            A.i(f'v_mfma_f32_16x16x32_bf16 {vr(RS,4)}, {vr(SELR,4)}, {vr(HA+4*L,4)}, {c}')
    h1_loads()
    h1_mfma(True)
    chain_max(HA, 16)
    A.i(f'v_cmpx_eq_u32 vcc, -1, v{CT}')
    A.i(f's_cbranch_execz {Lok1}')
    if 'nox' not in opts:
        A.label(Lp1)
        cnt(0)
        h1_loads()
        A.i(f's_waitcnt vmcnt({4*KF})')
        chain_max(HA, 16)
        A.i(f'v_cmpx_eq_u32 vcc, -1, v{CT}')
        A.i(f's_cbranch_execnz {Lp1}')
    A.i('s_mov_b64 exec, -1')
    h1_mfma(False)
    A.label(Lok1)
    A.i('s_mov_b64 exec, -1')
    for r in range(4):
        A.i(f'v_add_f32_dpp v{RS+r}, v{RS+r}, v{RS+r} row_ror:8 row_mask:0xf bank_mask:0xf')
    A.i('s_mov_b64 exec, 0x00ff00ff')
    A.i(f'v_cvt_pk_bf16_f32 v{RS}, v{RS}, v{RS+1}')
    A.i(f'v_cvt_pk_bf16_f32 v{RS+1}, v{RS+2}, v{RS+3}')
    A.i(f'buffer_store_dwordx2 {vr(RS,2)}, v{vX1}, {WSR}, s{sT4} offen')
    A.i('s_mov_b64 exec, -1')
    A.label(Lbe)
    ts(1)
    A.i('s_barrier')
    ts(2)
    A.i(f's_add_u32 s{sS}, s{sS}, 1')
    step_scalars(addr=False)
    for _ in range(getattr(sy, 'd2', 1)):
        A.i('s_nop 15')
    Lp2, Lok2 = A.newlabel('CHp2'), A.newlabel('CHok2')
    def h2_loads():
        for i in range(2):
            A.i(f'buffer_load_dwordx4 {vr(HA+4*i,4)}, v1, {WSR}, s{sT3} offen offset:{i*1024} sc1')
    h2_loads()
    for i in range(2):
        A.i(f's_waitcnt vmcnt({1-i})')
        A.i(f'ds_write_b128 v{vLW}, {vr(HA+4*i,4)} offset:{i*1024}')
    chain_max(HA, 8)
    for p in range(1, 4):
        A.i(f'v_xor_b32 v{RA+8*p}, {p << 11:#x}, v{vLW}')
    A.i(f'v_cmpx_eq_u32 vcc, -1, v{CT}')
    A.i(f's_cbranch_execz {Lok2}')
    if 'nox' not in opts:
        A.i(f's_mov_b64 s[40:41], exec')
        A.label(Lp2)
        cnt(1)
        h2_loads()
        A.i(f's_waitcnt vmcnt({2*KF})')
        chain_max(HA, 8)
        A.i(f'v_cmpx_eq_u32 vcc, -1, v{CT}')
        A.i(f's_cbranch_execnz {Lp2}')
        A.i('s_mov_b64 exec, s[40:41]')
        for i in range(2):
            A.i(f'ds_write_b128 v{vLW}, {vr(HA+4*i,4)} offset:{i*1024}')
    A.label(Lok2)
    A.i('s_mov_b64 exec, -1')
    ts(3)
    A.i(f's_branch {Ltop}')
    A.label(Lcut)
    A.i(f's_add_u32 s{sS}, s{sS}, 1')
    sy.trace(A, RD, sS, imm=0, wave=3)
    A.wl_all()
    A.i(f's_branch {Ltop}')
    A.i = _orig_i
    A.label(Lfin)
    if sy.tr and not prof:
        A.i('s_memtime s[6:7]')
        A.i('s_waitcnt lgkmcnt(0)')
        A.i('s_sub_u32 s6, s6, s4')
        A.i(f'v_mov_b32 v{vT0}, s6')
        A.i(f'buffer_store_dword v{vT0}, off, {WSR}, s100 offset:{120*4}')
    if prof:
        A.i(f's_lshl_b32 s101, s{sW}, 6')
        A.i('s_add_u32 s101, s101, s100')
        A.i('s_mov_b64 exec, 1')
        for k in range(10):
            A.i(f'v_mov_b32 v{vT0}, s{20+k}')
            A.i(f'buffer_store_dword v{vT0}, off, {WSR}, s101 offset:{512+4*k}')
        A.i('s_mov_b64 exec, -1')
    if sy.on:
        A.i('s_waitcnt vmcnt(0)')
        A.i('s_barrier')
        A.i(f's_add_u32 s{sT0}, s{sS}, 1')
        A.i(f'v_mov_b32 v{vT0}, s{sT0}')
        A.i(f's_mov_b64 exec, s[{sIO}:{sIO+1}]')
        A.i(f'buffer_store_dword v{vT0}, off, {WSR}, s{sFLG} sc1')
        A.i('s_mov_b64 exec, -1')
    A.i(f's_branch {end}')
    for Lp, Lok, sseg, r0, r1 in slow:
        A.label(Lp)
        A.i(f'buffer_load_dword v{r0}, off, {WSR}, s{sKVF} sc1')
        A.i('s_waitcnt vmcnt(0)')
        A.i(f'v_readfirstlane_b32 s{sKVS}, v{r0}')
        A.i(f's_cmp_gt_u32 s{sKVS}, s{sseg}')
        A.i(f's_cbranch_scc1 {Lok}')
        A.i(f's_branch {Lp}')
```

```python
from asmdsl import *

H = 0x0000000
H2 = 0x0200000
X1 = 0x0400000
MOD = 0x0600000
FLAGS = 0x0610000
XM = 0x06F8000
XP = 0x0700000
KM = 0x0800000
VM = 0x0C00000
KX = 0x1000000
VT = 0x2000000
OB = 0x3000000
PART = 0x4000000
GU = 0x5000000
TRACE = 0x6000000
WS_BYTES = 0x10000000

FL = 128
F_TICKET = FLAGS + 0 * FL
F_H = FLAGS + 16 * FL
F_KV = FLAGS + 80 * FL
F_CH = FLAGS + 144 * FL
F_QA = FLAGS + 208 * FL
F_MOD = FLAGS + 656 * FL
F_CI = FLAGS + 704 * FL
NFLAG = 768
F_WO = FLAGS + 272 * FL
F_R = FLAGS + 304 * FL
F_F1 = FLAGS + 320 * FL

P_X, P_MEM0, P_WQ, P_WK, P_WV, P_WO, P_SEG, P_BX, P_WG, P_WU, P_WD, P_C, P_WMOD, P_OUT, P_DBG, P_WS = [4 + 2 * i for i in range(16)]
S_WS, S_A, S_B, S_C, S_D = 36, 40, 44, 48, 52
sR, sW, sS = 56, 57, 58
sT0, sT1, sT2, sT3, sT4, sT5 = 59, 60, 61, 62, 63, 64
SELLO, SELHI = 66, 67
sHIM = 68
sLOG2E = 69
sSCALE = 70

LOG2E = 0x3fb8aa3b
SCALE = 0x3db504f3


def srd(A, s, ptr, nbytes):
    A.i(f's_mov_b32 s{s}, s{ptr}')
    A.i(f's_and_b32 s{s+1}, s{ptr+1}, 0xffff')
    A.i(f's_mov_b32 s{s+2}, {nbytes:#x}')
    A.i(f's_mov_b32 s{s+3}, 0x20000')


def prologue(A, nwg, end_label):
    A.i(f's_cmp_ge_u32 s2, {nwg}')
    A.i(f's_cbranch_scc1 {end_label}')
    A.i('s_load_dwordx16 s[4:19], s[0:1], 0')
    A.i('s_load_dwordx16 s[20:35], s[0:1], 64')
    A.i('v_lshrrev_b32 v1, 6, v0')
    A.i(f'v_readfirstlane_b32 s{sW}, v1')
    A.i('v_and_b32 v0, 63, v0')
    A.i('v_lshlrev_b32 v1, 4, v0')
    A.i(f's_mov_b32 s{SELLO}, 0x05040100')
    A.i(f's_mov_b32 s{SELHI}, 0x07060302')
    A.i(f's_mov_b32 s{sHIM}, 0xffff0000')
    A.i(f's_mov_b32 s{sLOG2E}, {LOG2E:#x}')
    A.i(f's_mov_b32 s{sSCALE}, {SCALE:#x}')
    A.i('s_waitcnt lgkmcnt(0)')
    srd(A, S_WS, P_WS, WS_BYTES)
    for s in (S_A, S_B, S_C, S_D):
        srd(A, s, P_WS, WS_BYTES)


def unpack(A, lo, hi, src):
    A.i(f'v_lshlrev_b32 v{lo}, 16, v{src}')
    A.i(f'v_and_b32 v{hi}, s{sHIM}, v{src}')


def round2(A, a, b, tmp):
    A.i(f'v_cvt_pk_bf16_f32 v{tmp}, v{a}, v{b}')
    A.i(f'v_lshlrev_b32 v{a}, 16, v{tmp}')
    A.i(f'v_and_b32 v{b}, s{sHIM}, v{tmp}')


def move_to(A, dst_u, src_v):
    if dst_u >= 256:
        A.i(f'v_accvgpr_write_b32 a{dst_u-256}, v{src_v}')
    elif dst_u != src_v:
        A.i(f'v_mov_b32 v{dst_u}, v{src_v}')


def perm_to(A, dst_u, hi_src, lo_src, sel, tmp):
    if dst_u >= 256:
        A.i(f'v_perm_b32 v{tmp}, v{hi_src}, v{lo_src}, {sel}')
        A.i(f'v_accvgpr_write_b32 a{dst_u-256}, v{tmp}')
    else:
        A.i(f'v_perm_b32 v{dst_u}, v{hi_src}, v{lo_src}, {sel}')


def wave_sum(A, v, sdst):
    for sh in (1, 2, 4, 8):
        A.i(f'v_add_f32_dpp v{v}, v{v}, v{v} row_shr:{sh} row_mask:0xf bank_mask:0xf bound_ctrl:0')
    A.i(f'v_add_f32_dpp v{v}, v{v}, v{v} row_bcast:15 row_mask:0xa bank_mask:0xf')
    A.i(f'v_add_f32_dpp v{v}, v{v}, v{v} row_bcast:31 row_mask:0xc bank_mask:0xf')
    A.i(f'v_readlane_b32 s{sdst}, v{v}, 63')


class Sync:
    def __init__(self, enabled, trace=False):
        self.on = enabled
        self.tr = trace
        self.pub_base = 0

    def trace(self, A, vtmp, sidx=None, imm=0, wave=None, lim=None):
        if not self.tr:
            return
        L = None
        if wave is not None:
            L = A.newlabel('Ltr')
            A.i(f's_cmp_lg_u32 s{sW}, {wave}')
            A.i(f's_cbranch_scc1 {L}')
            if lim:
                A.i(f's_cmp_ge_u32 s{sidx}, {lim}')
                A.i(f's_cbranch_scc1 {L}')
        A.i('s_memrealtime s[98:99]')
        if sidx is not None:
            A.i(f's_lshl_b32 s101, s{sidx}, 2')
            A.i(f's_add_u32 s101, s101, s100')
        else:
            A.i('s_mov_b32 s101, s100')
        A.i('s_waitcnt lgkmcnt(0)')
        A.i(f'v_mov_b32 v{vtmp}, s98')
        A.i('s_mov_b64 exec, 1')
        A.i(f'buffer_store_dword v{vtmp}, off, s[{S_WS}:{S_WS+3}], s101 offset:{imm*4}')
        A.i('s_mov_b64 exec, -1')
        if L:
            A.label(L)

    def publish(self, A, vaddr, vtmp, sval):
        if not self.on:
            return
        A.i(f'v_mov_b32 v{vtmp}, s{sval}')
        A.i('s_mov_b64 exec, 1')
        A.i(f'buffer_store_dword v{vtmp}, v{vaddr}, s[{S_WS}:{S_WS+3}], 0 offen sc1')
        A.i('s_mov_b64 exec, -1')
        self.trace(A, vtmp, sval, imm=self.pub_base)

    def wait(self, A, vaddr, vtmp, sneed, sleep=1):
        if not self.on:
            return
        L = A.newlabel('Lw')
        L2 = A.newlabel('Lwd')
        A.label(L)
        A.i(f'buffer_load_dword v{vtmp}, v{vaddr}, s[{S_WS}:{S_WS+3}], 0 offen sc1')
        A.i('s_waitcnt vmcnt(0)')
        A.i(f'v_cmp_le_u32 vcc, s{sneed}, v{vtmp}')
        A.i('s_cmp_eq_u64 vcc, exec')
        A.i(f's_cbranch_scc1 {L2}')
        sleep = getattr(self, 'dsl', sleep)
        if sleep:
            A.i(f's_sleep {sleep}')
        A.i(f's_branch {L}')
        A.label(L2)


DBG_READY = 4


def ready_wait(A, vz, vt):
    L = A.newlabel('Lrdy')
    A.i(f'v_mov_b32 v{vz}, 0')
    A.label(L)
    A.i(f'global_load_dword v{vt}, v{vz}, s[{P_DBG}:{P_DBG+1}] offset:{DBG_READY} sc1')
    A.i('s_waitcnt vmcnt(0)')
    A.i(f'v_cmp_ne_u32 vcc, 0, v{vt}')
    A.i('s_cmp_eq_u64 vcc, exec')
    A.i(f's_cbranch_scc0 {L}')
```

```python
from common import *
from roles import *

F_L = FLAGS + 272 * FL
NPX = 4


def role_post(A, sy, sX):
    WOW, F1W, F2W = 256, 384, 128
    sB = sS if 'bigscratch' in getattr(sy, 'opts', set()) else sX
    VPC, VLW, VLR, VSTP, VFQ, VFL, VT_, VDMA = 2, 3, 4, 5, 6, 7, 8, 10
    VRD, VSTG, VST2, VLR2, VF3, V32, GB = 11, 19, 20, 21, 22, 23, 24
    CG = 240
    sKB, sPRT, sOSRC, sGUD, sGUS, sFB, sC28 = 72, 73, 74, 75, 76, 77, 78
    defer_to_chain(A, sy, 28, 29)
    srd(A, S_A, P_WO, 4096 * 1024)
    srd(A, S_B, P_WG, 512 * 3584)
    srd(A, S_C, P_WU, 512 * 3584)
    srd(A, S_D, P_WD, 1792 * 1024)
    natural_setup(A, 28, 29, 1024, 30)
    A.i(f's_lshr_b32 s80, s{sR}, 3')
    A.i(f's_and_b32 s81, s{sR}, 7')
    A.i(f's_lshl_b32 s{sKB}, s80, 2')
    A.i(f's_add_u32 s{sKB}, s{sKB}, s{sW}')
    A.i(f's_lshl_b32 s82, s{sKB}, 18')
    A.i(f's_lshl_b32 s{sT0}, s81, 7')
    A.i(f's_add_u32 s82, s82, s{sT0}')
    load_weights(A, natural_units(S_A, 28, 82, 1024, 8, 4, WOW, 29), 64, 32, 30)
    natural_setup(A, 28, 29, 3584, 30)
    A.i(f's_min_u32 s{sC28}, s{sR}, 27')
    A.i(f's_lshl_b32 s82, s{sC28}, 7')
    A.i(f's_lshl_b32 s{sT0}, s{sW}, 5')
    A.i(f's_add_u32 s82, s82, s{sT0}')
    ug = natural_units(S_B, 28, 82, 3584, 16, 1, F1W, 29, tile_index=lambda ks, t: ks * 2)
    uu = natural_units(S_C, 28, 82, 3584, 16, 1, F1W, 29, tile_index=lambda ks, t: ks * 2 + 1)
    load_weights(A, ug + uu, 64, 32, 30)
    lane_woff(A, 28, 1024, 4, 30)
    A.i(f's_lshr_b32 s83, s{sR}, 1')
    A.i(f's_and_b32 s84, s{sR}, 1')
    A.i(f's_mul_i32 s82, s{sW}, {448*1024}')
    A.i(f's_lshl_b32 s{sT0}, s83, 6')
    A.i(f's_add_u32 s82, s82, s{sT0}')
    load_weights(A, paired_units(S_D, 28, 82, 1024, 14, F2W), 64, 32, 30)
    srd(A, S_A, P_X, 2048 * 1024)
    srd(A, S_B, P_OUT, 2048 * 1024)
    if getattr(sy, 'single', False):
        mod_wait(A, sy, 0, 48, 28, 29)
    G, T = 28, 29
    A.i(f'v_lshrrev_b32 v{G}, 4, v0')
    A.i(f'v_and_b32 v{T}, 15, v0')
    A.i(f'v_lshlrev_b32 v{VPC}, 9, v{G}')
    A.i(f'v_lshl_add_u32 v{VPC}, v{T}, 4, v{VPC}')
    A.i(f'v_lshlrev_b32 v{V32}, 5, v0')
    A.i(f'v_lshlrev_b32 v{VSTP}, 11, v{T}')
    A.i(f'v_lshl_add_u32 v{VSTP}, v{G}, 4, v{VSTP}')
    A.i(f's_lshl_b32 s{sT0}, s81, 8')
    A.i(f's_lshl_b32 s{sT1}, s{sW}, 6')
    A.i(f's_add_u32 s{sT0}, s{sT0}, s{sT1}')
    A.i(f's_lshl_b32 s{sT1}, s80, 16')
    A.i(f's_add_u32 s{sT0}, s{sT0}, s{sT1}')
    A.i(f's_add_u32 s{sPRT}, s{sT0}, {PART:#x}')
    RED = 65536
    A.i(f's_lshl_b32 s{sT0}, s{sW}, 13')
    A.i(f's_add_u32 s{sT0}, s{sT0}, {RED}')
    A.i(f'v_add_u32 v{VLW}, s{sT0}, v1')
    A.i(f's_lshl_b32 s{sT0}, s{sW}, 11')
    A.i(f's_add_u32 s{sT0}, s{sT0}, {RED}')
    A.i(f'v_add_u32 v{VLR}, s{sT0}, v1')
    A.i(f'v_and_b32 v30, 1, v0')
    A.i(f'v_lshlrev_b32 v30, 8, v30')
    A.i(f's_lshl_b32 s{sT0}, s{sKB}, 9')
    A.i(f's_add_u32 s{sT0}, s{sT0}, {F_QA:#x}')
    A.i(f'v_add_u32 v{VFQ}, s{sT0}, v30')
    A.i(f's_lshl_b32 s{sOSRC}, s{sKB}, 14')
    A.i(f's_add_u32 s{sOSRC}, s{sOSRC}, {OB:#x}')
    A.i(f's_mul_i32 s{sFB}, s{sX}, {96*FL}')
    A.i(f's_add_u32 s{sFB}, s{sFB}, {F_L:#x}')
    A.i(f'v_and_b32 v{VFL}, 31, v0')
    A.i(f'v_lshlrev_b32 v{VFL}, 7, v{VFL}')
    A.i(f'v_add_u32 v{VFL}, s{sFB}, v{VFL}')
    A.i(f'v_and_b32 v{VF3}, 7, v0')
    A.i(f'v_min_u32 v{VF3}, 6, v{VF3}')
    A.i(f'v_lshlrev_b32 v{VF3}, 7, v{VF3}')
    A.i(f's_mul_i32 s{sT0}, s{sW}, {7*FL}')
    A.i(f's_add_u32 s{sT0}, s{sT0}, s{sFB}')
    A.i(f's_add_u32 s{sT0}, s{sT0}, {64*FL}')
    A.i(f'v_add_u32 v{VF3}, s{sT0}, v{VF3}')
    A.i(f's_lshl_b32 s{sT0}, s{sR}, 7')
    A.i(f's_add_u32 s{sFB}, s{sFB}, s{sT0}')
    t1_setup(A, VDMA, VRD)
    A.i(f'v_lshrrev_b32 v{VSTG}, 5, v0')
    A.i(f'v_lshlrev_b32 v{VSTG}, 9, v{VSTG}')
    A.i(f'v_lshl_add_u32 v{VSTG}, v{T}, 4, v{VSTG}')
    A.i(f'v_bfe_u32 v30, v0, 4, 1')
    A.i(f'v_lshl_add_u32 v{VSTG}, v30, 3, v{VSTG}')
    A.i(f's_lshl_b32 s{sGUD}, s{sC28}, 12')
    A.i(f's_lshl_b32 s{sT0}, s{sW}, 10')
    A.i(f's_add_u32 s{sGUD}, s{sGUD}, s{sT0}')
    A.i(f's_add_u32 s{sGUD}, s{sGUD}, {GU:#x}')
    A.i(f'v_lshlrev_b32 v{VST2}, 10, v{T}')
    A.i(f'v_lshl_add_u32 v{VST2}, v{G}, 4, v{VST2}')
    A.i(f's_lshl_b32 s{sT0}, s84, 14')
    A.i(f's_lshl_b32 s{sT1}, s83, 6')
    A.i(f's_add_u32 s{sT0}, s{sT0}, s{sT1}')
    A.i(f's_lshl_b32 s{sT1}, s{sW}, 2')
    A.i(f's_add_u32 s{sT0}, s{sT0}, s{sT1}')
    A.i(f'v_add_u32 v{VST2}, s{sT0}, v{VST2}')
    A.i(f's_add_u32 s{sT0}, s{sT1}, {RED}')
    A.i(f'v_add_u32 v{VLR2}, s{sT0}, v1')
    A.i(f's_mul_i32 s{sGUS}, s{sW}, {56*512}')
    A.i(f's_lshl_b32 s{sT0}, s84, 8')
    A.i(f's_add_u32 s{sGUS}, s{sGUS}, s{sT0}')
    A.i(f's_add_u32 s{sGUS}, s{sGUS}, {GU:#x}')
    A.i(f'v_lshlrev_b32 v30, 5, v{G}')
    A.i(f's_lshl_b32 s{sT0}, s83, 7')
    A.i(f's_lshl_b32 s{sT1}, s{sW}, 3')
    A.i(f's_add_u32 s{sT0}, s{sT0}, s{sT1}')
    A.i(f's_add_u32 s{sT0}, s{sT0}, {MOD + 5*2048:#x}')
    A.i(f'buffer_load_dwordx2 {vr(GB,2)}, v30, {WSR}, s{sT0} offen sc1')
    SBL = 131072
    for dst, which in ((CG, 2), (CG + 8, 4), (32, 3)):
        A.i(f's_mov_b32 s{sT0}, {MOD + which*2048:#x}')
        A.i(f'buffer_load_dwordx4 {vr(dst,4)}, v{V32}, {WSR}, s{sT0} offen sc1')
        A.i(f'buffer_load_dwordx4 {vr(dst+4,4)}, v{V32}, {WSR}, s{sT0} offen offset:16 sc1')
    A.i('s_waitcnt vmcnt(0)')
    one_plus(A, CG + 8, VT_)
    A.i(f'v_add_u32 v26, {SBL}, v{V32}')
    A.i('ds_write_b128 v26, v[32:35]')
    A.i('ds_write_b128 v26, v[36:39] offset:16')
    A.i('s_waitcnt lgkmcnt(0)')
    A.i(f's_mov_b32 s{sS}, s{sX}')

    def lpublish(stage):
        Ls = A.newlabel('PSpub')
        A.i(f's_cmp_lg_u32 s{sW}, 0')
        A.i(f's_cbranch_scc1 {Ls}')
        A.i(f'v_mov_b32 v{VT_}, s{sT2}')
        A.i(f's_add_u32 s{sT0}, s{sFB}, {stage*32*FL}')
        A.i('s_mov_b64 exec, 1')
        A.i(f'buffer_store_dword v{VT_}, off, {WSR}, s{sT0}')
        A.i('s_mov_b64 exec, -1')
        sy.trace(A, VT_, sS, imm=1 + 64 * stage)
        A.label(Ls)

    def lwait(vaddr, off):
        L, L2 = A.newlabel('PSw'), A.newlabel('PSwd')
        A.i(f's_mov_b32 s{sT0}, {off}')
        A.label(L)
        A.i(f'buffer_load_dword v{VT_}, v{vaddr}, {WSR}, s{sT0} offen sc1')
        A.i('s_waitcnt vmcnt(0)')
        A.i(f'v_cmp_le_u32 vcc, s{sT2}, v{VT_}')
        A.i('s_cmp_eq_u64 vcc, exec')
        A.i(f's_cbranch_scc0 {L}')

    Ltop = A.newlabel('PStop')
    A.label(Ltop)
    A.i(f's_add_u32 s{sT2}, s{sS}, 1')
    XF, D, RD_ = 32, 96, 32
    A.i(f's_lshl_b32 s79, s{sS}, 5')
    A.i(f's_add_u32 s79, s79, s{sR}')
    A.i(f's_lshl_b32 s79, s79, 10')
    A.i(f'buffer_load_dwordx4 v[28:31], v1, s[{S_A}:{S_A+3}], s79 offen')
    A.i(f's_lshl_b32 s88, s{sB}, 5')
    A.i(f's_add_u32 s88, s88, s{sR}')
    A.i('s_lshl_b32 s88, s88, 10')
    if sy.on:
        A.i(f's_and_b32 s{sT0}, s{sS}, 1')
        A.i(f's_lshl_b32 s{sT0}, s{sT0}, 7')
        A.i(f'v_add_u32 v27, s{sT0}, v{VFQ}')
        sy.wait(A, 27, VT_, sT2)
    A.i(f's_lshl_b32 s{sT0}, s{sS}, 18')
    A.i(f's_add_u32 s{sT0}, s{sT0}, s{sOSRC}')
    for ks in range(8):
        if ks and (ks & 1) == 0:
            A.i(f's_add_u32 s{sT0}, s{sT0}, 4096')
        for tt in range(2):
            A.i(f'buffer_load_dwordx4 {vr(XF+(ks*2+tt)*4,4)}, v{VPC}, {WSR}, s{sT0} offen offset:{(ks&1)*2048+tt*256} sc1')
    for ks in range(8):
        A.i(f's_waitcnt vmcnt({14-2*ks})')
        for t in range(4):
            for tt in range(2):
                d = vr(D + (t * 2 + tt) * 4, 4)
                c = '0' if ks == 0 else d
                A.i(f'v_mfma_f32_16x16x32_bf16 {d}, {ur(WOW+(ks*4+t)*4,4)}, {vr(XF+(ks*2+tt)*4,4)}, {c}')
    for q in range(8):
        A.i(f'ds_write_b128 v{VLW}, {vr(D+q*4,4)} offset:{q*1024}')
    A.i('s_waitcnt lgkmcnt(0)')
    A.i('s_barrier')
    for u in range(2):
        for w2 in range(4):
            A.i(f'ds_read_b128 {vr(RD_+(u*4+w2)*4,4)}, v{VLR} offset:{w2*8192+u*1024}')
    A.i(f's_lshl_b32 s{sT0}, s{sB}, 18')
    A.i(f's_add_u32 s{sT0}, s{sT0}, s{sPRT}')
    A.i(f's_add_u32 s{sT1}, s{sT0}, {16*2048}')
    for u in range(2):
        A.i(f's_waitcnt lgkmcnt({4-4*u})')
        b = RD_ + u * 16
        for r in (0, 2):
            A.i(f'v_pk_add_f32 {vr(b+r,2)}, {vr(b+r,2)}, {vr(b+4+r,2)}')
            A.i(f'v_pk_add_f32 {vr(b+8+r,2)}, {vr(b+8+r,2)}, {vr(b+12+r,2)}')
        for r in (0, 2):
            A.i(f'v_pk_add_f32 {vr(b+r,2)}, {vr(b+r,2)}, {vr(b+8+r,2)}')
        A.i(f'buffer_store_dwordx4 {vr(b,4)}, v{VSTP}, {WSR}, s{sT0 if u == 0 else sT1} offen')
    A.i('s_waitcnt vmcnt(0)')
    A.i('s_barrier')
    lpublish(0)
    Lf1 = A.newlabel('PSf1')
    A.i(f's_cmp_lg_u32 s{sW}, 1')
    A.i(f's_cbranch_scc1 {Lf1}')
    X, TT_, PK, PT, SH = 32, 40, 52, 64, 96
    A.i(f'ds_read_b128 {vr(SH,4)}, v26')
    A.i(f'ds_read_b128 {vr(SH+4,4)}, v26 offset:16')
    lwait(VFL, 0)
    A.i(f's_lshl_b32 s{sT0}, s{sB}, 18')
    A.i(f's_lshl_b32 s{sT1}, s{sR}, 11')
    A.i(f's_add_u32 s{sT0}, s{sT0}, s{sT1}')
    A.i(f's_add_u32 s{sT0}, s{sT0}, {PART:#x}')
    for kq in range(4):
        if kq:
            A.i(f's_add_u32 s{sT0}, s{sT0}, 0x10000')
        A.i(f'buffer_load_dwordx4 {vr(PT+kq*8,4)}, v{V32}, {WSR}, s{sT0} offen sc1')
        A.i(f'buffer_load_dwordx4 {vr(PT+kq*8+4,4)}, v{V32}, {WSR}, s{sT0} offen offset:16 sc1')
    for j in range(4):
        unpack(A, X + 2 * j, X + 2 * j + 1, 28 + j)
    A.i('s_waitcnt vmcnt(0) lgkmcnt(0)')
    for j in range(0, 8, 2):
        A.i(f'v_pk_add_f32 {vr(PT+j,2)}, {vr(PT+j,2)}, {vr(PT+8+j,2)}')
        A.i(f'v_pk_add_f32 {vr(PT+16+j,2)}, {vr(PT+16+j,2)}, {vr(PT+24+j,2)}')
    for j in range(0, 8, 2):
        A.i(f'v_pk_add_f32 {vr(PT+j,2)}, {vr(PT+j,2)}, {vr(PT+16+j,2)}')
    for j in range(8):
        A.i(f'v_cvt_pk_bf16_f32 v{PT+j}, 0, v{PT+j}')
    for j in range(8):
        A.i(f'v_mul_f32 v{PT+j}, v{PT+j}, v{CG+j}')
    for j in range(8):
        A.i(f'v_cvt_pk_bf16_f32 v{PT+j}, 0, v{PT+j}')
    for j in range(8):
        A.i(f'v_add_f32 v{X+j}, v{X+j}, v{PT+j}')
    for j in range(4):
        A.i(f'v_cvt_pk_bf16_f32 v{28+j}, v{X+2*j}, v{X+2*j+1}')
    A.i(f's_add_u32 s{sT0}, s88, {X1:#x}')
    A.i(f'buffer_store_dwordx4 v[28:31], v1, {WSR}, s{sT0} offen')
    for j in range(8):
        A.i(f'v_cvt_pk_bf16_f32 v{X+j}, 0, v{X+j}')
    ln_core(A, X, TT_, CG + 8, SH, PK)
    A.i(f's_add_u32 s{sT0}, s88, {H2:#x}')
    A.i(f'buffer_store_dwordx4 {vr(PK,4)}, v1, {WSR}, s{sT0} offen')
    A.i('s_waitcnt vmcnt(0)')
    A.i(f'v_mov_b32 v{VT_}, s{sT2}')
    A.i(f's_add_u32 s{sT0}, s{sFB}, {32*FL}')
    A.i('s_mov_b64 exec, 1')
    A.i(f'buffer_store_dword v{VT_}, off, {WSR}, s{sT0}')
    A.i('s_mov_b64 exec, -1')
    sy.trace(A, VT_, sS, imm=1 + 64)
    A.label(Lf1)
    Lf2 = A.newlabel('PSf2')
    A.i(f's_cmp_ge_u32 s{sR}, 28')
    A.i(f's_cbranch_scc1 {Lf2}')
    A.i(f'v_and_b32 v27, 7, v0')
    A.i(f'v_lshlrev_b32 v27, 7, v27')
    A.i(f's_lshl_b32 s{sT1}, s{sR}, 7')
    A.i(f's_sub_u32 s{sT1}, s{sFB}, s{sT1}')
    A.i(f's_lshl_b32 s{sT0}, s{sW}, 10')
    A.i(f's_add_u32 s{sT1}, s{sT1}, s{sT0}')
    A.i(f'v_add_u32 v27, s{sT1}, v27')
    lwait(27, 32 * FL)
    A.i(f's_lshl_b32 s85, s{sB}, 15')
    A.i(f's_add_u32 s85, s85, {H2:#x}')
    A.i('s_mov_b32 s86, 0')
    t1_dma(A, VDMA, VT_, 85, 86)
    A.i('s_waitcnt vmcnt(0)')
    A.i('s_barrier')
    XF1, D1, PK1, T1 = 32, 64, 80, 88
    t1_compute(A, VRD, VRD, XF1, F1W, D1, swapped=True)
    g = [D1 + i for i in range(8)]
    u = [D1 + 8 + i for i in range(8)]
    for k in range(8):
        A.i(f'v_cvt_pk_bf16_f32 v{g[k]}, 0, v{g[k]}')
    for k in range(8):
        A.i(f'v_mul_f32 v{T1+k}, s{sLOG2E}, v{g[k]}')
    for k in range(8):
        A.i(f'v_exp_f32 v{T1+k}, -v{T1+k}')
    for k in range(8):
        A.i(f'v_cvt_pk_bf16_f32 v{u[k]}, 0, v{u[k]}')
    for k in range(8):
        A.i(f'v_add_f32 v{T1+k}, 1.0, v{T1+k}')
    for k in range(8):
        A.i(f'v_rcp_f32 v{T1+k}, v{T1+k}')
    for k in range(8):
        A.i(f'v_mul_f32 v{g[k]}, v{g[k]}, v{T1+k}')
    for k in range(8):
        A.i(f'v_cvt_pk_bf16_f32 v{g[k]}, 0, v{g[k]}')
    for k in range(8):
        A.i(f'v_mul_f32 v{g[k]}, v{g[k]}, v{u[k]}')
    for k in range(4):
        A.i(f'v_cvt_pk_bf16_f32 v{PK1+k}, v{g[2*k]}, v{g[2*k+1]}')
    A.i(f's_mul_i32 s{sT0}, s{sB}, 114688')
    A.i(f's_add_u32 s{sT0}, s{sT0}, s{sGUD}')
    for tt in range(2):
        A.i(f'buffer_store_dwordx2 {vr(PK1+2*tt,2)}, v{VSTG}, {WSR}, s{sT0} offen offset:{tt*256}')
    A.i('s_waitcnt vmcnt(0)')
    A.i('s_barrier')
    lpublish(2)
    A.label(Lf2)
    XF2, D2, R2, XR = 32, 96, 104, 112
    lwait(VF3, 0)
    A.i(f's_mul_i32 s{sT0}, s{sB}, 114688')
    A.i(f's_add_u32 s{sT0}, s{sT0}, s{sGUS}')
    for ks in range(14):
        if ks and (ks & 1) == 0:
            A.i(f's_add_u32 s{sT0}, s{sT0}, 4096')
        A.i(f'buffer_load_dwordx4 {vr(XF2+ks*4,4)}, v{VPC}, {WSR}, s{sT0} offen offset:{(ks&1)*2048} sc1')
    A.i(f's_lshl_b32 s85, s{sS}, 15')
    A.i(f's_lshl_b32 s{sT0}, s{sB}, 15')
    A.i(f's_add_u32 s{sT0}, s{sT0}, {X1:#x}')
    A.i(f'buffer_load_dword v{XR}, v{VST2}, {WSR}, s{sT0} offen sc1')
    for ks in range(14):
        A.i(f's_waitcnt vmcnt({14-ks})')
        for t in range(2):
            d = vr(D2 + t * 4, 4)
            c = '0' if ks == 0 else d
            A.i(f'v_mfma_f32_16x16x32_bf16 {d}, {ur(F2W+(ks*2+t)*4,4)}, {vr(XF2+ks*4,4)}, {c}')
    for t in range(2):
        A.i(f'ds_write_b128 v{VLW}, {vr(D2+t*4,4)} offset:{t*1024}')
    A.i('s_waitcnt lgkmcnt(0)')
    A.i('s_barrier')
    for t in range(2):
        for w2 in range(4):
            A.i(f'ds_read_b32 v{R2+t*4+w2}, v{VLR2} offset:{w2*8192+t*1024}')
    A.i('s_waitcnt vmcnt(0) lgkmcnt(0)')
    A.i('s_barrier')
    for t in range(2):
        b = R2 + t * 4
        A.i(f'v_pk_add_f32 {vr(b,2)}, {vr(b,2)}, {vr(b+2,2)}')
        A.i(f'v_add_f32 v{b}, v{b}, v{b+1}')
    f = [R2, R2 + 4]
    for k in range(2):
        A.i(f'v_cvt_pk_bf16_f32 v{f[k]}, 0, v{f[k]}')
    for k in range(2):
        A.i(f'v_mul_f32 v{f[k]}, v{f[k]}, v{GB+k}')
    for k in range(2):
        A.i(f'v_cvt_pk_bf16_f32 v{f[k]}, 0, v{f[k]}')
    unpack(A, R2 + 1, R2 + 2, XR)
    A.i(f'v_add_f32 v{f[0]}, v{f[0]}, v{R2+1}')
    A.i(f'v_add_f32 v{f[1]}, v{f[1]}, v{R2+2}')
    A.i(f'v_cvt_pk_bf16_f32 v{XR}, v{f[0]}, v{f[1]}')
    A.i(f'buffer_store_dword v{XR}, v{VST2}, s[{S_B}:{S_B+3}], s85 offen')
    sy.trace(A, VT_, sS, imm=1 + 192 - 1, wave=0)
    A.i(f's_add_u32 s{sS}, s{sS}, {NPX}')
    A.i(f's_cmp_lt_u32 s{sS}, 64')
    A.i(f's_cbranch_scc1 {Ltop}')
```

```python
from common import *

WSR = f's[{S_WS}:{S_WS+3}]'


def load_weights(A, units, tmp0, batch_regs, ptmp):
    ring = 2 * batch_regs
    GR = 8
    ngroups = ring // GR
    groups = []
    cur, used = [], 0
    for u in units:
        w = u[5]
        if used + 2 * w > GR:
            groups.append(cur)
            cur, used = [], 0
        cur.append((u, used))
        used += 2 * w
    if cur:
        groups.append(cur)

    def issue(gi):
        base = tmp0 + (gi % ngroups) * GR
        for (srd_s, voff, sbase, off0, off1, w, outs), at in groups[gi]:
            for k, off in enumerate((off0, off1)):
                A.i(f's_add_u32 s{sT0}, s{sbase}, {off:#x}')
                mn = {1: 'buffer_load_dword', 2: 'buffer_load_dwordx2', 4: 'buffer_load_dwordx4'}[w]
                A.i(f'{mn} {vr(base + at + k * w, w)}, v{voff}, s[{srd_s}:{srd_s+3}], s{sT0} offen')

    depth = ngroups - 1
    for gi in range(min(depth, len(groups))):
        issue(gi)
    for gi in range(len(groups)):
        if gi + depth < len(groups):
            issue(gi + depth)
        younger = sum(2 * len(groups[k]) for k in range(gi + 1, min(gi + depth + 1, len(groups))))
        A.i(f's_waitcnt vmcnt({min(younger, 63)})')
        base = tmp0 + (gi % ngroups) * GR
        for (srd_s, voff, sbase, off0, off1, w, outs), at in groups[gi]:
            for n, (dst, dw, sel) in enumerate(outs):
                perm_to(A, dst, base + at + w + dw, base + at + dw, sel, ptmp + (n & 1))


def role_init(A, end):
    Lfill = A.newlabel('Lfill')
    A.i(f's_cmp_ge_u32 s2, 48')
    A.i(f's_cbranch_scc1 {Lfill}')
    srd(A, S_A, P_C, 1024)
    srd(A, S_B, P_WMOD, 512 * 6144)
    A.i(f's_lshl_b32 s{sT0}, s{sW}, 6')
    A.i(f'v_add_u32 v2, s{sT0}, v0')
    A.i('v_and_b32 v3, 7, v2')
    A.i('v_lshrrev_b32 v4, 3, v2')
    A.i('v_lshlrev_b32 v5, 5, v4')
    A.i(f'buffer_load_dwordx4 v[8:11], v5, s[{S_A}:{S_A+3}], 0 offen')
    A.i(f'buffer_load_dwordx4 v[12:15], v5, s[{S_A}:{S_A+3}], 0 offen offset:16')
    A.i(f's_mov_b32 s{sT1}, {16*6144}')
    A.i(f'v_mul_lo_u32 v6, v4, s{sT1}')
    A.i('v_lshl_add_u32 v6, v3, 4, v6')
    A.i(f's_lshl_b32 s{sT1}, s2, 7')
    for i in range(16):
        A.i(f's_add_u32 s{sT0}, s{sT1}, {i*6144}')
        A.i(f'buffer_load_dwordx4 v[{64+4*i}:{67+4*i}], v6, s[{S_B}:{S_B+3}], s{sT0} offen')
    A.i('s_waitcnt vmcnt(16)')
    for i in range(8):
        unpack(A, 16 + 2 * i, 17 + 2 * i, 8 + i)
    for i in range(16):
        A.i(f'v_mul_f32 v{32+i}, s{sLOG2E}, v{16+i}')
    for i in range(16):
        A.i(f'v_exp_f32 v{32+i}, -v{32+i}')
    for i in range(16):
        A.i(f'v_add_f32 v{32+i}, 1.0, v{32+i}')
    for i in range(16):
        A.i(f'v_rcp_f32 v{32+i}, v{32+i}')
    for i in range(16):
        A.i(f'v_mul_f32 v{16+i}, v{16+i}, v{32+i}')
    for i in range(8):
        round2(A, 16 + 2 * i, 17 + 2 * i, 48)
    for j in range(8):
        A.i(f'v_mov_b32 v{32+j}, 0')
    for i in range(16):
        A.i(f's_waitcnt vmcnt({15-i})')
        for d in range(4):
            unpack(A, 48, 49, 64 + 4 * i + d)
            A.i(f'v_fmac_f32 v{32+2*d}, v{16+i}, v48')
            A.i(f'v_fmac_f32 v{33+2*d}, v{16+i}, v49')
    A.i('v_lshlrev_b32 v5, 8, v4')
    A.i('v_lshl_add_u32 v5, v3, 5, v5')
    A.i('ds_write_b128 v5, v[32:35]')
    A.i('ds_write_b128 v5, v[36:39] offset:16')
    A.i('s_waitcnt lgkmcnt(0)')
    A.i('s_barrier')
    A.i(f's_cmp_lg_u32 s{sW}, 0')
    A.i(f's_cbranch_scc1 {end}')
    A.i('v_lshlrev_b32 v5, 2, v0')
    for i in range(32):
        A.i(f'ds_read_b32 v{64+i}, v5 offset:{i*256}')
        if i == 14 or i == 29:
            A.i('s_waitcnt lgkmcnt(0)')
    A.i('s_waitcnt lgkmcnt(0)')
    for st in (16, 8, 4, 2, 1):
        for i in range(st):
            A.i(f'v_add_f32 v{64+i}, v{64+i}, v{64+st+i}')
    A.i('v_cvt_pk_bf16_f32 v64, v64, v64')
    A.i('v_lshlrev_b32 v64, 16, v64')
    A.i(f's_lshl_b32 s{sT0}, s2, 8')
    A.i(f's_add_u32 s{sT0}, s{sT0}, {MOD:#x}')
    A.i(f'buffer_store_dword v64, v5, {WSR}, s{sT0} offen')
    A.i(f's_branch {end}')
    A.label(Lfill)
    A.i(f's_sub_u32 s{sT0}, s2, 48')
    A.i(f's_lshl_b32 s{sT1}, s{sT0}, 14')
    A.i(f's_add_u32 s{sT2}, s{sT1}, {XM:#x}')
    A.i(f's_add_u32 s{sT3}, s{sT1}, {FLAGS - 66*16384:#x}')
    A.i(f's_cmp_lt_u32 s{sT0}, 66')
    A.i(f's_cselect_b32 s{sT2}, s{sT2}, s{sT3}')
    A.i(f's_cselect_b32 s{sT3}, -1, 0')
    A.i(f's_lshl_b32 s{sT1}, s{sW}, 12')
    A.i(f's_add_u32 s{sT2}, s{sT2}, s{sT1}')
    for i in range(4):
        A.i(f'v_mov_b32 v{4+i}, s{sT3}')
    for i in range(4):
        A.i(f'buffer_store_dwordx4 v[4:7], v1, {WSR}, s{sT2} offen offset:{i*1024}')
    A.i(f's_branch {end}')


def load_mod8(A, dst, which):
    A.i(f's_mov_b32 s{sT0}, {MOD + which*2048:#x}')
    A.i(f'buffer_load_dwordx4 v[{dst}:{dst+3}], v2, {WSR}, s{sT0} offen sc1')
    A.i(f'buffer_load_dwordx4 v[{dst+4}:{dst+7}], v2, {WSR}, s{sT0} offen offset:16 sc1')


def one_plus(A, c, tmp):
    for j in range(8):
        A.i(f'v_add_f32 v{c+j}, 1.0, v{c+j}')
    for j in range(4):
        round2(A, c + 2 * j, c + 2 * j + 1, tmp)


def ln_core(A, x, t, c1, sh, out):
    A.i(f'v_add_f32 v{t}, v{x}, v{x+1}')
    A.i(f'v_add_f32 v{t+1}, v{x+2}, v{x+3}')
    A.i(f'v_add_f32 v{t+2}, v{x+4}, v{x+5}')
    A.i(f'v_add_f32 v{t+3}, v{x+6}, v{x+7}')
    A.i(f'v_add_f32 v{t}, v{t}, v{t+1}')
    A.i(f'v_add_f32 v{t+2}, v{t+2}, v{t+3}')
    A.i(f'v_add_f32 v{t}, v{t}, v{t+2}')
    wave_sum(A, t, sT4)
    A.i(f'v_mov_b32 v{t+8}, 0x3b000000')
    A.i(f'v_mul_f32 v{t+9}, s{sT4}, v{t+8}')
    for j in range(8):
        A.i(f'v_sub_f32 v{t+j}, v{x+j}, v{t+9}')
    A.i(f'v_mul_f32 v{t}, v{t}, v{t}')
    A.i(f'v_mul_f32 v{t+1}, v{t+1}, v{t+1}')
    for j in range(2, 8):
        A.i(f'v_fmac_f32 v{t+(j&1)}, v{t+j}, v{t+j}')
    A.i(f'v_add_f32 v{t}, v{t}, v{t+1}')
    wave_sum(A, t, sT4)
    A.i(f'v_mul_f32 v{t+8}, s{sT4}, v{t+8}')
    round2(A, t + 8, t + 9, t)
    A.i(f'v_add_f32 v{t+8}, 0x3727c5ac, v{t+8}')
    A.i(f'v_cvt_pk_bf16_f32 v{t+8}, v{t+8}, v{t+8}')
    A.i(f'v_lshlrev_b32 v{t+8}, 16, v{t+8}')
    A.i(f'v_sqrt_f32 v{t+8}, v{t+8}')
    A.i(f'v_cvt_pk_bf16_f32 v{t+8}, v{t+8}, v{t+8}')
    A.i(f'v_lshlrev_b32 v{t+8}, 16, v{t+8}')
    A.i(f'v_rcp_f32 v{t+8}, v{t+8}')
    for j in range(8):
        A.i(f'v_sub_f32 v{x+j}, v{x+j}, v{t+9}')
    for j in range(4):
        round2(A, x + 2 * j, x + 2 * j + 1, t + j)
    for j in range(8):
        A.i(f'v_mul_f32 v{x+j}, v{x+j}, v{t+8}')
    for j in range(4):
        round2(A, x + 2 * j, x + 2 * j + 1, t + j)
    for j in range(8):
        A.i(f'v_mul_f32 v{x+j}, v{x+j}, v{c1+j}')
    for j in range(4):
        round2(A, x + 2 * j, x + 2 * j + 1, t + j)
    for j in range(8):
        A.i(f'v_add_f32 v{x+j}, v{x+j}, v{sh+j}')
    for j in range(4):
        A.i(f'v_cvt_pk_bf16_f32 v{out+j}, v{x+2*j}, v{x+2*j+1}')


def role_ln1(A, sy, sidx):
    srd(A, S_A, P_X, 2048 * 1024)
    A.i('v_lshlrev_b32 v2, 5, v0')
    A.i(f's_lshl_b32 s{sT1}, s{sidx}, 2')
    A.i(f's_add_u32 s{sT1}, s{sT1}, s{sW}')
    A.i(f's_lshl_b32 s{sT1}, s{sT1}, 10')
    for q in range(8):
        A.i(f's_add_u32 s{sT0}, s{sT1}, {q*256*1024:#x}')
        A.i(f'buffer_load_dwordx4 v[{64+4*q}:{67+4*q}], v1, s[{S_A}:{S_A+3}], s{sT0} offen')
    if getattr(sy, 'single', False):
        mod_wait(A, sy, 0, 16, 3, 4)
    load_mod8(A, 8, 1)
    load_mod8(A, 16, 0)
    A.i(f's_lshl_b32 s{sT0}, s{sidx}, 7')
    A.i(f's_add_u32 s{sT0}, s{sT0}, {F_H:#x}')
    A.i(f'v_mov_b32 v3, s{sT0}')
    A.i('s_waitcnt vmcnt(0)')
    one_plus(A, 8, 4)
    for q in range(8):
        for j in range(4):
            unpack(A, 24 + 2 * j, 25 + 2 * j, 64 + 4 * q + j)
        ln_core(A, 24, 32, 8, 16, 44 + 4 * (q & 1))
        A.i(f's_add_u32 s{sT0}, s{sT1}, {H + q*256*1024:#x}')
        A.i(f'buffer_store_dwordx4 v[{44+4*(q&1)}:{47+4*(q&1)}], v1, {WSR}, s{sT0} offen sc1')
        if sy.on and q in (0, 3, 7):
            A.i('s_waitcnt vmcnt(0)')
            A.i('s_barrier')
            Ls = A.newlabel('Lln')
            A.i(f's_cmp_lg_u32 s{sW}, 0')
            A.i(f's_cbranch_scc1 {Ls}')
            A.i(f's_mov_b32 s{sT0}, {q+1}')
            sy.publish(A, 3, 4, sT0)
            A.label(Ls)


XB0 = 0
XBS = 32768


def t1_setup(A, vdma, vrd, swap_odd=False):
    A.i(f's_and_b32 s{sT0}, s{sW}, 1')
    A.i(f's_lshl_b32 s{sT1}, s{sT0}, 7')
    A.i(f'v_xor_b32 v{vdma}, s{sT1}, v1')
    A.i(f'v_and_b32 v{vrd+7}, 15, v0')
    A.i(f'v_lshrrev_b32 v{vrd+6}, 4, v0')
    A.i(f'v_xor_b32 v{vrd+6}, v{vrd+6}, v{vrd+7}')
    A.i(f'v_lshlrev_b32 v{vrd+6}, 4, v{vrd+6}')
    A.i(f'v_lshl_or_b32 v{vrd+7}, v{vrd+7}, 10, v{vrd+6}')
    if swap_odd:
        A.i(f's_lshl_b32 s{sT1}, s{sT0}, 14')
        A.i(f'v_xor_b32 v{vrd+7}, s{sT1}, v{vrd+7}')
    for k in range(4):
        A.i(f'v_xor_b32 v{vrd+k}, {k*64}, v{vrd+7}')
    for k in range(3, -1, -1):
        A.i(f'v_xor_b32 v{vrd+4+k}, 0x4000, v{vrd+k}')


def t1_dma(A, vdma, vtmp, ssrc, sbuf):
    A.i(f's_lshl_b32 s{sT0}, s{sW}, 13')
    A.i(f's_add_u32 s{sT1}, s{sT0}, s{ssrc}')
    A.i(f's_add_u32 s{sT0}, s{sT0}, s{sbuf}')
    A.i(f's_mov_b32 m0, s{sT0}')
    for i in range(8):
        if i == 4:
            A.i(f's_add_u32 s{sT0}, s{sT0}, 4096')
            A.i(f's_add_u32 s{sT1}, s{sT1}, 4096')
            A.i(f's_mov_b32 m0, s{sT0}')
        A.i(f'v_xor_b32 v{vtmp+(i&1)}, {i*16}, v{vdma}')
        A.i(f'buffer_load_dwordx4 v{vtmp+(i&1)}, {WSR}, s{sT1} offen offset:{(i&3)*1024} sc1 lds')


def t1_compute(A, vrd, vabuf, xf, wbase, dbase, swapped, mid=None):
    def rd(ks):
        for tt in range(2):
            A.i(f'ds_read_b128 {vr(xf + (ks & 3) * 8 + tt * 4, 4)}, v{vabuf + tt*4 + (ks & 3)} offset:{(ks >> 2) * 256}')
    for ks in range(3):
        rd(ks)
    for ks in range(16):
        if ks + 3 < 16:
            rd(ks + 3)
            A.i('s_waitcnt lgkmcnt(6)')
        else:
            A.i(f's_waitcnt lgkmcnt({2 * (15 - ks)})')
        for t in range(2):
            for tt in range(2):
                d = ur(dbase + (t * 2 + tt) * 4, 4)
                w = ur(wbase + (ks * 2 + t) * 4, 4)
                x = vr(xf + (ks & 3) * 8 + tt * 4, 4)
                c = '0' if ks == 0 else d
                if swapped:
                    A.i(f'v_mfma_f32_16x16x32_bf16 {d}, {w}, {x}, {c}')
                else:
                    A.i(f'v_mfma_f32_16x16x32_bf16 {d}, {x}, {w}, {c}')
        if mid is not None:
            mid(ks)


def paired_units(srd_s, voff, sbase, rs, nks, wbase):
    units = []
    for ks in range(nks):
        for i in range(4):
            r0 = 32 * ks + 2 * i
            units.append((srd_s, voff, sbase, r0 * rs, (r0 + 1) * rs, 1,
                          [(wbase + (ks * 2 + 0) * 4 + i, 0, f's{SELLO}'), (wbase + (ks * 2 + 1) * 4 + i, 0, f's{SELHI}')]))
    return units


def lane_woff(A, dst, rs, colbytes, tmp):
    A.i(f'v_lshrrev_b32 v{tmp}, 4, v0')
    A.i(f's_mov_b32 s{sT0}, {8*rs}')
    A.i(f'v_mul_lo_u32 v{dst}, v{tmp}, s{sT0}')
    A.i(f'v_and_b32 v{tmp}, 15, v0')
    A.i(f'v_mul_u32_u24 v{tmp}, {colbytes}, v{tmp}')
    A.i(f'v_add_u32 v{dst}, v{dst}, v{tmp}')


def h_flag_addr(A, vdst, sseg, stmp):
    A.i(f's_and_b32 s{stmp}, s{sseg}, 7')
    A.i(f's_lshl_b32 s{stmp}, s{stmp}, 10')
    A.i(f's_add_u32 s{stmp}, s{stmp}, {F_H:#x}')
    A.i(f'v_and_b32 v{vdst}, 7, v0')
    A.i(f'v_lshlrev_b32 v{vdst}, 7, v{vdst}')
    A.i(f'v_add_u32 v{vdst}, s{stmp}, v{vdst}')


def t1_loop(A, sy, name, seg0, segstep, src_base, wait_src, body, vdma, vrd, vab, vtmp, vflag):
    Ltop, Lhave, Lnopf, Lend = (A.newlabel(name + x) for x in ('top', 'have', 'nopf', 'end'))
    A.i(f's_mov_b32 s72, {XB0}')
    A.i('s_mov_b32 s73, 0')
    A.label(Ltop)
    A.i('s_cmp_lg_u32 s73, 0')
    A.i(f's_cbranch_scc1 {Lhave}')
    wait_src(sS, True, None)
    A.i(f's_lshl_b32 s75, s{sS}, 15')
    A.i(f's_add_u32 s75, s75, {src_base:#x}')
    t1_dma(A, vdma, vtmp, 75, 72)
    A.label(Lhave)
    A.i('s_waitcnt vmcnt(0)')
    A.i('s_barrier')
    for k in range(8):
        A.i(f'v_add_u32 v{vab+k}, s72, v{vrd+k}')
    A.i('s_mov_b32 s73, 0')
    A.i(f's_add_u32 s74, s{sS}, {segstep}')
    A.i('s_cmp_ge_u32 s74, 64')
    A.i(f's_cbranch_scc1 {Lnopf}')
    wait_src(74, False, Lnopf)
    A.i('s_lshl_b32 s75, s74, 15')
    A.i(f's_add_u32 s75, s75, {src_base:#x}')
    A.i(f's_xor_b32 s76, s72, {XBS}')
    t1_dma(A, vdma, vtmp, 75, 76)
    A.i('s_mov_b32 s73, 1')
    A.label(Lnopf)
    body()
    if sy.on:
        A.i('s_waitcnt vmcnt(0)')
    A.i('s_barrier')
    if sy.on:
        Ls = A.newlabel(name + 'pub')
        A.i(f's_cmp_lg_u32 s{sW}, 0')
        A.i(f's_cbranch_scc1 {Ls}')
        A.i(f's_add_u32 s{sT0}, s{sS}, 1')
        sy.publish(A, vflag, vtmp, sT0)
        A.label(Ls)
    A.i(f's_xor_b32 s72, s72, {XBS}')
    A.i(f's_add_u32 s{sS}, s{sS}, {segstep}')
    A.i(f's_cmp_lt_u32 s{sS}, 64')
    A.i(f's_cbranch_scc1 {Ltop}')
    A.label(Lend)


def flag_test(A, sy, vaddr, vtmp, sneed, blocking, Lnot):
    if not sy.on:
        return
    if blocking:
        sy.wait(A, vaddr, vtmp, sneed)
    else:
        A.i(f'buffer_load_dword v{vtmp}, v{vaddr}, {WSR}, 0 offen sc1')
        A.i('s_waitcnt vmcnt(0)')
        A.i(f'v_cmp_le_u32 vcc, s{sneed}, v{vtmp}')
        A.i('s_cmp_eq_u64 vcc, exec')
        A.i(f's_cbranch_scc0 {Lnot}')


def make_wait_h(A, sy, va, vtmp):
    def wait_src(sseg, blocking, Lnot):
        if not sy.on:
            return
        h_flag_addr(A, va, sseg, sT0)
        A.i(f's_lshr_b32 s{sT2}, s{sseg}, 3')
        A.i(f's_add_u32 s{sT2}, s{sT2}, 1')
        flag_test(A, sy, va, vtmp, sT2, blocking, Lnot)
    return wait_src


def role_kv(A, sy, is_v):
    name = 'V' if is_v else 'K'
    srd(A, S_A, P_WV if is_v else P_WK, 512 * 8192)
    VDMA, VRD, VAB, VT_, VFL, VST, VWA = 2, 4, 12, 20, 22, 23, 24
    XF, D, PK = 32, 64, 80
    lane_woff(A, 3, 8192, 4, 4)
    A.i(f's_lshl_b32 s77, s{sR}, 8')
    A.i(f's_lshl_b32 s{sT0}, s{sW}, 6')
    A.i(f's_add_u32 s77, s77, s{sT0}')
    load_weights(A, paired_units(S_A, 3, 77, 8192, 16, 256), 128, 32, 4)
    t1_setup(A, VDMA, VRD)
    A.i(f's_lshl_b32 s{sT0}, s{sR}, 7')
    A.i(f's_add_u32 s{sT0}, s{sT0}, {F_KV + (32*FL if is_v else 0):#x}')
    A.i(f'v_mov_b32 v{VFL}, s{sT0}')
    if is_v:
        A.i(f's_lshl_b32 s77, s{sR}, 13')
        A.i(f's_lshl_b32 s{sT0}, s{sW}, 11')
        A.i(f's_add_u32 s77, s77, s{sT0}')
        A.i(f's_add_u32 s77, s77, {VT:#x}')
        A.i(f'v_mov_b32 v{VST}, v1')
    else:
        A.i(f's_lshl_b32 s77, s{sR}, 13')
        A.i(f's_lshl_b32 s{sT0}, s{sW}, 11')
        A.i(f's_add_u32 s77, s77, s{sT0}')
        A.i(f's_add_u32 s77, s77, {KX:#x}')
        A.i(f'v_lshrrev_b32 v{VST}, 4, v0')
        A.i(f'v_lshlrev_b32 v{VST}, 9, v{VST}')
        A.i(f'v_and_b32 v{VT_}, 15, v0')
        A.i(f'v_lshl_add_u32 v{VST}, v{VT_}, 4, v{VST}')
    A.i(f's_mov_b32 s{sS}, 0')

    def body():
        t1_compute(A, VRD, VAB, XF, 256, D, swapped=not is_v)
        A.i(f's_lshl_b32 s{sT0}, s{sS}, 18')
        A.i(f's_add_u32 s{sT0}, s{sT0}, s77')
        if is_v:
            for t in range(2):
                for tt in range(2):
                    d = D + (t * 2 + tt) * 4
                    A.i(f'v_cvt_pk_bf16_f32 v{PK+t*4+tt*2}, v{d}, v{d+1}')
                    A.i(f'v_cvt_pk_bf16_f32 v{PK+t*4+tt*2+1}, v{d+2}, v{d+3}')
                A.i(f'buffer_store_dwordx4 v[{PK+t*4}:{PK+t*4+3}], v{VST}, {WSR}, s{sT0} offen offset:{t*1024} sc1')
        else:
            for tt in range(2):
                for r in range(4):
                    A.i(f'v_cvt_pk_bf16_f32 v{PK+tt*4+r}, v{D+tt*4+r}, v{D+(2+tt)*4+r}')
                A.i(f'buffer_store_dwordx4 v[{PK+tt*4}:{PK+tt*4+3}], v{VST}, {WSR}, s{sT0} offen offset:{tt*256} sc1')

    t1_loop(A, sy, name, 0, 1, H, make_wait_h(A, sy, VWA, VT_), body, VDMA, VRD, VAB, VT_, VFL)


def score_round(A, regs, tmp):
    for a, b in zip(regs[0::2], regs[1::2]):
        round2(A, a, b, tmp)
    for a in regs:
        A.i(f'v_mul_f32 v{a}, s{sSCALE}, v{a}')
    for a, b in zip(regs[0::2], regs[1::2]):
        round2(A, a, b, tmp)


def xlane(A, op, v, t):
    A.i(f'v_mov_b32 v{t}, v{v}')
    A.i(f'v_permlane32_swap_b32 v{v}, v{t}')
    A.i(f'{op} v{v}, v{v}, v{t}')
    A.i(f'v_mov_b32 v{t}, v{v}')
    A.i(f'v_permlane16_swap_b32 v{v}, v{t}')
    A.i(f'{op} v{v}, v{v}, v{t}')


QIMG = 65536


def role_qa(A, sy):
    srd(A, S_A, P_WQ, 512 * 8192)
    VDMA, VRD, VAB, VT_, VFL, VWA = 2, 4, 12, 20, 22, 24
    VQW, VQR, VKX, VKM, VVM, VOST, VFKV, VFCH = 23, 25, 26, 27, 28, 29, 30, 31
    XF, D, PK = 32, 64, 80
    KF, VF, QF, KMF, VMF = 96, 128, 144, 160, 176
    S1, S2, S0, PX, PY, PM, OD, TM = 184, 188, 192, 196, 200, 204, 208, 224
    sH = 78
    A.i(f's_lshr_b32 s{sH}, s{sR}, 1')
    lane_woff(A, 3, 8192, 4, 4)
    A.i(f's_lshl_b32 s77, s{sH}, 8')
    A.i(f's_lshl_b32 s{sT0}, s{sW}, 6')
    A.i(f's_add_u32 s77, s77, s{sT0}')
    load_weights(A, paired_units(S_A, 3, 77, 8192, 16, 256), 128, 32, 4)
    t1_setup(A, VDMA, VRD)
    A.i(f's_lshl_b32 s{sT0}, s{sR}, 7')
    A.i(f's_add_u32 s{sT0}, s{sT0}, {F_QA:#x}')
    A.i(f'v_mov_b32 v{VFL}, s{sT0}')
    A.i(f'v_lshrrev_b32 v{TM}, 4, v0')
    A.i(f'v_and_b32 v{TM+1}, 15, v0')
    A.i(f'v_lshlrev_b32 v{VKX}, 9, v{TM}')
    A.i(f'v_lshl_add_u32 v{VKX}, v{TM+1}, 4, v{VKX}')
    A.i(f's_lshl_b32 s{sT0}, s{sW}, 11')
    A.i(f's_add_u32 s{sT0}, s{sT0}, {QIMG}')
    A.i(f'v_add_u32 v{VQW}, s{sT0}, v{VKX}')
    A.i(f's_and_b32 s79, s{sW}, 1')
    A.i(f's_lshr_b32 s80, s{sW}, 1')
    A.i(f's_lshl_b32 s{sT0}, s79, 8')
    A.i(f's_add_u32 s{sT1}, s{sT0}, {QIMG}')
    A.i(f'v_add_u32 v{VQR}, s{sT1}, v{VKX}')
    A.i(f's_lshl_b32 s{sT1}, s80, 12')
    A.i(f's_add_u32 s{sT1}, s{sT1}, s{sT0}')
    A.i(f'v_add_u32 v{VOST}, s{sT1}, v{VKX}')
    A.i(f'v_lshrrev_b32 v{TM+2}, 2, v{TM+1}')
    A.i(f'v_and_b32 v{TM+3}, 1, v{TM+1}')
    A.i(f'v_lshl_add_u32 v{TM+2}, v{TM+2}, 1, v{TM+3}')
    A.i(f'v_lshlrev_b32 v{TM+2}, 8, v{TM+2}')
    A.i(f'v_lshl_add_u32 v{VKM}, v{TM}, 4, v{TM+2}')
    A.i(f'v_lshlrev_b32 v{VVM}, 4, v{TM+1}')
    A.i(f'v_lshl_add_u32 v{VVM}, v{TM}, 2, v{VVM}')
    A.i(f's_lshl_b32 s{sT0}, s80, 10')
    A.i(f'v_add_u32 v{VVM}, s{sT0}, v{VVM}')
    A.i(f'v_and_b32 v{TM+2}, 1, v0')
    A.i(f'v_lshlrev_b32 v{TM+2}, 12, v{TM+2}')
    A.i(f's_lshl_b32 s{sT0}, s{sH}, 7')
    A.i(f's_add_u32 s{sT1}, s{sT0}, {F_KV:#x}')
    A.i(f'v_mov_b32 v{VFKV}, s{sT1}')
    A.i(f's_add_u32 s{sT1}, s{sT0}, {F_CH:#x}')
    A.i(f'v_mov_b32 v{VFCH}, s{sT1}')
    A.i(f's_lshl_b32 s{sT0}, s79, 4')
    A.i(f'v_lshlrev_b32 v{TM+2}, 2, v{TM}')
    A.i(f'v_sub_u32 v{TM+2}, v{TM+1}, v{TM+2}')
    A.i(f'v_add_u32 v{TM+2}, s{sT0}, v{TM+2}')
    for i in range(8):
        A.i(f'v_cmp_le_i32 s[{82+2*i}:{83+2*i}], {16*(i>>2)+(i&3)}, v{TM+2}')
    A.i(f'v_mov_b32 v{PM+1}, 0')
    A.i(f's_and_b32 s{sS}, s{sR}, 1')
    if getattr(sy, 'single', False):
        ready_wait(A, VWA, VT_)

    def body():
        A.i(f's_add_u32 s{sT2}, s{sS}, 1')
        sy.wait(A, VFKV, VT_, sT2)
        A.i(f's_lshl_b32 s81, s{sS}, 18')
        A.i(f's_lshl_b32 s{sT0}, s{sH}, 13')
        A.i(f's_add_u32 s81, s81, s{sT0}')
        A.i(f's_add_u32 s{sT0}, s81, {KX:#x}')
        A.i(f's_add_u32 s{sT1}, s{sT0}, 4096')
        for kt in range(2):
            for ks in range(4):
                so = sT0 if ks < 2 else sT1
                A.i(f'buffer_load_dwordx4 {vr(KF+(kt*4+ks)*4,4)}, v{VKX}, {WSR}, s{so} offen offset:{(ks&1)*2048+kt*256} sc1')
        A.i(f's_lshl_b32 s{sT0}, s80, 12')
        A.i(f's_add_u32 s{sT0}, s{sT0}, s81')
        A.i(f's_add_u32 s{sT0}, s{sT0}, {VT:#x}')
        for i in range(4):
            A.i(f'buffer_load_dwordx4 {vr(VF+i*4,4)}, v1, {WSR}, s{sT0} offen offset:{i*1024} sc1')
        t1_compute(A, VRD, VAB, XF, 256, D, swapped=True)
        for tt in range(2):
            for r in range(4):
                A.i(f'v_cvt_pk_bf16_f32 v{PK+tt*4+r}, v{D+tt*4+r}, v{D+(2+tt)*4+r}')
            A.i(f'ds_write_b128 v{VQW}, v[{PK+tt*4}:{PK+tt*4+3}] offset:{tt*256}')
        A.i('s_waitcnt lgkmcnt(0)')
        A.i('s_barrier')
        for ks in range(4):
            A.i(f'ds_read_b128 {vr(QF+ks*4,4)}, v{VQR} offset:{ks*2048}')
        A.i('s_waitcnt vmcnt(0) lgkmcnt(0)')
        for kt, S in ((0, S1), (1, S2)):
            for ks in range(4):
                c = '0' if ks == 0 else vr(S, 4)
                A.i(f'v_mfma_f32_16x16x32_bf16 {vr(S,4)}, {vr(KF+(kt*4+ks)*4,4)}, {vr(QF+ks*4,4)}, {c}')
        xs = [S1 + i for i in range(8)]
        score_round(A, xs, TM)
        A.i(f'v_mov_b32 v{TM}, 0xce6e6b28')
        for i in range(8):
            A.i(f'v_cndmask_b32 v{S1+i}, v{TM}, v{S1+i}, s[{82+2*i}:{83+2*i}]')
        A.i(f'v_max3_f32 v{TM+2}, v{S1}, v{S1+1}, v{S1+2}')
        A.i(f'v_max3_f32 v{TM+2}, v{TM+2}, v{S1+3}, v{S1+4}')
        A.i(f'v_max3_f32 v{TM+2}, v{TM+2}, v{S1+5}, v{S1+6}')
        A.i(f'v_max_f32 v{TM+2}, v{TM+2}, v{S1+7}')
        A.i(f's_add_u32 s{sT2}, s{sS}, 1')
        sy.wait(A, VFCH, VT_, sT2)
        A.i(f's_lshr_b32 s{sT0}, s81, 2')
        A.i(f's_add_u32 s{sT1}, s{sT0}, {VM:#x}')
        A.i(f's_add_u32 s{sT0}, s{sT0}, {KM:#x}')
        for ks in range(4):
            A.i(f'buffer_load_dwordx4 {vr(KMF+ks*4,4)}, v{VKM}, {WSR}, s{sT0} offen offset:{ks*64} sc1')
        for i in range(4):
            A.i(f'buffer_load_dword v{VMF+2*i}, v{VVM}, {WSR}, s{sT1} offen offset:{i*256} sc1')
            A.i(f'v_mov_b32 v{VMF+2*i+1}, 0')
        for ks in range(4):
            A.i(f's_waitcnt vmcnt({7-ks})')
            c = '0' if ks == 0 else vr(S0, 4)
            A.i(f'v_mfma_f32_16x16x32_bf16 {vr(S0,4)}, {vr(KMF+ks*4,4)}, {vr(QF+ks*4,4)}, {c}')
        score_round(A, [S0, S0 + 1], TM)
        A.i(f'v_max3_f32 v{TM+2}, v{TM+2}, v{S0}, v{S0+1}')
        xlane(A, 'v_max_f32', TM + 2, TM + 3)
        vals = xs + [S0, S0 + 1]
        A.i(f'v_mul_f32 v{TM+2}, s{sLOG2E}, v{TM+2}')
        for a in vals:
            A.i(f'v_fma_f32 v{a}, v{a}, s{sLOG2E}, -v{TM+2}')
        for a in vals:
            A.i(f'v_exp_f32 v{a}, v{a}')
        A.i(f'v_add_f32 v{TM+2}, v{vals[0]}, v{vals[1]}')
        A.i(f'v_add_f32 v{TM+4}, v{vals[2]}, v{vals[3]}')
        for k in range(4, 10, 2):
            A.i(f'v_add_f32 v{TM+2}, v{TM+2}, v{vals[k]}')
            A.i(f'v_add_f32 v{TM+4}, v{TM+4}, v{vals[k+1]}')
        A.i(f'v_add_f32 v{TM+2}, v{TM+2}, v{TM+4}')
        xlane(A, 'v_add_f32', TM + 2, TM + 3)
        A.i(f'v_rcp_f32 v{TM+2}, v{TM+2}')
        for a in vals:
            A.i(f'v_mul_f32 v{a}, v{a}, v{TM+2}')
        for k in range(4):
            A.i(f'v_cvt_pk_bf16_f32 v{PX+k}, v{S1+2*k}, v{S1+2*k+1}')
        A.i(f'v_cvt_pk_bf16_f32 v{PM}, v{S0}, v{S0+1}')
        A.i('s_waitcnt vmcnt(0)')
        for i in range(4):
            p = PX
            A.i(f'v_mfma_f32_16x16x32_bf16 {vr(OD+4*i,4)}, {vr(VF+4*i,4)}, {vr(p,4)}, 0')
        for i in range(4):
            A.i(f'v_mfma_f32_16x16x16_bf16 {vr(OD+4*i,4)}, {vr(VMF+2*i,2)}, {vr(PM,2)}, {vr(OD+4*i,4)}')
        A.i(f's_add_u32 s{sT0}, s81, {OB:#x}')
        for u in range(2):
            for r in range(4):
                A.i(f'v_cvt_pk_bf16_f32 v{PK+u*4+r}, v{OD+8*u+r}, v{OD+8*u+4+r}')
            A.i(f'buffer_store_dwordx4 v[{PK+u*4}:{PK+u*4+3}], v{VOST}, {WSR}, s{sT0} offen offset:{u*2048} sc1')

    t1_loop(A, sy, 'QA', 0, 2, H, make_wait_h(A, sy, VWA, VT_), body, VDMA, VRD, VAB, VT_, VFL)


def natural_units(srd_s, voff, sbase, rs, nks, ntiles, wbase, vsel, tile_stride=32, tile_index=None):
    units = []
    for ks in range(nks):
        for t in range(ntiles):
            for i in range(4):
                r0 = 32 * ks + 2 * i
                idx = tile_index(ks, t) if tile_index else ks * ntiles + t
                units.append((srd_s, voff, sbase, r0 * rs + t * tile_stride, (r0 + 1) * rs + t * tile_stride, 1,
                              [(wbase + idx * 4 + i, 0, f'v{vsel}')]))
    return units


def natural_setup(A, voff, vsel, rs, tmp):
    A.i(f'v_lshrrev_b32 v{tmp}, 4, v0')
    A.i(f's_mov_b32 s{sT0}, {8*rs}')
    A.i(f'v_mul_lo_u32 v{voff}, v{tmp}, s{sT0}')
    A.i(f'v_and_b32 v{tmp}, 14, v0')
    A.i(f'v_lshl_add_u32 v{voff}, v{tmp}, 1, v{voff}')
    A.i(f'v_and_b32 v{tmp}, 1, v0')
    A.i(f'v_cmp_eq_u32 vcc, 1, v{tmp}')
    A.i(f'v_mov_b32 v{vsel}, s{SELLO}')
    A.i(f'v_mov_b32 v{tmp}, s{SELHI}')
    A.i(f'v_cndmask_b32 v{vsel}, v{vsel}, v{tmp}, vcc')


def role_wo(A, sy):
    srd(A, S_A, P_WO, 4096 * 1024)
    VPC, VFL, VFQ, VT_, VLW, VLR, VST = 2, 5, 6, 7, 8, 9, 10
    XF, D, RD = 32, 96, 128
    natural_setup(A, 3, 4, 1024, 5)
    A.i(f's_lshr_b32 s78, s{sR}, 3')
    A.i(f's_and_b32 s79, s{sR}, 7')
    A.i(f's_lshl_b32 s80, s78, 2')
    A.i(f's_add_u32 s80, s80, s{sW}')
    A.i(f's_lshl_b32 s77, s80, 18')
    A.i(f's_lshl_b32 s{sT0}, s79, 7')
    A.i(f's_add_u32 s77, s77, s{sT0}')
    load_weights(A, natural_units(S_A, 3, 77, 1024, 8, 4, 256, 4), 128, 32, 6)
    A.i(f'v_lshrrev_b32 v{VT_}, 4, v0')
    A.i(f'v_lshlrev_b32 v{VPC}, 9, v{VT_}')
    A.i(f'v_and_b32 v{VST}, 15, v0')
    A.i(f'v_lshl_add_u32 v{VPC}, v{VST}, 4, v{VPC}')
    A.i(f'v_lshlrev_b32 v{VST}, 11, v{VST}')
    A.i(f'v_lshl_add_u32 v{VST}, v{VT_}, 4, v{VST}')
    A.i(f's_lshl_b32 s{sT0}, s79, 8')
    A.i(f's_lshl_b32 s{sT1}, s{sW}, 6')
    A.i(f's_add_u32 s{sT0}, s{sT0}, s{sT1}')
    A.i(f's_lshl_b32 s{sT1}, s78, 16')
    A.i(f's_add_u32 s{sT0}, s{sT0}, s{sT1}')
    A.i(f's_add_u32 s81, s{sT0}, {PART:#x}')
    A.i(f's_lshl_b32 s{sT0}, s{sW}, 13')
    A.i(f'v_add_u32 v{VLW}, s{sT0}, v1')
    A.i(f's_lshl_b32 s{sT0}, s{sW}, 11')
    A.i(f'v_add_u32 v{VLR}, s{sT0}, v1')
    A.i(f's_lshl_b32 s{sT0}, s{sR}, 7')
    A.i(f's_add_u32 s{sT0}, s{sT0}, {F_WO:#x}')
    A.i(f'v_mov_b32 v{VFL}, s{sT0}')
    A.i(f'v_and_b32 v{VT_}, 1, v0')
    A.i(f'v_lshlrev_b32 v{VT_}, 8, v{VT_}')
    A.i(f's_lshl_b32 s{sT0}, s80, 9')
    A.i(f's_add_u32 s{sT0}, s{sT0}, {F_QA:#x}')
    A.i(f'v_add_u32 v{VFQ}, s{sT0}, v{VT_}')
    A.i(f's_lshl_b32 s82, s80, 14')
    A.i(f's_add_u32 s82, s82, {OB:#x}')
    A.i(f's_mov_b32 s{sS}, 0')
    Ltop = A.newlabel('WOtop')
    A.label(Ltop)
    if sy.on:
        A.i(f's_and_b32 s{sT0}, s{sS}, 1')
        A.i(f's_lshl_b32 s{sT0}, s{sT0}, 7')
        A.i(f'v_add_u32 v11, s{sT0}, v{VFQ}')
        A.i(f's_add_u32 s{sT2}, s{sS}, 1')
        sy.wait(A, 11, VT_, sT2)
        sy.trace(A, VT_, sS, imm=110, wave=0, lim=40)
    A.i(f's_lshl_b32 s{sT0}, s{sS}, 18')
    A.i(f's_add_u32 s{sT0}, s{sT0}, s82')
    for ks in range(8):
        if ks and (ks & 1) == 0:
            A.i(f's_add_u32 s{sT0}, s{sT0}, 4096')
        for tt in range(2):
            A.i(f'buffer_load_dwordx4 {vr(XF+(ks*2+tt)*4,4)}, v{VPC}, {WSR}, s{sT0} offen offset:{(ks&1)*2048+tt*256} sc1')
    for ks in range(8):
        A.i(f's_waitcnt vmcnt({14-2*ks})')
        for t in range(4):
            for tt in range(2):
                d = vr(D + (t * 2 + tt) * 4, 4)
                c = '0' if ks == 0 else d
                A.i(f'v_mfma_f32_16x16x32_bf16 {d}, {ur(256+(ks*4+t)*4,4)}, {vr(XF+(ks*2+tt)*4,4)}, {c}')
    sy.trace(A, VT_, sS, imm=150, wave=0, lim=40)
    for q in range(8):
        A.i(f'ds_write_b128 v{VLW}, {vr(D+q*4,4)} offset:{q*1024}')
    A.i('s_waitcnt lgkmcnt(0)')
    A.i('s_barrier')
    for u in range(2):
        for w2 in range(4):
            A.i(f'ds_read_b128 {vr(RD+(u*4+w2)*4,4)}, v{VLR} offset:{w2*8192+u*1024}')
    A.i(f's_lshl_b32 s{sT0}, s{sS}, 18')
    A.i(f's_add_u32 s{sT0}, s{sT0}, s81')
    A.i(f's_add_u32 s{sT1}, s{sT0}, {16*2048}')
    for u in range(2):
        A.i(f's_waitcnt lgkmcnt({4-4*u})')
        b = RD + u * 16
        for r in range(4):
            A.i(f'v_add_f32 v{b+r}, v{b+r}, v{b+4+r}')
            A.i(f'v_add_f32 v{b+8+r}, v{b+8+r}, v{b+12+r}')
        for r in range(4):
            A.i(f'v_add_f32 v{b+r}, v{b+r}, v{b+8+r}')
        A.i(f'buffer_store_dwordx4 {vr(b,4)}, v{VST}, {WSR}, s{sT0 if u == 0 else sT1} offen sc1')
    sy.trace(A, VT_, sS, imm=190, wave=0, lim=40)
    if sy.on:
        A.i('s_waitcnt vmcnt(0)')
    A.i('s_barrier')
    if sy.on:
        Ls = A.newlabel('WOpub')
        A.i(f's_cmp_lg_u32 s{sW}, 0')
        A.i(f's_cbranch_scc1 {Ls}')
        A.i(f's_add_u32 s{sT0}, s{sS}, 1')
        sy.publish(A, VFL, VT_, sT0)
        A.label(Ls)
    A.i(f's_add_u32 s{sS}, s{sS}, 1')
    A.i(f's_cmp_lt_u32 s{sS}, 64')
    A.i(f's_cbranch_scc1 {Ltop}')


def role_r(A, sy):
    srd(A, S_A, P_X, 2048 * 1024)
    VFL, VFW, VT_ = 3, 4, 5
    GA, C1, SH, X, T, PK, XR, PT = 8, 16, 24, 32, 40, 52, 56, 64
    A.i('v_lshlrev_b32 v2, 5, v0')
    load_mod8(A, GA, 2)
    load_mod8(A, C1, 4)
    load_mod8(A, SH, 3)
    A.i(f's_and_b32 s78, s{sR}, 7')
    A.i(f's_lshl_b32 s78, s78, 2')
    A.i(f's_add_u32 s78, s78, s{sW}')
    A.i(f's_lshl_b32 s{sT0}, s{sR}, 7')
    A.i(f's_add_u32 s{sT0}, s{sT0}, {F_R:#x}')
    A.i(f'v_mov_b32 v{VFL}, s{sT0}')
    A.i(f'v_and_b32 v{VFW}, 31, v0')
    A.i(f'v_lshlrev_b32 v{VFW}, 7, v{VFW}')
    A.i(f'v_add_u32 v{VFW}, {F_WO:#x}, v{VFW}')
    A.i('s_waitcnt vmcnt(0)')
    one_plus(A, C1, VT_)
    A.i(f's_lshr_b32 s{sS}, s{sR}, 3')
    Ltop = A.newlabel('Rtop')
    A.label(Ltop)
    A.i(f's_lshl_b32 s79, s{sS}, 5')
    A.i(f's_add_u32 s79, s79, s78')
    A.i(f's_lshl_b32 s79, s79, 10')
    A.i(f'buffer_load_dwordx4 {vr(XR,4)}, v1, s[{S_A}:{S_A+3}], s79 offen')
    A.i(f's_add_u32 s{sT2}, s{sS}, 1')
    sy.wait(A, VFW, VT_, sT2)
    A.i(f's_lshl_b32 s{sT0}, s{sS}, 18')
    A.i(f's_lshl_b32 s{sT1}, s78, 11')
    A.i(f's_add_u32 s{sT0}, s{sT0}, s{sT1}')
    A.i(f's_add_u32 s{sT0}, s{sT0}, {PART:#x}')
    for kq in range(4):
        if kq:
            A.i(f's_add_u32 s{sT0}, s{sT0}, 0x10000')
        A.i(f'buffer_load_dwordx4 {vr(PT+kq*8,4)}, v2, {WSR}, s{sT0} offen sc1')
        A.i(f'buffer_load_dwordx4 {vr(PT+kq*8+4,4)}, v2, {WSR}, s{sT0} offen offset:16 sc1')
    A.i('s_waitcnt vmcnt(0)')
    for j in range(8):
        A.i(f'v_add_f32 v{PT+j}, v{PT+j}, v{PT+8+j}')
        A.i(f'v_add_f32 v{PT+16+j}, v{PT+16+j}, v{PT+24+j}')
    for j in range(8):
        A.i(f'v_add_f32 v{PT+j}, v{PT+j}, v{PT+16+j}')
    for j in range(4):
        round2(A, PT + 2 * j, PT + 2 * j + 1, T + j)
    for j in range(8):
        A.i(f'v_mul_f32 v{PT+j}, v{PT+j}, v{GA+j}')
    for j in range(4):
        round2(A, PT + 2 * j, PT + 2 * j + 1, T + j)
    for j in range(4):
        unpack(A, X + 2 * j, X + 2 * j + 1, XR + j)
    for j in range(8):
        A.i(f'v_add_f32 v{X+j}, v{X+j}, v{PT+j}')
    for j in range(4):
        A.i(f'v_cvt_pk_bf16_f32 v{XR+j}, v{X+2*j}, v{X+2*j+1}')
    A.i(f's_add_u32 s{sT0}, s79, {X1:#x}')
    A.i(f'buffer_store_dwordx4 {vr(XR,4)}, v1, {WSR}, s{sT0} offen sc1')
    for j in range(4):
        unpack(A, X + 2 * j, X + 2 * j + 1, XR + j)
    ln_core(A, X, T, C1, SH, PK)
    A.i(f's_add_u32 s{sT0}, s79, {H2:#x}')
    A.i(f'buffer_store_dwordx4 {vr(PK,4)}, v1, {WSR}, s{sT0} offen sc1')
    A.i('s_waitcnt vmcnt(0)')
    if sy.on:
        A.i('s_barrier')
        Ls = A.newlabel('Rpub')
        A.i(f's_cmp_lg_u32 s{sW}, 0')
        A.i(f's_cbranch_scc1 {Ls}')
        A.i(f's_add_u32 s{sT0}, s{sS}, 1')
        sy.publish(A, VFL, VT_, sT0)
        A.label(Ls)
    A.i(f's_add_u32 s{sS}, s{sS}, 2')
    A.i(f's_cmp_lt_u32 s{sS}, 64')
    A.i(f's_cbranch_scc1 {Ltop}')


def role_f1(A, sy):
    srd(A, S_A, P_WG, 512 * 3584)
    srd(A, S_B, P_WU, 512 * 3584)
    VDMA, VRD, VAB, VT_, VFL, VST, VWA = 2, 4, 12, 20, 22, 23, 24
    XF, D, PK, T = 32, 64, 80, 88
    natural_setup(A, 3, 25, 3584, 4)
    A.i(f's_lshl_b32 s77, s{sR}, 7')
    A.i(f's_lshl_b32 s{sT0}, s{sW}, 5')
    A.i(f's_add_u32 s77, s77, s{sT0}')
    ug = natural_units(S_A, 3, 77, 3584, 16, 1, 256, 25, tile_index=lambda ks, t: ks * 2)
    uu = natural_units(S_B, 3, 77, 3584, 16, 1, 256, 25, tile_index=lambda ks, t: ks * 2 + 1)
    load_weights(A, ug + uu, 128, 32, 4)
    t1_setup(A, VDMA, VRD)
    A.i(f's_lshl_b32 s{sT0}, s{sR}, 7')
    A.i(f's_add_u32 s{sT0}, s{sT0}, {F_F1:#x}')
    A.i(f'v_mov_b32 v{VFL}, s{sT0}')
    A.i(f'v_lshrrev_b32 v{VST}, 5, v0')
    A.i(f'v_lshlrev_b32 v{VST}, 9, v{VST}')
    A.i(f'v_and_b32 v{VT_}, 15, v0')
    A.i(f'v_lshl_add_u32 v{VST}, v{VT_}, 4, v{VST}')
    A.i(f'v_bfe_u32 v{VT_}, v0, 4, 1')
    A.i(f'v_lshl_add_u32 v{VST}, v{VT_}, 3, v{VST}')
    A.i(f's_lshl_b32 s77, s{sR}, 12')
    A.i(f's_lshl_b32 s{sT0}, s{sW}, 10')
    A.i(f's_add_u32 s77, s77, s{sT0}')
    A.i(f's_add_u32 s77, s77, {GU:#x}')
    A.i(f's_mov_b32 s{sS}, 0')

    def wait_src(sseg, blocking, Lnot):
        if not sy.on:
            return
        A.i(f's_and_b32 s{sT0}, s{sseg}, 1')
        A.i(f's_lshl_b32 s{sT0}, s{sT0}, 10')
        A.i(f's_add_u32 s{sT0}, s{sT0}, {F_R:#x}')
        A.i(f'v_and_b32 v{VWA}, 7, v0')
        A.i(f'v_lshlrev_b32 v{VWA}, 7, v{VWA}')
        A.i(f'v_add_u32 v{VWA}, s{sT0}, v{VWA}')
        A.i(f's_add_u32 s{sT2}, s{sseg}, 1')
        flag_test(A, sy, VWA, VT_, sT2, blocking, Lnot)

    def body():
        t1_compute(A, VRD, VAB, XF, 256, D, swapped=True)
        g = [D + i for i in range(8)]
        u = [D + 8 + i for i in range(8)]
        for k in range(0, 8, 2):
            round2(A, g[k], g[k + 1], T)
        for k in range(8):
            A.i(f'v_mul_f32 v{T+k}, s{sLOG2E}, v{g[k]}')
        for k in range(8):
            A.i(f'v_exp_f32 v{T+k}, -v{T+k}')
        for k in range(0, 8, 2):
            round2(A, u[k], u[k + 1], PK)
        for k in range(8):
            A.i(f'v_add_f32 v{T+k}, 1.0, v{T+k}')
        for k in range(8):
            A.i(f'v_rcp_f32 v{T+k}, v{T+k}')
        for k in range(8):
            A.i(f'v_mul_f32 v{g[k]}, v{g[k]}, v{T+k}')
        for k in range(0, 8, 2):
            round2(A, g[k], g[k + 1], T)
        for k in range(8):
            A.i(f'v_mul_f32 v{g[k]}, v{g[k]}, v{u[k]}')
        for k in range(4):
            A.i(f'v_cvt_pk_bf16_f32 v{PK+k}, v{g[2*k]}, v{g[2*k+1]}')
        A.i(f's_mul_i32 s{sT0}, s{sS}, 114688')
        A.i(f's_add_u32 s{sT0}, s{sT0}, s77')
        for tt in range(2):
            A.i(f'buffer_store_dwordx2 v[{PK+2*tt}:{PK+2*tt+1}], v{VST}, {WSR}, s{sT0} offen offset:{tt*256} sc1')

    t1_loop(A, sy, 'F1', 0, 1, H2, wait_src, body, VDMA, VRD, VAB, VT_, VFL)


def role_f2(A, sy):
    srd(A, S_A, P_WD, 1792 * 1024)
    srd(A, S_B, P_OUT, 2048 * 1024)
    VPC, VFQ, VT_, VLW, VLR, VST, GB = 2, 6, 7, 8, 9, 10, 12
    XF, D, RD, XR = 32, 144, 160, 176
    lane_woff(A, 3, 1024, 4, 4)
    A.i(f's_mul_i32 s77, s{sW}, {448*1024}')
    A.i(f's_lshl_b32 s{sT0}, s{sR}, 6')
    A.i(f's_add_u32 s77, s77, s{sT0}')
    load_weights(A, paired_units(S_A, 3, 77, 1024, 14, 256), 128, 32, 4)
    A.i(f'v_lshrrev_b32 v{VT_}, 4, v0')
    A.i(f'v_lshlrev_b32 v{VPC}, 9, v{VT_}')
    A.i(f'v_and_b32 v{VST}, 15, v0')
    A.i(f'v_lshl_add_u32 v{VPC}, v{VST}, 4, v{VPC}')
    A.i(f's_and_b32 s78, s{sW}, 1')
    A.i(f's_lshr_b32 s79, s{sW}, 1')
    A.i(f'v_lshlrev_b32 v{VST}, 10, v{VST}')
    A.i(f'v_lshl_add_u32 v{VST}, v{VT_}, 4, v{VST}')
    A.i(f's_lshl_b32 s{sT0}, s78, 14')
    A.i(f's_lshl_b32 s{sT1}, s{sR}, 6')
    A.i(f's_add_u32 s{sT0}, s{sT0}, s{sT1}')
    A.i(f's_lshl_b32 s{sT1}, s79, 3')
    A.i(f's_add_u32 s{sT0}, s{sT0}, s{sT1}')
    A.i(f'v_add_u32 v{VST}, s{sT0}, v{VST}')
    A.i(f'v_lshlrev_b32 v{VT_}, 5, v{VT_}')
    A.i(f's_lshl_b32 s{sT0}, s{sR}, 7')
    A.i(f's_lshl_b32 s{sT1}, s79, 4')
    A.i(f's_add_u32 s{sT0}, s{sT0}, s{sT1}')
    A.i(f's_add_u32 s{sT0}, s{sT0}, {MOD + 5*2048:#x}')
    A.i(f'buffer_load_dwordx4 {vr(GB,4)}, v{VT_}, {WSR}, s{sT0} offen sc1')
    A.i(f's_lshl_b32 s{sT0}, s{sW}, 12')
    A.i(f'v_add_u32 v{VLW}, s{sT0}, v1')
    A.i(f's_lshl_b32 s{sT0}, s78, 10')
    A.i(f's_lshl_b32 s{sT1}, s79, 3')
    A.i(f's_add_u32 s{sT0}, s{sT0}, s{sT1}')
    A.i(f'v_add_u32 v{VLR}, s{sT0}, v1')
    A.i(f'v_and_b32 v{VFQ}, 7, v0')
    A.i(f'v_min_u32 v{VFQ}, 6, v{VFQ}')
    A.i(f'v_lshlrev_b32 v{VFQ}, 7, v{VFQ}')
    A.i(f's_mul_i32 s{sT0}, s{sW}, {7*FL}')
    A.i(f's_add_u32 s{sT0}, s{sT0}, {F_F1:#x}')
    A.i(f'v_add_u32 v{VFQ}, s{sT0}, v{VFQ}')
    A.i(f's_mul_i32 s82, s{sW}, {56*512}')
    A.i(f's_add_u32 s82, s82, {GU:#x}')
    A.i(f's_mov_b32 s{sS}, 0')
    Ltop = A.newlabel('F2top')
    A.label(Ltop)
    A.i(f's_add_u32 s{sT2}, s{sS}, 1')
    sy.wait(A, VFQ, VT_, sT2)
    A.i(f's_mul_i32 s{sT0}, s{sS}, 114688')
    A.i(f's_add_u32 s{sT0}, s{sT0}, s82')
    for ks in range(14):
        if ks and (ks & 1) == 0:
            A.i(f's_add_u32 s{sT0}, s{sT0}, 4096')
        for tt in range(2):
            A.i(f'buffer_load_dwordx4 {vr(XF+(ks*2+tt)*4,4)}, v{VPC}, {WSR}, s{sT0} offen offset:{(ks&1)*2048+tt*256} sc1')
    A.i(f's_lshl_b32 s83, s{sS}, 15')
    A.i(f's_add_u32 s{sT0}, s83, {X1:#x}')
    A.i(f'buffer_load_dwordx2 {vr(XR,2)}, v{VST}, {WSR}, s{sT0} offen sc1')
    for ks in range(14):
        A.i(f's_waitcnt vmcnt({27-2*ks})')
        for t in range(2):
            for tt in range(2):
                d = vr(D + (t * 2 + tt) * 4, 4)
                c = '0' if ks == 0 else d
                A.i(f'v_mfma_f32_16x16x32_bf16 {d}, {ur(256+(ks*2+t)*4,4)}, {vr(XF+(ks*2+tt)*4,4)}, {c}')
    for q in range(4):
        A.i(f'ds_write_b128 v{VLW}, {vr(D+q*4,4)} offset:{q*1024}')
    A.i('s_waitcnt lgkmcnt(0)')
    A.i('s_barrier')
    for t in range(2):
        for w2 in range(4):
            A.i(f'ds_read_b64 {vr(RD+(t*4+w2)*2,2)}, v{VLR} offset:{w2*4096+t*2048}')
    A.i('s_waitcnt vmcnt(0) lgkmcnt(0)')
    A.i('s_barrier')
    for t in range(2):
        b = RD + t * 8
        for r in range(2):
            A.i(f'v_add_f32 v{b+r}, v{b+r}, v{b+2+r}')
            A.i(f'v_add_f32 v{b+4+r}, v{b+4+r}, v{b+6+r}')
        for r in range(2):
            A.i(f'v_add_f32 v{b+r}, v{b+r}, v{b+4+r}')
    f = [RD, RD + 8, RD + 1, RD + 9]
    round2(A, f[0], f[1], VT_)
    round2(A, f[2], f[3], VT_)
    for k in range(4):
        A.i(f'v_mul_f32 v{f[k]}, v{f[k]}, v{GB+k}')
    round2(A, f[0], f[1], VT_)
    round2(A, f[2], f[3], VT_)
    unpack(A, RD + 2, RD + 3, XR)
    unpack(A, RD + 4, RD + 5, XR + 1)
    for k in range(4):
        A.i(f'v_add_f32 v{f[k]}, v{f[k]}, v{RD+2+k}')
    A.i(f'v_cvt_pk_bf16_f32 v{XR}, v{f[0]}, v{f[1]}')
    A.i(f'v_cvt_pk_bf16_f32 v{XR+1}, v{f[2]}, v{f[3]}')
    A.i(f'buffer_store_dwordx2 {vr(XR,2)}, v{VST}, s[{S_B}:{S_B+3}], s83 offen')
    sy.trace(A, VT_, sS, imm=1, wave=0)
    A.i(f's_add_u32 s{sS}, s{sS}, 1')
    A.i(f's_cmp_lt_u32 s{sS}, 64')
    A.i(f's_cbranch_scc1 {Ltop}')


def h_wait_simple(A, sy, sseg, va, vtmp):
    if not sy.on:
        return
    Lok, Lall = A.newlabel('Hok'), A.newlabel('Hall')
    A.i('s_cmp_lg_u32 s87, 0')
    A.i(f's_cbranch_scc1 {Lok}')
    A.i(f's_cmp_ge_u32 s{sseg}, 8')
    A.i(f's_cbranch_scc1 {Lall}')
    h_flag_addr(A, va, sseg, sT0)
    A.i(f's_mov_b32 s{sT2}, 1')
    sy.wait(A, va, vtmp, sT2)
    A.i(f's_branch {Lok}')
    A.label(Lall)
    A.i(f'v_lshlrev_b32 v{va}, 7, v0')
    A.i(f'v_add_u32 v{va}, {F_H:#x}, v{va}')
    A.i(f's_mov_b32 s{sT2}, 8')
    sy.wait(A, va, vtmp, sT2)
    A.i('s_mov_b32 s87, 1')
    A.label(Lok)


def role_kv2(A, sy):
    srd(A, S_A, P_WK, 512 * 8192)
    srd(A, S_B, P_WV, 512 * 8192)
    VDMA, VRD, VAB, VT_, VFL, VST, VWA = 2, 4, 12, 20, 22, 23, 24
    XF, DK, DV, PK = 32, 64, 80, 96
    WKb, WVb = 256, 384
    lane_woff(A, 3, 8192, 4, 4)
    A.i(f's_lshl_b32 s77, s{sR}, 8')
    A.i(f's_lshl_b32 s{sT0}, s{sW}, 6')
    A.i(f's_add_u32 s77, s77, s{sT0}')
    load_weights(A, paired_units(S_A, 3, 77, 8192, 16, WKb) + paired_units(S_B, 3, 77, 8192, 16, WVb), 128, 32, 4)
    t1_setup(A, VDMA, VRD)
    A.i(f's_lshl_b32 s{sT0}, s{sR}, 7')
    A.i(f's_add_u32 s{sT0}, s{sT0}, {F_KV:#x}')
    A.i(f'v_mov_b32 v{VFL}, s{sT0}')
    A.i(f's_lshl_b32 s77, s{sR}, 13')
    A.i(f's_lshl_b32 s{sT0}, s{sW}, 11')
    A.i(f's_add_u32 s77, s77, s{sT0}')
    A.i(f's_add_u32 s77, s77, {KX:#x}')
    A.i(f'v_lshrrev_b32 v{VST}, 4, v0')
    A.i(f'v_lshlrev_b32 v{VST}, 9, v{VST}')
    A.i(f'v_and_b32 v{VT_}, 15, v0')
    A.i(f'v_lshl_add_u32 v{VST}, v{VT_}, 4, v{VST}')
    A.i(f's_mov_b32 s{sS}, 0')
    A.i('s_mov_b32 s87, 0')
    A.i(f's_mov_b32 s72, {XB0}')
    if getattr(sy, 'single', False):
        ready_wait(A, VWA, VT_)
    h_wait_simple(A, sy, sS, VWA, VT_)
    A.i(f's_mov_b32 s75, {H:#x}')
    t1_dma(A, VDMA, VT_, 75, 72)
    A.i('s_waitcnt vmcnt(0)')
    Ltop, Lnopf = A.newlabel('KVtop'), A.newlabel('KVnopf')
    A.label(Ltop)
    A.i('s_barrier')
    for k in range(8):
        A.i(f'v_add_u32 v{VAB+k}, s72, v{VRD+k}')

    def rd(ks):
        for tt in range(2):
            A.i(f'ds_read_b128 {vr(XF + (ks & 3) * 8 + tt * 4, 4)}, v{VAB + tt*4 + (ks & 3)} offset:{(ks >> 2) * 256}')
    for ks in range(3):
        rd(ks)
    for ks in range(16):
        if ks + 3 < 16:
            rd(ks + 3)
            A.i('s_waitcnt lgkmcnt(6)')
        else:
            A.i(f's_waitcnt lgkmcnt({2 * (15 - ks)})')
        for t in range(2):
            for tt in range(2):
                x = vr(XF + (ks & 3) * 8 + tt * 4, 4)
                d = vr(DK + (t * 2 + tt) * 4, 4)
                A.i(f'v_mfma_f32_16x16x32_bf16 {d}, {ur(WKb + (ks*2+t)*4, 4)}, {x}, {"0" if ks == 0 else d}')
                d = vr(DV + (t * 2 + tt) * 4, 4)
                A.i(f'v_mfma_f32_16x16x32_bf16 {d}, {x}, {ur(WVb + (ks*2+t)*4, 4)}, {"0" if ks == 0 else d}')
        if ks == 5:
            A.i('s_waitcnt vmcnt(0)')
            A.i('s_barrier')
            if sy.on:
                Ls = A.newlabel('KVpub')
                A.i(f's_cmp_lg_u32 s{sW}, 0')
                A.i(f's_cbranch_scc1 {Ls}')
                sy.publish(A, VFL, VT_, sS)
                A.label(Ls)
            A.i(f's_add_u32 s74, s{sS}, 1')
            A.i('s_cmp_ge_u32 s74, 64')
            A.i(f's_cbranch_scc1 {Lnopf}')
            h_wait_simple(A, sy, 74, VWA, VT_)
            A.i('s_lshl_b32 s75, s74, 15')
            A.i(f's_add_u32 s75, s75, {H:#x}')
            A.i(f's_xor_b32 s76, s72, {XBS}')
            t1_dma(A, VDMA, VT_, 75, 76)
            A.label(Lnopf)
    A.i(f's_lshl_b32 s{sT0}, s{sS}, 18')
    A.i(f's_add_u32 s{sT0}, s{sT0}, s77')
    A.i(f's_add_u32 s{sT1}, s{sT0}, {VT-KX:#x}')
    for tt in range(2):
        for r in range(4):
            A.i(f'v_cvt_pk_bf16_f32 v{PK+tt*4+r}, v{DK+tt*4+r}, v{DK+(2+tt)*4+r}')
        A.i(f'buffer_store_dwordx4 v[{PK+tt*4}:{PK+tt*4+3}], v{VST}, {WSR}, s{sT0} offen offset:{tt*256} sc1')
    for t in range(2):
        for tt in range(2):
            d = DV + (t * 2 + tt) * 4
            A.i(f'v_cvt_pk_bf16_f32 v{PK+8+t*4+tt*2}, v{d}, v{d+1}')
            A.i(f'v_cvt_pk_bf16_f32 v{PK+8+t*4+tt*2+1}, v{d+2}, v{d+3}')
        A.i(f'buffer_store_dwordx4 v[{PK+8+t*4}:{PK+8+t*4+3}], v1, {WSR}, s{sT1} offen offset:{t*1024} sc1')
    A.i(f's_xor_b32 s72, s72, {XBS}')
    A.i(f's_add_u32 s{sS}, s{sS}, 1')
    A.i('s_waitcnt vmcnt(4)')
    A.i(f's_cmp_lt_u32 s{sS}, 64')
    A.i(f's_cbranch_scc1 {Ltop}')
    if sy.on:
        A.i('s_waitcnt vmcnt(0)')
        A.i('s_barrier')
        Ls = A.newlabel('KVpub')
        A.i(f's_cmp_lg_u32 s{sW}, 0')
        A.i(f's_cbranch_scc1 {Ls}')
        sy.publish(A, VFL, VT_, sS)
        A.label(Ls)


def role_mod(A, sy, sidx):
    end = A.newlabel('Lmodend')
    srd(A, S_A, P_C, 1024)
    srd(A, S_B, P_WMOD, 512 * 6144)
    A.i(f's_lshl_b32 s{sT0}, s{sW}, 6')
    A.i(f'v_add_u32 v2, s{sT0}, v0')
    A.i('v_and_b32 v3, 7, v2')
    A.i('v_lshrrev_b32 v4, 3, v2')
    A.i('v_lshlrev_b32 v5, 5, v4')
    A.i(f'buffer_load_dwordx4 v[8:11], v5, s[{S_A}:{S_A+3}], 0 offen')
    A.i(f'buffer_load_dwordx4 v[12:15], v5, s[{S_A}:{S_A+3}], 0 offen offset:16')
    A.i(f's_mov_b32 s{sT1}, {16*6144}')
    A.i(f'v_mul_lo_u32 v6, v4, s{sT1}')
    A.i('v_lshl_add_u32 v6, v3, 4, v6')
    A.i(f's_lshl_b32 s{sT1}, s{sidx}, 7')
    for i in range(16):
        A.i(f's_add_u32 s{sT0}, s{sT1}, {i*6144}')
        A.i(f'buffer_load_dwordx4 v[{64+4*i}:{67+4*i}], v6, s[{S_B}:{S_B+3}], s{sT0} offen')
    A.i('s_waitcnt vmcnt(16)')
    for i in range(8):
        unpack(A, 16 + 2 * i, 17 + 2 * i, 8 + i)
    for i in range(16):
        A.i(f'v_mul_f32 v{32+i}, s{sLOG2E}, v{16+i}')
    for i in range(16):
        A.i(f'v_exp_f32 v{32+i}, -v{32+i}')
    for i in range(16):
        A.i(f'v_add_f32 v{32+i}, 1.0, v{32+i}')
    for i in range(16):
        A.i(f'v_rcp_f32 v{32+i}, v{32+i}')
    for i in range(16):
        A.i(f'v_mul_f32 v{16+i}, v{16+i}, v{32+i}')
    for i in range(8):
        round2(A, 16 + 2 * i, 17 + 2 * i, 48)
    for j in range(8):
        A.i(f'v_mov_b32 v{32+j}, 0')
    for i in range(16):
        A.i(f's_waitcnt vmcnt({15-i})')
        for d in range(4):
            unpack(A, 48, 49, 64 + 4 * i + d)
            A.i(f'v_fmac_f32 v{32+2*d}, v{16+i}, v48')
            A.i(f'v_fmac_f32 v{33+2*d}, v{16+i}, v49')
    A.i('v_lshlrev_b32 v5, 8, v4')
    A.i('v_lshl_add_u32 v5, v3, 5, v5')
    A.i('ds_write_b128 v5, v[32:35]')
    A.i('ds_write_b128 v5, v[36:39] offset:16')
    A.i('s_waitcnt lgkmcnt(0)')
    A.i('s_barrier')
    A.i(f's_cmp_lg_u32 s{sW}, 0')
    A.i(f's_cbranch_scc1 {end}')
    A.i('v_lshlrev_b32 v5, 2, v0')
    for i in range(32):
        A.i(f'ds_read_b32 v{64+i}, v5 offset:{i*256}')
        if i == 14 or i == 29:
            A.i('s_waitcnt lgkmcnt(0)')
    A.i('s_waitcnt lgkmcnt(0)')
    for st in (16, 8, 4, 2, 1):
        for i in range(st):
            A.i(f'v_add_f32 v{64+i}, v{64+i}, v{64+st+i}')
    A.i('v_cvt_pk_bf16_f32 v64, v64, v64')
    A.i('v_lshlrev_b32 v64, 16, v64')
    A.i(f's_lshl_b32 s{sT0}, s{sidx}, 8')
    A.i(f's_add_u32 s{sT0}, s{sT0}, {MOD:#x}')
    A.i(f'buffer_store_dword v64, v5, {WSR}, s{sT0} offen sc1')
    ready_wait(A, 6, 7)
    A.i(f's_lshl_b32 s{sT0}, s{sidx}, 7')
    A.i(f's_add_u32 s{sT0}, s{sT0}, {F_MOD:#x}')
    A.i('v_mov_b32 v6, 1')
    A.i('s_mov_b64 exec, 1')
    A.i(f'buffer_store_dword v6, off, {WSR}, s{sT0} sc1')
    A.i('s_mov_b64 exec, -1')
    A.label(end)


def role_zero(A):
    for i in range(4):
        A.i(f'v_mov_b32 v{4+i}, 0')
    A.i(f's_lshl_b32 s{sT0}, s{sW}, 10')
    A.i(f's_add_u32 s{sT0}, s{sT0}, {FLAGS:#x}')
    for i in range(NFLAG * FL // 4096):
        A.i(f'buffer_store_dwordx4 v[4:7], v1, {WSR}, s{sT0} offen sc1')
        A.i(f's_add_u32 s{sT0}, s{sT0}, 4096')
    A.i('s_waitcnt vmcnt(0)')
    A.i('s_barrier')
    A.i('v_mov_b32 v5, 1')
    A.i('s_mov_b64 exec, 1')
    A.i(f'global_store_dword v4, v5, s[{P_DBG}:{P_DBG+1}] offset:{DBG_READY} sc1')
    A.i('s_mov_b64 exec, -1')


def mod_wait(A, sy, first, count, va, vt):
    ready_wait(A, va, vt)
    A.i(f'v_min_u32 v{va}, {count-1}, v0')
    A.i(f'v_lshlrev_b32 v{va}, 7, v{va}')
    A.i(f'v_add_u32 v{va}, {F_MOD + first*FL:#x}, v{va}')
    A.i(f's_mov_b32 s{sT2}, 1')
    sy.wait(A, va, vt, sT2)
```

```python
import sys
from common import *
import roles, chain, post

NAME = 'adaLN_cond__memory_aug_recurrent_mem_tr__swiglu_ffn__prompt'
HEADER = open('cdna_kernels/%s.s.ref' % NAME).read().split('; Override launch')[0]
L_TICK = 163584
LDS_ALL = 163840


def kd(name, vgpr=512, accum=256, sgpr=102):
    return f'''.section .rodata,"a"
.p2align 6
.amdhsa_kernel {name}
  .amdhsa_next_free_vgpr {vgpr}
  .amdhsa_next_free_sgpr {sgpr}
  .amdhsa_accum_offset {accum}
  .amdhsa_group_segment_fixed_size 0
  .amdhsa_kernarg_size 128
  .amdhsa_user_sgpr_count 2
  .amdhsa_user_sgpr_kernarg_segment_ptr 1
  .amdhsa_system_sgpr_workgroup_id_x 1
  .amdhsa_float_denorm_mode_32 3
.end_amdhsa_kernel
.text
'''


def start(A, name):
    A.raw(f'.globl {name}\n.p2align 8\n.type {name},@function\n{name}:')
    A.hist = []


def ticket(A, single=False):
    L = A.newlabel('Ltk')
    A.i(f's_getreg_b32 s{sT3}, hwreg(HW_REG_XCC_ID, 0, 4)')
    A.i(f's_and_b32 s{sT3}, s{sT3}, 7')
    A.i(f'v_mov_b32 v2, {L_TICK}')
    A.i(f's_cmp_lg_u32 s{sW}, 0')
    A.i(f's_cbranch_scc1 {L}')
    A.i('v_mov_b32 v3, 1')
    A.i('s_mov_b64 exec, 1')
    if single:
        A.i(f's_lshl_b32 s{sT0}, s{sT3}, 5')
        A.i(f'v_mov_b32 v4, s{sT0}')
        A.i(f'global_atomic_add v3, v4, v3, s[{P_DBG}:{P_DBG+1}] sc0')
    else:
        A.i(f's_lshl_b32 s{sT0}, s{sT3}, 7')
        A.i(f's_add_u32 s{sT0}, s{sT0}, {F_TICKET:#x}')
        A.i(f'buffer_atomic_add v3, off, {roles.WSR}, s{sT0} sc0')
    A.i('s_waitcnt vmcnt(0)')
    A.i('ds_write_b32 v2, v3')
    A.i('s_mov_b64 exec, -1')
    A.i('s_waitcnt lgkmcnt(0)')
    A.label(L)
    A.i('s_barrier')
    A.i('ds_read_b32 v3, v2')
    A.i('s_waitcnt lgkmcnt(0)')
    A.i(f'v_readfirstlane_b32 s{sT4}, v3')


def build(mode):
    A = Asm()
    launches = []
    kds = []

    def kernel(name, nwg, body, lds, vgpr=512, accum=256):
        start(A, name)
        end = A.newlabel('Lend')
        prologue(A, nwg, end)
        body(end)
        A.label(end)
        A.i('s_endpgm')
        launches.append(f'; @launch kernel={name} grid=({nwg},1,1) block=(256,1,1) lds={lds}')
        kds.append(kd(name, vgpr, accum))

    single = not (mode.startswith('cb') or mode == 'multi' or 'two' in mode)
    if not single:
        kernel('init_kernel', 120, lambda end: roles.role_init(A, end), 8192, 128, 128)
    if mode.startswith('cb'):
        sy = Sync(False, trace=True)
        sy.opts = set(mode.split('_')[1:])
        for o in sy.opts:
            if o[0] == 'd' and '=' in o:
                setattr(sy, o.split('=')[0], int(o.split('=')[1]))

        def chain_body(end):
            ticket(A)
            A.i(f's_cmp_lg_u32 s{sT3}, 0')
            A.i(f's_cbranch_scc1 {end}')
            A.i(f's_cmp_ge_u32 s{sT4}, 32')
            A.i(f's_cbranch_scc1 {end}')
            A.i(f's_mov_b32 s{sR}, s{sT4}')
            A.i(f's_lshl_b32 s100, s{sT4}, 10')
            A.i(f's_add_u32 s100, s100, {TRACE:#x}')
            chain.role_chain(A, sy, end)
        kernel('chain_kernel', 256, chain_body, LDS_ALL)
    elif mode == 'multi':
        sy = Sync(False)

        def simple(fn):
            def body(end):
                A.i(f's_mov_b32 s{sR}, s2')
                fn()
            return body
        kernel('ln1_kernel', 64, simple(lambda: roles.role_ln1(A, sy, sR)), 0)
        kernel('k_kernel', 32, simple(lambda: roles.role_kv(A, sy, False)), LDS_ALL)
        kernel('v_kernel', 32, simple(lambda: roles.role_kv(A, sy, True)), LDS_ALL)

        def chain_body(end):
            ticket(A)
            A.i(f's_cmp_lg_u32 s{sT3}, 0')
            A.i(f's_cbranch_scc1 {end}')
            A.i(f's_cmp_ge_u32 s{sT4}, 32')
            A.i(f's_cbranch_scc1 {end}')
            A.i(f's_mov_b32 s{sR}, s{sT4}')
            chain.role_chain(A, sy, end)
        kernel('chain_kernel', 256, chain_body, LDS_ALL)
        kernel('qa_kernel', 64, simple(lambda: roles.role_qa(A, sy)), LDS_ALL)
        kernel('wo_kernel', 32, simple(lambda: roles.role_wo(A, sy)), LDS_ALL)
        kernel('r_kernel', 16, simple(lambda: roles.role_r(A, sy)), 0)
        kernel('f1_kernel', 28, simple(lambda: roles.role_f1(A, sy)), LDS_ALL)
        kernel('f2_kernel', 16, simple(lambda: roles.role_f2(A, sy)), LDS_ALL)
    else:
        sy = Sync(True, trace=mode.startswith('trace'))
        sy.opts = set(mode.split('_')[1:])
        for o in sy.opts:
            if o[0] == 'd' and '=' in o:
                setattr(sy, o.split('=')[0], int(o.split('=')[1]))

        sy.single = single

        def main_body(end):
            ticket(A, single)
            A.i(f's_cmp_ge_u32 s{sT4}, 32')
            A.i(f's_cbranch_scc1 {end}')
            A.i(f's_mov_b32 s{sR}, s{sT4}')
            if sy.tr:
                A.i(f's_lshl_b32 s100, s{sT3}, 5')
                A.i(f's_add_u32 s100, s100, s{sT4}')
                A.i('s_lshl_b32 s100, s100, 10')
                A.i(f's_add_u32 s100, s100, {TRACE:#x}')
                sy.trace(A, 3, None, imm=255, wave=0)
            labs = [A.newlabel('Lx%d' % i) for i in range(8)]
            for x in range(1, 8):
                A.i(f's_cmp_eq_u32 s{sT3}, {x}')
                A.i(f's_cbranch_scc1 {labs[x]}')
            chain.role_chain(A, sy, end)
            A.label(labs[1])
            roles.role_kv2(A, sy)
            A.i(f's_branch {end}')
            A.label(labs[3])
            A.i(f's_add_u32 s{sR}, s{sR}, 32')
            A.label(labs[2])
            roles.role_qa(A, sy)
            A.i(f's_branch {end}')
            A.label(labs[5])
            A.i(f's_add_u32 s{sR}, s{sR}, 32')
            A.label(labs[4])
            A.i(f's_mov_b32 s90, s{sT3}')
            sy.pub_base = 240
            roles.role_ln1(A, sy, sR)
            sy.pub_base = 0
            A.i(f's_and_b32 s{sR}, s{sR}, 31')
            A.i(f's_mov_b32 s{sT3}, s90')
            Lpost = A.newlabel('Lpost')
            A.i(f's_branch {Lpost}')
            A.label(labs[7])
            A.i(f's_add_u32 s{sR}, s{sR}, 32')
            A.label(labs[6])
            if single:
                Lnomod, Lnoz = A.newlabel('Lnomod'), A.newlabel('Lnoz')
                A.i(f's_mov_b32 s90, s{sT3}')
                A.i(f's_cmp_ge_u32 s{sR}, 48')
                A.i(f's_cbranch_scc1 {Lnomod}')
                roles.role_mod(A, sy, sR)
                A.i('s_barrier')
                A.label(Lnomod)
                A.i(f's_cmp_lg_u32 s{sR}, 48')
                A.i(f's_cbranch_scc1 {Lnoz}')
                roles.role_zero(A)
                A.label(Lnoz)
                A.i(f's_mov_b32 s{sT3}, s90')
            A.i(f's_and_b32 s{sR}, s{sR}, 31')
            A.label(Lpost)
            A.i(f's_sub_u32 s90, s{sT3}, 4')
            post.role_post(A, sy, 90)
        kernel('main_kernel', 256, main_body, LDS_ALL)
    out = HEADER + '\n'.join(launches) + '\n'
    out += '.amdgcn_target "amdgcn-amd-amdhsa--gfx950"\n.text\n'
    out += A.text()
    out += ''.join(kds)
    return out, A


if __name__ == '__main__':
    mode = sys.argv[1]
    path = sys.argv[2]
    out, A = build(mode)
    open(path, 'w').write(out)
    print('instructions', A.ninstr, 'nop states', A.nops, 'bytes', len(out))
```

```python
from common import *
from roles import load_weights, staged_load, WSR

L_MEM = 131072
L_KX = 139264
L_VX = 147456
L_OI = 155648
L_QI = L_OI + 2048
L_KI = L_QI + 2304
L_SEL = L_KI + 2304 + 64
L_VI = L_QI
QS = 288

vWV, vL2, vKX, vIDX, vQW, vQR, vPST, vX1, vX2, vVW, vOR, vOW, vLW, vT0 = range(2, 16)
vPF = 0
RA, RB, RC, RD = 16, 48, 80, 112
WK, WV, WQR, WOR = 256, 384, 128, 192
sPC, sPC2, sMC, sFLG, sKVF, sKVS, sOUT, sNX, sDST, sRST, sH1, sFA = range(72, 84)
sHF = 84
sLF = 86
sIO = 88
sSC2 = 90
sRP, sRM = 92, 93
sKS, sVS, sPFA, sPFD = 94, 95, 96, 97
sD2, sNV, sS1 = 65, 71, 3


def emit(A, x):
    if callable(x):
        x()
    else:
        A.i(x)


def mix(A, mf, fill, per=2, start=0):
    fill = list(fill)
    for k, m in enumerate(mf):
        emit(A, m)
        if k >= start:
            for _ in range(per):
                if fill:
                    emit(A, fill.pop(0))
    for f in fill:
        emit(A, f)


def role_chain(A, sy, end, nsteps=64):
    opts = getattr(sy, 'opts', set())
    sH = sR
    srd(A, S_A, P_WQ, 512 * 8192)
    srd(A, S_B, P_WK, 512 * 8192)
    srd(A, S_C, P_WV, 512 * 8192)
    srd(A, S_D, P_WO, 4096 * 1024)
    G, N, G1, TT, TA, TB, WA, WB, LN = 16, 17, 18, 19, 20, 21, 32, 33, 34
    A.i(f'v_mov_b32 v{LN}, v0')
    A.i(f'v_lshrrev_b32 v{G}, 4, v0')
    A.i(f'v_and_b32 v{N}, 15, v0')
    A.i(f'v_and_b32 v{G1}, 1, v{G}')
    A.i(f'v_lshrrev_b32 v{TT}, 5, v0')
    A.i(f'v_lshlrev_b32 v{vPF}, 3, v1')
    A.i(f's_lshl_b32 s{sT0}, s{sW}, 15')
    A.i(f'v_add_u32 v{vWV}, s{sT0}, v1')
    A.i(f'v_add_u32 v{vL2}, {L_MEM}, v1')
    A.i(f's_lshl_b32 s{sT0}, s{sW}, 11')
    A.i(f'v_add_u32 v{vLW}, s{sT0}, v{vL2}')
    A.i(f'v_lshlrev_b32 v{vKX}, 9, v{G}')
    A.i(f'v_lshl_add_u32 v{vKX}, v{N}, 4, v{vKX}')
    A.i(f'v_add_u32 v{vKX}, {L_KX}, v{vKX}')
    A.i(f's_mov_b32 s{sHF}, 0xff00ff00')
    A.i(f's_mov_b32 s{sHF+1}, 0xff00ff00')
    A.i(f's_mov_b32 s{sLF}, 0x00ff00ff')
    A.i(f's_mov_b32 s{sLF+1}, 0x00ff00ff')
    A.i(f's_mov_b32 s{sSC2}, {SCALE:#x}')
    A.i(f's_mov_b32 s{sSC2+1}, {SCALE:#x}')
    A.i(f's_cmp_eq_u32 s{sW}, 3')
    A.i(f's_cselect_b32 s{sIO}, 1, 0')
    A.i(f's_mov_b32 s{sIO+1}, 0')
    A.i(f'v_mov_b32 v{vIDX}, 0x4444')
    A.i(f'v_mov_b32 v{TA}, 0xeeee')
    A.i(f'v_cndmask_b32 v{vIDX}, v{vIDX}, v{TA}, s[{sHF}:{sHF+1}]')
    A.i(f'v_lshlrev_b32 v{TA}, 1, v{G1}')
    A.i(f'v_add_u32 v{TA}, v{TA}, v{TT}')
    A.i(f'v_mul_u32_u24 v{vQW}, {2*QS}, v{TA}')
    A.i(f'v_lshl_add_u32 v{vQW}, v{N}, 2, v{vQW}')
    A.i(f's_lshl_b32 s{sT0}, s{sW}, 6')
    A.i(f's_add_u32 s{sT0}, s{sT0}, {L_QI}')
    A.i(f'v_add_u32 v{vQW}, s{sT0}, v{vQW}')
    A.i(f'v_lshrrev_b32 v{vPST}, 1, v{N}')
    A.i(f'v_lshlrev_b32 v{vPST}, 13, v{vPST}')
    A.i(f'v_lshl_add_u32 v{vPST}, v{G}, 4, v{vPST}')
    A.i(f'v_and_b32 v{TB}, 1, v{N}')
    A.i(f'v_lshl_add_u32 v{vPST}, v{TB}, 6, v{vPST}')
    A.i(f's_lshl_b32 s{sT0}, s{sW}, 16')
    A.i(f's_lshl_b32 s{sT1}, s{sH}, 7')
    A.i(f's_add_u32 s{sT0}, s{sT0}, s{sT1}')
    A.i(f'v_add_u32 v{vPST}, s{sT0}, v{vPST}')
    A.i(f'v_lshlrev_b32 v{vVW}, 8, v{TT}')
    A.i(f'v_lshl_add_u32 v{vVW}, v{N}, 4, v{vVW}')
    A.i(f'v_lshl_add_u32 v{vVW}, v{G1}, 3, v{vVW}')
    A.i(f's_lshl_b32 s{sT0}, s{sW}, 9')
    A.i(f's_add_u32 s{sT0}, s{sT0}, {L_VI}')
    A.i(f'v_add_u32 v{vVW}, s{sT0}, v{vVW}')
    A.i(f'v_and_b32 v{TA}, 7, v{N}')
    A.i(f'v_mul_u32_u24 v{vQR}, {QS}, v{TA}')
    A.i(f'v_lshl_add_u32 v{vQR}, v{G}, 4, v{vQR}')
    A.i(f'v_add_u32 v{vQR}, {L_QI}, v{vQR}')
    A.i(f'v_lshlrev_b32 v{vOR}, 7, v{G}')
    A.i(f'v_lshl_add_u32 v{vOR}, v{TA}, 4, v{vOR}')
    A.i(f'v_add_u32 v{vOR}, {L_OI}, v{vOR}')
    A.i(f's_lshl_b32 s{sT0}, s{sW}, 9')
    A.i(f'v_add_u32 v{vOW}, s{sT0}, v{vOR}')
    A.i(f'v_lshlrev_b32 v{vX1}, 6, v{TB}')
    A.i(f'v_lshl_add_u32 v{vX1}, v{G1}, 4, v{vX1}')
    A.i(f'v_bfe_u32 v{TA}, v{N}, 2, 1')
    A.i(f'v_lshl_add_u32 v{vX1}, v{TA}, 7, v{vX1}')
    A.i(f'v_bfe_u32 v{TA}, v{N}, 1, 1')
    A.i(f'v_lshl_add_u32 v{vX1}, v{TA}, 3, v{vX1}')
    A.i(f's_lshl_b32 s{sT0}, s{sH}, 8')
    A.i(f's_and_b32 s{sT1}, s{sW}, 1')
    A.i(f's_lshl_b32 s{sT2}, s{sT1}, 5')
    A.i(f's_add_u32 s{sT0}, s{sT0}, s{sT2}')
    A.i(f'v_add_u32 v{vX1}, s{sT0}, v{vX1}')
    A.i(f'v_mov_b32 v{vX2}, 0')
    A.i(f's_lshl_b32 s{sH1}, s{sH}, 13')
    A.i(f's_lshl_b32 s{sT2}, s{sT1}, 12')
    A.i(f's_add_u32 s{sH1}, s{sH1}, s{sT2}')
    A.i(f's_lshl_b32 s{sT0}, s{sH}, 7')
    A.i(f's_add_u32 s{sKVF}, s{sT0}, {F_KV:#x}')
    A.i(f's_add_u32 s{sFLG}, s{sT0}, {F_CH:#x}')
    A.i(f's_lshl_b32 s{sT0}, s{sH}, 11')
    A.i(f's_lshr_b32 s{sT2}, s{sW}, 1')
    A.i(f's_lshl_b32 s{sT2}, s{sT2}, 22')
    A.i(f's_add_u32 s{sOUT}, s{sT0}, s{sT2}')
    A.i(f's_lshl_b32 s{sT2}, s{sT1}, 10')
    A.i(f's_add_u32 s{sOUT}, s{sOUT}, s{sT2}')
    A.i(f's_add_u32 s{sOUT}, s{sOUT}, {KM:#x}')
    A.i(f's_lshl_b32 s{sT0}, s{sH}, 13')
    A.i(f's_lshl_b32 s{sT2}, s{sW}, 11')
    A.i(f's_add_u32 s{sRST}, s{sT0}, s{sT2}')
    A.i(f's_add_u32 s{sNX}, s{sRST}, {KX:#x}')
    A.i(f's_add_u32 s{sDST}, s{sT2}, {L_KX}')
    A.i(f's_lshl_b32 s{sPFD}, s{sT1}, 24')
    A.i(f's_sub_u32 s{sPFD}, s{sPFD}, s{sT2}')
    A.i(f's_mov_b32 s{sKVS}, {0 if sy.on else 64}')
    A.i(f's_mov_b32 s{sKS}, 0')
    A.i(f's_mov_b32 s{sVS}, 0')
    A.i(f'v_lshlrev_b32 v{TA}, 1, v{G1}')
    A.i(f'v_add_u32 v{TA}, v{TA}, v{TT}')
    A.i(f'v_lshlrev_b32 v{vX2}, 9, v{TA}')
    A.i(f'v_lshl_add_u32 v{vX2}, v{N}, 2, v{vX2}')
    A.i(f's_lshl_b32 s{sT0}, s{sW}, 6')
    A.i(f'v_add_u32 v{vX2}, s{sT0}, v{vX2}')
    A.i(f'v_add_u32 v{vVW}, {VM-KM-L_VI:#x}, v{vVW}')
    A.i(f's_lshl_b32 s{sOUT}, s{sH}, 11')
    A.i(f's_add_u32 s{sOUT}, s{sOUT}, {KM - 0x10000:#x}')
    for c in range(4):
        A.i(f'v_mov_b32 v{24+c}, 0')
        A.i(f'v_cmp_eq_u32 vcc, {2*c}, v{N}')
        A.i(f'v_mov_b32 v{TA}, 0x3f80')
        A.i(f'v_cndmask_b32 v{24+c}, v{24+c}, v{TA}, vcc')
        A.i(f'v_cmp_eq_u32 vcc, {2*c+1}, v{N}')
        A.i(f'v_mov_b32 v{TA}, 0x3f800000')
        A.i(f'v_cndmask_b32 v{24+c}, v{24+c}, v{TA}, vcc')
    A.i(f'ds_write_b128 v{vL2}, v[24:27] offset:{L_SEL-L_MEM}')
    single = getattr(sy, 'single', False)
    if single:
        for i in range(4):
            A.i(f'v_mov_b32 v{24+i}, -1')
        A.i(f's_lshl_b32 s{sT0}, s{sW}, 18')
        A.i(f's_lshl_b32 s{sT1}, s{sH}, 13')
        A.i(f's_add_u32 s{sT0}, s{sT0}, s{sT1}')
        A.i(f's_add_u32 s{sT0}, s{sT0}, {XP:#x}')
        A.i(f's_add_u32 s{sT1}, s{sT0}, 4096')
        for i in range(8):
            A.i(f'buffer_store_dwordx4 v[24:27], v1, {WSR}, s{sT0 if i < 4 else sT1} offen offset:{(i&3)*1024}')
        A.i(f's_lshl_b32 s{sT0}, s{sW}, 13')
        A.i(f's_lshl_b32 s{sT1}, s{sH}, 8')
        A.i(f's_add_u32 s{sT0}, s{sT0}, s{sT1}')
        A.i(f's_add_u32 s{sT0}, s{sT0}, {XM:#x}')
        A.i('s_mov_b64 exec, 0xffff')
        A.i(f'buffer_store_dwordx4 v[24:27], v1, {WSR}, s{sT0} offen')
        A.i('s_mov_b64 exec, -1')
    A.i(f'v_lshrrev_b32 v{TA}, 1, v{G}')
    A.i(f'v_lshlrev_b32 v{WA}, 17, v{TA}')
    A.i(f'v_lshl_add_u32 v{WA}, v{G1}, 15, v{WA}')
    A.i(f'v_lshl_add_u32 v{WA}, v{N}, 2, v{WA}')
    A.i(f'v_lshlrev_b32 v{WB}, 12, v{G}')
    A.i(f'v_lshl_add_u32 v{WB}, v{N}, 4, v{WB}')
    sWA, sWB = sT4, sT5
    A.i(f's_lshl_b32 s{sWA}, s{sH}, 8')
    A.i(f's_lshl_b32 s{sT0}, s{sW}, 6')
    A.i(f's_add_u32 s{sWA}, s{sWA}, s{sT0}')
    A.i(f's_lshl_b32 s{sWB}, s{sH}, 17')
    A.i(f's_lshl_b32 s{sT0}, s{sW}, 8')
    A.i(f's_add_u32 s{sWB}, s{sWB}, s{sT0}')

    sWAp, sWBp = [4, 5, 6, 7], [8, 9, 10, 11]
    A.i(f's_mov_b32 s12, s{P_MEM0}')
    A.i(f's_mov_b32 s13, s{P_MEM0+1}')
    for p in range(4):
        A.i(f's_xor_b32 s{sT0}, s{sW}, {p}')
        A.i(f's_lshl_b32 s{sT1}, s{sT0}, 20')
        A.i(f's_add_u32 s{sWAp[p]}, s{sWA}, s{sT1}')
        A.i(f's_lshl_b32 s{sT1}, s{sT0}, 15')
        A.i(f's_add_u32 s{sWBp[p]}, s{sWB}, s{sT1}')

    def mem_units(srd_s, dst, ks_list):
        u = []
        for ks in ks_list:
            for r in range(8):
                d0 = 64 * (ks & 1) + 32 * (r >> 2) + 8 * (r & 1) + 2 * ((r >> 1) & 1)
                u.append((srd_s, WA, sWAp[ks >> 1], d0 * 8192, (d0 + 1) * 8192, 1,
                          [(dst(ks * 2) + r, 0, f's{SELLO}'), (dst(ks * 2 + 1) + r, 0, f's{SELHI}')]))
        return u

    def o_units(dst, ks_list):
        u = []
        for ks in ks_list:
            for uu in range(4):
                e0 = 16 * (uu >> 1) + 2 * (uu & 1)
                outs = []
                for cg in range(4):
                    for st in range(2):
                        outs.append((dst(ks * 4 + cg) + 2 * uu + st, 2 * st + (cg >> 1),
                                     f's{SELHI if (cg & 1) else SELLO}'))
                u.append((S_D, WB, sWBp[ks], e0 * 1024, (e0 + 1) * 1024, 4, outs))
        return u

    WO_STREAM = [0, 1, 2, 3, 4, 13, 14, 15]
    def spill(first_reg, nfrag, lds_frag0):
        for f in range(nfrag):
            for hq in range(2):
                A.i(f'ds_write_b128 v{vWV}, {vr(first_reg + f*8 + hq*4, 4)} offset:{(lds_frag0 + f)*2048 + hq*1024}')
            A.i('s_waitcnt lgkmcnt(0)')
    def spill_u(first_u, lds_frag):
        for hq in range(2):
            A.i(f'ds_write_b128 v{vWV}, {ur(first_u + hq*4, 4)} offset:{lds_frag*2048 + hq*1024}')
    def o_home(p):
        return (WV + WO_STREAM.index(p) * 8) if p in WO_STREAM else WOR + (p - 5) * 8
    def q_home(f):
        return (WV + 64 + f * 8) if f < 8 else WQR + (f - 8) * 8
    load_weights(A, o_units(o_home, range(4)) + mem_units(S_A, q_home, range(8)) + mem_units(S_B, lambda f: WK + f * 8, range(8)), 48, 32, 22)
    for k in range(8):
        spill_u(WV + k * 8, 8 + k)
        spill_u(WV + 64 + k * 8, k)
        A.i('s_waitcnt lgkmcnt(0)')
    if single:
        ready_wait(A, 24, 25)
        A.i('s_barrier')
        A.i(f's_lshl_b32 s{sT0}, s{sH}, 7')
        A.i(f's_add_u32 s{sT0}, s{sT0}, {F_CI:#x}')
        A.i('v_mov_b32 v24, 1')
        A.i(f's_mov_b64 exec, s[{sIO}:{sIO+1}]')
        A.i(f'buffer_store_dword v24, off, {WSR}, s{sT0} sc1')
        A.i('s_mov_b64 exec, -1')
    load_weights(A, mem_units(S_C, lambda f: WV + f * 8, range(8)), 48, 32, 22)
    sy.trace(A, vT0, None, imm=102, wave=0)
    if single:
        A.i(f'v_and_b32 v24, 31, v{LN}')
        A.i('v_lshlrev_b32 v24, 7, v24')
        A.i(f'v_add_u32 v24, {F_CI:#x}, v24')
        A.i(f's_mov_b32 s{sT2}, 1')
        sy.wait(A, 24, 25, sT2)
    sy.trace(A, vT0, None, imm=101, wave=0)
    srd(A, S_A, 12, 8192)
    A.i(f's_mov_b32 s{sS}, 0')
    A.i(f'v_and_b32 v{vT0}, 7, v{LN}')
    A.i(f'v_lshlrev_b32 v{vT0}, 10, v{vT0}')
    A.i(f'v_lshrrev_b32 v{TA}, 3, v{LN}')
    A.i(f'v_lshl_add_u32 v{vT0}, v{TA}, 4, v{vT0}')
    A.i(f's_lshl_b32 s{sT0}, s{sW}, 8')
    for i in range(2):
        A.i(f'buffer_load_dwordx4 {vr(RA+4*i,4)}, v{vT0}, s[{S_A}:{S_A+3}], s{sT0} offen offset:{i*128}')
    A.i('s_waitcnt vmcnt(0)')
    for i in range(2):
        A.i(f'ds_write_b128 v{vLW}, {vr(RA+4*i,4)} offset:{i*1024}')
    A.i('s_waitcnt lgkmcnt(0)')

    slow = []
    def kv_wait(sseg, r0, r1):
        if sy.on:
            Lok, Lp = A.newlabel('CHkvok'), A.newlabel('CHkvp')
            A.i(f's_cmp_gt_u32 s{sKVS}, s{sseg}')
            A.i(f's_cbranch_scc0 {Lp}')
            A.label(Lok)
            slow.append((Lp, Lok, sseg, r0, r1))

    def kv_dma(which):
        A.i(f's_mov_b32 m0, s{sD2 if which else sDST}')
        for i in range(2):
            A.i(f'buffer_load_dwordx4 v1, {WSR}, s{sNV if which else sNX} offen offset:{i*1024} sc1 lds')

    A.i(f's_add_u32 s{sD2}, s{sDST}, {L_VX-L_KX}')
    A.i(f's_add_u32 s{sNV}, s{sNX}, {VT-KX:#x}')
    kv_wait(sS, 34, 35)
    kv_dma(0)
    kv_dma(1)

    stamps = []
    Lfin = A.newlabel('CHfin')
    Lcut = A.newlabel('CHcut')
    def stamp(name):
        if ('cut' + name) in opts:
            A.i(f's_cmp_eq_u32 s{sS}, {nsteps-1}')
            A.i(f's_cbranch_scc1 {Lfin}')
            A.i(f's_branch {Lcut}')

    prof = 'prof' in opts
    def ts(k):
        if prof:
            A.i(f's_memtime s[{4+2*k}:{5+2*k}]')
    def cnt(k):
        if prof:
            A.i(f's_add_u32 s{28+k}, s{28+k}, 1')
    if prof:
        for k in range(4, 32):
            A.i(f's_mov_b32 s{k}, 0')
    AQ, AK, AV = RD, RD + 8, RD
    MA = RA
    XQ = RB
    S1, S2 = RB + 24, RB + 28
    QF, KR = RC, RC + 16
    S0, PM0, PM1 = RD + 8, RD + 12, RD + 14
    P4, VXF, OP, WD = RC, RC + 4, RC + 12, RC + 16
    OD, OA = RB + 24, RA
    PK = RC
    YS = [RB, RB + 8, RB + 16, RA + 16, RA + 24]

    def frag_read(reg, lf, tag):
        return [lambda: A.ds(f'ds_read_b128 {vr(reg,4)}, v{vWV} offset:{lf*2048}', tag),
                lambda: A.ds(f'ds_read_b128 {vr(reg+4,4)}, v{vWV} offset:{lf*2048+1024}', tag)]

    def pre_step():
        for f in range(8):
            for x in frag_read(XQ + 8 * f, f, 'xq'):
                x()
            A.i(f'v_mov_b64 {vr(RD+2*f,2)}, 0')

    def step_scalars(addr=True):
        A.i(f's_and_b32 s{sT0}, s{sS}, 3')
        A.i(f's_lshl_b32 s{sPC}, s{sT0}, 18')
        A.i(f's_add_u32 s{sPC}, s{sPC}, {XP:#x}')
        A.i(f's_add_u32 s{sPC2}, s{sPC}, 4096')
        A.i(f's_lshl_b32 s{sMC}, s{sT0}, 13')
        A.i(f's_add_u32 s{sMC}, s{sMC}, {XM:#x}')
        A.i(f's_add_u32 s{sT2}, s{sS}, 8')
        A.i(f's_cmp_gt_u32 s{sKVS}, s{sT2}')
        A.i(f's_cselect_b32 s{sFA}, {FLAGS + 8*FL:#x}, s{sKVF}')
        for p in range(1, 4):
            if addr:
                A.i(f'v_xor_b32 v{RA+8*p}, {p << 11:#x}, v{vLW}')
        A.i(f's_add_u32 s{sOUT}, s{sOUT}, 0x10000')
        A.i(f's_add_u32 s{sS1}, s{sS}, 1')
        A.i(f's_min_u32 s{sS1}, s{sS1}, 63')
        A.i(f's_add_u32 s{sT1}, s{sNX}, s{sPFD}')
        A.i(f's_add_u32 s{sNX}, s{sNX}, 0x40000')
        A.i(f's_add_u32 s{sNV}, s{sNV}, 0x40000')
        A.i(f's_add_u32 s{sPFA}, s{sT1}, 0x80000')
        A.i(f's_add_u32 s{sT2}, s{sS}, 2')
        A.i(f's_cmp_gt_u32 s{sKVS}, s{sT2}')
        A.i(f's_cselect_b32 s{sPFA}, s{sPFA}, s{sT1}')
        A.i(f's_add_u32 s{sT0}, s{sS}, 3')
        A.i(f's_and_b32 s{sT0}, s{sT0}, 3')
        A.i(f's_lshl_b32 s{sT0}, s{sT0}, 18')
        A.i(f's_add_u32 s{sT0}, s{sT0}, s{sRST}')
        A.i(f's_add_u32 s{sRP}, s{sT0}, {XP:#x}')
        A.i(f's_xor_b32 s{sRM}, s{sMC}, 0x4000')
        A.i(f's_lshl_b32 s{sT1}, s{sH}, 8')
        A.i(f's_add_u32 s{sRM}, s{sRM}, s{sT1}')

    pre_step()
    step_scalars()
    kv_wait(sS1, RA + 27, RA + 28)
    Ltop = A.newlabel('CHtop')
    if sy.tr and not prof:
        A.i('s_memtime s[4:5]')
    A.i('s_waitcnt vmcnt(0)')
    A.wl_all()
    A.label(Ltop)
    _orig_i = A.i
    def _filt(text):
        for t in text.split('\n'):
            if 'novm' in opts and t.startswith('buffer_') and 's101' not in t:
                continue
            if 'nokv' in opts and ('buffer_store' in t and 'sc1' in t):
                continue
            if 'nodma' in opts and (' lds' in t and 'buffer_load' in t):
                continue
            if 'nopf' in opts and t.startswith('buffer_load_dword v') and 'offen' in t:
                t = t.replace(f's{sPFA}', f's{sMC}')
            if 'plainkv' in opts and ('buffer_store' in t and 'sc1' in t):
                t = t.replace(' sc1', '')
            _orig_i(t)
    A.i = _filt
    def sm(acc, a, w):
        return f'v_smfmac_f32_16x16x64_bf16 {vr(acc,4)}, {vr(a,4)}, {ur(w,8)}, v{vIDX}'
    def wq(f):
        return XQ + 8 * f if f < 8 else WQR + 8 * (f - 8)
    for f in range(4):
        A.i(sm(AQ + 4 * (f & 1), MA + 4 * (f >> 1), wq(f)))
    A.i('s_waitcnt lgkmcnt(0)')
    A.i('s_barrier')
    stamp('Ba')
    ts(4)
    Lxo = A.newlabel('CHxo')
    if 'xonly' in opts:
        A.i(f's_cmp_eq_u32 s{sS}, {nsteps-1}')
        A.i(f's_cbranch_scc1 {Lfin}')
        A.i(f'v_mov_b64 {vr(RC+4,2)}, -1')
        A.i(f'v_mov_b64 {vr(RC+6,2)}, -1')
        A.i(f'buffer_store_dwordx4 {vr(RC+4,4)}, v1, {WSR}, s{sRP} offen')
        A.i(f'buffer_store_dwordx4 {vr(RC+4,4)}, v1, {WSR}, s{sRP} offen offset:1024')
        A.i('s_mov_b64 exec, 0xffff')
        A.i(f'buffer_store_dwordx4 {vr(RC+4,4)}, v1, {WSR}, s{sRM} offen')
        A.i('s_mov_b64 exec, -1')
        for r in range(0, 16, 2):
            A.i(f'v_mov_b64 {vr(RC+16+r,2)}, 0')
        for _ in range(getattr(sy, 'dx', 16)):
            A.i('s_nop 15')
        A.i(f's_branch {Lxo}')
    for p in range(1, 4):
        A.ds(f'ds_read_b128 {vr(MA+8*p+4,4)}, v{RA+8*p} offset:1024', ('ma', 2 * p + 1))
        A.ds(f'ds_read_b128 {vr(MA+8*p,4)}, v{RA+8*p}', ('ma', 2 * p))
    for f in range(2):
        A.i(sm(AK + 4 * (f & 1), MA + 4 * (f >> 1), WK + f * 8))
    A.i(f'buffer_load_dword v{vT0}, v{vPF}, {WSR}, s{sPFA} offen sc1')
    if sy.on:
        A.i(f'buffer_load_dword v{vT0}, off, {WSR}, s{sFA} sc1')
    for f in range(2, 4):
        A.i(sm(AK + 4 * (f & 1), MA + 4 * (f >> 1), WK + f * 8))
    def kx_read(j):
        A.ds(f'ds_read_b128 {vr(KR+(j&3)*4,4)}, v{vKX} offset:{(j>>1)*2048+(j&1)*256}', ('kx', j))
    mf = []
    for ks in range(2, 8):
        if ks in (2, 4, 6):
            mf.append(lambda ks=ks: (A.wl(('ma', ks)), A.i(sm(AQ, MA + 4 * ks, wq(ks * 2)))))
        else:
            mf.append(sm(AQ, MA + 4 * ks, wq(ks * 2)))
        mf.append(sm(AQ + 4, MA + 4 * ks, wq(ks * 2 + 1)))
    fill = []
    for k in range(3):
        fill += frag_read(YS[k], 8 + k, ('y', k))
    fill += [lambda j=j: kx_read(j) for j in range(2)]
    mix(A, mf, fill, per=1, start=4)
    stamp('Qdone')

    def fold_qk(acc, off, t0, t1):
        f = []
        for t in range(2):
            f.append(f'v_permlane32_swap_b32 v{acc+4*t}, v{acc+4*t+2}')
            f.append(f'v_permlane32_swap_b32 v{acc+4*t+1}, v{acc+4*t+3}')
        for t in range(2):
            f.append(f'v_pk_add_f32 {vr(acc+4*t,2)}, {vr(acc+4*t,2)}, {vr(acc+4*t+2,2)}')
        f.append(f'v_cvt_pk_bf16_f32 v{t0}, v{acc}, v{acc+4}')
        f.append(f'v_cvt_pk_bf16_f32 v{t1}, v{acc+1}, v{acc+5}')
        f.append(lambda: A.ds(f'ds_write2_b32 v{vQW}, v{t0}, v{t1} offset0:0 offset1:{QS//4}', 'w') if off == 0 else
                 (A.ds(f'ds_write_b32 v{vQW}, v{t0} offset:{off}', 'w'), A.ds(f'ds_write_b32 v{vQW}, v{t1} offset:{off+QS}', 'w')))
        return f

    mf = []
    for ks in range(2, 8):
        mf.append(sm(AK, MA + 4 * ks, WK + (ks * 2) * 8))
        mf.append(sm(AK + 4, MA + 4 * ks, WK + (ks * 2 + 1) * 8))
    mix(A, mf[:3], [lambda j=j: kx_read(j) for j in range(2, 4)], per=1)
    mix(A, mf[3:8], fold_qk(AQ, 0, AQ + 2, AQ + 3), per=2)
    mix(A, mf[8:11], [f'v_mov_b64 {vr(AV+r,2)}, 0' for r in (0, 4, 6)], per=1)
    A.wl('w')
    A.i('s_barrier')
    stamp('Bb')
    emit(A, mf[11])
    for ks in range(4):
        A.ds(f'ds_read_b128 {vr(QF+4*ks,4)}, v{vQR} offset:{ks*64}', ('q', ks))
    A.i(f'v_mov_b64 {vr(AV+2,2)}, 0')
    if sy.on:
        A.i(f'v_mov_b32 v{S2}, s{sS}')
        A.i(f's_mov_b64 exec, s[{sIO}:{sIO+1}]')
        A.i(f'buffer_store_dword v{S2}, off, {WSR}, s{sFLG} sc1')
        A.i('s_mov_b64 exec, -1')
    early = False
    tag = False
    stamp('Kdone')

    vstate = {'f': 0}
    def vstep():
        f = 15 - vstate['f']
        ks, t = f >> 1, f & 1
        A.i(sm(AV + 4 * t, MA + 4 * ks, WV + f * 8))
        vstate['f'] += 1

    def smx(j):
        ks, kt = j >> 1, j & 1
        S = S2 if kt else S1
        c = '0' if ks == 0 else vr(S, 4)
        def f():
            A.wl(('kx', j))
            A.wl(('q', ks))
            A.i(f'v_mfma_f32_16x16x32_bf16 {vr(S,4)}, {vr(KR+(j&3)*4,4)}, {vr(QF+4*ks,4)}, {c}')
            if j + 4 < 8:
                kx_read(j + 4)
        return f
    for x in fold_qk(AK, L_KI - L_QI, AK + 2, AK + 3):
        emit(A, x)
    if early:
        A.i(f'buffer_store_dwordx4 {vr(S2,4)}, v1, {WSR}, s{sRP} offen offset:1024')
        A.i('s_mov_b64 exec, 0xffff')
        A.i(f'buffer_store_dwordx4 {vr(S2,4)}, v1, {WSR}, s{sRM} offen')
        A.i('s_mov_b64 exec, -1')
    A.wl(('q', 3))
    for j in range(4):
        smx(j)()
    A.wl('w')
    A.i('s_barrier')
    stamp('Bc')
    vstep()
    A.i(f'buffer_store_dword v{AK+2}, v{vX2}, {WSR}, s{sOUT} offen sc1')
    A.i(f'buffer_store_dword v{AK+3}, v{vX2}, {WSR}, s{sOUT} offen offset:256 sc1')
    A.wl(('kx', 7))
    for j in range(4, 8):
        smx(j)()
        A.ds(f'ds_read_b128 {vr(KR+4*(j-4),4)}, v{vQR} offset:{L_KI-L_QI+(j-4)*64}', ('km', j - 4))
    SX = S1
    T0, T1, T2 = S2, S2 + 1, S0 + 2
    def r1(a):
        return f'v_cvt_pk_bf16_f32 v{a}, 0, v{a}'
    vstep()
    A.i(f'v_mov_b64 {vr(PM0,2)}, 0')
    vstep()
    A.i(f'v_mov_b64 {vr(PM1,2)}, 0')
    fx = [f'v_cndmask_b32 v{S1+r}, v{S1+r}, v{S2+r}, s[{sHF}:{sHF+1}]' for r in range(4)]
    fx += [r1(SX + r) for r in range(4)]
    fx += [f'v_mul_f32 v{SX+r}, s{sSCALE}, v{SX+r}' for r in range(4)]
    fx += [r1(SX + r) for r in range(4)]
    fx += [f'v_max3_f32 v{T0}, v{SX}, v{SX+1}, v{SX+2}']
    s0 = []
    for ks in range(4):
        c = '0' if ks == 0 else vr(S0, 4)
        s0.append(lambda ks=ks, c=c: (A.wl(('km', ks if ks != 1 else 3)), A.i(f'v_mfma_f32_16x16x32_bf16 {vr(S0,4)}, {vr(KR+4*ks,4)}, {vr(QF+4*ks,4)}, {c}')))
    mix(A, s0, fx[:8], per=2)
    stamp('S0')
    for t in range(2):
        A.ds(f'ds_read_b128 {vr(VXF+4*t,4)}, v{vLW} offset:{L_VX-L_MEM+t*1024}', ('vx', t))
    for x in fx[8:]:
        emit(A, x)
    wz = [f'v_mov_b64 {vr(WD+r,2)}, 0' for r in range(0, 16, 2)]
    f = [f'v_cndmask_b32 v{S0}, v{S0}, v{S0+2}, s[{sHF}:{sHF+1}]', f'v_cndmask_b32 v{S0+1}, v{S0+1}, v{S0+3}, s[{sHF}:{sHF+1}]',
         r1(S0), r1(S0 + 1), f'v_mul_f32 v{S0}, s{sSCALE}, v{S0}', f'v_mul_f32 v{S0+1}, s{sSCALE}, v{S0+1}', r1(S0), r1(S0 + 1),
         f'v_max3_f32 v{T1}, v{SX+3}, v{S0}, v{S0+1}', f'v_max_f32 v{T0}, v{T0}, v{T1}',
         vstep, wz[0],
         f'v_max_f32_dpp v{T0}, v{T0}, v{T0} row_ror:8 row_mask:0xf bank_mask:0xf',
         f'v_mov_b32 v{T1}, v{T0}', vstep, wz[1], f'v_permlane32_swap_b32 v{T0}, v{T1}', f'v_max_f32 v{T0}, v{T0}, v{T1}',
         f'v_mov_b32 v{T1}, v{T0}', vstep, wz[2], f'v_permlane16_swap_b32 v{T0}, v{T1}', f'v_max_f32 v{T0}, v{T0}, v{T1}',
         f'v_mul_f32 v{T0}, s{sLOG2E}, v{T0}']
    vals = [SX, SX + 1, SX + 2, SX + 3, S0, S0 + 1]
    for a in vals:
        f += [f'v_fma_f32 v{a}, v{a}, s{sLOG2E}, -v{T0}', vstep]
    yr = frag_read(YS[3], 8 + 3, ('y', 3)) + frag_read(YS[4], 8 + 4, ('y', 4))
    f += [yr[0], vstep]
    f += [f'v_exp_f32 v{a}, v{a}' for a in vals]
    f += [f'v_pk_add_f32 {vr(T0,2)}, {vr(SX,2)}, {vr(SX+2,2)}', f'v_add_f32 v{T2}, v{S0}, v{S0+1}', f'v_add_f32 v{T0}, v{T0}, v{T1}',
          f'v_fma_f32 v{T0}, v{T2}, 0.5, v{T0}', vstep, wz[3],
          f'v_add_f32_dpp v{T0}, v{T0}, v{T0} row_ror:8 row_mask:0xf bank_mask:0xf',
          f'v_mov_b32 v{T1}, v{T0}', vstep, wz[4], f'v_permlane32_swap_b32 v{T0}, v{T1}', f'v_add_f32 v{T0}, v{T0}, v{T1}',
          f'v_mov_b32 v{T1}, v{T0}', vstep, wz[5], f'v_permlane16_swap_b32 v{T0}, v{T1}', f'v_add_f32 v{T0}, v{T0}, v{T1}',
          f'v_rcp_f32 v{T0}, v{T0}', yr[1]]
    f += [f'v_pk_mul_f32 {vr(a,2)}, {vr(a,2)}, {vr(T0,2)} op_sel_hi:[1,0]' for a in (SX, SX + 2, S0)]
    f += [f'v_cvt_pk_bf16_f32 v{P4}, v{SX}, v{SX+1}', f'v_cvt_pk_bf16_f32 v{P4+1}, v{SX+2}, v{SX+3}',
          f'v_cvt_pk_bf16_f32 v{T2}, v{S0}, v{S0+1}',
          f'v_mov_b32_dpp v{P4+2}, v{P4} row_ror:8 row_mask:0xf bank_mask:0xf',
          f'v_mov_b32_dpp v{P4+3}, v{P4+1} row_ror:8 row_mask:0xf bank_mask:0xf']
    for x in f:
        emit(A, x)
    assert vstate['f'] == 16, vstate
    pmv = [f'v_mov_b32_dpp v{PM0}, v{T2} quad_perm:[0,1,2,3] row_mask:0x3 bank_mask:0xf',
           f'v_mov_b32_dpp v{PM0+1}, v{T2} row_ror:8 row_mask:0x3 bank_mask:0xf',
           f'v_mov_b32_dpp v{PM1}, v{T2} quad_perm:[0,1,2,3] row_mask:0xc bank_mask:0xf',
           f'v_mov_b32_dpp v{PM1+1}, v{T2} row_ror:8 row_mask:0xc bank_mask:0xf']
    g = [f'v_permlane32_swap_b32 v{AV+r}, v{AV+4+r}' for r in range(4)]
    g += [f'v_pk_add_f32 {vr(AV,2)}, {vr(AV,2)}, {vr(AV+4,2)}', f'v_pk_add_f32 {vr(AV+2,2)}, {vr(AV+2,2)}, {vr(AV+6,2)}']
    g += [f'v_cvt_pk_bf16_f32 v{AV+4}, v{AV}, v{AV+1}', f'v_cvt_pk_bf16_f32 v{AV+5}, v{AV+2}, v{AV+3}']
    stamp('P')
    for x in g[:2]:
        emit(A, x)
    A.wl(('vx', 1))
    A.i(f'v_mfma_f32_16x16x32_bf16 {vr(OD,4)}, {vr(VXF,4)}, {vr(P4,4)}, 0')
    for x in g[2:4]:
        emit(A, x)
    A.i(f'v_mfma_f32_16x16x32_bf16 {vr(OD+4,4)}, {vr(VXF+4,4)}, {vr(P4,4)}, 0')
    for x in g[4:] + pmv:
        emit(A, x)
    A.i(f'v_mfma_f32_16x16x16_bf16 {vr(OD,4)}, {vr(AV+4,2)}, {vr(PM0,2)}, {vr(OD,4)}')
    A.i(f'v_mfma_f32_16x16x16_bf16 {vr(OD+4,4)}, {vr(AV+4,2)}, {vr(PM1,2)}, {vr(OD+4,4)}')
    A.i(f'buffer_store_dwordx2 {vr(AV+4,2)}, v{vVW}, {WSR}, s{sOUT} offen sc1')
    A.i(f's_mov_b32 m0, s{sD2}')
    A.i(f's_cmp_eq_u32 s{sS}, {nsteps-1}')
    for i in range(2):
        A.i(f'buffer_load_dwordx4 v1, {WSR}, s{sNV} offen offset:{i*1024} sc1 lds')
    A.i(f's_mov_b32 m0, s{sDST}')
    SEN = RC + 4
    for x in [yr[2], yr[3], wz[6], wz[7]] + ([] if early else [f'v_mov_b64 {vr(SEN,2)}, -1', f'v_mov_b64 {vr(SEN+2,2)}, -1']):
        emit(A, x)
    A.i(f's_cbranch_scc1 {Lfin}')
    for c in range(4):
        A.i(f'v_cvt_pk_bf16_f32 v{OP+c}, v{OD+c}, v{OD+4+c}')
    A.i(f's_mov_b64 exec, s[{sLF}:{sLF+1}]')
    A.ds(f'ds_write_b128 v{vOW}, {vr(OP,4)}', 'w')
    A.i('s_mov_b64 exec, -1')
    for c in range(4):
        A.i(f'v_mov_b32_dpp v{OP+c}, v{OP+c} row_ror:8 row_mask:0xf bank_mask:0xc')
    for p in range(1, 4):
        A.i(f'v_xor_b32 v{OA+4*p}, {p << 9:#x}, v{vOW}')
    def wo_step(p):
        ks, cg = p >> 2, p & 3
        if p == 4:
            A.wl(('o', 1))
        if p == 8:
            A.wl(('o', 3))
        if p < 5:
            w = YS[p]
        elif p < 13:
            w = WOR + (p - 5) * 8
        else:
            w = YS[p - 13]
            if p == 13:
                A.wl(('y', 15))
        A.i(sm(WD + 4 * cg, OP if ks == 0 else OA + 4 * ks, w))
    wo_step(0)
    A.i(f'buffer_store_dwordx4 {vr(SEN,4)}, v1, {WSR}, s{sRP} offen')
    wo_step(1)
    A.wl_all()
    A.i('s_barrier')
    for ks in range(1, 4):
        A.ds(f'ds_read_b128 {vr(OA+4*ks,4)}, v{OA+4*ks}', ('o', ks))
    wo_step(2)
    A.i(f'buffer_store_dwordx4 {vr(SEN,4)}, v1, {WSR}, s{sRP} offen offset:1024')
    wo_step(3)
    A.i('s_mov_b64 exec, 0xffff')
    A.i(f'buffer_store_dwordx4 {vr(SEN,4)}, v1, {WSR}, s{sRM} offen')
    A.i('s_mov_b64 exec, -1')
    for i in range(2):
        A.i(f'buffer_load_dwordx4 v1, {WSR}, s{sNX} offen offset:{i*1024} sc1 lds')
    stamp('Bd')
    yy = []
    for k in range(3):
        yy += frag_read(YS[k], 8 + 5 + k, ('y', 13 + k))
    for p in range(4, 16):
        wo_step(p)
        if yy:
            yy.pop(0)()
    if 'xonly' in opts:
        A.label(Lxo)
    for r in range(4):
        A.i(f'v_cvt_pk_bf16_f32 v{PK+2*r}, v{WD+r}, v{WD+4+r}')
        if tag:
            A.i(f'v_and_or_b32 v{PK+2*r}, v{PK+2*r}, -2, s{sFA}')
    for r in range(4):
        A.i(f'v_cvt_pk_bf16_f32 v{PK+2*r+1}, v{WD+8+r}, v{WD+12+r}')
        if tag:
            A.i(f'v_and_or_b32 v{PK+2*r+1}, v{PK+2*r+1}, -2, s{sFA}')
        if r == 1:
            A.i(f'buffer_store_dwordx4 {vr(PK,4)}, v{vPST}, {WSR}, s{sPC} offen')
    A.i(f'buffer_store_dwordx4 {vr(PK+4,4)}, v{vPST}, {WSR}, s{sPC2} offen')
    stamp('Wo')
    if prof:
        ts(5)
        A.i('s_waitcnt lgkmcnt(0)')
        for k in range(5):
            A.i(f's_sub_u32 s{sT0}, s{4+2*(k+1)}, s{4+2*k}')
            A.i(f's_cmp_gt_u32 s{sS}, 4')
            A.i(f's_cselect_b32 s{sT0}, s{sT0}, 0')
            A.i(f's_add_u32 s{20+k}, s{20+k}, s{sT0}')
        A.i('s_mov_b32 s4, s14')
    SELR, RS, HA, IMG = RA + 16, RA + 20, RA, RA + 28
    Lbe = A.newlabel('CHbe')
    A.ds(f'ds_read_b128 {vr(SELR,4)}, v{vL2} offset:{L_SEL-L_MEM}', 'sel')
    if sy.on:
        A.i('s_waitcnt vmcnt(12)')
        A.i(f'v_readfirstlane_b32 s{sT0}, v{vT0}')
        A.i(f's_max_u32 s{sKVS}, s{sKVS}, s{sT0}')
    sy.trace(A, RD, sS, imm=0, wave=3)
    pre_step()
    A.i(f's_add_u32 s{sT5}, s{sPC}, s{sH1}')
    A.i(f's_lshl_b32 s{sT3}, s{sW}, 11')
    A.i(f's_add_u32 s{sT3}, s{sT3}, s{sMC}')
    A.i(f's_mov_b32 s{sT4}, s{sMC}')

    CT = RA + 26
    def chain_max(H, n):
        A.i(f'v_max3_u32 v{CT}, v{H}, v{H+1}, v{H+2}')
        for k in range(3, n - 1, 2):
            A.i(f'v_max3_u32 v{CT}, v{CT}, v{H+k}, v{H+k+1}')
        A.i(f'v_max_u32 v{CT}, v{CT}, v{H+n-1}')
    KF = getattr(sy, 'dk', 2)

    A.wl_all()
    A.i(f's_cmp_ge_u32 s{sW}, 2')
    A.i(f's_cbranch_scc1 {Lbe}')
    for _ in range(getattr(sy, 'd1', 2)):
        A.i('s_nop 15')
    Lp1, Lok1 = A.newlabel('CHp1'), A.newlabel('CHok1')
    def h1_loads():
        for L in range(4):
            A.i(f'buffer_load_dwordx4 {vr(HA+4*L,4)}, v1, {WSR}, s{sT5} offen offset:{L*1024} sc1')
    def h1_mfma(waits):
        for L in range(4):
            if waits:
                A.i(f's_waitcnt vmcnt({3-L})')
            c = '0' if L == 0 else vr(RS, 4)
            A.i(f'v_mfma_f32_16x16x32_bf16 {vr(RS,4)}, {vr(SELR,4)}, {vr(HA+4*L,4)}, {c}')
    h1_loads()
    h1_mfma(True)
    chain_max(HA, 16)
    A.i(f'v_cmpx_eq_u32 vcc, -1, v{CT}')
    A.i(f's_cbranch_execz {Lok1}')
    if 'nox' not in opts:
        A.label(Lp1)
        cnt(0)
        h1_loads()
        A.i(f's_waitcnt vmcnt({4*KF})')
        chain_max(HA, 16)
        A.i(f'v_cmpx_eq_u32 vcc, -1, v{CT}')
        A.i(f's_cbranch_execnz {Lp1}')
    A.i('s_mov_b64 exec, -1')
    h1_mfma(False)
    A.label(Lok1)
    A.i('s_mov_b64 exec, -1')
    for r in range(4):
        A.i(f'v_add_f32_dpp v{RS+r}, v{RS+r}, v{RS+r} row_ror:8 row_mask:0xf bank_mask:0xf')
    A.i('s_mov_b64 exec, 0x00ff00ff')
    A.i(f'v_cvt_pk_bf16_f32 v{RS}, v{RS}, v{RS+1}')
    A.i(f'v_cvt_pk_bf16_f32 v{RS+1}, v{RS+2}, v{RS+3}')
    A.i(f'buffer_store_dwordx2 {vr(RS,2)}, v{vX1}, {WSR}, s{sT4} offen')
    A.i('s_mov_b64 exec, -1')
    A.label(Lbe)
    ts(1)
    A.i('s_barrier')
    ts(2)
    A.i(f's_add_u32 s{sS}, s{sS}, 1')
    step_scalars(addr=False)
    kv_wait(sS1, RA + 27, RA + 28)
    for _ in range(getattr(sy, 'd2', 1)):
        A.i('s_nop 15')
    Lp2, Lok2 = A.newlabel('CHp2'), A.newlabel('CHok2')
    def h2_loads():
        for i in range(2):
            A.i(f'buffer_load_dwordx4 {vr(HA+4*i,4)}, v1, {WSR}, s{sT3} offen offset:{i*1024} sc1')
    h2_loads()
    for i in range(2):
        A.i(f's_waitcnt vmcnt({1-i})')
        A.i(f'ds_write_b128 v{vLW}, {vr(HA+4*i,4)} offset:{i*1024}')
    chain_max(HA, 8)
    for p in range(1, 4):
        A.i(f'v_xor_b32 v{RA+8*p}, {p << 11:#x}, v{vLW}')
    A.i(f'v_cmpx_eq_u32 vcc, -1, v{CT}')
    A.i(f's_cbranch_execz {Lok2}')
    if 'nox' not in opts:
        A.i(f's_mov_b64 s[40:41], exec')
        A.label(Lp2)
        cnt(1)
        h2_loads()
        A.i(f's_waitcnt vmcnt({2*KF})')
        chain_max(HA, 8)
        A.i(f'v_cmpx_eq_u32 vcc, -1, v{CT}')
        A.i(f's_cbranch_execnz {Lp2}')
        A.i('s_mov_b64 exec, s[40:41]')
        for i in range(2):
            A.i(f'ds_write_b128 v{vLW}, {vr(HA+4*i,4)} offset:{i*1024}')
    A.label(Lok2)
    A.i('s_mov_b64 exec, -1')
    ts(3)
    A.i(f's_branch {Ltop}')
    A.label(Lcut)
    A.i(f's_add_u32 s{sS}, s{sS}, 1')
    sy.trace(A, RD, sS, imm=0, wave=3)
    A.wl_all()
    A.i(f's_branch {Ltop}')
    A.i = _orig_i
    A.label(Lfin)
    if sy.tr and not prof:
        A.i('s_memtime s[6:7]')
        A.i('s_waitcnt lgkmcnt(0)')
        A.i('s_sub_u32 s6, s6, s4')
        A.i(f'v_mov_b32 v{vT0}, s6')
        A.i(f'buffer_store_dword v{vT0}, off, {WSR}, s100 offset:{120*4}')
    if prof:
        A.i(f's_lshl_b32 s101, s{sW}, 6')
        A.i('s_add_u32 s101, s101, s100')
        A.i('s_mov_b64 exec, 1')
        for k in range(10):
            A.i(f'v_mov_b32 v{vT0}, s{20+k}')
            A.i(f'buffer_store_dword v{vT0}, off, {WSR}, s101 offset:{512+4*k}')
        A.i('s_mov_b64 exec, -1')
    if sy.on:
        A.i('s_waitcnt vmcnt(0)')
        A.i('s_barrier')
        A.i(f's_add_u32 s{sT0}, s{sS}, 1')
        A.i(f'v_mov_b32 v{vT0}, s{sT0}')
        A.i(f's_mov_b64 exec, s[{sIO}:{sIO+1}]')
        A.i(f'buffer_store_dword v{vT0}, off, {WSR}, s{sFLG} sc1')
        A.i('s_mov_b64 exec, -1')
    A.i(f's_branch {end}')
    for Lp, Lok, sseg, r0, r1 in slow:
        A.label(Lp)
        A.i(f'buffer_load_dword v{r0}, off, {WSR}, s{sKVF} sc1')
        A.i('s_waitcnt vmcnt(0)')
        A.i(f'v_readfirstlane_b32 s{sKVS}, v{r0}')
        A.i(f's_cmp_gt_u32 s{sKVS}, s{sseg}')
        A.i(f's_cbranch_scc1 {Lok}')
        A.i(f's_branch {Lp}')
```

```python
from common import *

WSR = f's[{S_WS}:{S_WS+3}]'


def load_weights(A, units, tmp0, batch_regs, ptmp):
    ring = 2 * batch_regs
    GR = 8
    ngroups = ring // GR
    groups = []
    cur, used = [], 0
    for u in units:
        w = u[5]
        if used + 2 * w > GR:
            groups.append(cur)
            cur, used = [], 0
        cur.append((u, used))
        used += 2 * w
    if cur:
        groups.append(cur)

    def issue(gi):
        base = tmp0 + (gi % ngroups) * GR
        for (srd_s, voff, sbase, off0, off1, w, outs), at in groups[gi]:
            for k, off in enumerate((off0, off1)):
                A.i(f's_add_u32 s{sT0}, s{sbase}, {off:#x}')
                mn = {1: 'buffer_load_dword', 2: 'buffer_load_dwordx2', 4: 'buffer_load_dwordx4'}[w]
                A.i(f'{mn} {vr(base + at + k * w, w)}, v{voff}, s[{srd_s}:{srd_s+3}], s{sT0} offen')

    depth = ngroups - 1
    for gi in range(min(depth, len(groups))):
        issue(gi)
    for gi in range(len(groups)):
        if gi + depth < len(groups):
            issue(gi + depth)
        younger = sum(2 * len(groups[k]) for k in range(gi + 1, min(gi + depth + 1, len(groups))))
        A.i(f's_waitcnt vmcnt({min(younger, 63)})')
        base = tmp0 + (gi % ngroups) * GR
        for (srd_s, voff, sbase, off0, off1, w, outs), at in groups[gi]:
            for n, (dst, dw, sel) in enumerate(outs):
                perm_to(A, dst, base + at + w + dw, base + at + dw, sel, ptmp + (n & 1))


def role_init(A, end):
    Lfill = A.newlabel('Lfill')
    A.i(f's_cmp_ge_u32 s2, 48')
    A.i(f's_cbranch_scc1 {Lfill}')
    srd(A, S_A, P_C, 1024)
    srd(A, S_B, P_WMOD, 512 * 6144)
    A.i(f's_lshl_b32 s{sT0}, s{sW}, 6')
    A.i(f'v_add_u32 v2, s{sT0}, v0')
    A.i('v_and_b32 v3, 7, v2')
    A.i('v_lshrrev_b32 v4, 3, v2')
    A.i('v_lshlrev_b32 v5, 5, v4')
    A.i(f'buffer_load_dwordx4 v[8:11], v5, s[{S_A}:{S_A+3}], 0 offen')
    A.i(f'buffer_load_dwordx4 v[12:15], v5, s[{S_A}:{S_A+3}], 0 offen offset:16')
    A.i(f's_mov_b32 s{sT1}, {16*6144}')
    A.i(f'v_mul_lo_u32 v6, v4, s{sT1}')
    A.i('v_lshl_add_u32 v6, v3, 4, v6')
    A.i(f's_lshl_b32 s{sT1}, s2, 7')
    for i in range(16):
        A.i(f's_add_u32 s{sT0}, s{sT1}, {i*6144}')
        A.i(f'buffer_load_dwordx4 v[{64+4*i}:{67+4*i}], v6, s[{S_B}:{S_B+3}], s{sT0} offen')
    A.i('s_waitcnt vmcnt(16)')
    for i in range(8):
        unpack(A, 16 + 2 * i, 17 + 2 * i, 8 + i)
    for i in range(16):
        A.i(f'v_mul_f32 v{32+i}, s{sLOG2E}, v{16+i}')
    for i in range(16):
        A.i(f'v_exp_f32 v{32+i}, -v{32+i}')
    for i in range(16):
        A.i(f'v_add_f32 v{32+i}, 1.0, v{32+i}')
    for i in range(16):
        A.i(f'v_rcp_f32 v{32+i}, v{32+i}')
    for i in range(16):
        A.i(f'v_mul_f32 v{16+i}, v{16+i}, v{32+i}')
    for i in range(8):
        round2(A, 16 + 2 * i, 17 + 2 * i, 48)
    for j in range(8):
        A.i(f'v_mov_b32 v{32+j}, 0')
    for i in range(16):
        A.i(f's_waitcnt vmcnt({15-i})')
        for d in range(4):
            unpack(A, 48, 49, 64 + 4 * i + d)
            A.i(f'v_fmac_f32 v{32+2*d}, v{16+i}, v48')
            A.i(f'v_fmac_f32 v{33+2*d}, v{16+i}, v49')
    A.i('v_lshlrev_b32 v5, 8, v4')
    A.i('v_lshl_add_u32 v5, v3, 5, v5')
    A.i('ds_write_b128 v5, v[32:35]')
    A.i('ds_write_b128 v5, v[36:39] offset:16')
    A.i('s_waitcnt lgkmcnt(0)')
    A.i('s_barrier')
    A.i(f's_cmp_lg_u32 s{sW}, 0')
    A.i(f's_cbranch_scc1 {end}')
    A.i('v_lshlrev_b32 v5, 2, v0')
    for i in range(32):
        A.i(f'ds_read_b32 v{64+i}, v5 offset:{i*256}')
        if i == 14 or i == 29:
            A.i('s_waitcnt lgkmcnt(0)')
    A.i('s_waitcnt lgkmcnt(0)')
    for st in (16, 8, 4, 2, 1):
        for i in range(st):
            A.i(f'v_add_f32 v{64+i}, v{64+i}, v{64+st+i}')
    A.i('v_cvt_pk_bf16_f32 v64, v64, v64')
    A.i('v_lshlrev_b32 v64, 16, v64')
    A.i(f's_lshl_b32 s{sT0}, s2, 8')
    A.i(f's_add_u32 s{sT0}, s{sT0}, {MOD:#x}')
    A.i(f'buffer_store_dword v64, v5, {WSR}, s{sT0} offen')
    A.i(f's_branch {end}')
    A.label(Lfill)
    A.i(f's_sub_u32 s{sT0}, s2, 48')
    A.i(f's_lshl_b32 s{sT1}, s{sT0}, 14')
    A.i(f's_add_u32 s{sT2}, s{sT1}, {XM:#x}')
    A.i(f's_add_u32 s{sT3}, s{sT1}, {FLAGS - 66*16384:#x}')
    A.i(f's_cmp_lt_u32 s{sT0}, 66')
    A.i(f's_cselect_b32 s{sT2}, s{sT2}, s{sT3}')
    A.i(f's_cselect_b32 s{sT3}, -1, 0')
    A.i(f's_lshl_b32 s{sT1}, s{sW}, 12')
    A.i(f's_add_u32 s{sT2}, s{sT2}, s{sT1}')
    for i in range(4):
        A.i(f'v_mov_b32 v{4+i}, s{sT3}')
    for i in range(4):
        A.i(f'buffer_store_dwordx4 v[4:7], v1, {WSR}, s{sT2} offen offset:{i*1024}')
    A.i(f's_branch {end}')


def load_mod8(A, dst, which):
    A.i(f's_mov_b32 s{sT0}, {MOD + which*2048:#x}')
    A.i(f'buffer_load_dwordx4 v[{dst}:{dst+3}], v2, {WSR}, s{sT0} offen sc1')
    A.i(f'buffer_load_dwordx4 v[{dst+4}:{dst+7}], v2, {WSR}, s{sT0} offen offset:16 sc1')


def one_plus(A, c, tmp):
    for j in range(8):
        A.i(f'v_add_f32 v{c+j}, 1.0, v{c+j}')
    for j in range(4):
        round2(A, c + 2 * j, c + 2 * j + 1, tmp)


def ln_core(A, x, t, c1, sh, out):
    A.i(f'v_add_f32 v{t}, v{x}, v{x+1}')
    A.i(f'v_add_f32 v{t+1}, v{x+2}, v{x+3}')
    A.i(f'v_add_f32 v{t+2}, v{x+4}, v{x+5}')
    A.i(f'v_add_f32 v{t+3}, v{x+6}, v{x+7}')
    A.i(f'v_add_f32 v{t}, v{t}, v{t+1}')
    A.i(f'v_add_f32 v{t+2}, v{t+2}, v{t+3}')
    A.i(f'v_add_f32 v{t}, v{t}, v{t+2}')
    wave_sum(A, t, sT4)
    A.i(f'v_mov_b32 v{t+8}, 0x3b000000')
    A.i(f'v_mul_f32 v{t+9}, s{sT4}, v{t+8}')
    for j in range(8):
        A.i(f'v_sub_f32 v{t+j}, v{x+j}, v{t+9}')
    A.i(f'v_mul_f32 v{t}, v{t}, v{t}')
    A.i(f'v_mul_f32 v{t+1}, v{t+1}, v{t+1}')
    for j in range(2, 8):
        A.i(f'v_fmac_f32 v{t+(j&1)}, v{t+j}, v{t+j}')
    A.i(f'v_add_f32 v{t}, v{t}, v{t+1}')
    wave_sum(A, t, sT4)
    A.i(f'v_mul_f32 v{t+8}, s{sT4}, v{t+8}')
    round2(A, t + 8, t + 9, t)
    A.i(f'v_add_f32 v{t+8}, 0x3727c5ac, v{t+8}')
    A.i(f'v_cvt_pk_bf16_f32 v{t+8}, v{t+8}, v{t+8}')
    A.i(f'v_lshlrev_b32 v{t+8}, 16, v{t+8}')
    A.i(f'v_sqrt_f32 v{t+8}, v{t+8}')
    A.i(f'v_cvt_pk_bf16_f32 v{t+8}, v{t+8}, v{t+8}')
    A.i(f'v_lshlrev_b32 v{t+8}, 16, v{t+8}')
    A.i(f'v_rcp_f32 v{t+8}, v{t+8}')
    for j in range(8):
        A.i(f'v_sub_f32 v{x+j}, v{x+j}, v{t+9}')
    for j in range(4):
        round2(A, x + 2 * j, x + 2 * j + 1, t + j)
    for j in range(8):
        A.i(f'v_mul_f32 v{x+j}, v{x+j}, v{t+8}')
    for j in range(4):
        round2(A, x + 2 * j, x + 2 * j + 1, t + j)
    for j in range(8):
        A.i(f'v_mul_f32 v{x+j}, v{x+j}, v{c1+j}')
    for j in range(4):
        round2(A, x + 2 * j, x + 2 * j + 1, t + j)
    for j in range(8):
        A.i(f'v_add_f32 v{x+j}, v{x+j}, v{sh+j}')
    for j in range(4):
        A.i(f'v_cvt_pk_bf16_f32 v{out+j}, v{x+2*j}, v{x+2*j+1}')


def role_ln1(A, sy, sidx):
    srd(A, S_A, P_X, 2048 * 1024)
    A.i('v_lshlrev_b32 v2, 5, v0')
    A.i(f's_lshl_b32 s{sT1}, s{sidx}, 2')
    A.i(f's_add_u32 s{sT1}, s{sT1}, s{sW}')
    A.i(f's_lshl_b32 s{sT1}, s{sT1}, 10')
    for q in range(8):
        A.i(f's_add_u32 s{sT0}, s{sT1}, {q*256*1024:#x}')
        A.i(f'buffer_load_dwordx4 v[{64+4*q}:{67+4*q}], v1, s[{S_A}:{S_A+3}], s{sT0} offen')
    if getattr(sy, 'single', False):
        mod_wait(A, sy, 0, 16, 3, 4)
    load_mod8(A, 8, 1)
    load_mod8(A, 16, 0)
    A.i(f's_lshl_b32 s{sT0}, s{sidx}, 7')
    A.i(f's_add_u32 s{sT0}, s{sT0}, {F_H:#x}')
    A.i(f'v_mov_b32 v3, s{sT0}')
    A.i('s_waitcnt vmcnt(0)')
    one_plus(A, 8, 4)
    for q in range(8):
        for j in range(4):
            unpack(A, 24 + 2 * j, 25 + 2 * j, 64 + 4 * q + j)
        ln_core(A, 24, 32, 8, 16, 44 + 4 * (q & 1))
        A.i(f's_add_u32 s{sT0}, s{sT1}, {H + q*256*1024:#x}')
        A.i(f'buffer_store_dwordx4 v[{44+4*(q&1)}:{47+4*(q&1)}], v1, {WSR}, s{sT0} offen sc1')
        if sy.on and q in (0, 3, 7):
            A.i('s_waitcnt vmcnt(0)')
            A.i('s_barrier')
            Ls = A.newlabel('Lln')
            A.i(f's_cmp_lg_u32 s{sW}, 0')
            A.i(f's_cbranch_scc1 {Ls}')
            A.i(f's_mov_b32 s{sT0}, {q+1}')
            sy.publish(A, 3, 4, sT0)
            A.label(Ls)


XB0 = 0
XBS = 32768


def t1_setup(A, vdma, vrd, swap_odd=False):
    A.i(f's_and_b32 s{sT0}, s{sW}, 1')
    A.i(f's_lshl_b32 s{sT1}, s{sT0}, 7')
    A.i(f'v_xor_b32 v{vdma}, s{sT1}, v1')
    A.i(f'v_and_b32 v{vrd+7}, 15, v0')
    A.i(f'v_lshrrev_b32 v{vrd+6}, 4, v0')
    A.i(f'v_xor_b32 v{vrd+6}, v{vrd+6}, v{vrd+7}')
    A.i(f'v_lshlrev_b32 v{vrd+6}, 4, v{vrd+6}')
    A.i(f'v_lshl_or_b32 v{vrd+7}, v{vrd+7}, 10, v{vrd+6}')
    if swap_odd:
        A.i(f's_lshl_b32 s{sT1}, s{sT0}, 14')
        A.i(f'v_xor_b32 v{vrd+7}, s{sT1}, v{vrd+7}')
    for k in range(4):
        A.i(f'v_xor_b32 v{vrd+k}, {k*64}, v{vrd+7}')
    for k in range(3, -1, -1):
        A.i(f'v_xor_b32 v{vrd+4+k}, 0x4000, v{vrd+k}')


def t1_dma(A, vdma, vtmp, ssrc, sbuf):
    A.i(f's_lshl_b32 s{sT0}, s{sW}, 13')
    A.i(f's_add_u32 s{sT1}, s{sT0}, s{ssrc}')
    A.i(f's_add_u32 s{sT0}, s{sT0}, s{sbuf}')
    A.i(f's_mov_b32 m0, s{sT0}')
    for i in range(8):
        if i == 4:
            A.i(f's_add_u32 s{sT0}, s{sT0}, 4096')
            A.i(f's_add_u32 s{sT1}, s{sT1}, 4096')
            A.i(f's_mov_b32 m0, s{sT0}')
        A.i(f'v_xor_b32 v{vtmp+(i&1)}, {i*16}, v{vdma}')
        A.i(f'buffer_load_dwordx4 v{vtmp+(i&1)}, {WSR}, s{sT1} offen offset:{(i&3)*1024} sc1 lds')


def t1_compute(A, vrd, vabuf, xf, wbase, dbase, swapped, mid=None):
    def rd(ks):
        for tt in range(2):
            A.i(f'ds_read_b128 {vr(xf + (ks & 3) * 8 + tt * 4, 4)}, v{vabuf + tt*4 + (ks & 3)} offset:{(ks >> 2) * 256}')
    for ks in range(3):
        rd(ks)
    for ks in range(16):
        if ks + 3 < 16:
            rd(ks + 3)
            A.i('s_waitcnt lgkmcnt(6)')
        else:
            A.i(f's_waitcnt lgkmcnt({2 * (15 - ks)})')
        for t in range(2):
            for tt in range(2):
                d = ur(dbase + (t * 2 + tt) * 4, 4)
                w = ur(wbase + (ks * 2 + t) * 4, 4)
                x = vr(xf + (ks & 3) * 8 + tt * 4, 4)
                c = '0' if ks == 0 else d
                if swapped:
                    A.i(f'v_mfma_f32_16x16x32_bf16 {d}, {w}, {x}, {c}')
                else:
                    A.i(f'v_mfma_f32_16x16x32_bf16 {d}, {x}, {w}, {c}')
        if mid is not None:
            mid(ks)


def paired_units(srd_s, voff, sbase, rs, nks, wbase):
    units = []
    for ks in range(nks):
        for i in range(4):
            r0 = 32 * ks + 2 * i
            units.append((srd_s, voff, sbase, r0 * rs, (r0 + 1) * rs, 1,
                          [(wbase + (ks * 2 + 0) * 4 + i, 0, f's{SELLO}'), (wbase + (ks * 2 + 1) * 4 + i, 0, f's{SELHI}')]))
    return units


def lane_woff(A, dst, rs, colbytes, tmp):
    A.i(f'v_lshrrev_b32 v{tmp}, 4, v0')
    A.i(f's_mov_b32 s{sT0}, {8*rs}')
    A.i(f'v_mul_lo_u32 v{dst}, v{tmp}, s{sT0}')
    A.i(f'v_and_b32 v{tmp}, 15, v0')
    A.i(f'v_mul_u32_u24 v{tmp}, {colbytes}, v{tmp}')
    A.i(f'v_add_u32 v{dst}, v{dst}, v{tmp}')


def h_flag_addr(A, vdst, sseg, stmp):
    A.i(f's_and_b32 s{stmp}, s{sseg}, 7')
    A.i(f's_lshl_b32 s{stmp}, s{stmp}, 10')
    A.i(f's_add_u32 s{stmp}, s{stmp}, {F_H:#x}')
    A.i(f'v_and_b32 v{vdst}, 7, v0')
    A.i(f'v_lshlrev_b32 v{vdst}, 7, v{vdst}')
    A.i(f'v_add_u32 v{vdst}, s{stmp}, v{vdst}')


def t1_loop(A, sy, name, seg0, segstep, src_base, wait_src, body, vdma, vrd, vab, vtmp, vflag):
    Ltop, Lhave, Lnopf, Lend = (A.newlabel(name + x) for x in ('top', 'have', 'nopf', 'end'))
    A.i(f's_mov_b32 s72, {XB0}')
    A.i('s_mov_b32 s73, 0')
    A.label(Ltop)
    A.i('s_cmp_lg_u32 s73, 0')
    A.i(f's_cbranch_scc1 {Lhave}')
    wait_src(sS, True, None)
    A.i(f's_lshl_b32 s75, s{sS}, 15')
    A.i(f's_add_u32 s75, s75, {src_base:#x}')
    t1_dma(A, vdma, vtmp, 75, 72)
    A.label(Lhave)
    A.i('s_waitcnt vmcnt(0)')
    A.i('s_barrier')
    for k in range(8):
        A.i(f'v_add_u32 v{vab+k}, s72, v{vrd+k}')
    A.i('s_mov_b32 s73, 0')
    A.i(f's_add_u32 s74, s{sS}, {segstep}')
    A.i('s_cmp_ge_u32 s74, 64')
    A.i(f's_cbranch_scc1 {Lnopf}')
    wait_src(74, False, Lnopf)
    A.i('s_lshl_b32 s75, s74, 15')
    A.i(f's_add_u32 s75, s75, {src_base:#x}')
    A.i(f's_xor_b32 s76, s72, {XBS}')
    t1_dma(A, vdma, vtmp, 75, 76)
    A.i('s_mov_b32 s73, 1')
    A.label(Lnopf)
    body()
    if sy.on:
        A.i('s_waitcnt vmcnt(0)')
    A.i('s_barrier')
    if sy.on:
        Ls = A.newlabel(name + 'pub')
        A.i(f's_cmp_lg_u32 s{sW}, 0')
        A.i(f's_cbranch_scc1 {Ls}')
        A.i(f's_add_u32 s{sT0}, s{sS}, 1')
        sy.publish(A, vflag, vtmp, sT0)
        A.label(Ls)
    A.i(f's_xor_b32 s72, s72, {XBS}')
    A.i(f's_add_u32 s{sS}, s{sS}, {segstep}')
    A.i(f's_cmp_lt_u32 s{sS}, 64')
    A.i(f's_cbranch_scc1 {Ltop}')
    A.label(Lend)


def flag_test(A, sy, vaddr, vtmp, sneed, blocking, Lnot):
    if not sy.on:
        return
    if blocking:
        sy.wait(A, vaddr, vtmp, sneed)
    else:
        A.i(f'buffer_load_dword v{vtmp}, v{vaddr}, {WSR}, 0 offen sc1')
        A.i('s_waitcnt vmcnt(0)')
        A.i(f'v_cmp_le_u32 vcc, s{sneed}, v{vtmp}')
        A.i('s_cmp_eq_u64 vcc, exec')
        A.i(f's_cbranch_scc0 {Lnot}')


def make_wait_h(A, sy, va, vtmp):
    def wait_src(sseg, blocking, Lnot):
        if not sy.on:
            return
        h_flag_addr(A, va, sseg, sT0)
        A.i(f's_lshr_b32 s{sT2}, s{sseg}, 3')
        A.i(f's_add_u32 s{sT2}, s{sT2}, 1')
        flag_test(A, sy, va, vtmp, sT2, blocking, Lnot)
    return wait_src


def role_kv(A, sy, is_v):
    name = 'V' if is_v else 'K'
    srd(A, S_A, P_WV if is_v else P_WK, 512 * 8192)
    VDMA, VRD, VAB, VT_, VFL, VST, VWA = 2, 4, 12, 20, 22, 23, 24
    XF, D, PK = 32, 64, 80
    lane_woff(A, 3, 8192, 4, 4)
    A.i(f's_lshl_b32 s77, s{sR}, 8')
    A.i(f's_lshl_b32 s{sT0}, s{sW}, 6')
    A.i(f's_add_u32 s77, s77, s{sT0}')
    load_weights(A, paired_units(S_A, 3, 77, 8192, 16, 256), 128, 32, 4)
    t1_setup(A, VDMA, VRD)
    A.i(f's_lshl_b32 s{sT0}, s{sR}, 7')
    A.i(f's_add_u32 s{sT0}, s{sT0}, {F_KV + (32*FL if is_v else 0):#x}')
    A.i(f'v_mov_b32 v{VFL}, s{sT0}')
    if is_v:
        A.i(f's_lshl_b32 s77, s{sR}, 13')
        A.i(f's_lshl_b32 s{sT0}, s{sW}, 11')
        A.i(f's_add_u32 s77, s77, s{sT0}')
        A.i(f's_add_u32 s77, s77, {VT:#x}')
        A.i(f'v_mov_b32 v{VST}, v1')
    else:
        A.i(f's_lshl_b32 s77, s{sR}, 13')
        A.i(f's_lshl_b32 s{sT0}, s{sW}, 11')
        A.i(f's_add_u32 s77, s77, s{sT0}')
        A.i(f's_add_u32 s77, s77, {KX:#x}')
        A.i(f'v_lshrrev_b32 v{VST}, 4, v0')
        A.i(f'v_lshlrev_b32 v{VST}, 9, v{VST}')
        A.i(f'v_and_b32 v{VT_}, 15, v0')
        A.i(f'v_lshl_add_u32 v{VST}, v{VT_}, 4, v{VST}')
    A.i(f's_mov_b32 s{sS}, 0')

    def body():
        t1_compute(A, VRD, VAB, XF, 256, D, swapped=not is_v)
        A.i(f's_lshl_b32 s{sT0}, s{sS}, 18')
        A.i(f's_add_u32 s{sT0}, s{sT0}, s77')
        if is_v:
            for t in range(2):
                for tt in range(2):
                    d = D + (t * 2 + tt) * 4
                    A.i(f'v_cvt_pk_bf16_f32 v{PK+t*4+tt*2}, v{d}, v{d+1}')
                    A.i(f'v_cvt_pk_bf16_f32 v{PK+t*4+tt*2+1}, v{d+2}, v{d+3}')
                A.i(f'buffer_store_dwordx4 v[{PK+t*4}:{PK+t*4+3}], v{VST}, {WSR}, s{sT0} offen offset:{t*1024} sc1')
        else:
            for tt in range(2):
                for r in range(4):
                    A.i(f'v_cvt_pk_bf16_f32 v{PK+tt*4+r}, v{D+tt*4+r}, v{D+(2+tt)*4+r}')
                A.i(f'buffer_store_dwordx4 v[{PK+tt*4}:{PK+tt*4+3}], v{VST}, {WSR}, s{sT0} offen offset:{tt*256} sc1')

    t1_loop(A, sy, name, 0, 1, H, make_wait_h(A, sy, VWA, VT_), body, VDMA, VRD, VAB, VT_, VFL)


def score_round(A, regs, tmp):
    for a, b in zip(regs[0::2], regs[1::2]):
        round2(A, a, b, tmp)
    for a in regs:
        A.i(f'v_mul_f32 v{a}, s{sSCALE}, v{a}')
    for a, b in zip(regs[0::2], regs[1::2]):
        round2(A, a, b, tmp)


def xlane(A, op, v, t):
    A.i(f'v_mov_b32 v{t}, v{v}')
    A.i(f'v_permlane32_swap_b32 v{v}, v{t}')
    A.i(f'{op} v{v}, v{v}, v{t}')
    A.i(f'v_mov_b32 v{t}, v{v}')
    A.i(f'v_permlane16_swap_b32 v{v}, v{t}')
    A.i(f'{op} v{v}, v{v}, v{t}')


QIMG = 65536


def role_qa(A, sy):
    srd(A, S_A, P_WQ, 512 * 8192)
    VDMA, VRD, VAB, VT_, VFL, VWA = 2, 4, 12, 20, 22, 24
    VQW, VQR, VKX, VKM, VVM, VOST, VFKV, VFCH = 23, 25, 26, 27, 28, 29, 30, 31
    XF, D, PK = 32, 64, 80
    KF, VF, QF, KMF, VMF = 96, 128, 144, 160, 176
    S1, S2, S0, PX, PY, PM, OD, TM = 184, 188, 192, 196, 200, 204, 208, 224
    sH = 78
    A.i(f's_lshr_b32 s{sH}, s{sR}, 1')
    dense_stage_setup(A, 3, 4, 79, 8192, 0, 5)
    A.i(f's_lshl_b32 s77, s{sH}, 8')
    A.i(f's_lshl_b32 s{sT0}, s{sW}, 6')
    A.i(f's_add_u32 s77, s77, s{sT0}')
    defer_to_chain(A, sy, 6, 7)
    staged_load(A, dense_chunks(S_A, 77, 8192, 16, 256), 3, 4, 79, 8, 128, 6)
    A.i('s_barrier')
    t1_setup(A, VDMA, VRD)
    A.i(f's_lshl_b32 s{sT0}, s{sR}, 7')
    A.i(f's_add_u32 s{sT0}, s{sT0}, {F_QA:#x}')
    A.i(f'v_mov_b32 v{VFL}, s{sT0}')
    A.i(f'v_lshrrev_b32 v{TM}, 4, v0')
    A.i(f'v_and_b32 v{TM+1}, 15, v0')
    A.i(f'v_lshlrev_b32 v{VKX}, 9, v{TM}')
    A.i(f'v_lshl_add_u32 v{VKX}, v{TM+1}, 4, v{VKX}')
    A.i(f's_lshl_b32 s{sT0}, s{sW}, 11')
    A.i(f's_add_u32 s{sT0}, s{sT0}, {QIMG}')
    A.i(f'v_add_u32 v{VQW}, s{sT0}, v{VKX}')
    A.i(f's_and_b32 s79, s{sW}, 1')
    A.i(f's_lshr_b32 s80, s{sW}, 1')
    A.i(f's_lshl_b32 s{sT0}, s79, 8')
    A.i(f's_add_u32 s{sT1}, s{sT0}, {QIMG}')
    A.i(f'v_add_u32 v{VQR}, s{sT1}, v{VKX}')
    A.i(f's_lshl_b32 s{sT1}, s80, 12')
    A.i(f's_add_u32 s{sT1}, s{sT1}, s{sT0}')
    A.i(f'v_add_u32 v{VOST}, s{sT1}, v{VKX}')
    A.i(f'v_lshrrev_b32 v{TM+2}, 2, v{TM+1}')
    A.i(f'v_and_b32 v{TM+3}, 1, v{TM+1}')
    A.i(f'v_lshl_add_u32 v{TM+2}, v{TM+2}, 1, v{TM+3}')
    A.i(f'v_lshlrev_b32 v{TM+2}, 8, v{TM+2}')
    A.i(f'v_lshl_add_u32 v{VKM}, v{TM}, 4, v{TM+2}')
    A.i(f'v_lshlrev_b32 v{VVM}, 4, v{TM+1}')
    A.i(f'v_lshl_add_u32 v{VVM}, v{TM}, 2, v{VVM}')
    A.i(f's_lshl_b32 s{sT0}, s80, 10')
    A.i(f'v_add_u32 v{VVM}, s{sT0}, v{VVM}')
    A.i(f'v_and_b32 v{TM+2}, 1, v0')
    A.i(f'v_lshlrev_b32 v{TM+2}, 12, v{TM+2}')
    A.i(f's_lshl_b32 s{sT0}, s{sH}, 7')
    A.i(f's_add_u32 s{sT1}, s{sT0}, {F_KV:#x}')
    A.i(f'v_mov_b32 v{VFKV}, s{sT1}')
    A.i(f's_add_u32 s{sT1}, s{sT0}, {F_CH:#x}')
    A.i(f'v_mov_b32 v{VFCH}, s{sT1}')
    A.i(f's_lshl_b32 s{sT0}, s79, 4')
    A.i(f'v_lshlrev_b32 v{TM+2}, 2, v{TM}')
    A.i(f'v_sub_u32 v{TM+2}, v{TM+1}, v{TM+2}')
    A.i(f'v_add_u32 v{TM+2}, s{sT0}, v{TM+2}')
    for i in range(8):
        A.i(f'v_cmp_le_i32 s[{82+2*i}:{83+2*i}], {16*(i>>2)+(i&3)}, v{TM+2}')
    A.i(f'v_mov_b32 v{PM+1}, 0')
    A.i(f's_and_b32 s{sS}, s{sR}, 1')
    if getattr(sy, 'single', False):
        ready_wait(A, VWA, VT_)

    def body():
        A.i(f's_add_u32 s{sT2}, s{sS}, 1')
        sy.wait(A, VFKV, VT_, sT2)
        A.i(f's_lshl_b32 s81, s{sS}, 18')
        A.i(f's_lshl_b32 s{sT0}, s{sH}, 13')
        A.i(f's_add_u32 s81, s81, s{sT0}')
        A.i(f's_add_u32 s{sT0}, s81, {KX:#x}')
        A.i(f's_add_u32 s{sT1}, s{sT0}, 4096')
        for kt in range(2):
            for ks in range(4):
                so = sT0 if ks < 2 else sT1
                A.i(f'buffer_load_dwordx4 {vr(KF+(kt*4+ks)*4,4)}, v{VKX}, {WSR}, s{so} offen offset:{(ks&1)*2048+kt*256} sc1')
        A.i(f's_lshl_b32 s{sT0}, s80, 12')
        A.i(f's_add_u32 s{sT0}, s{sT0}, s81')
        A.i(f's_add_u32 s{sT0}, s{sT0}, {VT:#x}')
        for i in range(4):
            A.i(f'buffer_load_dwordx4 {vr(VF+i*4,4)}, v1, {WSR}, s{sT0} offen offset:{i*1024} sc1')
        t1_compute(A, VRD, VAB, XF, 256, D, swapped=True)
        for tt in range(2):
            for r in range(4):
                A.i(f'v_cvt_pk_bf16_f32 v{PK+tt*4+r}, v{D+tt*4+r}, v{D+(2+tt)*4+r}')
            A.i(f'ds_write_b128 v{VQW}, v[{PK+tt*4}:{PK+tt*4+3}] offset:{tt*256}')
        A.i('s_waitcnt lgkmcnt(0)')
        A.i('s_barrier')
        for ks in range(4):
            A.i(f'ds_read_b128 {vr(QF+ks*4,4)}, v{VQR} offset:{ks*2048}')
        A.i('s_waitcnt vmcnt(0) lgkmcnt(0)')
        for kt, S in ((0, S1), (1, S2)):
            for ks in range(4):
                c = '0' if ks == 0 else vr(S, 4)
                A.i(f'v_mfma_f32_16x16x32_bf16 {vr(S,4)}, {vr(KF+(kt*4+ks)*4,4)}, {vr(QF+ks*4,4)}, {c}')
        xs = [S1 + i for i in range(8)]
        score_round(A, xs, TM)
        A.i(f'v_mov_b32 v{TM}, 0xce6e6b28')
        for i in range(8):
            A.i(f'v_cndmask_b32 v{S1+i}, v{TM}, v{S1+i}, s[{82+2*i}:{83+2*i}]')
        A.i(f'v_max3_f32 v{TM+2}, v{S1}, v{S1+1}, v{S1+2}')
        A.i(f'v_max3_f32 v{TM+2}, v{TM+2}, v{S1+3}, v{S1+4}')
        A.i(f'v_max3_f32 v{TM+2}, v{TM+2}, v{S1+5}, v{S1+6}')
        A.i(f'v_max_f32 v{TM+2}, v{TM+2}, v{S1+7}')
        A.i(f's_add_u32 s{sT2}, s{sS}, 1')
        sy.wait(A, VFCH, VT_, sT2)
        A.i(f's_lshr_b32 s{sT0}, s81, 2')
        A.i(f's_add_u32 s{sT1}, s{sT0}, {VM:#x}')
        A.i(f's_add_u32 s{sT0}, s{sT0}, {KM:#x}')
        for ks in range(4):
            A.i(f'buffer_load_dwordx4 {vr(KMF+ks*4,4)}, v{VKM}, {WSR}, s{sT0} offen offset:{ks*64} sc1')
        for i in range(4):
            A.i(f'buffer_load_dword v{VMF+2*i}, v{VVM}, {WSR}, s{sT1} offen offset:{i*256} sc1')
            A.i(f'v_mov_b32 v{VMF+2*i+1}, 0')
        for ks in range(4):
            A.i(f's_waitcnt vmcnt({7-ks})')
            c = '0' if ks == 0 else vr(S0, 4)
            A.i(f'v_mfma_f32_16x16x32_bf16 {vr(S0,4)}, {vr(KMF+ks*4,4)}, {vr(QF+ks*4,4)}, {c}')
        score_round(A, [S0, S0 + 1], TM)
        A.i(f'v_max3_f32 v{TM+2}, v{TM+2}, v{S0}, v{S0+1}')
        xlane(A, 'v_max_f32', TM + 2, TM + 3)
        vals = xs + [S0, S0 + 1]
        A.i(f'v_mul_f32 v{TM+2}, s{sLOG2E}, v{TM+2}')
        for a in vals:
            A.i(f'v_fma_f32 v{a}, v{a}, s{sLOG2E}, -v{TM+2}')
        for a in vals:
            A.i(f'v_exp_f32 v{a}, v{a}')
        A.i(f'v_add_f32 v{TM+2}, v{vals[0]}, v{vals[1]}')
        A.i(f'v_add_f32 v{TM+4}, v{vals[2]}, v{vals[3]}')
        for k in range(4, 10, 2):
            A.i(f'v_add_f32 v{TM+2}, v{TM+2}, v{vals[k]}')
            A.i(f'v_add_f32 v{TM+4}, v{TM+4}, v{vals[k+1]}')
        A.i(f'v_add_f32 v{TM+2}, v{TM+2}, v{TM+4}')
        xlane(A, 'v_add_f32', TM + 2, TM + 3)
        A.i(f'v_rcp_f32 v{TM+2}, v{TM+2}')
        for a in vals:
            A.i(f'v_mul_f32 v{a}, v{a}, v{TM+2}')
        for k in range(4):
            A.i(f'v_cvt_pk_bf16_f32 v{PX+k}, v{S1+2*k}, v{S1+2*k+1}')
        A.i(f'v_cvt_pk_bf16_f32 v{PM}, v{S0}, v{S0+1}')
        A.i('s_waitcnt vmcnt(0)')
        for i in range(4):
            p = PX
            A.i(f'v_mfma_f32_16x16x32_bf16 {vr(OD+4*i,4)}, {vr(VF+4*i,4)}, {vr(p,4)}, 0')
        for i in range(4):
            A.i(f'v_mfma_f32_16x16x16_bf16 {vr(OD+4*i,4)}, {vr(VMF+2*i,2)}, {vr(PM,2)}, {vr(OD+4*i,4)}')
        A.i(f's_add_u32 s{sT0}, s81, {OB:#x}')
        for u in range(2):
            for r in range(4):
                A.i(f'v_cvt_pk_bf16_f32 v{PK+u*4+r}, v{OD+8*u+r}, v{OD+8*u+4+r}')
            A.i(f'buffer_store_dwordx4 v[{PK+u*4}:{PK+u*4+3}], v{VOST}, {WSR}, s{sT0} offen offset:{u*2048} sc1')

    t1_loop(A, sy, 'QA', 0, 2, H, make_wait_h(A, sy, VWA, VT_), body, VDMA, VRD, VAB, VT_, VFL)


def natural_units(srd_s, voff, sbase, rs, nks, ntiles, wbase, vsel, tile_stride=32, tile_index=None):
    units = []
    for ks in range(nks):
        for t in range(ntiles):
            for i in range(4):
                r0 = 32 * ks + 2 * i
                idx = tile_index(ks, t) if tile_index else ks * ntiles + t
                units.append((srd_s, voff, sbase, r0 * rs + t * tile_stride, (r0 + 1) * rs + t * tile_stride, 1,
                              [(wbase + idx * 4 + i, 0, f'v{vsel}')]))
    return units


def natural_setup(A, voff, vsel, rs, tmp):
    A.i(f'v_lshrrev_b32 v{tmp}, 4, v0')
    A.i(f's_mov_b32 s{sT0}, {8*rs}')
    A.i(f'v_mul_lo_u32 v{voff}, v{tmp}, s{sT0}')
    A.i(f'v_and_b32 v{tmp}, 14, v0')
    A.i(f'v_lshl_add_u32 v{voff}, v{tmp}, 1, v{voff}')
    A.i(f'v_and_b32 v{tmp}, 1, v0')
    A.i(f'v_cmp_eq_u32 vcc, 1, v{tmp}')
    A.i(f'v_mov_b32 v{vsel}, s{SELLO}')
    A.i(f'v_mov_b32 v{tmp}, s{SELHI}')
    A.i(f'v_cndmask_b32 v{vsel}, v{vsel}, v{tmp}, vcc')


def role_wo(A, sy):
    srd(A, S_A, P_WO, 4096 * 1024)
    VPC, VFL, VFQ, VT_, VLW, VLR, VST = 2, 5, 6, 7, 8, 9, 10
    XF, D, RD = 32, 96, 128
    natural_setup(A, 3, 4, 1024, 5)
    A.i(f's_lshr_b32 s78, s{sR}, 3')
    A.i(f's_and_b32 s79, s{sR}, 7')
    A.i(f's_lshl_b32 s80, s78, 2')
    A.i(f's_add_u32 s80, s80, s{sW}')
    A.i(f's_lshl_b32 s77, s80, 18')
    A.i(f's_lshl_b32 s{sT0}, s79, 7')
    A.i(f's_add_u32 s77, s77, s{sT0}')
    load_weights(A, natural_units(S_A, 3, 77, 1024, 8, 4, 256, 4), 128, 32, 6)
    A.i(f'v_lshrrev_b32 v{VT_}, 4, v0')
    A.i(f'v_lshlrev_b32 v{VPC}, 9, v{VT_}')
    A.i(f'v_and_b32 v{VST}, 15, v0')
    A.i(f'v_lshl_add_u32 v{VPC}, v{VST}, 4, v{VPC}')
    A.i(f'v_lshlrev_b32 v{VST}, 11, v{VST}')
    A.i(f'v_lshl_add_u32 v{VST}, v{VT_}, 4, v{VST}')
    A.i(f's_lshl_b32 s{sT0}, s79, 8')
    A.i(f's_lshl_b32 s{sT1}, s{sW}, 6')
    A.i(f's_add_u32 s{sT0}, s{sT0}, s{sT1}')
    A.i(f's_lshl_b32 s{sT1}, s78, 16')
    A.i(f's_add_u32 s{sT0}, s{sT0}, s{sT1}')
    A.i(f's_add_u32 s81, s{sT0}, {PART:#x}')
    A.i(f's_lshl_b32 s{sT0}, s{sW}, 13')
    A.i(f'v_add_u32 v{VLW}, s{sT0}, v1')
    A.i(f's_lshl_b32 s{sT0}, s{sW}, 11')
    A.i(f'v_add_u32 v{VLR}, s{sT0}, v1')
    A.i(f's_lshl_b32 s{sT0}, s{sR}, 7')
    A.i(f's_add_u32 s{sT0}, s{sT0}, {F_WO:#x}')
    A.i(f'v_mov_b32 v{VFL}, s{sT0}')
    A.i(f'v_and_b32 v{VT_}, 1, v0')
    A.i(f'v_lshlrev_b32 v{VT_}, 8, v{VT_}')
    A.i(f's_lshl_b32 s{sT0}, s80, 9')
    A.i(f's_add_u32 s{sT0}, s{sT0}, {F_QA:#x}')
    A.i(f'v_add_u32 v{VFQ}, s{sT0}, v{VT_}')
    A.i(f's_lshl_b32 s82, s80, 14')
    A.i(f's_add_u32 s82, s82, {OB:#x}')
    A.i(f's_mov_b32 s{sS}, 0')
    Ltop = A.newlabel('WOtop')
    A.label(Ltop)
    if sy.on:
        A.i(f's_and_b32 s{sT0}, s{sS}, 1')
        A.i(f's_lshl_b32 s{sT0}, s{sT0}, 7')
        A.i(f'v_add_u32 v11, s{sT0}, v{VFQ}')
        A.i(f's_add_u32 s{sT2}, s{sS}, 1')
        sy.wait(A, 11, VT_, sT2)
        sy.trace(A, VT_, sS, imm=110, wave=0, lim=40)
    A.i(f's_lshl_b32 s{sT0}, s{sS}, 18')
    A.i(f's_add_u32 s{sT0}, s{sT0}, s82')
    for ks in range(8):
        if ks and (ks & 1) == 0:
            A.i(f's_add_u32 s{sT0}, s{sT0}, 4096')
        for tt in range(2):
            A.i(f'buffer_load_dwordx4 {vr(XF+(ks*2+tt)*4,4)}, v{VPC}, {WSR}, s{sT0} offen offset:{(ks&1)*2048+tt*256} sc1')
    for ks in range(8):
        A.i(f's_waitcnt vmcnt({14-2*ks})')
        for t in range(4):
            for tt in range(2):
                d = vr(D + (t * 2 + tt) * 4, 4)
                c = '0' if ks == 0 else d
                A.i(f'v_mfma_f32_16x16x32_bf16 {d}, {ur(256+(ks*4+t)*4,4)}, {vr(XF+(ks*2+tt)*4,4)}, {c}')
    sy.trace(A, VT_, sS, imm=150, wave=0, lim=40)
    for q in range(8):
        A.i(f'ds_write_b128 v{VLW}, {vr(D+q*4,4)} offset:{q*1024}')
    A.i('s_waitcnt lgkmcnt(0)')
    A.i('s_barrier')
    for u in range(2):
        for w2 in range(4):
            A.i(f'ds_read_b128 {vr(RD+(u*4+w2)*4,4)}, v{VLR} offset:{w2*8192+u*1024}')
    A.i(f's_lshl_b32 s{sT0}, s{sS}, 18')
    A.i(f's_add_u32 s{sT0}, s{sT0}, s81')
    A.i(f's_add_u32 s{sT1}, s{sT0}, {16*2048}')
    for u in range(2):
        A.i(f's_waitcnt lgkmcnt({4-4*u})')
        b = RD + u * 16
        for r in range(4):
            A.i(f'v_add_f32 v{b+r}, v{b+r}, v{b+4+r}')
            A.i(f'v_add_f32 v{b+8+r}, v{b+8+r}, v{b+12+r}')
        for r in range(4):
            A.i(f'v_add_f32 v{b+r}, v{b+r}, v{b+8+r}')
        A.i(f'buffer_store_dwordx4 {vr(b,4)}, v{VST}, {WSR}, s{sT0 if u == 0 else sT1} offen sc1')
    sy.trace(A, VT_, sS, imm=190, wave=0, lim=40)
    if sy.on:
        A.i('s_waitcnt vmcnt(0)')
    A.i('s_barrier')
    if sy.on:
        Ls = A.newlabel('WOpub')
        A.i(f's_cmp_lg_u32 s{sW}, 0')
        A.i(f's_cbranch_scc1 {Ls}')
        A.i(f's_add_u32 s{sT0}, s{sS}, 1')
        sy.publish(A, VFL, VT_, sT0)
        A.label(Ls)
    A.i(f's_add_u32 s{sS}, s{sS}, 1')
    A.i(f's_cmp_lt_u32 s{sS}, 64')
    A.i(f's_cbranch_scc1 {Ltop}')


def role_r(A, sy):
    srd(A, S_A, P_X, 2048 * 1024)
    VFL, VFW, VT_ = 3, 4, 5
    GA, C1, SH, X, T, PK, XR, PT = 8, 16, 24, 32, 40, 52, 56, 64
    A.i('v_lshlrev_b32 v2, 5, v0')
    load_mod8(A, GA, 2)
    load_mod8(A, C1, 4)
    load_mod8(A, SH, 3)
    A.i(f's_and_b32 s78, s{sR}, 7')
    A.i(f's_lshl_b32 s78, s78, 2')
    A.i(f's_add_u32 s78, s78, s{sW}')
    A.i(f's_lshl_b32 s{sT0}, s{sR}, 7')
    A.i(f's_add_u32 s{sT0}, s{sT0}, {F_R:#x}')
    A.i(f'v_mov_b32 v{VFL}, s{sT0}')
    A.i(f'v_and_b32 v{VFW}, 31, v0')
    A.i(f'v_lshlrev_b32 v{VFW}, 7, v{VFW}')
    A.i(f'v_add_u32 v{VFW}, {F_WO:#x}, v{VFW}')
    A.i('s_waitcnt vmcnt(0)')
    one_plus(A, C1, VT_)
    A.i(f's_lshr_b32 s{sS}, s{sR}, 3')
    Ltop = A.newlabel('Rtop')
    A.label(Ltop)
    A.i(f's_lshl_b32 s79, s{sS}, 5')
    A.i(f's_add_u32 s79, s79, s78')
    A.i(f's_lshl_b32 s79, s79, 10')
    A.i(f'buffer_load_dwordx4 {vr(XR,4)}, v1, s[{S_A}:{S_A+3}], s79 offen')
    A.i(f's_add_u32 s{sT2}, s{sS}, 1')
    sy.wait(A, VFW, VT_, sT2)
    A.i(f's_lshl_b32 s{sT0}, s{sS}, 18')
    A.i(f's_lshl_b32 s{sT1}, s78, 11')
    A.i(f's_add_u32 s{sT0}, s{sT0}, s{sT1}')
    A.i(f's_add_u32 s{sT0}, s{sT0}, {PART:#x}')
    for kq in range(4):
        if kq:
            A.i(f's_add_u32 s{sT0}, s{sT0}, 0x10000')
        A.i(f'buffer_load_dwordx4 {vr(PT+kq*8,4)}, v2, {WSR}, s{sT0} offen sc1')
        A.i(f'buffer_load_dwordx4 {vr(PT+kq*8+4,4)}, v2, {WSR}, s{sT0} offen offset:16 sc1')
    A.i('s_waitcnt vmcnt(0)')
    for j in range(8):
        A.i(f'v_add_f32 v{PT+j}, v{PT+j}, v{PT+8+j}')
        A.i(f'v_add_f32 v{PT+16+j}, v{PT+16+j}, v{PT+24+j}')
    for j in range(8):
        A.i(f'v_add_f32 v{PT+j}, v{PT+j}, v{PT+16+j}')
    for j in range(4):
        round2(A, PT + 2 * j, PT + 2 * j + 1, T + j)
    for j in range(8):
        A.i(f'v_mul_f32 v{PT+j}, v{PT+j}, v{GA+j}')
    for j in range(4):
        round2(A, PT + 2 * j, PT + 2 * j + 1, T + j)
    for j in range(4):
        unpack(A, X + 2 * j, X + 2 * j + 1, XR + j)
    for j in range(8):
        A.i(f'v_add_f32 v{X+j}, v{X+j}, v{PT+j}')
    for j in range(4):
        A.i(f'v_cvt_pk_bf16_f32 v{XR+j}, v{X+2*j}, v{X+2*j+1}')
    A.i(f's_add_u32 s{sT0}, s79, {X1:#x}')
    A.i(f'buffer_store_dwordx4 {vr(XR,4)}, v1, {WSR}, s{sT0} offen sc1')
    for j in range(4):
        unpack(A, X + 2 * j, X + 2 * j + 1, XR + j)
    ln_core(A, X, T, C1, SH, PK)
    A.i(f's_add_u32 s{sT0}, s79, {H2:#x}')
    A.i(f'buffer_store_dwordx4 {vr(PK,4)}, v1, {WSR}, s{sT0} offen sc1')
    A.i('s_waitcnt vmcnt(0)')
    if sy.on:
        A.i('s_barrier')
        Ls = A.newlabel('Rpub')
        A.i(f's_cmp_lg_u32 s{sW}, 0')
        A.i(f's_cbranch_scc1 {Ls}')
        A.i(f's_add_u32 s{sT0}, s{sS}, 1')
        sy.publish(A, VFL, VT_, sT0)
        A.label(Ls)
    A.i(f's_add_u32 s{sS}, s{sS}, 2')
    A.i(f's_cmp_lt_u32 s{sS}, 64')
    A.i(f's_cbranch_scc1 {Ltop}')


def role_f1(A, sy):
    srd(A, S_A, P_WG, 512 * 3584)
    srd(A, S_B, P_WU, 512 * 3584)
    VDMA, VRD, VAB, VT_, VFL, VST, VWA = 2, 4, 12, 20, 22, 23, 24
    XF, D, PK, T = 32, 64, 80, 88
    natural_setup(A, 3, 25, 3584, 4)
    A.i(f's_lshl_b32 s77, s{sR}, 7')
    A.i(f's_lshl_b32 s{sT0}, s{sW}, 5')
    A.i(f's_add_u32 s77, s77, s{sT0}')
    ug = natural_units(S_A, 3, 77, 3584, 16, 1, 256, 25, tile_index=lambda ks, t: ks * 2)
    uu = natural_units(S_B, 3, 77, 3584, 16, 1, 256, 25, tile_index=lambda ks, t: ks * 2 + 1)
    load_weights(A, ug + uu, 128, 32, 4)
    t1_setup(A, VDMA, VRD)
    A.i(f's_lshl_b32 s{sT0}, s{sR}, 7')
    A.i(f's_add_u32 s{sT0}, s{sT0}, {F_F1:#x}')
    A.i(f'v_mov_b32 v{VFL}, s{sT0}')
    A.i(f'v_lshrrev_b32 v{VST}, 5, v0')
    A.i(f'v_lshlrev_b32 v{VST}, 9, v{VST}')
    A.i(f'v_and_b32 v{VT_}, 15, v0')
    A.i(f'v_lshl_add_u32 v{VST}, v{VT_}, 4, v{VST}')
    A.i(f'v_bfe_u32 v{VT_}, v0, 4, 1')
    A.i(f'v_lshl_add_u32 v{VST}, v{VT_}, 3, v{VST}')
    A.i(f's_lshl_b32 s77, s{sR}, 12')
    A.i(f's_lshl_b32 s{sT0}, s{sW}, 10')
    A.i(f's_add_u32 s77, s77, s{sT0}')
    A.i(f's_add_u32 s77, s77, {GU:#x}')
    A.i(f's_mov_b32 s{sS}, 0')

    def wait_src(sseg, blocking, Lnot):
        if not sy.on:
            return
        A.i(f's_and_b32 s{sT0}, s{sseg}, 1')
        A.i(f's_lshl_b32 s{sT0}, s{sT0}, 10')
        A.i(f's_add_u32 s{sT0}, s{sT0}, {F_R:#x}')
        A.i(f'v_and_b32 v{VWA}, 7, v0')
        A.i(f'v_lshlrev_b32 v{VWA}, 7, v{VWA}')
        A.i(f'v_add_u32 v{VWA}, s{sT0}, v{VWA}')
        A.i(f's_add_u32 s{sT2}, s{sseg}, 1')
        flag_test(A, sy, VWA, VT_, sT2, blocking, Lnot)

    def body():
        t1_compute(A, VRD, VAB, XF, 256, D, swapped=True)
        g = [D + i for i in range(8)]
        u = [D + 8 + i for i in range(8)]
        for k in range(0, 8, 2):
            round2(A, g[k], g[k + 1], T)
        for k in range(8):
            A.i(f'v_mul_f32 v{T+k}, s{sLOG2E}, v{g[k]}')
        for k in range(8):
            A.i(f'v_exp_f32 v{T+k}, -v{T+k}')
        for k in range(0, 8, 2):
            round2(A, u[k], u[k + 1], PK)
        for k in range(8):
            A.i(f'v_add_f32 v{T+k}, 1.0, v{T+k}')
        for k in range(8):
            A.i(f'v_rcp_f32 v{T+k}, v{T+k}')
        for k in range(8):
            A.i(f'v_mul_f32 v{g[k]}, v{g[k]}, v{T+k}')
        for k in range(0, 8, 2):
            round2(A, g[k], g[k + 1], T)
        for k in range(8):
            A.i(f'v_mul_f32 v{g[k]}, v{g[k]}, v{u[k]}')
        for k in range(4):
            A.i(f'v_cvt_pk_bf16_f32 v{PK+k}, v{g[2*k]}, v{g[2*k+1]}')
        A.i(f's_mul_i32 s{sT0}, s{sS}, 114688')
        A.i(f's_add_u32 s{sT0}, s{sT0}, s77')
        for tt in range(2):
            A.i(f'buffer_store_dwordx2 v[{PK+2*tt}:{PK+2*tt+1}], v{VST}, {WSR}, s{sT0} offen offset:{tt*256} sc1')

    t1_loop(A, sy, 'F1', 0, 1, H2, wait_src, body, VDMA, VRD, VAB, VT_, VFL)


def role_f2(A, sy):
    srd(A, S_A, P_WD, 1792 * 1024)
    srd(A, S_B, P_OUT, 2048 * 1024)
    VPC, VFQ, VT_, VLW, VLR, VST, GB = 2, 6, 7, 8, 9, 10, 12
    XF, D, RD, XR = 32, 144, 160, 176
    lane_woff(A, 3, 1024, 4, 4)
    A.i(f's_mul_i32 s77, s{sW}, {448*1024}')
    A.i(f's_lshl_b32 s{sT0}, s{sR}, 6')
    A.i(f's_add_u32 s77, s77, s{sT0}')
    load_weights(A, paired_units(S_A, 3, 77, 1024, 14, 256), 128, 32, 4)
    A.i(f'v_lshrrev_b32 v{VT_}, 4, v0')
    A.i(f'v_lshlrev_b32 v{VPC}, 9, v{VT_}')
    A.i(f'v_and_b32 v{VST}, 15, v0')
    A.i(f'v_lshl_add_u32 v{VPC}, v{VST}, 4, v{VPC}')
    A.i(f's_and_b32 s78, s{sW}, 1')
    A.i(f's_lshr_b32 s79, s{sW}, 1')
    A.i(f'v_lshlrev_b32 v{VST}, 10, v{VST}')
    A.i(f'v_lshl_add_u32 v{VST}, v{VT_}, 4, v{VST}')
    A.i(f's_lshl_b32 s{sT0}, s78, 14')
    A.i(f's_lshl_b32 s{sT1}, s{sR}, 6')
    A.i(f's_add_u32 s{sT0}, s{sT0}, s{sT1}')
    A.i(f's_lshl_b32 s{sT1}, s79, 3')
    A.i(f's_add_u32 s{sT0}, s{sT0}, s{sT1}')
    A.i(f'v_add_u32 v{VST}, s{sT0}, v{VST}')
    A.i(f'v_lshlrev_b32 v{VT_}, 5, v{VT_}')
    A.i(f's_lshl_b32 s{sT0}, s{sR}, 7')
    A.i(f's_lshl_b32 s{sT1}, s79, 4')
    A.i(f's_add_u32 s{sT0}, s{sT0}, s{sT1}')
    A.i(f's_add_u32 s{sT0}, s{sT0}, {MOD + 5*2048:#x}')
    A.i(f'buffer_load_dwordx4 {vr(GB,4)}, v{VT_}, {WSR}, s{sT0} offen sc1')
    A.i(f's_lshl_b32 s{sT0}, s{sW}, 12')
    A.i(f'v_add_u32 v{VLW}, s{sT0}, v1')
    A.i(f's_lshl_b32 s{sT0}, s78, 10')
    A.i(f's_lshl_b32 s{sT1}, s79, 3')
    A.i(f's_add_u32 s{sT0}, s{sT0}, s{sT1}')
    A.i(f'v_add_u32 v{VLR}, s{sT0}, v1')
    A.i(f'v_and_b32 v{VFQ}, 7, v0')
    A.i(f'v_min_u32 v{VFQ}, 6, v{VFQ}')
    A.i(f'v_lshlrev_b32 v{VFQ}, 7, v{VFQ}')
    A.i(f's_mul_i32 s{sT0}, s{sW}, {7*FL}')
    A.i(f's_add_u32 s{sT0}, s{sT0}, {F_F1:#x}')
    A.i(f'v_add_u32 v{VFQ}, s{sT0}, v{VFQ}')
    A.i(f's_mul_i32 s82, s{sW}, {56*512}')
    A.i(f's_add_u32 s82, s82, {GU:#x}')
    A.i(f's_mov_b32 s{sS}, 0')
    Ltop = A.newlabel('F2top')
    A.label(Ltop)
    A.i(f's_add_u32 s{sT2}, s{sS}, 1')
    sy.wait(A, VFQ, VT_, sT2)
    A.i(f's_mul_i32 s{sT0}, s{sS}, 114688')
    A.i(f's_add_u32 s{sT0}, s{sT0}, s82')
    for ks in range(14):
        if ks and (ks & 1) == 0:
            A.i(f's_add_u32 s{sT0}, s{sT0}, 4096')
        for tt in range(2):
            A.i(f'buffer_load_dwordx4 {vr(XF+(ks*2+tt)*4,4)}, v{VPC}, {WSR}, s{sT0} offen offset:{(ks&1)*2048+tt*256} sc1')
    A.i(f's_lshl_b32 s83, s{sS}, 15')
    A.i(f's_add_u32 s{sT0}, s83, {X1:#x}')
    A.i(f'buffer_load_dwordx2 {vr(XR,2)}, v{VST}, {WSR}, s{sT0} offen sc1')
    for ks in range(14):
        A.i(f's_waitcnt vmcnt({27-2*ks})')
        for t in range(2):
            for tt in range(2):
                d = vr(D + (t * 2 + tt) * 4, 4)
                c = '0' if ks == 0 else d
                A.i(f'v_mfma_f32_16x16x32_bf16 {d}, {ur(256+(ks*2+t)*4,4)}, {vr(XF+(ks*2+tt)*4,4)}, {c}')
    for q in range(4):
        A.i(f'ds_write_b128 v{VLW}, {vr(D+q*4,4)} offset:{q*1024}')
    A.i('s_waitcnt lgkmcnt(0)')
    A.i('s_barrier')
    for t in range(2):
        for w2 in range(4):
            A.i(f'ds_read_b64 {vr(RD+(t*4+w2)*2,2)}, v{VLR} offset:{w2*4096+t*2048}')
    A.i('s_waitcnt vmcnt(0) lgkmcnt(0)')
    A.i('s_barrier')
    for t in range(2):
        b = RD + t * 8
        for r in range(2):
            A.i(f'v_add_f32 v{b+r}, v{b+r}, v{b+2+r}')
            A.i(f'v_add_f32 v{b+4+r}, v{b+4+r}, v{b+6+r}')
        for r in range(2):
            A.i(f'v_add_f32 v{b+r}, v{b+r}, v{b+4+r}')
    f = [RD, RD + 8, RD + 1, RD + 9]
    round2(A, f[0], f[1], VT_)
    round2(A, f[2], f[3], VT_)
    for k in range(4):
        A.i(f'v_mul_f32 v{f[k]}, v{f[k]}, v{GB+k}')
    round2(A, f[0], f[1], VT_)
    round2(A, f[2], f[3], VT_)
    unpack(A, RD + 2, RD + 3, XR)
    unpack(A, RD + 4, RD + 5, XR + 1)
    for k in range(4):
        A.i(f'v_add_f32 v{f[k]}, v{f[k]}, v{RD+2+k}')
    A.i(f'v_cvt_pk_bf16_f32 v{XR}, v{f[0]}, v{f[1]}')
    A.i(f'v_cvt_pk_bf16_f32 v{XR+1}, v{f[2]}, v{f[3]}')
    A.i(f'buffer_store_dwordx2 {vr(XR,2)}, v{VST}, s[{S_B}:{S_B+3}], s83 offen')
    sy.trace(A, VT_, sS, imm=1, wave=0)
    A.i(f's_add_u32 s{sS}, s{sS}, 1')
    A.i(f's_cmp_lt_u32 s{sS}, 64')
    A.i(f's_cbranch_scc1 {Ltop}')


def h_wait_simple(A, sy, sseg, va, vtmp):
    if not sy.on:
        return
    Lok, Lall = A.newlabel('Hok'), A.newlabel('Hall')
    A.i('s_cmp_lg_u32 s87, 0')
    A.i(f's_cbranch_scc1 {Lok}')
    A.i(f's_cmp_ge_u32 s{sseg}, 8')
    A.i(f's_cbranch_scc1 {Lall}')
    h_flag_addr(A, va, sseg, sT0)
    A.i(f's_mov_b32 s{sT2}, 1')
    sy.wait(A, va, vtmp, sT2)
    A.i(f's_branch {Lok}')
    A.label(Lall)
    A.i(f'v_lshlrev_b32 v{va}, 7, v0')
    A.i(f'v_add_u32 v{va}, {F_H:#x}, v{va}')
    A.i(f's_mov_b32 s{sT2}, 8')
    sy.wait(A, va, vtmp, sT2)
    A.i('s_mov_b32 s87, 1')
    A.label(Lok)


def role_kv2(A, sy):
    srd(A, S_A, P_WK, 512 * 8192)
    srd(A, S_B, P_WV, 512 * 8192)
    VDMA, VRD, VAB, VT_, VFL, VST, VWA = 2, 4, 12, 20, 22, 23, 24
    XF, DK, DV, PK = 32, 64, 80, 96
    WKb, WVb = 256, 384
    dense_stage_setup(A, 3, 4, 78, 8192, 0, 5)
    A.i(f's_lshl_b32 s77, s{sR}, 8')
    A.i(f's_lshl_b32 s{sT0}, s{sW}, 6')
    A.i(f's_add_u32 s77, s77, s{sT0}')
    staged_load(A, dense_chunks(S_A, 77, 8192, 16, WKb) + dense_chunks(S_B, 77, 8192, 16, WVb), 3, 4, 78, 8, 128, 6)
    A.i('s_barrier')
    sy.trace(A, 5, None, imm=101, wave=0)
    t1_setup(A, VDMA, VRD)
    A.i(f's_lshl_b32 s{sT0}, s{sR}, 7')
    A.i(f's_add_u32 s{sT0}, s{sT0}, {F_KV:#x}')
    A.i(f'v_mov_b32 v{VFL}, s{sT0}')
    A.i(f's_lshl_b32 s77, s{sR}, 13')
    A.i(f's_lshl_b32 s{sT0}, s{sW}, 11')
    A.i(f's_add_u32 s77, s77, s{sT0}')
    A.i(f's_add_u32 s77, s77, {KX:#x}')
    A.i(f'v_lshrrev_b32 v{VST}, 4, v0')
    A.i(f'v_lshlrev_b32 v{VST}, 9, v{VST}')
    A.i(f'v_and_b32 v{VT_}, 15, v0')
    A.i(f'v_lshl_add_u32 v{VST}, v{VT_}, 4, v{VST}')
    A.i(f's_mov_b32 s{sS}, 0')
    A.i('s_mov_b32 s87, 0')
    A.i(f's_mov_b32 s72, {XB0}')
    if getattr(sy, 'single', False):
        ready_wait(A, VWA, VT_)
        A.i(f'v_add_u32 v{VWA}, {32*FL}, v{VFL}')
        A.i(f'v_mov_b32 v{VT_}, 1')
        A.i('s_mov_b64 exec, 1')
        A.i(f'buffer_store_dword v{VT_}, v{VWA}, {WSR}, 0 offen sc1')
        A.i('s_mov_b64 exec, -1')
    A.i('s_mov_b32 s74, 8')
    h_wait_simple(A, sy, 74, VWA, VT_)
    A.i(f's_mov_b32 s75, {H:#x}')
    t1_dma(A, VDMA, VT_, 75, 72)
    A.i('s_waitcnt vmcnt(0)')
    Ltop, Lnopf = A.newlabel('KVtop'), A.newlabel('KVnopf')
    A.label(Ltop)
    A.i('s_barrier')
    for k in range(8):
        A.i(f'v_add_u32 v{VAB+k}, s72, v{VRD+k}')

    def rd(ks):
        for tt in range(2):
            A.i(f'ds_read_b128 {vr(XF + (ks & 3) * 8 + tt * 4, 4)}, v{VAB + tt*4 + (ks & 3)} offset:{(ks >> 2) * 256}')
    for ks in range(3):
        rd(ks)
    for ks in range(16):
        if ks + 3 < 16:
            rd(ks + 3)
            A.i('s_waitcnt lgkmcnt(6)')
        else:
            A.i(f's_waitcnt lgkmcnt({2 * (15 - ks)})')
        for t in range(2):
            for tt in range(2):
                x = vr(XF + (ks & 3) * 8 + tt * 4, 4)
                d = vr(DK + (t * 2 + tt) * 4, 4)
                A.i(f'v_mfma_f32_16x16x32_bf16 {d}, {ur(WKb + (ks*2+t)*4, 4)}, {x}, {"0" if ks == 0 else d}')
                d = vr(DV + (t * 2 + tt) * 4, 4)
                A.i(f'v_mfma_f32_16x16x32_bf16 {d}, {x}, {ur(WVb + (ks*2+t)*4, 4)}, {"0" if ks == 0 else d}')
        if ks == 5:
            A.i('s_waitcnt vmcnt(0)')
            A.i('s_barrier')
            if sy.on:
                Ls = A.newlabel('KVpub')
                A.i(f's_cmp_lg_u32 s{sW}, 0')
                A.i(f's_cbranch_scc1 {Ls}')
                sy.publish(A, VFL, VT_, sS)
                A.label(Ls)
            A.i(f's_add_u32 s74, s{sS}, 1')
            A.i('s_cmp_ge_u32 s74, 64')
            A.i(f's_cbranch_scc1 {Lnopf}')
            h_wait_simple(A, sy, 74, VWA, VT_)
            A.i('s_lshl_b32 s75, s74, 15')
            A.i(f's_add_u32 s75, s75, {H:#x}')
            A.i(f's_xor_b32 s76, s72, {XBS}')
            t1_dma(A, VDMA, VT_, 75, 76)
            A.label(Lnopf)
    A.i(f's_lshl_b32 s{sT0}, s{sS}, 18')
    A.i(f's_add_u32 s{sT0}, s{sT0}, s77')
    A.i(f's_add_u32 s{sT1}, s{sT0}, {VT-KX:#x}')
    for tt in range(2):
        for r in range(4):
            A.i(f'v_cvt_pk_bf16_f32 v{PK+tt*4+r}, v{DK+tt*4+r}, v{DK+(2+tt)*4+r}')
        A.i(f'buffer_store_dwordx4 v[{PK+tt*4}:{PK+tt*4+3}], v{VST}, {WSR}, s{sT0} offen offset:{tt*256} sc1')
    for t in range(2):
        for tt in range(2):
            d = DV + (t * 2 + tt) * 4
            A.i(f'v_cvt_pk_bf16_f32 v{PK+8+t*4+tt*2}, v{d}, v{d+1}')
            A.i(f'v_cvt_pk_bf16_f32 v{PK+8+t*4+tt*2+1}, v{d+2}, v{d+3}')
        A.i(f'buffer_store_dwordx4 v[{PK+8+t*4}:{PK+8+t*4+3}], v1, {WSR}, s{sT1} offen offset:{t*1024} sc1')
    A.i(f's_xor_b32 s72, s72, {XBS}')
    A.i(f's_add_u32 s{sS}, s{sS}, 1')
    if sy.on:
        Lq, Ls = A.newlabel('KVq'), A.newlabel('KVpub')
        A.i(f's_cmp_gt_u32 s{sS}, 2')
        A.i(f's_cbranch_scc1 {Lq}')
        A.i('s_waitcnt vmcnt(0)')
        A.i('s_barrier')
        A.i(f's_cmp_lg_u32 s{sW}, 0')
        A.i(f's_cbranch_scc1 {Lq}')
        tr = sy.tr
        sy.tr = False
        sy.publish(A, VFL, VT_, sS)
        sy.tr = tr
        A.label(Lq)
    A.i('s_waitcnt vmcnt(4)')
    A.i(f's_cmp_lt_u32 s{sS}, 64')
    A.i(f's_cbranch_scc1 {Ltop}')
    if sy.on:
        A.i('s_waitcnt vmcnt(0)')
        A.i('s_barrier')
        Ls = A.newlabel('KVpub')
        A.i(f's_cmp_lg_u32 s{sW}, 0')
        A.i(f's_cbranch_scc1 {Ls}')
        sy.publish(A, VFL, VT_, sS)
        A.label(Ls)


def role_mod(A, sy, sidx):
    end = A.newlabel('Lmodend')
    srd(A, S_A, P_C, 1024)
    srd(A, S_B, P_WMOD, 512 * 6144)
    A.i(f's_lshl_b32 s{sT0}, s{sW}, 6')
    A.i(f'v_add_u32 v2, s{sT0}, v0')
    A.i('v_and_b32 v3, 7, v2')
    A.i('v_lshrrev_b32 v4, 3, v2')
    A.i('v_lshlrev_b32 v5, 5, v4')
    A.i(f'buffer_load_dwordx4 v[8:11], v5, s[{S_A}:{S_A+3}], 0 offen')
    A.i(f'buffer_load_dwordx4 v[12:15], v5, s[{S_A}:{S_A+3}], 0 offen offset:16')
    A.i(f's_mov_b32 s{sT1}, {16*6144}')
    A.i(f'v_mul_lo_u32 v6, v4, s{sT1}')
    A.i('v_lshl_add_u32 v6, v3, 4, v6')
    A.i(f's_lshl_b32 s{sT1}, s{sidx}, 7')
    for i in range(16):
        A.i(f's_add_u32 s{sT0}, s{sT1}, {i*6144}')
        A.i(f'buffer_load_dwordx4 v[{64+4*i}:{67+4*i}], v6, s[{S_B}:{S_B+3}], s{sT0} offen')
    A.i('s_waitcnt vmcnt(16)')
    for i in range(8):
        unpack(A, 16 + 2 * i, 17 + 2 * i, 8 + i)
    for i in range(16):
        A.i(f'v_mul_f32 v{32+i}, s{sLOG2E}, v{16+i}')
    for i in range(16):
        A.i(f'v_exp_f32 v{32+i}, -v{32+i}')
    for i in range(16):
        A.i(f'v_add_f32 v{32+i}, 1.0, v{32+i}')
    for i in range(16):
        A.i(f'v_rcp_f32 v{32+i}, v{32+i}')
    for i in range(16):
        A.i(f'v_mul_f32 v{16+i}, v{16+i}, v{32+i}')
    for i in range(8):
        round2(A, 16 + 2 * i, 17 + 2 * i, 48)
    for j in range(8):
        A.i(f'v_mov_b32 v{32+j}, 0')
    for i in range(16):
        A.i(f's_waitcnt vmcnt({15-i})')
        for d in range(4):
            unpack(A, 48, 49, 64 + 4 * i + d)
            A.i(f'v_fmac_f32 v{32+2*d}, v{16+i}, v48')
            A.i(f'v_fmac_f32 v{33+2*d}, v{16+i}, v49')
    A.i('v_lshlrev_b32 v5, 8, v4')
    A.i('v_lshl_add_u32 v5, v3, 5, v5')
    A.i('ds_write_b128 v5, v[32:35]')
    A.i('ds_write_b128 v5, v[36:39] offset:16')
    A.i('s_waitcnt lgkmcnt(0)')
    A.i('s_barrier')
    A.i(f's_cmp_lg_u32 s{sW}, 0')
    A.i(f's_cbranch_scc1 {end}')
    A.i('v_lshlrev_b32 v5, 2, v0')
    for i in range(32):
        A.i(f'ds_read_b32 v{64+i}, v5 offset:{i*256}')
        if i == 14 or i == 29:
            A.i('s_waitcnt lgkmcnt(0)')
    A.i('s_waitcnt lgkmcnt(0)')
    for st in (16, 8, 4, 2, 1):
        for i in range(st):
            A.i(f'v_add_f32 v{64+i}, v{64+i}, v{64+st+i}')
    A.i('v_cvt_pk_bf16_f32 v64, v64, v64')
    A.i('v_lshlrev_b32 v64, 16, v64')
    A.i(f's_lshl_b32 s{sT0}, s{sidx}, 8')
    A.i(f's_add_u32 s{sT0}, s{sT0}, {MOD:#x}')
    A.i(f'buffer_store_dword v64, v5, {WSR}, s{sT0} offen sc1')
    ready_wait(A, 6, 7)
    A.i(f's_lshl_b32 s{sT0}, s{sidx}, 7')
    A.i(f's_add_u32 s{sT0}, s{sT0}, {F_MOD:#x}')
    A.i('v_mov_b32 v6, 1')
    A.i('s_mov_b64 exec, 1')
    A.i(f'buffer_store_dword v6, off, {WSR}, s{sT0} sc1')
    A.i('s_mov_b64 exec, -1')
    sy.trace(A, 6, None, imm=0)
    A.label(end)


def role_zero(A):
    for i in range(4):
        A.i(f'v_mov_b32 v{4+i}, 0')
    A.i(f's_lshl_b32 s{sT0}, s{sW}, 10')
    A.i(f's_add_u32 s{sT0}, s{sT0}, {FLAGS:#x}')
    for i in range(NFLAG * FL // 4096):
        A.i(f'buffer_store_dwordx4 v[4:7], v1, {WSR}, s{sT0} offen sc1')
        A.i(f's_add_u32 s{sT0}, s{sT0}, 4096')
    A.i('s_waitcnt vmcnt(0)')
    A.i('s_barrier')
    A.i('v_mov_b32 v5, 1')
    A.i('s_mov_b64 exec, 1')
    A.i(f'global_store_dword v4, v5, s[{P_DBG}:{P_DBG+1}] offset:{DBG_READY} sc1')
    A.i('s_mov_b64 exec, -1')


def mod_wait(A, sy, first, count, va, vt):
    ready_wait(A, va, vt)
    A.i(f'v_min_u32 v{va}, {count-1}, v0')
    A.i(f'v_lshlrev_b32 v{va}, 7, v{va}')
    A.i(f'v_add_u32 v{va}, {F_MOD + first*FL:#x}, v{va}')
    A.i(f's_mov_b32 s{sT2}, 1')
    sy.wait(A, va, vt, sT2)


def defer_to_chain(A, sy, va, vt):
    if not getattr(sy, 'single', False) or 'defer' not in getattr(sy, 'opts', set()):
        return
    ready_wait(A, va, vt)
    A.i(f's_and_b32 s{sT0}, s{sR}, 31')
    A.i(f's_lshl_b32 s{sT0}, s{sT0}, 7')
    A.i(f's_add_u32 s{sT0}, s{sT0}, {F_KV + 32*FL:#x}')
    A.i(f'v_mov_b32 v{va}, s{sT0}')
    A.i(f's_mov_b32 s{sT2}, 1')
    sy.wait(A, va, vt, sT2, sleep=8)


def staged_load(A, chunks, vdma, vrd, slds, nslots, tmp, ptmp, pre_issue=None, extra_out=0):
    def issue(c):
        srd_s, sbase, offs, _, _ = chunks[c]
        assert len(offs) == 4
        A.i(f's_add_u32 s{sT1}, s{slds}, {(c % nslots) * 4096}')
        for i, off in enumerate(offs):
            if i:
                A.i(f's_add_u32 s{sT1}, s{sT1}, 1024')
            A.i(f's_mov_b32 m0, s{sT1}')
            A.i(f's_add_u32 s{sT0}, s{sbase}, {off:#x}')
            A.i(f'buffer_load_dwordx4 v{vdma}, s[{srd_s}:{srd_s+3}], s{sT0} offen lds')
    n = len(chunks)
    for c in range(min(nslots, n)):
        issue(c)
    if pre_issue:
        pre_issue()
    for c in range(n):
        younger = 4 * (min(c + nslots, n) - c - 1)
        A.i(f's_waitcnt vmcnt({younger})')
        outs = chunks[c][3]
        for k in range(8):
            blk = (c % nslots) * 16 + 2 * k
            A.i(f'ds_read2st64_b32 {vr(tmp + 2*k, 2)}, v{vrd} offset0:{blk} offset1:{blk+1}')
        for k in range(8):
            A.i(f's_waitcnt lgkmcnt({7-k})')
            lo, hi = outs[k]
            perm_to(A, lo, tmp + 2 * k + 1, tmp + 2 * k, f's{SELLO}', ptmp)
            perm_to(A, hi, tmp + 2 * k + 1, tmp + 2 * k, f's{SELHI}', ptmp + 1)
        if chunks[c][4]:
            chunks[c][4]()
        if c + nslots < n:
            issue(c + nslots)


def dense_chunks(srd_s, sbase, rs, nks, wbase):
    ch = []
    for k2 in range(0, nks, 2):
        offs = [(32 * (k2 + (i >> 1)) + 4 * (i & 1)) * rs for i in range(4)]
        outs = []
        for kk in range(2):
            for i in range(4):
                ks = k2 + kk
                outs.append((wbase + (ks * 2) * 4 + i, wbase + (ks * 2 + 1) * 4 + i))
        ch.append((srd_s, sbase, offs, outs, None))
    return ch


def dense_stage_setup(A, vdma, vrd, slds, rs, lds0, tmp):
    A.i(f'v_bfe_u32 v{tmp}, v0, 2, 2')
    A.i(f'v_lshlrev_b32 v{tmp}, 3, v{tmp}')
    A.i(f'v_lshrrev_b32 v{vdma}, 4, v0')
    A.i(f'v_add_u32 v{tmp}, v{tmp}, v{vdma}')
    A.i(f's_mov_b32 s{sT0}, {rs}')
    A.i(f'v_mul_lo_u32 v{vdma}, v{tmp}, s{sT0}')
    A.i(f'v_and_b32 v{tmp}, 3, v0')
    A.i(f'v_lshl_add_u32 v{vdma}, v{tmp}, 4, v{vdma}')
    A.i(f's_lshl_b32 s{slds}, s{sW}, 15')
    if lds0:
        A.i(f's_add_u32 s{slds}, s{slds}, {lds0}')
    A.i(f'v_lshlrev_b32 v{vrd}, 2, v0')
    A.i(f'v_add_u32 v{vrd}, s{slds}, v{vrd}')
```

```python
import sys
from common import *
import roles, chain, post

NAME = 'adaLN_cond__memory_aug_recurrent_mem_tr__swiglu_ffn__prompt'
HEADER = open('cdna_kernels/%s.s.ref' % NAME).read().split('; Override launch')[0]
L_TICK = 163584
LDS_ALL = 163840


def kd(name, vgpr=512, accum=256, sgpr=102):
    return f'''.section .rodata,"a"
.p2align 6
.amdhsa_kernel {name}
  .amdhsa_next_free_vgpr {vgpr}
  .amdhsa_next_free_sgpr {sgpr}
  .amdhsa_accum_offset {accum}
  .amdhsa_group_segment_fixed_size 0
  .amdhsa_kernarg_size 128
  .amdhsa_user_sgpr_count 2
  .amdhsa_user_sgpr_kernarg_segment_ptr 1
  .amdhsa_system_sgpr_workgroup_id_x 1
  .amdhsa_float_denorm_mode_32 3
.end_amdhsa_kernel
.text
'''


def start(A, name):
    A.raw(f'.globl {name}\n.p2align 8\n.type {name},@function\n{name}:')
    A.hist = []


def ticket(A, single=False):
    L = A.newlabel('Ltk')
    A.i(f's_getreg_b32 s{sT3}, hwreg(HW_REG_XCC_ID, 0, 4)')
    A.i(f's_and_b32 s{sT3}, s{sT3}, 7')
    A.i(f'v_mov_b32 v2, {L_TICK}')
    A.i(f's_cmp_lg_u32 s{sW}, 0')
    A.i(f's_cbranch_scc1 {L}')
    A.i('v_mov_b32 v3, 1')
    A.i('s_mov_b64 exec, 1')
    if single:
        A.i(f's_lshl_b32 s{sT0}, s{sT3}, 5')
        A.i(f'v_mov_b32 v4, s{sT0}')
        A.i(f'global_atomic_add v3, v4, v3, s[{P_DBG}:{P_DBG+1}] sc0')
    else:
        A.i(f's_lshl_b32 s{sT0}, s{sT3}, 7')
        A.i(f's_add_u32 s{sT0}, s{sT0}, {F_TICKET:#x}')
        A.i(f'buffer_atomic_add v3, off, {roles.WSR}, s{sT0} sc0')
    A.i('s_waitcnt vmcnt(0)')
    A.i('ds_write_b32 v2, v3')
    A.i('s_mov_b64 exec, -1')
    A.i('s_waitcnt lgkmcnt(0)')
    A.label(L)
    A.i('s_barrier')
    A.i('ds_read_b32 v3, v2')
    A.i('s_waitcnt lgkmcnt(0)')
    A.i(f'v_readfirstlane_b32 s{sT4}, v3')


def build(mode):
    A = Asm()
    launches = []
    kds = []

    def kernel(name, nwg, body, lds, vgpr=512, accum=256):
        start(A, name)
        end = A.newlabel('Lend')
        if mode.startswith('trace'):
            A.i('s_memrealtime s[96:97]')
        prologue(A, nwg, end)
        body(end)
        A.label(end)
        A.i('s_endpgm')
        if name == 'main_kernel':
            A.raw('Lcode_end:')
        launches.append(f'; @launch kernel={name} grid=({nwg},1,1) block=(256,1,1) lds={lds}')
        kds.append(kd(name, vgpr, accum))

    single = not (mode.startswith('cb') or mode == 'multi' or 'two' in mode)
    if not single:
        kernel('init_kernel', 120, lambda end: roles.role_init(A, end), 8192, 128, 128)
    if mode.startswith('cb'):
        sy = Sync(False, trace=True)
        sy.opts = set(mode.split('_')[1:])
        for o in sy.opts:
            if o[0] == 'd' and '=' in o:
                setattr(sy, o.split('=')[0], int(o.split('=')[1]))

        def chain_body(end):
            ticket(A)
            A.i(f's_cmp_lg_u32 s{sT3}, 0')
            A.i(f's_cbranch_scc1 {end}')
            A.i(f's_cmp_ge_u32 s{sT4}, 32')
            A.i(f's_cbranch_scc1 {end}')
            A.i(f's_mov_b32 s{sR}, s{sT4}')
            A.i(f's_lshl_b32 s100, s{sT4}, 10')
            A.i(f's_add_u32 s100, s100, {TRACE:#x}')
            chain.role_chain(A, sy, end)
        kernel('chain_kernel', 256, chain_body, LDS_ALL)
    elif mode == 'multi':
        sy = Sync(False)

        def simple(fn):
            def body(end):
                A.i(f's_mov_b32 s{sR}, s2')
                fn()
            return body
        kernel('ln1_kernel', 64, simple(lambda: roles.role_ln1(A, sy, sR)), 0)
        kernel('k_kernel', 32, simple(lambda: roles.role_kv(A, sy, False)), LDS_ALL)
        kernel('v_kernel', 32, simple(lambda: roles.role_kv(A, sy, True)), LDS_ALL)

        def chain_body(end):
            ticket(A)
            A.i(f's_cmp_lg_u32 s{sT3}, 0')
            A.i(f's_cbranch_scc1 {end}')
            A.i(f's_cmp_ge_u32 s{sT4}, 32')
            A.i(f's_cbranch_scc1 {end}')
            A.i(f's_mov_b32 s{sR}, s{sT4}')
            chain.role_chain(A, sy, end)
        kernel('chain_kernel', 256, chain_body, LDS_ALL)
        kernel('qa_kernel', 64, simple(lambda: roles.role_qa(A, sy)), LDS_ALL)
        kernel('wo_kernel', 32, simple(lambda: roles.role_wo(A, sy)), LDS_ALL)
        kernel('r_kernel', 16, simple(lambda: roles.role_r(A, sy)), 0)
        kernel('f1_kernel', 28, simple(lambda: roles.role_f1(A, sy)), LDS_ALL)
        kernel('f2_kernel', 16, simple(lambda: roles.role_f2(A, sy)), LDS_ALL)
    else:
        sy = Sync(True, trace=mode.startswith('trace'))
        sy.opts = set(mode.split('_')[1:])
        for o in sy.opts:
            if o[0] == 'd' and '=' in o:
                setattr(sy, o.split('=')[0], int(o.split('=')[1]))

        sy.single = single

        def main_body(end):
            if 'code' in sy.opts:
                A.i('s_getpc_b64 s[40:41]')
                A.i('s_and_b32 s40, s40, 0xffffff00')
                A.i('s_and_b32 s41, s41, 0xffff')
                A.i('s_mov_b32 s42, Lcode_end-main_kernel-512')
                A.i('s_lshr_b32 s59, s2, 3')
                A.i('s_and_b32 s59, s59, 31')
                A.i('s_lshl_b32 s59, s59, 12')
                A.i(f's_lshl_b32 s60, s{sW}, 10')
                A.i('s_add_u32 s59, s59, s60')
                A.i('buffer_load_dwordx4 v[8:11], v1, s[40:43], s59 offen')
            ticket(A, single)
            A.i(f's_cmp_ge_u32 s{sT4}, 32')
            A.i(f's_cbranch_scc1 {end}')
            A.i(f's_mov_b32 s{sR}, s{sT4}')
            if sy.tr:
                A.i(f's_lshl_b32 s100, s{sT3}, 5')
                A.i(f's_add_u32 s100, s100, s{sT4}')
                A.i('s_lshl_b32 s100, s100, 10')
                A.i(f's_add_u32 s100, s100, {TRACE:#x}')
                sy.trace(A, 3, None, imm=255, wave=0)
                A.i('v_mov_b32 v3, s96')
                A.i(f'buffer_store_dword v3, off, {roles.WSR}, s100 offset:{254*4}')
            labs = [A.newlabel('Lx%d' % i) for i in range(8)]
            for x in range(1, 8):
                A.i(f's_cmp_eq_u32 s{sT3}, {x}')
                A.i(f's_cbranch_scc1 {labs[x]}')
            chain.role_chain(A, sy, end)
            A.label(labs[1])
            roles.role_kv2(A, sy)
            A.i(f's_branch {end}')
            A.label(labs[3])
            A.i(f's_add_u32 s{sR}, s{sR}, 32')
            A.label(labs[2])
            roles.role_qa(A, sy)
            A.i(f's_branch {end}')
            A.label(labs[5])
            A.i(f's_add_u32 s{sR}, s{sR}, 32')
            A.label(labs[4])
            A.i(f's_mov_b32 s90, s{sT3}')
            sy.pub_base = -1 if False else 240
            roles.role_ln1(A, sy, sR)
            sy.pub_base = 0
            A.i(f's_and_b32 s{sR}, s{sR}, 31')
            A.i(f's_mov_b32 s{sT3}, s90')
            Lpost = A.newlabel('Lpost')
            A.i(f's_branch {Lpost}')
            A.label(labs[7])
            A.i(f's_add_u32 s{sR}, s{sR}, 32')
            A.label(labs[6])
            if single:
                Lnomod, Lnoz = A.newlabel('Lnomod'), A.newlabel('Lnoz')
                A.i(f's_mov_b32 s90, s{sT3}')
                A.i(f's_cmp_ge_u32 s{sR}, 48')
                A.i(f's_cbranch_scc1 {Lnomod}')
                roles.role_mod(A, sy, sR)
                A.i('s_barrier')
                A.label(Lnomod)
                A.i(f's_cmp_lg_u32 s{sR}, 48')
                A.i(f's_cbranch_scc1 {Lnoz}')
                roles.role_zero(A)
                A.label(Lnoz)
                A.i(f's_mov_b32 s{sT3}, s90')
            A.i(f's_and_b32 s{sR}, s{sR}, 31')
            A.label(Lpost)
            A.i(f's_sub_u32 s90, s{sT3}, 4')
            post.role_post(A, sy, 90)
        kernel('main_kernel', 256, main_body, LDS_ALL)
    out = HEADER + '\n'.join(launches) + '\n'
    out += '.amdgcn_target "amdgcn-amd-amdhsa--gfx950"\n.text\n'
    out += A.text()
    out += ''.join(kds)
    return out, A


if __name__ == '__main__':
    mode = sys.argv[1]
    path = sys.argv[2]
    out, A = build(mode)
    open(path, 'w').write(out)
    print('instructions', A.ninstr, 'nop states', A.nops, 'bytes', len(out))
```

```python
from common import *
from roles import load_weights, staged_load, WSR

L_MEM = 131072
L_KX = 139264
L_VX = 147456
L_OI = 155648
L_QI = L_OI + 2048
L_KI = L_QI + 2304
L_SEL = L_KI + 2304 + 64
L_VI = L_QI
QS = 288

vWV, vL2, vKX, vIDX, vQW, vQR, vPST, vX1, vX2, vVW, vOR, vOW, vLW, vT0 = range(2, 16)
vPF = 0
RA, RB, RC, RD = 16, 48, 80, 112
WK, WV, WQR, WOR = 256, 384, 128, 192
sPC, sPC2, sMC, sFLG, sKVF, sKVS, sOUT, sNX, sDST, sRST, sH1, sFA = range(72, 84)
sHF = 84
sLF = 86
sIO = 88
sSC2 = 90
sRP, sRM = 92, 93
sKS, sVS, sPFA, sPFD = 94, 95, 96, 97
sD2, sNV, sS1 = 65, 71, 3


def emit(A, x):
    if callable(x):
        x()
    else:
        A.i(x)


def mix(A, mf, fill, per=2, start=0):
    fill = list(fill)
    for k, m in enumerate(mf):
        emit(A, m)
        if k >= start:
            for _ in range(per):
                if fill:
                    emit(A, fill.pop(0))
    for f in fill:
        emit(A, f)


def role_chain(A, sy, end, nsteps=64):
    opts = getattr(sy, 'opts', set())
    sH = sR
    srd(A, S_A, P_WQ, 512 * 8192)
    srd(A, S_B, P_WK, 512 * 8192)
    srd(A, S_C, P_WV, 512 * 8192)
    srd(A, S_D, P_WO, 4096 * 1024)
    G, N, G1, TT, TA, TB, WA, WB, LN = 16, 17, 18, 19, 20, 21, 32, 33, 34
    A.i(f'v_mov_b32 v{LN}, v0')
    A.i(f'v_lshrrev_b32 v{G}, 4, v0')
    A.i(f'v_and_b32 v{N}, 15, v0')
    A.i(f'v_and_b32 v{G1}, 1, v{G}')
    A.i(f'v_lshrrev_b32 v{TT}, 5, v0')
    A.i(f'v_lshlrev_b32 v{vPF}, 3, v1')
    A.i(f's_lshl_b32 s{sT0}, s{sW}, 15')
    A.i(f'v_add_u32 v{vWV}, s{sT0}, v1')
    A.i(f'v_add_u32 v{vL2}, {L_MEM}, v1')
    A.i(f's_lshl_b32 s{sT0}, s{sW}, 11')
    A.i(f'v_add_u32 v{vLW}, s{sT0}, v{vL2}')
    A.i(f'v_lshlrev_b32 v{vKX}, 9, v{G}')
    A.i(f'v_lshl_add_u32 v{vKX}, v{N}, 4, v{vKX}')
    A.i(f'v_add_u32 v{vKX}, {L_KX}, v{vKX}')
    A.i(f's_mov_b32 s{sHF}, 0xff00ff00')
    A.i(f's_mov_b32 s{sHF+1}, 0xff00ff00')
    A.i(f's_mov_b32 s{sLF}, 0x00ff00ff')
    A.i(f's_mov_b32 s{sLF+1}, 0x00ff00ff')
    A.i(f's_mov_b32 s{sSC2}, {SCALE:#x}')
    A.i(f's_mov_b32 s{sSC2+1}, {SCALE:#x}')
    A.i(f's_cmp_eq_u32 s{sW}, 3')
    A.i(f's_cselect_b32 s{sIO}, 1, 0')
    A.i(f's_mov_b32 s{sIO+1}, 0')
    A.i(f'v_mov_b32 v{vIDX}, 0x4444')
    A.i(f'v_mov_b32 v{TA}, 0xeeee')
    A.i(f'v_cndmask_b32 v{vIDX}, v{vIDX}, v{TA}, s[{sHF}:{sHF+1}]')
    A.i(f'v_lshlrev_b32 v{TA}, 1, v{G1}')
    A.i(f'v_add_u32 v{TA}, v{TA}, v{TT}')
    A.i(f'v_mul_u32_u24 v{vQW}, {2*QS}, v{TA}')
    A.i(f'v_lshl_add_u32 v{vQW}, v{N}, 2, v{vQW}')
    A.i(f's_lshl_b32 s{sT0}, s{sW}, 6')
    A.i(f's_add_u32 s{sT0}, s{sT0}, {L_QI}')
    A.i(f'v_add_u32 v{vQW}, s{sT0}, v{vQW}')
    A.i(f'v_lshrrev_b32 v{vPST}, 1, v{N}')
    A.i(f'v_lshlrev_b32 v{vPST}, 13, v{vPST}')
    A.i(f'v_lshl_add_u32 v{vPST}, v{G}, 4, v{vPST}')
    A.i(f'v_and_b32 v{TB}, 1, v{N}')
    A.i(f'v_lshl_add_u32 v{vPST}, v{TB}, 6, v{vPST}')
    A.i(f's_lshl_b32 s{sT0}, s{sW}, 16')
    A.i(f's_lshl_b32 s{sT1}, s{sH}, 7')
    A.i(f's_add_u32 s{sT0}, s{sT0}, s{sT1}')
    A.i(f'v_add_u32 v{vPST}, s{sT0}, v{vPST}')
    A.i(f'v_lshlrev_b32 v{vVW}, 8, v{TT}')
    A.i(f'v_lshl_add_u32 v{vVW}, v{N}, 4, v{vVW}')
    A.i(f'v_lshl_add_u32 v{vVW}, v{G1}, 3, v{vVW}')
    A.i(f's_lshl_b32 s{sT0}, s{sW}, 9')
    A.i(f's_add_u32 s{sT0}, s{sT0}, {L_VI}')
    A.i(f'v_add_u32 v{vVW}, s{sT0}, v{vVW}')
    A.i(f'v_and_b32 v{TA}, 7, v{N}')
    A.i(f'v_mul_u32_u24 v{vQR}, {QS}, v{TA}')
    A.i(f'v_lshl_add_u32 v{vQR}, v{G}, 4, v{vQR}')
    A.i(f'v_add_u32 v{vQR}, {L_QI}, v{vQR}')
    A.i(f'v_lshlrev_b32 v{vOR}, 7, v{G}')
    A.i(f'v_lshl_add_u32 v{vOR}, v{TA}, 4, v{vOR}')
    A.i(f'v_add_u32 v{vOR}, {L_OI}, v{vOR}')
    A.i(f's_lshl_b32 s{sT0}, s{sW}, 9')
    A.i(f'v_add_u32 v{vOW}, s{sT0}, v{vOR}')
    A.i(f'v_lshlrev_b32 v{vX1}, 6, v{TB}')
    A.i(f'v_lshl_add_u32 v{vX1}, v{G1}, 4, v{vX1}')
    A.i(f'v_bfe_u32 v{TA}, v{N}, 2, 1')
    A.i(f'v_lshl_add_u32 v{vX1}, v{TA}, 7, v{vX1}')
    A.i(f'v_bfe_u32 v{TA}, v{N}, 1, 1')
    A.i(f'v_lshl_add_u32 v{vX1}, v{TA}, 3, v{vX1}')
    A.i(f's_lshl_b32 s{sT0}, s{sH}, 8')
    A.i(f's_and_b32 s{sT1}, s{sW}, 1')
    A.i(f's_lshl_b32 s{sT2}, s{sT1}, 5')
    A.i(f's_add_u32 s{sT0}, s{sT0}, s{sT2}')
    A.i(f'v_add_u32 v{vX1}, s{sT0}, v{vX1}')
    A.i(f'v_mov_b32 v{vX2}, 0')
    A.i(f's_lshl_b32 s{sH1}, s{sH}, 13')
    A.i(f's_lshl_b32 s{sT2}, s{sT1}, 12')
    A.i(f's_add_u32 s{sH1}, s{sH1}, s{sT2}')
    A.i(f's_lshl_b32 s{sT0}, s{sH}, 7')
    A.i(f's_add_u32 s{sKVF}, s{sT0}, {F_KV:#x}')
    A.i(f's_add_u32 s{sFLG}, s{sT0}, {F_CH:#x}')
    A.i(f's_lshl_b32 s{sT0}, s{sH}, 11')
    A.i(f's_lshr_b32 s{sT2}, s{sW}, 1')
    A.i(f's_lshl_b32 s{sT2}, s{sT2}, 22')
    A.i(f's_add_u32 s{sOUT}, s{sT0}, s{sT2}')
    A.i(f's_lshl_b32 s{sT2}, s{sT1}, 10')
    A.i(f's_add_u32 s{sOUT}, s{sOUT}, s{sT2}')
    A.i(f's_add_u32 s{sOUT}, s{sOUT}, {KM:#x}')
    A.i(f's_lshl_b32 s{sT0}, s{sH}, 13')
    A.i(f's_lshl_b32 s{sT2}, s{sW}, 11')
    A.i(f's_add_u32 s{sRST}, s{sT0}, s{sT2}')
    A.i(f's_add_u32 s{sNX}, s{sRST}, {KX:#x}')
    A.i(f's_add_u32 s{sDST}, s{sT2}, {L_KX}')
    A.i(f's_lshl_b32 s{sPFD}, s{sT1}, 24')
    A.i(f's_sub_u32 s{sPFD}, s{sPFD}, s{sT2}')
    A.i(f's_mov_b32 s{sKVS}, {0 if sy.on else 64}')
    A.i(f's_mov_b32 s{sKS}, 0')
    A.i(f's_mov_b32 s{sVS}, 0')
    A.i(f'v_lshlrev_b32 v{TA}, 1, v{G1}')
    A.i(f'v_add_u32 v{TA}, v{TA}, v{TT}')
    A.i(f'v_lshlrev_b32 v{vX2}, 9, v{TA}')
    A.i(f'v_lshl_add_u32 v{vX2}, v{N}, 2, v{vX2}')
    A.i(f's_lshl_b32 s{sT0}, s{sW}, 6')
    A.i(f'v_add_u32 v{vX2}, s{sT0}, v{vX2}')
    A.i(f'v_add_u32 v{vVW}, {VM-KM-L_VI:#x}, v{vVW}')
    A.i(f's_lshl_b32 s{sOUT}, s{sH}, 11')
    A.i(f's_add_u32 s{sOUT}, s{sOUT}, {KM - 0x10000:#x}')
    for c in range(4):
        A.i(f'v_mov_b32 v{24+c}, 0')
        A.i(f'v_cmp_eq_u32 vcc, {2*c}, v{N}')
        A.i(f'v_mov_b32 v{TA}, 0x3f80')
        A.i(f'v_cndmask_b32 v{24+c}, v{24+c}, v{TA}, vcc')
        A.i(f'v_cmp_eq_u32 vcc, {2*c+1}, v{N}')
        A.i(f'v_mov_b32 v{TA}, 0x3f800000')
        A.i(f'v_cndmask_b32 v{24+c}, v{24+c}, v{TA}, vcc')
    A.i(f'ds_write_b128 v{vL2}, v[24:27] offset:{L_SEL-L_MEM}')
    single = getattr(sy, 'single', False)
    if single:
        for i in range(4):
            A.i(f'v_mov_b32 v{24+i}, -1')
        A.i(f's_lshl_b32 s{sT0}, s{sW}, 18')
        A.i(f's_lshl_b32 s{sT1}, s{sH}, 13')
        A.i(f's_add_u32 s{sT0}, s{sT0}, s{sT1}')
        A.i(f's_add_u32 s{sT0}, s{sT0}, {XP:#x}')
        A.i(f's_add_u32 s{sT1}, s{sT0}, 4096')
        for i in range(8):
            A.i(f'buffer_store_dwordx4 v[24:27], v1, {WSR}, s{sT0 if i < 4 else sT1} offen offset:{(i&3)*1024}')
        A.i(f's_lshl_b32 s{sT0}, s{sW}, 13')
        A.i(f's_lshl_b32 s{sT1}, s{sH}, 8')
        A.i(f's_add_u32 s{sT0}, s{sT0}, s{sT1}')
        A.i(f's_add_u32 s{sT0}, s{sT0}, {XM:#x}')
        A.i('s_mov_b64 exec, 0xffff')
        A.i(f'buffer_store_dwordx4 v[24:27], v1, {WSR}, s{sT0} offen')
        A.i('s_mov_b64 exec, -1')
    A.i(f'v_lshrrev_b32 v{TA}, 1, v{G}')
    A.i(f'v_lshlrev_b32 v{WA}, 17, v{TA}')
    A.i(f'v_lshl_add_u32 v{WA}, v{G1}, 15, v{WA}')
    A.i(f'v_lshl_add_u32 v{WA}, v{N}, 2, v{WA}')
    A.i(f'v_lshlrev_b32 v{WB}, 12, v{G}')
    A.i(f'v_lshl_add_u32 v{WB}, v{N}, 4, v{WB}')
    sWA, sWB = sT4, sT5
    A.i(f's_lshl_b32 s{sWA}, s{sH}, 8')
    A.i(f's_lshl_b32 s{sT0}, s{sW}, 6')
    A.i(f's_add_u32 s{sWA}, s{sWA}, s{sT0}')
    A.i(f's_lshl_b32 s{sWB}, s{sH}, 17')
    A.i(f's_lshl_b32 s{sT0}, s{sW}, 8')
    A.i(f's_add_u32 s{sWB}, s{sWB}, s{sT0}')

    sWAp, sWBp = [4, 5, 6, 7], [8, 9, 10, 11]
    A.i(f's_mov_b32 s12, s{P_MEM0}')
    A.i(f's_mov_b32 s13, s{P_MEM0+1}')
    for p in range(4):
        A.i(f's_xor_b32 s{sT0}, s{sW}, {p}')
        A.i(f's_lshl_b32 s{sT1}, s{sT0}, 20')
        A.i(f's_add_u32 s{sWAp[p]}, s{sWA}, s{sT1}')
        A.i(f's_lshl_b32 s{sT1}, s{sT0}, 15')
        A.i(f's_add_u32 s{sWBp[p]}, s{sWB}, s{sT1}')

    def mem_units(srd_s, dst, ks_list):
        u = []
        for ks in ks_list:
            for r in range(8):
                d0 = 64 * (ks & 1) + 32 * (r >> 2) + 8 * (r & 1) + 2 * ((r >> 1) & 1)
                u.append((srd_s, WA, sWAp[ks >> 1], d0 * 8192, (d0 + 1) * 8192, 1,
                          [(dst(ks * 2) + r, 0, f's{SELLO}'), (dst(ks * 2 + 1) + r, 0, f's{SELHI}')]))
        return u

    def o_units(dst, ks_list):
        u = []
        for ks in ks_list:
            for uu in range(4):
                e0 = 16 * (uu >> 1) + 2 * (uu & 1)
                outs = []
                for cg in range(4):
                    for st in range(2):
                        outs.append((dst(ks * 4 + cg) + 2 * uu + st, 2 * st + (cg >> 1),
                                     f's{SELHI if (cg & 1) else SELLO}'))
                u.append((S_D, WB, sWBp[ks], e0 * 1024, (e0 + 1) * 1024, 4, outs))
        return u

    WO_STREAM = [0, 1, 2, 3, 4, 13, 14, 15]
    def spill(first_reg, nfrag, lds_frag0):
        for f in range(nfrag):
            for hq in range(2):
                A.i(f'ds_write_b128 v{vWV}, {vr(first_reg + f*8 + hq*4, 4)} offset:{(lds_frag0 + f)*2048 + hq*1024}')
            A.i('s_waitcnt lgkmcnt(0)')
    def spill_u(first_u, lds_frag):
        for hq in range(2):
            A.i(f'ds_write_b128 v{vWV}, {ur(first_u + hq*4, 4)} offset:{lds_frag*2048 + hq*1024}')
    def o_home(p):
        return (WV + WO_STREAM.index(p) * 8) if p in WO_STREAM else WOR + (p - 5) * 8
    def q_home(f):
        return (WV + 64 + f * 8) if f < 8 else WQR + (f - 8) * 8
    load_weights(A, o_units(o_home, range(4)) + mem_units(S_A, q_home, range(8)) + mem_units(S_B, lambda f: WK + f * 8, range(8)), 48, 32, 22)
    for k in range(8):
        spill_u(WV + k * 8, 8 + k)
        spill_u(WV + 64 + k * 8, k)
        A.i('s_waitcnt lgkmcnt(0)')
    if single:
        ready_wait(A, 24, 25)
        A.i('s_barrier')
        A.i(f's_lshl_b32 s{sT0}, s{sH}, 7')
        A.i(f's_add_u32 s{sT0}, s{sT0}, {F_CI:#x}')
        A.i('v_mov_b32 v24, 1')
        A.i(f's_mov_b64 exec, s[{sIO}:{sIO+1}]')
        A.i(f'buffer_store_dword v24, off, {WSR}, s{sT0} sc1')
        A.i('s_mov_b64 exec, -1')
    load_weights(A, mem_units(S_C, lambda f: WV + f * 8, range(8)), 48, 32, 22)
    sy.trace(A, vT0, None, imm=102, wave=0)
    if single:
        A.i(f'v_and_b32 v24, 31, v{LN}')
        A.i('v_lshlrev_b32 v24, 7, v24')
        A.i(f'v_add_u32 v24, {F_CI:#x}, v24')
        A.i(f's_mov_b32 s{sT2}, 1')
        sy.wait(A, 24, 25, sT2)
    sy.trace(A, vT0, None, imm=101, wave=0)
    srd(A, S_A, 12, 8192)
    A.i(f's_mov_b32 s{sS}, 0')
    A.i(f'v_and_b32 v{vT0}, 7, v{LN}')
    A.i(f'v_lshlrev_b32 v{vT0}, 10, v{vT0}')
    A.i(f'v_lshrrev_b32 v{TA}, 3, v{LN}')
    A.i(f'v_lshl_add_u32 v{vT0}, v{TA}, 4, v{vT0}')
    A.i(f's_lshl_b32 s{sT0}, s{sW}, 8')
    for i in range(2):
        A.i(f'buffer_load_dwordx4 {vr(RA+4*i,4)}, v{vT0}, s[{S_A}:{S_A+3}], s{sT0} offen offset:{i*128}')
    A.i('s_waitcnt vmcnt(0)')
    for i in range(2):
        A.i(f'ds_write_b128 v{vLW}, {vr(RA+4*i,4)} offset:{i*1024}')
    A.i('s_waitcnt lgkmcnt(0)')

    slow = []
    def kv_wait(sseg, r0, r1):
        if sy.on:
            Lok, Lp = A.newlabel('CHkvok'), A.newlabel('CHkvp')
            A.i(f's_cmp_gt_u32 s{sKVS}, s{sseg}')
            A.i(f's_cbranch_scc0 {Lp}')
            A.label(Lok)
            slow.append((Lp, Lok, sseg, r0, r1))

    def kv_dma(which):
        A.i(f's_mov_b32 m0, s{sD2 if which else sDST}')
        for i in range(2):
            A.i(f'buffer_load_dwordx4 v1, {WSR}, s{sNV if which else sNX} offen offset:{i*1024} sc1 lds')

    A.i(f's_add_u32 s{sD2}, s{sDST}, {L_VX-L_KX}')
    A.i(f's_add_u32 s{sNV}, s{sNX}, {VT-KX:#x}')
    kv_wait(sS, 34, 35)
    kv_dma(0)
    kv_dma(1)

    stamps = []
    Lfin = A.newlabel('CHfin')
    Lcut = A.newlabel('CHcut')
    def stamp(name):
        if ('cut' + name) in opts:
            A.i(f's_cmp_eq_u32 s{sS}, {nsteps-1}')
            A.i(f's_cbranch_scc1 {Lfin}')
            A.i(f's_branch {Lcut}')

    prof = 'prof' in opts
    def ts(k):
        if prof:
            A.i(f's_memtime s[{4+2*k}:{5+2*k}]')
    def cnt(k):
        if prof:
            A.i(f's_add_u32 s{28+k}, s{28+k}, 1')
    if prof:
        for k in range(4, 32):
            A.i(f's_mov_b32 s{k}, 0')
    AQ, AK, AV = RD, RD + 8, RD
    MA = RA
    XQ = RB
    S1, S2 = RB + 24, RB + 28
    QF, KR = RC, RC + 16
    S0, PM0, PM1 = RD + 8, RD + 12, RD + 14
    P4, VXF, OP, WD = RC, RC + 4, RC + 12, RC + 16
    OD, OA = RB + 24, RA
    PK = RC
    YS = [RB, RB + 8, RB + 16, RA + 16, RA + 24]

    def frag_read(reg, lf, tag):
        return [lambda: A.ds(f'ds_read_b128 {vr(reg,4)}, v{vWV} offset:{lf*2048}', tag),
                lambda: A.ds(f'ds_read_b128 {vr(reg+4,4)}, v{vWV} offset:{lf*2048+1024}', tag)]

    def pre_step():
        for f in range(8):
            for x in frag_read(XQ + 8 * f, f, 'xq'):
                x()
            A.i(f'v_mov_b64 {vr(RD+2*f,2)}, 0')

    def step_scalars(addr=True):
        A.i(f's_and_b32 s{sT0}, s{sS}, 3')
        A.i(f's_lshl_b32 s{sPC}, s{sT0}, 18')
        A.i(f's_add_u32 s{sPC}, s{sPC}, {XP:#x}')
        A.i(f's_add_u32 s{sPC2}, s{sPC}, 4096')
        A.i(f's_lshl_b32 s{sMC}, s{sT0}, 13')
        A.i(f's_add_u32 s{sMC}, s{sMC}, {XM:#x}')
        A.i(f's_add_u32 s{sT2}, s{sS}, 8')
        A.i(f's_cmp_gt_u32 s{sKVS}, s{sT2}')
        A.i(f's_cselect_b32 s{sFA}, {FLAGS + 8*FL:#x}, s{sKVF}')
        for p in range(1, 4):
            if addr:
                A.i(f'v_xor_b32 v{RA+8*p}, {p << 11:#x}, v{vLW}')
        A.i(f's_add_u32 s{sOUT}, s{sOUT}, 0x10000')
        A.i(f's_add_u32 s{sS1}, s{sS}, 1')
        A.i(f's_min_u32 s{sS1}, s{sS1}, 63')
        A.i(f's_add_u32 s{sT1}, s{sNX}, s{sPFD}')
        A.i(f's_add_u32 s{sNX}, s{sNX}, 0x40000')
        A.i(f's_add_u32 s{sNV}, s{sNV}, 0x40000')
        A.i(f's_add_u32 s{sPFA}, s{sT1}, 0x80000')
        A.i(f's_add_u32 s{sT2}, s{sS}, 2')
        A.i(f's_cmp_gt_u32 s{sKVS}, s{sT2}')
        A.i(f's_cselect_b32 s{sPFA}, s{sPFA}, s{sT1}')
        A.i(f's_add_u32 s{sT0}, s{sS}, 3')
        A.i(f's_and_b32 s{sT0}, s{sT0}, 3')
        A.i(f's_lshl_b32 s{sT0}, s{sT0}, 18')
        A.i(f's_add_u32 s{sT0}, s{sT0}, s{sRST}')
        A.i(f's_add_u32 s{sRP}, s{sT0}, {XP:#x}')
        A.i(f's_xor_b32 s{sRM}, s{sMC}, 0x4000')
        A.i(f's_lshl_b32 s{sT1}, s{sH}, 8')
        A.i(f's_add_u32 s{sRM}, s{sRM}, s{sT1}')

    pre_step()
    step_scalars()
    Ltop = A.newlabel('CHtop')
    if sy.tr and not prof:
        A.i('s_memtime s[4:5]')
    A.i('s_waitcnt vmcnt(0)')
    A.wl_all()
    A.label(Ltop)
    _orig_i = A.i
    def _filt(text):
        for t in text.split('\n'):
            if 'novm' in opts and t.startswith('buffer_') and 's101' not in t:
                continue
            if 'nokv' in opts and ('buffer_store' in t and 'sc1' in t):
                continue
            if 'nodma' in opts and (' lds' in t and 'buffer_load' in t):
                continue
            if 'nopf' in opts and t.startswith('buffer_load_dword v') and 'offen' in t:
                t = t.replace(f's{sPFA}', f's{sMC}')
            if 'plainkv' in opts and ('buffer_store' in t and 'sc1' in t):
                t = t.replace(' sc1', '')
            _orig_i(t)
    A.i = _filt
    def sm(acc, a, w):
        return f'v_smfmac_f32_16x16x64_bf16 {vr(acc,4)}, {vr(a,4)}, {ur(w,8)}, v{vIDX}'
    def wq(f):
        return XQ + 8 * f if f < 8 else WQR + 8 * (f - 8)
    for f in range(4):
        A.i(sm(AQ + 4 * (f & 1), MA + 4 * (f >> 1), wq(f)))
    A.i('s_waitcnt lgkmcnt(0)')
    A.i('s_barrier')
    stamp('Ba')
    ts(4)
    Lxo = A.newlabel('CHxo')
    if 'xonly' in opts:
        A.i(f's_cmp_eq_u32 s{sS}, {nsteps-1}')
        A.i(f's_cbranch_scc1 {Lfin}')
        A.i(f'v_mov_b64 {vr(RC+4,2)}, -1')
        A.i(f'v_mov_b64 {vr(RC+6,2)}, -1')
        A.i(f'buffer_store_dwordx4 {vr(RC+4,4)}, v1, {WSR}, s{sRP} offen')
        A.i(f'buffer_store_dwordx4 {vr(RC+4,4)}, v1, {WSR}, s{sRP} offen offset:1024')
        A.i('s_mov_b64 exec, 0xffff')
        A.i(f'buffer_store_dwordx4 {vr(RC+4,4)}, v1, {WSR}, s{sRM} offen')
        A.i('s_mov_b64 exec, -1')
        for r in range(0, 16, 2):
            A.i(f'v_mov_b64 {vr(RC+16+r,2)}, 0')
        for _ in range(getattr(sy, 'dx', 16)):
            A.i('s_nop 15')
        A.i(f's_branch {Lxo}')
    for p in range(1, 4):
        A.ds(f'ds_read_b128 {vr(MA+8*p+4,4)}, v{RA+8*p} offset:1024', ('ma', 2 * p + 1))
        A.ds(f'ds_read_b128 {vr(MA+8*p,4)}, v{RA+8*p}', ('ma', 2 * p))
    for f in range(2):
        A.i(sm(AK + 4 * (f & 1), MA + 4 * (f >> 1), WK + f * 8))
    A.i(f'buffer_load_dword v{vT0}, v{vPF}, {WSR}, s{sPFA} offen sc1')
    if sy.on:
        A.i(f'buffer_load_dword v{vT0}, off, {WSR}, s{sFA} sc1')
    for f in range(2, 4):
        A.i(sm(AK + 4 * (f & 1), MA + 4 * (f >> 1), WK + f * 8))
    def kx_read(j):
        A.ds(f'ds_read_b128 {vr(KR+(j&3)*4,4)}, v{vKX} offset:{(j>>1)*2048+(j&1)*256}', ('kx', j))
    mf = []
    for ks in range(2, 8):
        if ks in (2, 4, 6):
            mf.append(lambda ks=ks: (A.wl(('ma', ks)), A.i(sm(AQ, MA + 4 * ks, wq(ks * 2)))))
        else:
            mf.append(sm(AQ, MA + 4 * ks, wq(ks * 2)))
        mf.append(sm(AQ + 4, MA + 4 * ks, wq(ks * 2 + 1)))
    fill = []
    for k in range(3):
        fill += frag_read(YS[k], 8 + k, ('y', k))
    fill += [lambda j=j: kx_read(j) for j in range(2)]
    mix(A, mf, fill, per=1, start=4)
    stamp('Qdone')

    def fold_qk(acc, off, t0, t1):
        f = []
        for t in range(2):
            f.append(f'v_permlane32_swap_b32 v{acc+4*t}, v{acc+4*t+2}')
            f.append(f'v_permlane32_swap_b32 v{acc+4*t+1}, v{acc+4*t+3}')
        for t in range(2):
            f.append(f'v_pk_add_f32 {vr(acc+4*t,2)}, {vr(acc+4*t,2)}, {vr(acc+4*t+2,2)}')
        f.append(f'v_cvt_pk_bf16_f32 v{t0}, v{acc}, v{acc+4}')
        f.append(f'v_cvt_pk_bf16_f32 v{t1}, v{acc+1}, v{acc+5}')
        f.append(lambda: A.ds(f'ds_write2_b32 v{vQW}, v{t0}, v{t1} offset0:0 offset1:{QS//4}', 'w') if off == 0 else
                 (A.ds(f'ds_write_b32 v{vQW}, v{t0} offset:{off}', 'w'), A.ds(f'ds_write_b32 v{vQW}, v{t1} offset:{off+QS}', 'w')))
        return f

    mf = []
    for ks in range(2, 8):
        mf.append(sm(AK, MA + 4 * ks, WK + (ks * 2) * 8))
        mf.append(sm(AK + 4, MA + 4 * ks, WK + (ks * 2 + 1) * 8))
    mix(A, mf[:3], [lambda j=j: kx_read(j) for j in range(2, 4)], per=1)
    mix(A, mf[3:8], fold_qk(AQ, 0, AQ + 2, AQ + 3), per=2)
    mix(A, mf[8:11], [f'v_mov_b64 {vr(AV+r,2)}, 0' for r in (0, 4, 6)], per=1)
    A.wl('w')
    A.i('s_barrier')
    stamp('Bb')
    emit(A, mf[11])
    for ks in range(4):
        A.ds(f'ds_read_b128 {vr(QF+4*ks,4)}, v{vQR} offset:{ks*64}', ('q', ks))
    A.i(f'v_mov_b64 {vr(AV+2,2)}, 0')
    if sy.on:
        A.i(f'v_mov_b32 v{S2}, s{sS}')
        A.i(f's_mov_b64 exec, s[{sIO}:{sIO+1}]')
        A.i(f'buffer_store_dword v{S2}, off, {WSR}, s{sFLG} sc1')
        A.i('s_mov_b64 exec, -1')
    early = False
    tag = False
    stamp('Kdone')

    vstate = {'f': 0}
    def vstep():
        f = 15 - vstate['f']
        ks, t = f >> 1, f & 1
        A.i(sm(AV + 4 * t, MA + 4 * ks, WV + f * 8))
        vstate['f'] += 1

    def smx(j):
        ks, kt = j >> 1, j & 1
        S = S2 if kt else S1
        c = '0' if ks == 0 else vr(S, 4)
        def f():
            A.wl(('kx', j))
            A.wl(('q', ks))
            A.i(f'v_mfma_f32_16x16x32_bf16 {vr(S,4)}, {vr(KR+(j&3)*4,4)}, {vr(QF+4*ks,4)}, {c}')
            if j + 4 < 8:
                kx_read(j + 4)
        return f
    for x in fold_qk(AK, L_KI - L_QI, AK + 2, AK + 3):
        emit(A, x)
    if early:
        A.i(f'buffer_store_dwordx4 {vr(S2,4)}, v1, {WSR}, s{sRP} offen offset:1024')
        A.i('s_mov_b64 exec, 0xffff')
        A.i(f'buffer_store_dwordx4 {vr(S2,4)}, v1, {WSR}, s{sRM} offen')
        A.i('s_mov_b64 exec, -1')
    A.wl(('q', 3))
    for j in range(4):
        smx(j)()
    A.wl('w')
    A.i('s_barrier')
    stamp('Bc')
    vstep()
    A.i(f'buffer_store_dword v{AK+2}, v{vX2}, {WSR}, s{sOUT} offen sc1')
    A.i(f'buffer_store_dword v{AK+3}, v{vX2}, {WSR}, s{sOUT} offen offset:256 sc1')
    A.wl(('kx', 7))
    for j in range(4, 8):
        smx(j)()
        A.ds(f'ds_read_b128 {vr(KR+4*(j-4),4)}, v{vQR} offset:{L_KI-L_QI+(j-4)*64}', ('km', j - 4))
    SX = S1
    T0, T1, T2 = S2, S2 + 1, S0 + 2
    def r1(a):
        return f'v_cvt_pk_bf16_f32 v{a}, 0, v{a}'
    vstep()
    A.i(f'v_mov_b64 {vr(PM0,2)}, 0')
    vstep()
    A.i(f'v_mov_b64 {vr(PM1,2)}, 0')
    fx = [f'v_cndmask_b32 v{S1+r}, v{S1+r}, v{S2+r}, s[{sHF}:{sHF+1}]' for r in range(4)]
    fx += [r1(SX + r) for r in range(4)]
    fx += [f'v_mul_f32 v{SX+r}, s{sSCALE}, v{SX+r}' for r in range(4)]
    fx += [r1(SX + r) for r in range(4)]
    fx += [f'v_max3_f32 v{T0}, v{SX}, v{SX+1}, v{SX+2}']
    s0 = []
    for ks in range(4):
        c = '0' if ks == 0 else vr(S0, 4)
        s0.append(lambda ks=ks, c=c: (A.wl(('km', ks if ks != 1 else 3)), A.i(f'v_mfma_f32_16x16x32_bf16 {vr(S0,4)}, {vr(KR+4*ks,4)}, {vr(QF+4*ks,4)}, {c}')))
    mix(A, s0, fx[:8], per=2)
    stamp('S0')
    for t in range(2):
        A.ds(f'ds_read_b128 {vr(VXF+4*t,4)}, v{vLW} offset:{L_VX-L_MEM+t*1024}', ('vx', t))
    for x in fx[8:]:
        emit(A, x)
    wz = [f'v_mov_b64 {vr(WD+r,2)}, 0' for r in range(0, 16, 2)]
    f = [f'v_cndmask_b32 v{S0}, v{S0}, v{S0+2}, s[{sHF}:{sHF+1}]', f'v_cndmask_b32 v{S0+1}, v{S0+1}, v{S0+3}, s[{sHF}:{sHF+1}]',
         r1(S0), r1(S0 + 1), f'v_mul_f32 v{S0}, s{sSCALE}, v{S0}', f'v_mul_f32 v{S0+1}, s{sSCALE}, v{S0+1}', r1(S0), r1(S0 + 1),
         f'v_max3_f32 v{T1}, v{SX+3}, v{S0}, v{S0+1}', f'v_max_f32 v{T0}, v{T0}, v{T1}',
         vstep, wz[0],
         f'v_max_f32_dpp v{T0}, v{T0}, v{T0} row_ror:8 row_mask:0xf bank_mask:0xf',
         f'v_mov_b32 v{T1}, v{T0}', vstep, wz[1], f'v_permlane32_swap_b32 v{T0}, v{T1}', f'v_max_f32 v{T0}, v{T0}, v{T1}',
         f'v_mov_b32 v{T1}, v{T0}', vstep, wz[2], f'v_permlane16_swap_b32 v{T0}, v{T1}', f'v_max_f32 v{T0}, v{T0}, v{T1}',
         f'v_mul_f32 v{T0}, s{sLOG2E}, v{T0}']
    vals = [SX, SX + 1, SX + 2, SX + 3, S0, S0 + 1]
    for a in vals:
        f += [f'v_fma_f32 v{a}, v{a}, s{sLOG2E}, -v{T0}', vstep]
    yr = frag_read(YS[3], 8 + 3, ('y', 3)) + frag_read(YS[4], 8 + 4, ('y', 4))
    f += [yr[0], vstep]
    f += [f'v_exp_f32 v{a}, v{a}' for a in vals]
    f += [f'v_pk_add_f32 {vr(T0,2)}, {vr(SX,2)}, {vr(SX+2,2)}', f'v_add_f32 v{T2}, v{S0}, v{S0+1}', f'v_add_f32 v{T0}, v{T0}, v{T1}',
          f'v_fma_f32 v{T0}, v{T2}, 0.5, v{T0}', vstep, wz[3],
          f'v_add_f32_dpp v{T0}, v{T0}, v{T0} row_ror:8 row_mask:0xf bank_mask:0xf',
          f'v_mov_b32 v{T1}, v{T0}', vstep, wz[4], f'v_permlane32_swap_b32 v{T0}, v{T1}', f'v_add_f32 v{T0}, v{T0}, v{T1}',
          f'v_mov_b32 v{T1}, v{T0}', vstep, wz[5], f'v_permlane16_swap_b32 v{T0}, v{T1}', f'v_add_f32 v{T0}, v{T0}, v{T1}',
          f'v_rcp_f32 v{T0}, v{T0}', yr[1]]
    f += [f'v_pk_mul_f32 {vr(a,2)}, {vr(a,2)}, {vr(T0,2)} op_sel_hi:[1,0]' for a in (SX, SX + 2, S0)]
    f += [f'v_cvt_pk_bf16_f32 v{P4}, v{SX}, v{SX+1}', f'v_cvt_pk_bf16_f32 v{P4+1}, v{SX+2}, v{SX+3}',
          f'v_cvt_pk_bf16_f32 v{T2}, v{S0}, v{S0+1}',
          f'v_mov_b32_dpp v{P4+2}, v{P4} row_ror:8 row_mask:0xf bank_mask:0xf',
          f'v_mov_b32_dpp v{P4+3}, v{P4+1} row_ror:8 row_mask:0xf bank_mask:0xf']
    for x in f:
        emit(A, x)
    assert vstate['f'] == 16, vstate
    pmv = [f'v_mov_b32_dpp v{PM0}, v{T2} quad_perm:[0,1,2,3] row_mask:0x3 bank_mask:0xf',
           f'v_mov_b32_dpp v{PM0+1}, v{T2} row_ror:8 row_mask:0x3 bank_mask:0xf',
           f'v_mov_b32_dpp v{PM1}, v{T2} quad_perm:[0,1,2,3] row_mask:0xc bank_mask:0xf',
           f'v_mov_b32_dpp v{PM1+1}, v{T2} row_ror:8 row_mask:0xc bank_mask:0xf']
    g = [f'v_permlane32_swap_b32 v{AV+r}, v{AV+4+r}' for r in range(4)]
    g += [f'v_pk_add_f32 {vr(AV,2)}, {vr(AV,2)}, {vr(AV+4,2)}', f'v_pk_add_f32 {vr(AV+2,2)}, {vr(AV+2,2)}, {vr(AV+6,2)}']
    g += [f'v_cvt_pk_bf16_f32 v{AV+4}, v{AV}, v{AV+1}', f'v_cvt_pk_bf16_f32 v{AV+5}, v{AV+2}, v{AV+3}']
    stamp('P')
    for x in g[:2]:
        emit(A, x)
    A.wl(('vx', 1))
    A.i(f'v_mfma_f32_16x16x32_bf16 {vr(OD,4)}, {vr(VXF,4)}, {vr(P4,4)}, 0')
    for x in g[2:4]:
        emit(A, x)
    A.i(f'v_mfma_f32_16x16x32_bf16 {vr(OD+4,4)}, {vr(VXF+4,4)}, {vr(P4,4)}, 0')
    for x in g[4:] + pmv:
        emit(A, x)
    A.i(f'v_mfma_f32_16x16x16_bf16 {vr(OD,4)}, {vr(AV+4,2)}, {vr(PM0,2)}, {vr(OD,4)}')
    A.i(f'v_mfma_f32_16x16x16_bf16 {vr(OD+4,4)}, {vr(AV+4,2)}, {vr(PM1,2)}, {vr(OD+4,4)}')
    A.i(f'buffer_store_dwordx2 {vr(AV+4,2)}, v{vVW}, {WSR}, s{sOUT} offen sc1')
    kv_wait(sS1, RC + 4, RC + 5)
    kv_dma(1)
    SEN = RC + 4
    for x in [yr[2], yr[3], wz[6], wz[7]] + ([] if early else [f'v_mov_b64 {vr(SEN,2)}, -1', f'v_mov_b64 {vr(SEN+2,2)}, -1']):
        emit(A, x)
    for p in range(1, 4):
        A.i(f'v_xor_b32 v{OA+4*p}, {p << 9:#x}, v{vOW}')
    for c in range(4):
        A.i(f'v_cvt_pk_bf16_f32 v{OP+c}, v{OD+c}, v{OD+4+c}')
    A.i(f's_mov_b64 exec, s[{sLF}:{sLF+1}]')
    A.ds(f'ds_write_b128 v{vOW}, {vr(OP,4)}', 'w')
    A.i('s_mov_b64 exec, -1')
    for c in range(4):
        A.i(f'v_mov_b32_dpp v{OP+c}, v{OP+c} row_ror:8 row_mask:0xf bank_mask:0xc')
    A.i(f'buffer_store_dwordx4 {vr(SEN,4)}, v1, {WSR}, s{sRP} offen')
    A.i(f's_cmp_eq_u32 s{sS}, {nsteps-1}')
    def wo_step(p):
        ks, cg = p >> 2, p & 3
        if p == 4:
            A.wl(('o', 1))
        if p == 8:
            A.wl(('o', 3))
        if p < 5:
            w = YS[p]
        elif p < 13:
            w = WOR + (p - 5) * 8
        else:
            w = YS[p - 13]
            if p == 13:
                A.wl(('y', 15))
        A.i(sm(WD + 4 * cg, OP if ks == 0 else OA + 4 * ks, w))
    wo_step(0)
    wo_step(1)
    A.wl_all()
    A.i('s_barrier')
    for ks in range(1, 4):
        A.ds(f'ds_read_b128 {vr(OA+4*ks,4)}, v{OA+4*ks}', ('o', ks))
    A.i(f's_cbranch_scc1 {Lfin}')
    wo_step(2)
    A.i(f'buffer_store_dwordx4 {vr(SEN,4)}, v1, {WSR}, s{sRP} offen offset:1024')
    wo_step(3)
    A.i('s_mov_b64 exec, 0xffff')
    A.i(f'buffer_store_dwordx4 {vr(SEN,4)}, v1, {WSR}, s{sRM} offen')
    A.i('s_mov_b64 exec, -1')
    kv_dma(0)
    stamp('Bd')
    yy = []
    for k in range(3):
        yy += frag_read(YS[k], 8 + 5 + k, ('y', 13 + k))
    for p in range(4, 16):
        wo_step(p)
        if yy:
            yy.pop(0)()
    if 'xonly' in opts:
        A.label(Lxo)
    for r in range(4):
        A.i(f'v_cvt_pk_bf16_f32 v{PK+2*r}, v{WD+r}, v{WD+4+r}')
        if tag:
            A.i(f'v_and_or_b32 v{PK+2*r}, v{PK+2*r}, -2, s{sFA}')
    for r in range(4):
        A.i(f'v_cvt_pk_bf16_f32 v{PK+2*r+1}, v{WD+8+r}, v{WD+12+r}')
        if tag:
            A.i(f'v_and_or_b32 v{PK+2*r+1}, v{PK+2*r+1}, -2, s{sFA}')
        if r == 1:
            A.i(f'buffer_store_dwordx4 {vr(PK,4)}, v{vPST}, {WSR}, s{sPC} offen')
    A.i(f'buffer_store_dwordx4 {vr(PK+4,4)}, v{vPST}, {WSR}, s{sPC2} offen')
    stamp('Wo')
    if prof:
        ts(5)
        A.i('s_waitcnt lgkmcnt(0)')
        for k in range(5):
            A.i(f's_sub_u32 s{sT0}, s{4+2*(k+1)}, s{4+2*k}')
            A.i(f's_cmp_gt_u32 s{sS}, 4')
            A.i(f's_cselect_b32 s{sT0}, s{sT0}, 0')
            A.i(f's_add_u32 s{20+k}, s{20+k}, s{sT0}')
        A.i('s_mov_b32 s4, s14')
    SELR, RS, HA, IMG = RA + 16, RA + 20, RA, RA + 28
    Lbe = A.newlabel('CHbe')
    A.ds(f'ds_read_b128 {vr(SELR,4)}, v{vL2} offset:{L_SEL-L_MEM}', 'sel')
    if sy.on:
        A.i('s_waitcnt vmcnt(12)')
        A.i(f'v_readfirstlane_b32 s{sT0}, v{vT0}')
        A.i(f's_max_u32 s{sKVS}, s{sKVS}, s{sT0}')
    sy.trace(A, RD, sS, imm=0, wave=3)
    pre_step()
    A.i(f's_add_u32 s{sT5}, s{sPC}, s{sH1}')
    A.i(f's_lshl_b32 s{sT3}, s{sW}, 11')
    A.i(f's_add_u32 s{sT3}, s{sT3}, s{sMC}')
    A.i(f's_mov_b32 s{sT4}, s{sMC}')

    CT = RA + 26
    def chain_max(H, n):
        A.i(f'v_max3_u32 v{CT}, v{H}, v{H+1}, v{H+2}')
        for k in range(3, n - 1, 2):
            A.i(f'v_max3_u32 v{CT}, v{CT}, v{H+k}, v{H+k+1}')
        A.i(f'v_max_u32 v{CT}, v{CT}, v{H+n-1}')
    KF = getattr(sy, 'dk', 2)

    A.wl_all()
    A.i(f's_cmp_ge_u32 s{sW}, 2')
    A.i(f's_cbranch_scc1 {Lbe}')
    for _ in range(getattr(sy, 'd1', 2)):
        A.i('s_nop 15')
    Lp1, Lok1 = A.newlabel('CHp1'), A.newlabel('CHok1')
    def h1_loads():
        for L in range(4):
            A.i(f'buffer_load_dwordx4 {vr(HA+4*L,4)}, v1, {WSR}, s{sT5} offen offset:{L*1024} sc1')
    def h1_mfma(waits):
        for L in range(4):
            if waits:
                A.i(f's_waitcnt vmcnt({3-L})')
            c = '0' if L == 0 else vr(RS, 4)
            A.i(f'v_mfma_f32_16x16x32_bf16 {vr(RS,4)}, {vr(SELR,4)}, {vr(HA+4*L,4)}, {c}')
    h1_loads()
    h1_mfma(True)
    chain_max(HA, 16)
    A.i(f'v_cmpx_eq_u32 vcc, -1, v{CT}')
    A.i(f's_cbranch_execz {Lok1}')
    if 'nox' not in opts:
        A.label(Lp1)
        cnt(0)
        h1_loads()
        A.i(f's_waitcnt vmcnt({4*KF})')
        chain_max(HA, 16)
        A.i(f'v_cmpx_eq_u32 vcc, -1, v{CT}')
        A.i(f's_cbranch_execnz {Lp1}')
    A.i('s_mov_b64 exec, -1')
    h1_mfma(False)
    A.label(Lok1)
    A.i('s_mov_b64 exec, -1')
    for r in range(4):
        A.i(f'v_add_f32_dpp v{RS+r}, v{RS+r}, v{RS+r} row_ror:8 row_mask:0xf bank_mask:0xf')
    A.i('s_mov_b64 exec, 0x00ff00ff')
    A.i(f'v_cvt_pk_bf16_f32 v{RS}, v{RS}, v{RS+1}')
    A.i(f'v_cvt_pk_bf16_f32 v{RS+1}, v{RS+2}, v{RS+3}')
    A.i(f'buffer_store_dwordx2 {vr(RS,2)}, v{vX1}, {WSR}, s{sT4} offen')
    A.i('s_mov_b64 exec, -1')
    A.label(Lbe)
    ts(1)
    A.i('s_barrier')
    ts(2)
    A.i(f's_add_u32 s{sS}, s{sS}, 1')
    step_scalars(addr=False)
    for _ in range(getattr(sy, 'd2', 1)):
        A.i('s_nop 15')
    Lp2, Lok2 = A.newlabel('CHp2'), A.newlabel('CHok2')
    def h2_loads():
        for i in range(2):
            A.i(f'buffer_load_dwordx4 {vr(HA+4*i,4)}, v1, {WSR}, s{sT3} offen offset:{i*1024} sc1')
    h2_loads()
    for i in range(2):
        A.i(f's_waitcnt vmcnt({1-i})')
        A.i(f'ds_write_b128 v{vLW}, {vr(HA+4*i,4)} offset:{i*1024}')
    chain_max(HA, 8)
    for p in range(1, 4):
        A.i(f'v_xor_b32 v{RA+8*p}, {p << 11:#x}, v{vLW}')
    A.i(f'v_cmpx_eq_u32 vcc, -1, v{CT}')
    A.i(f's_cbranch_execz {Lok2}')
    if 'nox' not in opts:
        A.i(f's_mov_b64 s[40:41], exec')
        A.label(Lp2)
        cnt(1)
        h2_loads()
        A.i(f's_waitcnt vmcnt({2*KF})')
        chain_max(HA, 8)
        A.i(f'v_cmpx_eq_u32 vcc, -1, v{CT}')
        A.i(f's_cbranch_execnz {Lp2}')
        A.i('s_mov_b64 exec, s[40:41]')
        for i in range(2):
            A.i(f'ds_write_b128 v{vLW}, {vr(HA+4*i,4)} offset:{i*1024}')
    A.label(Lok2)
    A.i('s_mov_b64 exec, -1')
    ts(3)
    A.i(f's_branch {Ltop}')
    A.label(Lcut)
    A.i(f's_add_u32 s{sS}, s{sS}, 1')
    sy.trace(A, RD, sS, imm=0, wave=3)
    A.wl_all()
    A.i(f's_branch {Ltop}')
    A.i = _orig_i
    A.label(Lfin)
    if sy.tr and not prof:
        A.i('s_memtime s[6:7]')
        A.i('s_waitcnt lgkmcnt(0)')
        A.i('s_sub_u32 s6, s6, s4')
        A.i(f'v_mov_b32 v{vT0}, s6')
        A.i(f'buffer_store_dword v{vT0}, off, {WSR}, s100 offset:{120*4}')
    if prof:
        A.i(f's_lshl_b32 s101, s{sW}, 6')
        A.i('s_add_u32 s101, s101, s100')
        A.i('s_mov_b64 exec, 1')
        for k in range(10):
            A.i(f'v_mov_b32 v{vT0}, s{20+k}')
            A.i(f'buffer_store_dword v{vT0}, off, {WSR}, s101 offset:{512+4*k}')
        A.i('s_mov_b64 exec, -1')
    if sy.on:
        A.i('s_waitcnt vmcnt(0)')
        A.i('s_barrier')
        A.i(f's_add_u32 s{sT0}, s{sS}, 1')
        A.i(f'v_mov_b32 v{vT0}, s{sT0}')
        A.i(f's_mov_b64 exec, s[{sIO}:{sIO+1}]')
        A.i(f'buffer_store_dword v{vT0}, off, {WSR}, s{sFLG} sc1')
        A.i('s_mov_b64 exec, -1')
    A.i(f's_branch {end}')
    for Lp, Lok, sseg, r0, r1 in slow:
        A.label(Lp)
        A.i(f'buffer_load_dword v{r0}, off, {WSR}, s{sKVF} sc1')
        A.i('s_waitcnt vmcnt(0)')
        A.i(f'v_readfirstlane_b32 s{sKVS}, v{r0}')
        A.i(f's_cmp_gt_u32 s{sKVS}, s{sseg}')
        A.i(f's_cbranch_scc1 {Lok}')
        A.i(f's_branch {Lp}')
```

```python
from common import *

WSR = f's[{S_WS}:{S_WS+3}]'


def load_weights(A, units, tmp0, batch_regs, ptmp):
    ring = 2 * batch_regs
    GR = 8
    ngroups = ring // GR
    groups = []
    cur, used = [], 0
    for u in units:
        w = u[5]
        if used + 2 * w > GR:
            groups.append(cur)
            cur, used = [], 0
        cur.append((u, used))
        used += 2 * w
    if cur:
        groups.append(cur)

    def issue(gi):
        base = tmp0 + (gi % ngroups) * GR
        for (srd_s, voff, sbase, off0, off1, w, outs), at in groups[gi]:
            for k, off in enumerate((off0, off1)):
                A.i(f's_add_u32 s{sT0}, s{sbase}, {off:#x}')
                mn = {1: 'buffer_load_dword', 2: 'buffer_load_dwordx2', 4: 'buffer_load_dwordx4'}[w]
                A.i(f'{mn} {vr(base + at + k * w, w)}, v{voff}, s[{srd_s}:{srd_s+3}], s{sT0} offen')

    depth = ngroups - 1
    for gi in range(min(depth, len(groups))):
        issue(gi)
    for gi in range(len(groups)):
        if gi + depth < len(groups):
            issue(gi + depth)
        younger = sum(2 * len(groups[k]) for k in range(gi + 1, min(gi + depth + 1, len(groups))))
        A.i(f's_waitcnt vmcnt({min(younger, 63)})')
        base = tmp0 + (gi % ngroups) * GR
        for (srd_s, voff, sbase, off0, off1, w, outs), at in groups[gi]:
            for n, (dst, dw, sel) in enumerate(outs):
                perm_to(A, dst, base + at + w + dw, base + at + dw, sel, ptmp + (n & 1))


def role_init(A, end):
    Lfill = A.newlabel('Lfill')
    A.i(f's_cmp_ge_u32 s2, 48')
    A.i(f's_cbranch_scc1 {Lfill}')
    srd(A, S_A, P_C, 1024)
    srd(A, S_B, P_WMOD, 512 * 6144)
    A.i(f's_lshl_b32 s{sT0}, s{sW}, 6')
    A.i(f'v_add_u32 v2, s{sT0}, v0')
    A.i('v_and_b32 v3, 7, v2')
    A.i('v_lshrrev_b32 v4, 3, v2')
    A.i('v_lshlrev_b32 v5, 5, v4')
    A.i(f'buffer_load_dwordx4 v[8:11], v5, s[{S_A}:{S_A+3}], 0 offen')
    A.i(f'buffer_load_dwordx4 v[12:15], v5, s[{S_A}:{S_A+3}], 0 offen offset:16')
    A.i(f's_mov_b32 s{sT1}, {16*6144}')
    A.i(f'v_mul_lo_u32 v6, v4, s{sT1}')
    A.i('v_lshl_add_u32 v6, v3, 4, v6')
    A.i(f's_lshl_b32 s{sT1}, s2, 7')
    for i in range(16):
        A.i(f's_add_u32 s{sT0}, s{sT1}, {i*6144}')
        A.i(f'buffer_load_dwordx4 v[{64+4*i}:{67+4*i}], v6, s[{S_B}:{S_B+3}], s{sT0} offen')
    A.i('s_waitcnt vmcnt(16)')
    for i in range(8):
        unpack(A, 16 + 2 * i, 17 + 2 * i, 8 + i)
    for i in range(16):
        A.i(f'v_mul_f32 v{32+i}, s{sLOG2E}, v{16+i}')
    for i in range(16):
        A.i(f'v_exp_f32 v{32+i}, -v{32+i}')
    for i in range(16):
        A.i(f'v_add_f32 v{32+i}, 1.0, v{32+i}')
    for i in range(16):
        A.i(f'v_rcp_f32 v{32+i}, v{32+i}')
    for i in range(16):
        A.i(f'v_mul_f32 v{16+i}, v{16+i}, v{32+i}')
    for i in range(8):
        round2(A, 16 + 2 * i, 17 + 2 * i, 48)
    for j in range(8):
        A.i(f'v_mov_b32 v{32+j}, 0')
    for i in range(16):
        A.i(f's_waitcnt vmcnt({15-i})')
        for d in range(4):
            unpack(A, 48, 49, 64 + 4 * i + d)
            A.i(f'v_fmac_f32 v{32+2*d}, v{16+i}, v48')
            A.i(f'v_fmac_f32 v{33+2*d}, v{16+i}, v49')
    A.i('v_lshlrev_b32 v5, 8, v4')
    A.i('v_lshl_add_u32 v5, v3, 5, v5')
    A.i('ds_write_b128 v5, v[32:35]')
    A.i('ds_write_b128 v5, v[36:39] offset:16')
    A.i('s_waitcnt lgkmcnt(0)')
    A.i('s_barrier')
    A.i(f's_cmp_lg_u32 s{sW}, 0')
    A.i(f's_cbranch_scc1 {end}')
    A.i('v_lshlrev_b32 v5, 2, v0')
    for i in range(32):
        A.i(f'ds_read_b32 v{64+i}, v5 offset:{i*256}')
        if i == 14 or i == 29:
            A.i('s_waitcnt lgkmcnt(0)')
    A.i('s_waitcnt lgkmcnt(0)')
    for st in (16, 8, 4, 2, 1):
        for i in range(st):
            A.i(f'v_add_f32 v{64+i}, v{64+i}, v{64+st+i}')
    A.i('v_cvt_pk_bf16_f32 v64, v64, v64')
    A.i('v_lshlrev_b32 v64, 16, v64')
    A.i(f's_lshl_b32 s{sT0}, s2, 8')
    A.i(f's_add_u32 s{sT0}, s{sT0}, {MOD:#x}')
    A.i(f'buffer_store_dword v64, v5, {WSR}, s{sT0} offen')
    A.i(f's_branch {end}')
    A.label(Lfill)
    A.i(f's_sub_u32 s{sT0}, s2, 48')
    A.i(f's_lshl_b32 s{sT1}, s{sT0}, 14')
    A.i(f's_add_u32 s{sT2}, s{sT1}, {XM:#x}')
    A.i(f's_add_u32 s{sT3}, s{sT1}, {FLAGS - 66*16384:#x}')
    A.i(f's_cmp_lt_u32 s{sT0}, 66')
    A.i(f's_cselect_b32 s{sT2}, s{sT2}, s{sT3}')
    A.i(f's_cselect_b32 s{sT3}, -1, 0')
    A.i(f's_lshl_b32 s{sT1}, s{sW}, 12')
    A.i(f's_add_u32 s{sT2}, s{sT2}, s{sT1}')
    for i in range(4):
        A.i(f'v_mov_b32 v{4+i}, s{sT3}')
    for i in range(4):
        A.i(f'buffer_store_dwordx4 v[4:7], v1, {WSR}, s{sT2} offen offset:{i*1024}')
    A.i(f's_branch {end}')


def load_mod8(A, dst, which):
    A.i(f's_mov_b32 s{sT0}, {MOD + which*2048:#x}')
    A.i(f'buffer_load_dwordx4 v[{dst}:{dst+3}], v2, {WSR}, s{sT0} offen sc1')
    A.i(f'buffer_load_dwordx4 v[{dst+4}:{dst+7}], v2, {WSR}, s{sT0} offen offset:16 sc1')


def one_plus(A, c, tmp):
    for j in range(8):
        A.i(f'v_add_f32 v{c+j}, 1.0, v{c+j}')
    for j in range(4):
        round2(A, c + 2 * j, c + 2 * j + 1, tmp)


def ln_core(A, x, t, c1, sh, out):
    A.i(f'v_add_f32 v{t}, v{x}, v{x+1}')
    A.i(f'v_add_f32 v{t+1}, v{x+2}, v{x+3}')
    A.i(f'v_add_f32 v{t+2}, v{x+4}, v{x+5}')
    A.i(f'v_add_f32 v{t+3}, v{x+6}, v{x+7}')
    A.i(f'v_add_f32 v{t}, v{t}, v{t+1}')
    A.i(f'v_add_f32 v{t+2}, v{t+2}, v{t+3}')
    A.i(f'v_add_f32 v{t}, v{t}, v{t+2}')
    wave_sum(A, t, sT4)
    A.i(f'v_mov_b32 v{t+8}, 0x3b000000')
    A.i(f'v_mul_f32 v{t+9}, s{sT4}, v{t+8}')
    for j in range(8):
        A.i(f'v_sub_f32 v{t+j}, v{x+j}, v{t+9}')
    A.i(f'v_mul_f32 v{t}, v{t}, v{t}')
    A.i(f'v_mul_f32 v{t+1}, v{t+1}, v{t+1}')
    for j in range(2, 8):
        A.i(f'v_fmac_f32 v{t+(j&1)}, v{t+j}, v{t+j}')
    A.i(f'v_add_f32 v{t}, v{t}, v{t+1}')
    wave_sum(A, t, sT4)
    A.i(f'v_mul_f32 v{t+8}, s{sT4}, v{t+8}')
    round2(A, t + 8, t + 9, t)
    A.i(f'v_add_f32 v{t+8}, 0x3727c5ac, v{t+8}')
    A.i(f'v_cvt_pk_bf16_f32 v{t+8}, v{t+8}, v{t+8}')
    A.i(f'v_lshlrev_b32 v{t+8}, 16, v{t+8}')
    A.i(f'v_sqrt_f32 v{t+8}, v{t+8}')
    A.i(f'v_cvt_pk_bf16_f32 v{t+8}, v{t+8}, v{t+8}')
    A.i(f'v_lshlrev_b32 v{t+8}, 16, v{t+8}')
    A.i(f'v_rcp_f32 v{t+8}, v{t+8}')
    for j in range(8):
        A.i(f'v_sub_f32 v{x+j}, v{x+j}, v{t+9}')
    for j in range(4):
        round2(A, x + 2 * j, x + 2 * j + 1, t + j)
    for j in range(8):
        A.i(f'v_mul_f32 v{x+j}, v{x+j}, v{t+8}')
    for j in range(4):
        round2(A, x + 2 * j, x + 2 * j + 1, t + j)
    for j in range(8):
        A.i(f'v_mul_f32 v{x+j}, v{x+j}, v{c1+j}')
    for j in range(4):
        round2(A, x + 2 * j, x + 2 * j + 1, t + j)
    for j in range(8):
        A.i(f'v_add_f32 v{x+j}, v{x+j}, v{sh+j}')
    for j in range(4):
        A.i(f'v_cvt_pk_bf16_f32 v{out+j}, v{x+2*j}, v{x+2*j+1}')


def role_ln1(A, sy, sidx):
    srd(A, S_A, P_X, 2048 * 1024)
    A.i('v_lshlrev_b32 v2, 5, v0')
    A.i(f's_lshl_b32 s{sT1}, s{sidx}, 2')
    A.i(f's_add_u32 s{sT1}, s{sT1}, s{sW}')
    A.i(f's_lshl_b32 s{sT1}, s{sT1}, 10')
    for q in range(8):
        A.i(f's_add_u32 s{sT0}, s{sT1}, {q*256*1024:#x}')
        A.i(f'buffer_load_dwordx4 v[{64+4*q}:{67+4*q}], v1, s[{S_A}:{S_A+3}], s{sT0} offen')
    if getattr(sy, 'single', False):
        mod_wait(A, sy, 0, 16, 3, 4)
    load_mod8(A, 8, 1)
    load_mod8(A, 16, 0)
    A.i(f's_lshl_b32 s{sT0}, s{sidx}, 7')
    A.i(f's_add_u32 s{sT0}, s{sT0}, {F_H:#x}')
    A.i(f'v_mov_b32 v3, s{sT0}')
    A.i('s_waitcnt vmcnt(0)')
    one_plus(A, 8, 4)
    for q in range(8):
        for j in range(4):
            unpack(A, 24 + 2 * j, 25 + 2 * j, 64 + 4 * q + j)
        ln_core(A, 24, 32, 8, 16, 44 + 4 * (q & 1))
        A.i(f's_add_u32 s{sT0}, s{sT1}, {H + q*256*1024:#x}')
        A.i(f'buffer_store_dwordx4 v[{44+4*(q&1)}:{47+4*(q&1)}], v1, {WSR}, s{sT0} offen sc1')
        if sy.on and q in (0, 3, 7):
            A.i('s_waitcnt vmcnt(0)')
            A.i('s_barrier')
            Ls = A.newlabel('Lln')
            A.i(f's_cmp_lg_u32 s{sW}, 0')
            A.i(f's_cbranch_scc1 {Ls}')
            A.i(f's_mov_b32 s{sT0}, {q+1}')
            sy.publish(A, 3, 4, sT0)
            A.label(Ls)


XB0 = 0
XBS = 32768


def t1_setup(A, vdma, vrd, swap_odd=False):
    A.i(f's_and_b32 s{sT0}, s{sW}, 1')
    A.i(f's_lshl_b32 s{sT1}, s{sT0}, 7')
    A.i(f'v_xor_b32 v{vdma}, s{sT1}, v1')
    A.i(f'v_and_b32 v{vrd+7}, 15, v0')
    A.i(f'v_lshrrev_b32 v{vrd+6}, 4, v0')
    A.i(f'v_xor_b32 v{vrd+6}, v{vrd+6}, v{vrd+7}')
    A.i(f'v_lshlrev_b32 v{vrd+6}, 4, v{vrd+6}')
    A.i(f'v_lshl_or_b32 v{vrd+7}, v{vrd+7}, 10, v{vrd+6}')
    if swap_odd:
        A.i(f's_lshl_b32 s{sT1}, s{sT0}, 14')
        A.i(f'v_xor_b32 v{vrd+7}, s{sT1}, v{vrd+7}')
    for k in range(4):
        A.i(f'v_xor_b32 v{vrd+k}, {k*64}, v{vrd+7}')
    for k in range(3, -1, -1):
        A.i(f'v_xor_b32 v{vrd+4+k}, 0x4000, v{vrd+k}')


def t1_dma(A, vdma, vtmp, ssrc, sbuf):
    A.i(f's_lshl_b32 s{sT0}, s{sW}, 13')
    A.i(f's_add_u32 s{sT1}, s{sT0}, s{ssrc}')
    A.i(f's_add_u32 s{sT0}, s{sT0}, s{sbuf}')
    A.i(f's_mov_b32 m0, s{sT0}')
    for i in range(8):
        if i == 4:
            A.i(f's_add_u32 s{sT0}, s{sT0}, 4096')
            A.i(f's_add_u32 s{sT1}, s{sT1}, 4096')
            A.i(f's_mov_b32 m0, s{sT0}')
        A.i(f'v_xor_b32 v{vtmp+(i&1)}, {i*16}, v{vdma}')
        A.i(f'buffer_load_dwordx4 v{vtmp+(i&1)}, {WSR}, s{sT1} offen offset:{(i&3)*1024} sc1 lds')


def t1_compute(A, vrd, vabuf, xf, wbase, dbase, swapped, mid=None):
    def rd(ks):
        for tt in range(2):
            A.i(f'ds_read_b128 {vr(xf + (ks & 3) * 8 + tt * 4, 4)}, v{vabuf + tt*4 + (ks & 3)} offset:{(ks >> 2) * 256}')
    for ks in range(3):
        rd(ks)
    for ks in range(16):
        if ks + 3 < 16:
            rd(ks + 3)
            A.i('s_waitcnt lgkmcnt(6)')
        else:
            A.i(f's_waitcnt lgkmcnt({2 * (15 - ks)})')
        for t in range(2):
            for tt in range(2):
                d = ur(dbase + (t * 2 + tt) * 4, 4)
                w = ur(wbase + (ks * 2 + t) * 4, 4)
                x = vr(xf + (ks & 3) * 8 + tt * 4, 4)
                c = '0' if ks == 0 else d
                if swapped:
                    A.i(f'v_mfma_f32_16x16x32_bf16 {d}, {w}, {x}, {c}')
                else:
                    A.i(f'v_mfma_f32_16x16x32_bf16 {d}, {x}, {w}, {c}')
        if mid is not None:
            mid(ks)


def paired_units(srd_s, voff, sbase, rs, nks, wbase):
    units = []
    for ks in range(nks):
        for i in range(4):
            r0 = 32 * ks + 2 * i
            units.append((srd_s, voff, sbase, r0 * rs, (r0 + 1) * rs, 1,
                          [(wbase + (ks * 2 + 0) * 4 + i, 0, f's{SELLO}'), (wbase + (ks * 2 + 1) * 4 + i, 0, f's{SELHI}')]))
    return units


def lane_woff(A, dst, rs, colbytes, tmp):
    A.i(f'v_lshrrev_b32 v{tmp}, 4, v0')
    A.i(f's_mov_b32 s{sT0}, {8*rs}')
    A.i(f'v_mul_lo_u32 v{dst}, v{tmp}, s{sT0}')
    A.i(f'v_and_b32 v{tmp}, 15, v0')
    A.i(f'v_mul_u32_u24 v{tmp}, {colbytes}, v{tmp}')
    A.i(f'v_add_u32 v{dst}, v{dst}, v{tmp}')


def h_flag_addr(A, vdst, sseg, stmp):
    A.i(f's_and_b32 s{stmp}, s{sseg}, 7')
    A.i(f's_lshl_b32 s{stmp}, s{stmp}, 10')
    A.i(f's_add_u32 s{stmp}, s{stmp}, {F_H:#x}')
    A.i(f'v_and_b32 v{vdst}, 7, v0')
    A.i(f'v_lshlrev_b32 v{vdst}, 7, v{vdst}')
    A.i(f'v_add_u32 v{vdst}, s{stmp}, v{vdst}')


def t1_loop(A, sy, name, seg0, segstep, src_base, wait_src, body, vdma, vrd, vab, vtmp, vflag):
    Ltop, Lhave, Lnopf, Lend = (A.newlabel(name + x) for x in ('top', 'have', 'nopf', 'end'))
    A.i(f's_mov_b32 s72, {XB0}')
    A.i('s_mov_b32 s73, 0')
    A.label(Ltop)
    A.i('s_cmp_lg_u32 s73, 0')
    A.i(f's_cbranch_scc1 {Lhave}')
    wait_src(sS, True, None)
    A.i(f's_lshl_b32 s75, s{sS}, 15')
    A.i(f's_add_u32 s75, s75, {src_base:#x}')
    t1_dma(A, vdma, vtmp, 75, 72)
    A.label(Lhave)
    A.i('s_waitcnt vmcnt(0)')
    A.i('s_barrier')
    for k in range(8):
        A.i(f'v_add_u32 v{vab+k}, s72, v{vrd+k}')
    A.i('s_mov_b32 s73, 0')
    A.i(f's_add_u32 s74, s{sS}, {segstep}')
    A.i('s_cmp_ge_u32 s74, 64')
    A.i(f's_cbranch_scc1 {Lnopf}')
    wait_src(74, False, Lnopf)
    A.i('s_lshl_b32 s75, s74, 15')
    A.i(f's_add_u32 s75, s75, {src_base:#x}')
    A.i(f's_xor_b32 s76, s72, {XBS}')
    t1_dma(A, vdma, vtmp, 75, 76)
    A.i('s_mov_b32 s73, 1')
    A.label(Lnopf)
    body()
    if sy.on:
        A.i('s_waitcnt vmcnt(0)')
    A.i('s_barrier')
    if sy.on:
        Ls = A.newlabel(name + 'pub')
        A.i(f's_cmp_lg_u32 s{sW}, 0')
        A.i(f's_cbranch_scc1 {Ls}')
        A.i(f's_add_u32 s{sT0}, s{sS}, 1')
        sy.publish(A, vflag, vtmp, sT0)
        A.label(Ls)
    A.i(f's_xor_b32 s72, s72, {XBS}')
    A.i(f's_add_u32 s{sS}, s{sS}, {segstep}')
    A.i(f's_cmp_lt_u32 s{sS}, 64')
    A.i(f's_cbranch_scc1 {Ltop}')
    A.label(Lend)


def flag_test(A, sy, vaddr, vtmp, sneed, blocking, Lnot):
    if not sy.on:
        return
    if blocking:
        sy.wait(A, vaddr, vtmp, sneed)
    else:
        A.i(f'buffer_load_dword v{vtmp}, v{vaddr}, {WSR}, 0 offen sc1')
        A.i('s_waitcnt vmcnt(0)')
        A.i(f'v_cmp_le_u32 vcc, s{sneed}, v{vtmp}')
        A.i('s_cmp_eq_u64 vcc, exec')
        A.i(f's_cbranch_scc0 {Lnot}')


def make_wait_h(A, sy, va, vtmp):
    def wait_src(sseg, blocking, Lnot):
        if not sy.on:
            return
        h_flag_addr(A, va, sseg, sT0)
        A.i(f's_lshr_b32 s{sT2}, s{sseg}, 3')
        A.i(f's_add_u32 s{sT2}, s{sT2}, 1')
        flag_test(A, sy, va, vtmp, sT2, blocking, Lnot)
    return wait_src


def role_kv(A, sy, is_v):
    name = 'V' if is_v else 'K'
    srd(A, S_A, P_WV if is_v else P_WK, 512 * 8192)
    VDMA, VRD, VAB, VT_, VFL, VST, VWA = 2, 4, 12, 20, 22, 23, 24
    XF, D, PK = 32, 64, 80
    lane_woff(A, 3, 8192, 4, 4)
    A.i(f's_lshl_b32 s77, s{sR}, 8')
    A.i(f's_lshl_b32 s{sT0}, s{sW}, 6')
    A.i(f's_add_u32 s77, s77, s{sT0}')
    load_weights(A, paired_units(S_A, 3, 77, 8192, 16, 256), 128, 32, 4)
    t1_setup(A, VDMA, VRD)
    A.i(f's_lshl_b32 s{sT0}, s{sR}, 7')
    A.i(f's_add_u32 s{sT0}, s{sT0}, {F_KV + (32*FL if is_v else 0):#x}')
    A.i(f'v_mov_b32 v{VFL}, s{sT0}')
    if is_v:
        A.i(f's_lshl_b32 s77, s{sR}, 13')
        A.i(f's_lshl_b32 s{sT0}, s{sW}, 11')
        A.i(f's_add_u32 s77, s77, s{sT0}')
        A.i(f's_add_u32 s77, s77, {VT:#x}')
        A.i(f'v_mov_b32 v{VST}, v1')
    else:
        A.i(f's_lshl_b32 s77, s{sR}, 13')
        A.i(f's_lshl_b32 s{sT0}, s{sW}, 11')
        A.i(f's_add_u32 s77, s77, s{sT0}')
        A.i(f's_add_u32 s77, s77, {KX:#x}')
        A.i(f'v_lshrrev_b32 v{VST}, 4, v0')
        A.i(f'v_lshlrev_b32 v{VST}, 9, v{VST}')
        A.i(f'v_and_b32 v{VT_}, 15, v0')
        A.i(f'v_lshl_add_u32 v{VST}, v{VT_}, 4, v{VST}')
    A.i(f's_mov_b32 s{sS}, 0')

    def body():
        t1_compute(A, VRD, VAB, XF, 256, D, swapped=not is_v)
        A.i(f's_lshl_b32 s{sT0}, s{sS}, 18')
        A.i(f's_add_u32 s{sT0}, s{sT0}, s77')
        if is_v:
            for t in range(2):
                for tt in range(2):
                    d = D + (t * 2 + tt) * 4
                    A.i(f'v_cvt_pk_bf16_f32 v{PK+t*4+tt*2}, v{d}, v{d+1}')
                    A.i(f'v_cvt_pk_bf16_f32 v{PK+t*4+tt*2+1}, v{d+2}, v{d+3}')
                A.i(f'buffer_store_dwordx4 v[{PK+t*4}:{PK+t*4+3}], v{VST}, {WSR}, s{sT0} offen offset:{t*1024} sc1')
        else:
            for tt in range(2):
                for r in range(4):
                    A.i(f'v_cvt_pk_bf16_f32 v{PK+tt*4+r}, v{D+tt*4+r}, v{D+(2+tt)*4+r}')
                A.i(f'buffer_store_dwordx4 v[{PK+tt*4}:{PK+tt*4+3}], v{VST}, {WSR}, s{sT0} offen offset:{tt*256} sc1')

    t1_loop(A, sy, name, 0, 1, H, make_wait_h(A, sy, VWA, VT_), body, VDMA, VRD, VAB, VT_, VFL)


def score_round(A, regs, tmp):
    for a, b in zip(regs[0::2], regs[1::2]):
        round2(A, a, b, tmp)
    for a in regs:
        A.i(f'v_mul_f32 v{a}, s{sSCALE}, v{a}')
    for a, b in zip(regs[0::2], regs[1::2]):
        round2(A, a, b, tmp)


def xlane(A, op, v, t):
    A.i(f'v_mov_b32 v{t}, v{v}')
    A.i(f'v_permlane32_swap_b32 v{v}, v{t}')
    A.i(f'{op} v{v}, v{v}, v{t}')
    A.i(f'v_mov_b32 v{t}, v{v}')
    A.i(f'v_permlane16_swap_b32 v{v}, v{t}')
    A.i(f'{op} v{v}, v{v}, v{t}')


QIMG = 65536


def role_qa(A, sy):
    srd(A, S_A, P_WQ, 512 * 8192)
    VDMA, VRD, VAB, VT_, VFL, VWA = 2, 4, 12, 20, 22, 24
    VQW, VQR, VKX, VKM, VVM, VOST, VFKV, VFCH = 23, 25, 26, 27, 28, 29, 30, 31
    XF, D, PK = 32, 64, 80
    KF, VF, QF, KMF, VMF = 96, 128, 144, 160, 176
    S1, S2, S0, PX, PY, PM, OD, TM = 184, 188, 192, 196, 200, 204, 208, 224
    sH = 78
    A.i(f's_lshr_b32 s{sH}, s{sR}, 1')
    dense_stage_setup(A, 3, 4, 79, 8192, 0, 5)
    A.i(f's_lshl_b32 s77, s{sH}, 8')
    A.i(f's_lshl_b32 s{sT0}, s{sW}, 6')
    A.i(f's_add_u32 s77, s77, s{sT0}')
    defer_to_chain(A, sy, 6, 7)
    staged_load(A, dense_chunks(S_A, 77, 8192, 16, 256), 3, 4, 79, 8, 128, 6)
    A.i('s_barrier')
    t1_setup(A, VDMA, VRD)
    A.i(f's_lshl_b32 s{sT0}, s{sR}, 7')
    A.i(f's_add_u32 s{sT0}, s{sT0}, {F_QA:#x}')
    A.i(f'v_mov_b32 v{VFL}, s{sT0}')
    A.i(f'v_lshrrev_b32 v{TM}, 4, v0')
    A.i(f'v_and_b32 v{TM+1}, 15, v0')
    A.i(f'v_lshlrev_b32 v{VKX}, 9, v{TM}')
    A.i(f'v_lshl_add_u32 v{VKX}, v{TM+1}, 4, v{VKX}')
    A.i(f's_lshl_b32 s{sT0}, s{sW}, 11')
    A.i(f's_add_u32 s{sT0}, s{sT0}, {QIMG}')
    A.i(f'v_add_u32 v{VQW}, s{sT0}, v{VKX}')
    A.i(f's_and_b32 s79, s{sW}, 1')
    A.i(f's_lshr_b32 s80, s{sW}, 1')
    A.i(f's_lshl_b32 s{sT0}, s79, 8')
    A.i(f's_add_u32 s{sT1}, s{sT0}, {QIMG}')
    A.i(f'v_add_u32 v{VQR}, s{sT1}, v{VKX}')
    A.i(f's_lshl_b32 s{sT1}, s80, 12')
    A.i(f's_add_u32 s{sT1}, s{sT1}, s{sT0}')
    A.i(f'v_add_u32 v{VOST}, s{sT1}, v{VKX}')
    A.i(f'v_lshrrev_b32 v{TM+2}, 2, v{TM+1}')
    A.i(f'v_and_b32 v{TM+3}, 1, v{TM+1}')
    A.i(f'v_lshl_add_u32 v{TM+2}, v{TM+2}, 1, v{TM+3}')
    A.i(f'v_lshlrev_b32 v{TM+2}, 8, v{TM+2}')
    A.i(f'v_lshl_add_u32 v{VKM}, v{TM}, 4, v{TM+2}')
    A.i(f'v_lshlrev_b32 v{VVM}, 4, v{TM+1}')
    A.i(f'v_lshl_add_u32 v{VVM}, v{TM}, 2, v{VVM}')
    A.i(f's_lshl_b32 s{sT0}, s80, 10')
    A.i(f'v_add_u32 v{VVM}, s{sT0}, v{VVM}')
    A.i(f'v_and_b32 v{TM+2}, 1, v0')
    A.i(f'v_lshlrev_b32 v{TM+2}, 12, v{TM+2}')
    A.i(f's_lshl_b32 s{sT0}, s{sH}, 7')
    A.i(f's_add_u32 s{sT1}, s{sT0}, {F_KV:#x}')
    A.i(f'v_mov_b32 v{VFKV}, s{sT1}')
    A.i(f's_add_u32 s{sT1}, s{sT0}, {F_CH:#x}')
    A.i(f'v_mov_b32 v{VFCH}, s{sT1}')
    A.i(f's_lshl_b32 s{sT0}, s79, 4')
    A.i(f'v_lshlrev_b32 v{TM+2}, 2, v{TM}')
    A.i(f'v_sub_u32 v{TM+2}, v{TM+1}, v{TM+2}')
    A.i(f'v_add_u32 v{TM+2}, s{sT0}, v{TM+2}')
    for i in range(8):
        A.i(f'v_cmp_le_i32 s[{82+2*i}:{83+2*i}], {16*(i>>2)+(i&3)}, v{TM+2}')
    A.i(f'v_mov_b32 v{PM+1}, 0')
    A.i(f's_and_b32 s{sS}, s{sR}, 1')
    if getattr(sy, 'single', False):
        ready_wait(A, VWA, VT_)

    def body():
        A.i(f's_add_u32 s{sT2}, s{sS}, 1')
        sy.wait(A, VFKV, VT_, sT2)
        A.i(f's_lshl_b32 s81, s{sS}, 18')
        A.i(f's_lshl_b32 s{sT0}, s{sH}, 13')
        A.i(f's_add_u32 s81, s81, s{sT0}')
        A.i(f's_add_u32 s{sT0}, s81, {KX:#x}')
        A.i(f's_add_u32 s{sT1}, s{sT0}, 4096')
        for kt in range(2):
            for ks in range(4):
                so = sT0 if ks < 2 else sT1
                A.i(f'buffer_load_dwordx4 {vr(KF+(kt*4+ks)*4,4)}, v{VKX}, {WSR}, s{so} offen offset:{(ks&1)*2048+kt*256} sc1')
        A.i(f's_lshl_b32 s{sT0}, s80, 12')
        A.i(f's_add_u32 s{sT0}, s{sT0}, s81')
        A.i(f's_add_u32 s{sT0}, s{sT0}, {VT:#x}')
        for i in range(4):
            A.i(f'buffer_load_dwordx4 {vr(VF+i*4,4)}, v1, {WSR}, s{sT0} offen offset:{i*1024} sc1')
        t1_compute(A, VRD, VAB, XF, 256, D, swapped=True)
        for tt in range(2):
            for r in range(4):
                A.i(f'v_cvt_pk_bf16_f32 v{PK+tt*4+r}, v{D+tt*4+r}, v{D+(2+tt)*4+r}')
            A.i(f'ds_write_b128 v{VQW}, v[{PK+tt*4}:{PK+tt*4+3}] offset:{tt*256}')
        A.i('s_waitcnt lgkmcnt(0)')
        A.i('s_barrier')
        for ks in range(4):
            A.i(f'ds_read_b128 {vr(QF+ks*4,4)}, v{VQR} offset:{ks*2048}')
        A.i('s_waitcnt vmcnt(0) lgkmcnt(0)')
        for kt, S in ((0, S1), (1, S2)):
            for ks in range(4):
                c = '0' if ks == 0 else vr(S, 4)
                A.i(f'v_mfma_f32_16x16x32_bf16 {vr(S,4)}, {vr(KF+(kt*4+ks)*4,4)}, {vr(QF+ks*4,4)}, {c}')
        xs = [S1 + i for i in range(8)]
        score_round(A, xs, TM)
        A.i(f'v_mov_b32 v{TM}, 0xce6e6b28')
        for i in range(8):
            A.i(f'v_cndmask_b32 v{S1+i}, v{TM}, v{S1+i}, s[{82+2*i}:{83+2*i}]')
        A.i(f'v_max3_f32 v{TM+2}, v{S1}, v{S1+1}, v{S1+2}')
        A.i(f'v_max3_f32 v{TM+2}, v{TM+2}, v{S1+3}, v{S1+4}')
        A.i(f'v_max3_f32 v{TM+2}, v{TM+2}, v{S1+5}, v{S1+6}')
        A.i(f'v_max_f32 v{TM+2}, v{TM+2}, v{S1+7}')
        A.i(f's_add_u32 s{sT2}, s{sS}, 1')
        sy.wait(A, VFCH, VT_, sT2)
        A.i(f's_lshr_b32 s{sT0}, s81, 2')
        A.i(f's_add_u32 s{sT1}, s{sT0}, {VM:#x}')
        A.i(f's_add_u32 s{sT0}, s{sT0}, {KM:#x}')
        for ks in range(4):
            A.i(f'buffer_load_dwordx4 {vr(KMF+ks*4,4)}, v{VKM}, {WSR}, s{sT0} offen offset:{ks*64} sc1')
        for i in range(4):
            A.i(f'buffer_load_dword v{VMF+2*i}, v{VVM}, {WSR}, s{sT1} offen offset:{i*256} sc1')
            A.i(f'v_mov_b32 v{VMF+2*i+1}, 0')
        for ks in range(4):
            A.i(f's_waitcnt vmcnt({7-ks})')
            c = '0' if ks == 0 else vr(S0, 4)
            A.i(f'v_mfma_f32_16x16x32_bf16 {vr(S0,4)}, {vr(KMF+ks*4,4)}, {vr(QF+ks*4,4)}, {c}')
        score_round(A, [S0, S0 + 1], TM)
        A.i(f'v_max3_f32 v{TM+2}, v{TM+2}, v{S0}, v{S0+1}')
        xlane(A, 'v_max_f32', TM + 2, TM + 3)
        vals = xs + [S0, S0 + 1]
        A.i(f'v_mul_f32 v{TM+2}, s{sLOG2E}, v{TM+2}')
        for a in vals:
            A.i(f'v_fma_f32 v{a}, v{a}, s{sLOG2E}, -v{TM+2}')
        for a in vals:
            A.i(f'v_exp_f32 v{a}, v{a}')
        A.i(f'v_add_f32 v{TM+2}, v{vals[0]}, v{vals[1]}')
        A.i(f'v_add_f32 v{TM+4}, v{vals[2]}, v{vals[3]}')
        for k in range(4, 10, 2):
            A.i(f'v_add_f32 v{TM+2}, v{TM+2}, v{vals[k]}')
            A.i(f'v_add_f32 v{TM+4}, v{TM+4}, v{vals[k+1]}')
        A.i(f'v_add_f32 v{TM+2}, v{TM+2}, v{TM+4}')
        xlane(A, 'v_add_f32', TM + 2, TM + 3)
        A.i(f'v_rcp_f32 v{TM+2}, v{TM+2}')
        for a in vals:
            A.i(f'v_mul_f32 v{a}, v{a}, v{TM+2}')
        for k in range(4):
            A.i(f'v_cvt_pk_bf16_f32 v{PX+k}, v{S1+2*k}, v{S1+2*k+1}')
        A.i(f'v_cvt_pk_bf16_f32 v{PM}, v{S0}, v{S0+1}')
        A.i('s_waitcnt vmcnt(0)')
        for i in range(4):
            p = PX
            A.i(f'v_mfma_f32_16x16x32_bf16 {vr(OD+4*i,4)}, {vr(VF+4*i,4)}, {vr(p,4)}, 0')
        for i in range(4):
            A.i(f'v_mfma_f32_16x16x16_bf16 {vr(OD+4*i,4)}, {vr(VMF+2*i,2)}, {vr(PM,2)}, {vr(OD+4*i,4)}')
        A.i(f's_add_u32 s{sT0}, s81, {OB:#x}')
        for u in range(2):
            for r in range(4):
                A.i(f'v_cvt_pk_bf16_f32 v{PK+u*4+r}, v{OD+8*u+r}, v{OD+8*u+4+r}')
            A.i(f'buffer_store_dwordx4 v[{PK+u*4}:{PK+u*4+3}], v{VOST}, {WSR}, s{sT0} offen offset:{u*2048} sc1')

    t1_loop(A, sy, 'QA', 0, 2, H, make_wait_h(A, sy, VWA, VT_), body, VDMA, VRD, VAB, VT_, VFL)


def natural_units(srd_s, voff, sbase, rs, nks, ntiles, wbase, vsel, tile_stride=32, tile_index=None):
    units = []
    for ks in range(nks):
        for t in range(ntiles):
            for i in range(4):
                r0 = 32 * ks + 2 * i
                idx = tile_index(ks, t) if tile_index else ks * ntiles + t
                units.append((srd_s, voff, sbase, r0 * rs + t * tile_stride, (r0 + 1) * rs + t * tile_stride, 1,
                              [(wbase + idx * 4 + i, 0, f'v{vsel}')]))
    return units


def natural_setup(A, voff, vsel, rs, tmp):
    A.i(f'v_lshrrev_b32 v{tmp}, 4, v0')
    A.i(f's_mov_b32 s{sT0}, {8*rs}')
    A.i(f'v_mul_lo_u32 v{voff}, v{tmp}, s{sT0}')
    A.i(f'v_and_b32 v{tmp}, 14, v0')
    A.i(f'v_lshl_add_u32 v{voff}, v{tmp}, 1, v{voff}')
    A.i(f'v_and_b32 v{tmp}, 1, v0')
    A.i(f'v_cmp_eq_u32 vcc, 1, v{tmp}')
    A.i(f'v_mov_b32 v{vsel}, s{SELLO}')
    A.i(f'v_mov_b32 v{tmp}, s{SELHI}')
    A.i(f'v_cndmask_b32 v{vsel}, v{vsel}, v{tmp}, vcc')


def role_wo(A, sy):
    srd(A, S_A, P_WO, 4096 * 1024)
    VPC, VFL, VFQ, VT_, VLW, VLR, VST = 2, 5, 6, 7, 8, 9, 10
    XF, D, RD = 32, 96, 128
    natural_setup(A, 3, 4, 1024, 5)
    A.i(f's_lshr_b32 s78, s{sR}, 3')
    A.i(f's_and_b32 s79, s{sR}, 7')
    A.i(f's_lshl_b32 s80, s78, 2')
    A.i(f's_add_u32 s80, s80, s{sW}')
    A.i(f's_lshl_b32 s77, s80, 18')
    A.i(f's_lshl_b32 s{sT0}, s79, 7')
    A.i(f's_add_u32 s77, s77, s{sT0}')
    load_weights(A, natural_units(S_A, 3, 77, 1024, 8, 4, 256, 4), 128, 32, 6)
    A.i(f'v_lshrrev_b32 v{VT_}, 4, v0')
    A.i(f'v_lshlrev_b32 v{VPC}, 9, v{VT_}')
    A.i(f'v_and_b32 v{VST}, 15, v0')
    A.i(f'v_lshl_add_u32 v{VPC}, v{VST}, 4, v{VPC}')
    A.i(f'v_lshlrev_b32 v{VST}, 11, v{VST}')
    A.i(f'v_lshl_add_u32 v{VST}, v{VT_}, 4, v{VST}')
    A.i(f's_lshl_b32 s{sT0}, s79, 8')
    A.i(f's_lshl_b32 s{sT1}, s{sW}, 6')
    A.i(f's_add_u32 s{sT0}, s{sT0}, s{sT1}')
    A.i(f's_lshl_b32 s{sT1}, s78, 16')
    A.i(f's_add_u32 s{sT0}, s{sT0}, s{sT1}')
    A.i(f's_add_u32 s81, s{sT0}, {PART:#x}')
    A.i(f's_lshl_b32 s{sT0}, s{sW}, 13')
    A.i(f'v_add_u32 v{VLW}, s{sT0}, v1')
    A.i(f's_lshl_b32 s{sT0}, s{sW}, 11')
    A.i(f'v_add_u32 v{VLR}, s{sT0}, v1')
    A.i(f's_lshl_b32 s{sT0}, s{sR}, 7')
    A.i(f's_add_u32 s{sT0}, s{sT0}, {F_WO:#x}')
    A.i(f'v_mov_b32 v{VFL}, s{sT0}')
    A.i(f'v_and_b32 v{VT_}, 1, v0')
    A.i(f'v_lshlrev_b32 v{VT_}, 8, v{VT_}')
    A.i(f's_lshl_b32 s{sT0}, s80, 9')
    A.i(f's_add_u32 s{sT0}, s{sT0}, {F_QA:#x}')
    A.i(f'v_add_u32 v{VFQ}, s{sT0}, v{VT_}')
    A.i(f's_lshl_b32 s82, s80, 14')
    A.i(f's_add_u32 s82, s82, {OB:#x}')
    A.i(f's_mov_b32 s{sS}, 0')
    Ltop = A.newlabel('WOtop')
    A.label(Ltop)
    if sy.on:
        A.i(f's_and_b32 s{sT0}, s{sS}, 1')
        A.i(f's_lshl_b32 s{sT0}, s{sT0}, 7')
        A.i(f'v_add_u32 v11, s{sT0}, v{VFQ}')
        A.i(f's_add_u32 s{sT2}, s{sS}, 1')
        sy.wait(A, 11, VT_, sT2)
        sy.trace(A, VT_, sS, imm=110, wave=0, lim=40)
    A.i(f's_lshl_b32 s{sT0}, s{sS}, 18')
    A.i(f's_add_u32 s{sT0}, s{sT0}, s82')
    for ks in range(8):
        if ks and (ks & 1) == 0:
            A.i(f's_add_u32 s{sT0}, s{sT0}, 4096')
        for tt in range(2):
            A.i(f'buffer_load_dwordx4 {vr(XF+(ks*2+tt)*4,4)}, v{VPC}, {WSR}, s{sT0} offen offset:{(ks&1)*2048+tt*256} sc1')
    for ks in range(8):
        A.i(f's_waitcnt vmcnt({14-2*ks})')
        for t in range(4):
            for tt in range(2):
                d = vr(D + (t * 2 + tt) * 4, 4)
                c = '0' if ks == 0 else d
                A.i(f'v_mfma_f32_16x16x32_bf16 {d}, {ur(256+(ks*4+t)*4,4)}, {vr(XF+(ks*2+tt)*4,4)}, {c}')
    sy.trace(A, VT_, sS, imm=150, wave=0, lim=40)
    for q in range(8):
        A.i(f'ds_write_b128 v{VLW}, {vr(D+q*4,4)} offset:{q*1024}')
    A.i('s_waitcnt lgkmcnt(0)')
    A.i('s_barrier')
    for u in range(2):
        for w2 in range(4):
            A.i(f'ds_read_b128 {vr(RD+(u*4+w2)*4,4)}, v{VLR} offset:{w2*8192+u*1024}')
    A.i(f's_lshl_b32 s{sT0}, s{sS}, 18')
    A.i(f's_add_u32 s{sT0}, s{sT0}, s81')
    A.i(f's_add_u32 s{sT1}, s{sT0}, {16*2048}')
    for u in range(2):
        A.i(f's_waitcnt lgkmcnt({4-4*u})')
        b = RD + u * 16
        for r in range(4):
            A.i(f'v_add_f32 v{b+r}, v{b+r}, v{b+4+r}')
            A.i(f'v_add_f32 v{b+8+r}, v{b+8+r}, v{b+12+r}')
        for r in range(4):
            A.i(f'v_add_f32 v{b+r}, v{b+r}, v{b+8+r}')
        A.i(f'buffer_store_dwordx4 {vr(b,4)}, v{VST}, {WSR}, s{sT0 if u == 0 else sT1} offen sc1')
    sy.trace(A, VT_, sS, imm=190, wave=0, lim=40)
    if sy.on:
        A.i('s_waitcnt vmcnt(0)')
    A.i('s_barrier')
    if sy.on:
        Ls = A.newlabel('WOpub')
        A.i(f's_cmp_lg_u32 s{sW}, 0')
        A.i(f's_cbranch_scc1 {Ls}')
        A.i(f's_add_u32 s{sT0}, s{sS}, 1')
        sy.publish(A, VFL, VT_, sT0)
        A.label(Ls)
    A.i(f's_add_u32 s{sS}, s{sS}, 1')
    A.i(f's_cmp_lt_u32 s{sS}, 64')
    A.i(f's_cbranch_scc1 {Ltop}')


def role_r(A, sy):
    srd(A, S_A, P_X, 2048 * 1024)
    VFL, VFW, VT_ = 3, 4, 5
    GA, C1, SH, X, T, PK, XR, PT = 8, 16, 24, 32, 40, 52, 56, 64
    A.i('v_lshlrev_b32 v2, 5, v0')
    load_mod8(A, GA, 2)
    load_mod8(A, C1, 4)
    load_mod8(A, SH, 3)
    A.i(f's_and_b32 s78, s{sR}, 7')
    A.i(f's_lshl_b32 s78, s78, 2')
    A.i(f's_add_u32 s78, s78, s{sW}')
    A.i(f's_lshl_b32 s{sT0}, s{sR}, 7')
    A.i(f's_add_u32 s{sT0}, s{sT0}, {F_R:#x}')
    A.i(f'v_mov_b32 v{VFL}, s{sT0}')
    A.i(f'v_and_b32 v{VFW}, 31, v0')
    A.i(f'v_lshlrev_b32 v{VFW}, 7, v{VFW}')
    A.i(f'v_add_u32 v{VFW}, {F_WO:#x}, v{VFW}')
    A.i('s_waitcnt vmcnt(0)')
    one_plus(A, C1, VT_)
    A.i(f's_lshr_b32 s{sS}, s{sR}, 3')
    Ltop = A.newlabel('Rtop')
    A.label(Ltop)
    A.i(f's_lshl_b32 s79, s{sS}, 5')
    A.i(f's_add_u32 s79, s79, s78')
    A.i(f's_lshl_b32 s79, s79, 10')
    A.i(f'buffer_load_dwordx4 {vr(XR,4)}, v1, s[{S_A}:{S_A+3}], s79 offen')
    A.i(f's_add_u32 s{sT2}, s{sS}, 1')
    sy.wait(A, VFW, VT_, sT2)
    A.i(f's_lshl_b32 s{sT0}, s{sS}, 18')
    A.i(f's_lshl_b32 s{sT1}, s78, 11')
    A.i(f's_add_u32 s{sT0}, s{sT0}, s{sT1}')
    A.i(f's_add_u32 s{sT0}, s{sT0}, {PART:#x}')
    for kq in range(4):
        if kq:
            A.i(f's_add_u32 s{sT0}, s{sT0}, 0x10000')
        A.i(f'buffer_load_dwordx4 {vr(PT+kq*8,4)}, v2, {WSR}, s{sT0} offen sc1')
        A.i(f'buffer_load_dwordx4 {vr(PT+kq*8+4,4)}, v2, {WSR}, s{sT0} offen offset:16 sc1')
    A.i('s_waitcnt vmcnt(0)')
    for j in range(8):
        A.i(f'v_add_f32 v{PT+j}, v{PT+j}, v{PT+8+j}')
        A.i(f'v_add_f32 v{PT+16+j}, v{PT+16+j}, v{PT+24+j}')
    for j in range(8):
        A.i(f'v_add_f32 v{PT+j}, v{PT+j}, v{PT+16+j}')
    for j in range(4):
        round2(A, PT + 2 * j, PT + 2 * j + 1, T + j)
    for j in range(8):
        A.i(f'v_mul_f32 v{PT+j}, v{PT+j}, v{GA+j}')
    for j in range(4):
        round2(A, PT + 2 * j, PT + 2 * j + 1, T + j)
    for j in range(4):
        unpack(A, X + 2 * j, X + 2 * j + 1, XR + j)
    for j in range(8):
        A.i(f'v_add_f32 v{X+j}, v{X+j}, v{PT+j}')
    for j in range(4):
        A.i(f'v_cvt_pk_bf16_f32 v{XR+j}, v{X+2*j}, v{X+2*j+1}')
    A.i(f's_add_u32 s{sT0}, s79, {X1:#x}')
    A.i(f'buffer_store_dwordx4 {vr(XR,4)}, v1, {WSR}, s{sT0} offen sc1')
    for j in range(4):
        unpack(A, X + 2 * j, X + 2 * j + 1, XR + j)
    ln_core(A, X, T, C1, SH, PK)
    A.i(f's_add_u32 s{sT0}, s79, {H2:#x}')
    A.i(f'buffer_store_dwordx4 {vr(PK,4)}, v1, {WSR}, s{sT0} offen sc1')
    A.i('s_waitcnt vmcnt(0)')
    if sy.on:
        A.i('s_barrier')
        Ls = A.newlabel('Rpub')
        A.i(f's_cmp_lg_u32 s{sW}, 0')
        A.i(f's_cbranch_scc1 {Ls}')
        A.i(f's_add_u32 s{sT0}, s{sS}, 1')
        sy.publish(A, VFL, VT_, sT0)
        A.label(Ls)
    A.i(f's_add_u32 s{sS}, s{sS}, 2')
    A.i(f's_cmp_lt_u32 s{sS}, 64')
    A.i(f's_cbranch_scc1 {Ltop}')


def role_f1(A, sy):
    srd(A, S_A, P_WG, 512 * 3584)
    srd(A, S_B, P_WU, 512 * 3584)
    VDMA, VRD, VAB, VT_, VFL, VST, VWA = 2, 4, 12, 20, 22, 23, 24
    XF, D, PK, T = 32, 64, 80, 88
    natural_setup(A, 3, 25, 3584, 4)
    A.i(f's_lshl_b32 s77, s{sR}, 7')
    A.i(f's_lshl_b32 s{sT0}, s{sW}, 5')
    A.i(f's_add_u32 s77, s77, s{sT0}')
    ug = natural_units(S_A, 3, 77, 3584, 16, 1, 256, 25, tile_index=lambda ks, t: ks * 2)
    uu = natural_units(S_B, 3, 77, 3584, 16, 1, 256, 25, tile_index=lambda ks, t: ks * 2 + 1)
    load_weights(A, ug + uu, 128, 32, 4)
    t1_setup(A, VDMA, VRD)
    A.i(f's_lshl_b32 s{sT0}, s{sR}, 7')
    A.i(f's_add_u32 s{sT0}, s{sT0}, {F_F1:#x}')
    A.i(f'v_mov_b32 v{VFL}, s{sT0}')
    A.i(f'v_lshrrev_b32 v{VST}, 5, v0')
    A.i(f'v_lshlrev_b32 v{VST}, 9, v{VST}')
    A.i(f'v_and_b32 v{VT_}, 15, v0')
    A.i(f'v_lshl_add_u32 v{VST}, v{VT_}, 4, v{VST}')
    A.i(f'v_bfe_u32 v{VT_}, v0, 4, 1')
    A.i(f'v_lshl_add_u32 v{VST}, v{VT_}, 3, v{VST}')
    A.i(f's_lshl_b32 s77, s{sR}, 12')
    A.i(f's_lshl_b32 s{sT0}, s{sW}, 10')
    A.i(f's_add_u32 s77, s77, s{sT0}')
    A.i(f's_add_u32 s77, s77, {GU:#x}')
    A.i(f's_mov_b32 s{sS}, 0')

    def wait_src(sseg, blocking, Lnot):
        if not sy.on:
            return
        A.i(f's_and_b32 s{sT0}, s{sseg}, 1')
        A.i(f's_lshl_b32 s{sT0}, s{sT0}, 10')
        A.i(f's_add_u32 s{sT0}, s{sT0}, {F_R:#x}')
        A.i(f'v_and_b32 v{VWA}, 7, v0')
        A.i(f'v_lshlrev_b32 v{VWA}, 7, v{VWA}')
        A.i(f'v_add_u32 v{VWA}, s{sT0}, v{VWA}')
        A.i(f's_add_u32 s{sT2}, s{sseg}, 1')
        flag_test(A, sy, VWA, VT_, sT2, blocking, Lnot)

    def body():
        t1_compute(A, VRD, VAB, XF, 256, D, swapped=True)
        g = [D + i for i in range(8)]
        u = [D + 8 + i for i in range(8)]
        for k in range(0, 8, 2):
            round2(A, g[k], g[k + 1], T)
        for k in range(8):
            A.i(f'v_mul_f32 v{T+k}, s{sLOG2E}, v{g[k]}')
        for k in range(8):
            A.i(f'v_exp_f32 v{T+k}, -v{T+k}')
        for k in range(0, 8, 2):
            round2(A, u[k], u[k + 1], PK)
        for k in range(8):
            A.i(f'v_add_f32 v{T+k}, 1.0, v{T+k}')
        for k in range(8):
            A.i(f'v_rcp_f32 v{T+k}, v{T+k}')
        for k in range(8):
            A.i(f'v_mul_f32 v{g[k]}, v{g[k]}, v{T+k}')
        for k in range(0, 8, 2):
            round2(A, g[k], g[k + 1], T)
        for k in range(8):
            A.i(f'v_mul_f32 v{g[k]}, v{g[k]}, v{u[k]}')
        for k in range(4):
            A.i(f'v_cvt_pk_bf16_f32 v{PK+k}, v{g[2*k]}, v{g[2*k+1]}')
        A.i(f's_mul_i32 s{sT0}, s{sS}, 114688')
        A.i(f's_add_u32 s{sT0}, s{sT0}, s77')
        for tt in range(2):
            A.i(f'buffer_store_dwordx2 v[{PK+2*tt}:{PK+2*tt+1}], v{VST}, {WSR}, s{sT0} offen offset:{tt*256} sc1')

    t1_loop(A, sy, 'F1', 0, 1, H2, wait_src, body, VDMA, VRD, VAB, VT_, VFL)


def role_f2(A, sy):
    srd(A, S_A, P_WD, 1792 * 1024)
    srd(A, S_B, P_OUT, 2048 * 1024)
    VPC, VFQ, VT_, VLW, VLR, VST, GB = 2, 6, 7, 8, 9, 10, 12
    XF, D, RD, XR = 32, 144, 160, 176
    lane_woff(A, 3, 1024, 4, 4)
    A.i(f's_mul_i32 s77, s{sW}, {448*1024}')
    A.i(f's_lshl_b32 s{sT0}, s{sR}, 6')
    A.i(f's_add_u32 s77, s77, s{sT0}')
    load_weights(A, paired_units(S_A, 3, 77, 1024, 14, 256), 128, 32, 4)
    A.i(f'v_lshrrev_b32 v{VT_}, 4, v0')
    A.i(f'v_lshlrev_b32 v{VPC}, 9, v{VT_}')
    A.i(f'v_and_b32 v{VST}, 15, v0')
    A.i(f'v_lshl_add_u32 v{VPC}, v{VST}, 4, v{VPC}')
    A.i(f's_and_b32 s78, s{sW}, 1')
    A.i(f's_lshr_b32 s79, s{sW}, 1')
    A.i(f'v_lshlrev_b32 v{VST}, 10, v{VST}')
    A.i(f'v_lshl_add_u32 v{VST}, v{VT_}, 4, v{VST}')
    A.i(f's_lshl_b32 s{sT0}, s78, 14')
    A.i(f's_lshl_b32 s{sT1}, s{sR}, 6')
    A.i(f's_add_u32 s{sT0}, s{sT0}, s{sT1}')
    A.i(f's_lshl_b32 s{sT1}, s79, 3')
    A.i(f's_add_u32 s{sT0}, s{sT0}, s{sT1}')
    A.i(f'v_add_u32 v{VST}, s{sT0}, v{VST}')
    A.i(f'v_lshlrev_b32 v{VT_}, 5, v{VT_}')
    A.i(f's_lshl_b32 s{sT0}, s{sR}, 7')
    A.i(f's_lshl_b32 s{sT1}, s79, 4')
    A.i(f's_add_u32 s{sT0}, s{sT0}, s{sT1}')
    A.i(f's_add_u32 s{sT0}, s{sT0}, {MOD + 5*2048:#x}')
    A.i(f'buffer_load_dwordx4 {vr(GB,4)}, v{VT_}, {WSR}, s{sT0} offen sc1')
    A.i(f's_lshl_b32 s{sT0}, s{sW}, 12')
    A.i(f'v_add_u32 v{VLW}, s{sT0}, v1')
    A.i(f's_lshl_b32 s{sT0}, s78, 10')
    A.i(f's_lshl_b32 s{sT1}, s79, 3')
    A.i(f's_add_u32 s{sT0}, s{sT0}, s{sT1}')
    A.i(f'v_add_u32 v{VLR}, s{sT0}, v1')
    A.i(f'v_and_b32 v{VFQ}, 7, v0')
    A.i(f'v_min_u32 v{VFQ}, 6, v{VFQ}')
    A.i(f'v_lshlrev_b32 v{VFQ}, 7, v{VFQ}')
    A.i(f's_mul_i32 s{sT0}, s{sW}, {7*FL}')
    A.i(f's_add_u32 s{sT0}, s{sT0}, {F_F1:#x}')
    A.i(f'v_add_u32 v{VFQ}, s{sT0}, v{VFQ}')
    A.i(f's_mul_i32 s82, s{sW}, {56*512}')
    A.i(f's_add_u32 s82, s82, {GU:#x}')
    A.i(f's_mov_b32 s{sS}, 0')
    Ltop = A.newlabel('F2top')
    A.label(Ltop)
    A.i(f's_add_u32 s{sT2}, s{sS}, 1')
    sy.wait(A, VFQ, VT_, sT2)
    A.i(f's_mul_i32 s{sT0}, s{sS}, 114688')
    A.i(f's_add_u32 s{sT0}, s{sT0}, s82')
    for ks in range(14):
        if ks and (ks & 1) == 0:
            A.i(f's_add_u32 s{sT0}, s{sT0}, 4096')
        for tt in range(2):
            A.i(f'buffer_load_dwordx4 {vr(XF+(ks*2+tt)*4,4)}, v{VPC}, {WSR}, s{sT0} offen offset:{(ks&1)*2048+tt*256} sc1')
    A.i(f's_lshl_b32 s83, s{sS}, 15')
    A.i(f's_add_u32 s{sT0}, s83, {X1:#x}')
    A.i(f'buffer_load_dwordx2 {vr(XR,2)}, v{VST}, {WSR}, s{sT0} offen sc1')
    for ks in range(14):
        A.i(f's_waitcnt vmcnt({27-2*ks})')
        for t in range(2):
            for tt in range(2):
                d = vr(D + (t * 2 + tt) * 4, 4)
                c = '0' if ks == 0 else d
                A.i(f'v_mfma_f32_16x16x32_bf16 {d}, {ur(256+(ks*2+t)*4,4)}, {vr(XF+(ks*2+tt)*4,4)}, {c}')
    for q in range(4):
        A.i(f'ds_write_b128 v{VLW}, {vr(D+q*4,4)} offset:{q*1024}')
    A.i('s_waitcnt lgkmcnt(0)')
    A.i('s_barrier')
    for t in range(2):
        for w2 in range(4):
            A.i(f'ds_read_b64 {vr(RD+(t*4+w2)*2,2)}, v{VLR} offset:{w2*4096+t*2048}')
    A.i('s_waitcnt vmcnt(0) lgkmcnt(0)')
    A.i('s_barrier')
    for t in range(2):
        b = RD + t * 8
        for r in range(2):
            A.i(f'v_add_f32 v{b+r}, v{b+r}, v{b+2+r}')
            A.i(f'v_add_f32 v{b+4+r}, v{b+4+r}, v{b+6+r}')
        for r in range(2):
            A.i(f'v_add_f32 v{b+r}, v{b+r}, v{b+4+r}')
    f = [RD, RD + 8, RD + 1, RD + 9]
    round2(A, f[0], f[1], VT_)
    round2(A, f[2], f[3], VT_)
    for k in range(4):
        A.i(f'v_mul_f32 v{f[k]}, v{f[k]}, v{GB+k}')
    round2(A, f[0], f[1], VT_)
    round2(A, f[2], f[3], VT_)
    unpack(A, RD + 2, RD + 3, XR)
    unpack(A, RD + 4, RD + 5, XR + 1)
    for k in range(4):
        A.i(f'v_add_f32 v{f[k]}, v{f[k]}, v{RD+2+k}')
    A.i(f'v_cvt_pk_bf16_f32 v{XR}, v{f[0]}, v{f[1]}')
    A.i(f'v_cvt_pk_bf16_f32 v{XR+1}, v{f[2]}, v{f[3]}')
    A.i(f'buffer_store_dwordx2 {vr(XR,2)}, v{VST}, s[{S_B}:{S_B+3}], s83 offen')
    sy.trace(A, VT_, sS, imm=1, wave=0)
    A.i(f's_add_u32 s{sS}, s{sS}, 1')
    A.i(f's_cmp_lt_u32 s{sS}, 64')
    A.i(f's_cbranch_scc1 {Ltop}')


def h_wait_simple(A, sy, sseg, va, vtmp):
    if not sy.on:
        return
    Lok, Lall = A.newlabel('Hok'), A.newlabel('Hall')
    A.i('s_cmp_lg_u32 s87, 0')
    A.i(f's_cbranch_scc1 {Lok}')
    A.i(f's_cmp_ge_u32 s{sseg}, 8')
    A.i(f's_cbranch_scc1 {Lall}')
    h_flag_addr(A, va, sseg, sT0)
    A.i(f's_mov_b32 s{sT2}, 1')
    sy.wait(A, va, vtmp, sT2)
    A.i(f's_branch {Lok}')
    A.label(Lall)
    A.i(f'v_lshlrev_b32 v{va}, 7, v0')
    A.i(f'v_add_u32 v{va}, {F_H:#x}, v{va}')
    A.i(f's_mov_b32 s{sT2}, 8')
    sy.wait(A, va, vtmp, sT2)
    A.i('s_mov_b32 s87, 1')
    A.label(Lok)


def role_kv2(A, sy):
    srd(A, S_A, P_WK, 512 * 8192)
    srd(A, S_B, P_WV, 512 * 8192)
    VDMA, VRD, VAB, VT_, VFL, VST, VWA = 2, 4, 12, 20, 22, 23, 24
    XF, DK, DV, PK = 32, 64, 80, 96
    WKb, WVb = 256, 384
    dense_stage_setup(A, 3, 4, 78, 8192, 0, 5)
    A.i(f's_lshl_b32 s77, s{sR}, 8')
    A.i(f's_lshl_b32 s{sT0}, s{sW}, 6')
    A.i(f's_add_u32 s77, s77, s{sT0}')
    staged_load(A, dense_chunks(S_A, 77, 8192, 16, WKb) + dense_chunks(S_B, 77, 8192, 16, WVb), 3, 4, 78, 8, 128, 6)
    A.i('s_barrier')
    sy.trace(A, 5, None, imm=101, wave=0)
    t1_setup(A, VDMA, VRD)
    A.i(f's_lshl_b32 s{sT0}, s{sR}, 7')
    A.i(f's_add_u32 s{sT0}, s{sT0}, {F_KV:#x}')
    A.i(f'v_mov_b32 v{VFL}, s{sT0}')
    A.i(f's_lshl_b32 s77, s{sR}, 13')
    A.i(f's_lshl_b32 s{sT0}, s{sW}, 11')
    A.i(f's_add_u32 s77, s77, s{sT0}')
    A.i(f's_add_u32 s77, s77, {KX:#x}')
    A.i(f'v_lshrrev_b32 v{VST}, 4, v0')
    A.i(f'v_lshlrev_b32 v{VST}, 9, v{VST}')
    A.i(f'v_and_b32 v{VT_}, 15, v0')
    A.i(f'v_lshl_add_u32 v{VST}, v{VT_}, 4, v{VST}')
    A.i(f's_mov_b32 s{sS}, 0')
    A.i('s_mov_b32 s87, 0')
    A.i(f's_mov_b32 s72, {XB0}')
    if getattr(sy, 'single', False):
        ready_wait(A, VWA, VT_)
    h_wait_simple(A, sy, sS, VWA, VT_)
    A.i(f's_mov_b32 s75, {H:#x}')
    t1_dma(A, VDMA, VT_, 75, 72)
    A.i('s_waitcnt vmcnt(0)')
    Ltop, Lnopf = A.newlabel('KVtop'), A.newlabel('KVnopf')
    A.label(Ltop)
    A.i('s_barrier')
    for k in range(8):
        A.i(f'v_add_u32 v{VAB+k}, s72, v{VRD+k}')

    def rd(ks):
        for tt in range(2):
            A.i(f'ds_read_b128 {vr(XF + (ks & 3) * 8 + tt * 4, 4)}, v{VAB + tt*4 + (ks & 3)} offset:{(ks >> 2) * 256}')
    for ks in range(3):
        rd(ks)
    for ks in range(16):
        if ks + 3 < 16:
            rd(ks + 3)
            A.i('s_waitcnt lgkmcnt(6)')
        else:
            A.i(f's_waitcnt lgkmcnt({2 * (15 - ks)})')
        for t in range(2):
            for tt in range(2):
                x = vr(XF + (ks & 3) * 8 + tt * 4, 4)
                d = vr(DK + (t * 2 + tt) * 4, 4)
                A.i(f'v_mfma_f32_16x16x32_bf16 {d}, {ur(WKb + (ks*2+t)*4, 4)}, {x}, {"0" if ks == 0 else d}')
                d = vr(DV + (t * 2 + tt) * 4, 4)
                A.i(f'v_mfma_f32_16x16x32_bf16 {d}, {x}, {ur(WVb + (ks*2+t)*4, 4)}, {"0" if ks == 0 else d}')
        if ks == 5:
            A.i('s_waitcnt vmcnt(0)')
            A.i('s_barrier')
            if sy.on:
                Ls = A.newlabel('KVpub')
                A.i(f's_cmp_lg_u32 s{sW}, 0')
                A.i(f's_cbranch_scc1 {Ls}')
                sy.publish(A, VFL, VT_, sS)
                A.label(Ls)
            A.i(f's_add_u32 s74, s{sS}, 1')
            A.i('s_cmp_ge_u32 s74, 64')
            A.i(f's_cbranch_scc1 {Lnopf}')
            h_wait_simple(A, sy, 74, VWA, VT_)
            A.i('s_lshl_b32 s75, s74, 15')
            A.i(f's_add_u32 s75, s75, {H:#x}')
            A.i(f's_xor_b32 s76, s72, {XBS}')
            t1_dma(A, VDMA, VT_, 75, 76)
            A.label(Lnopf)
    A.i(f's_lshl_b32 s{sT0}, s{sS}, 18')
    A.i(f's_add_u32 s{sT0}, s{sT0}, s77')
    A.i(f's_add_u32 s{sT1}, s{sT0}, {VT-KX:#x}')
    for tt in range(2):
        for r in range(4):
            A.i(f'v_cvt_pk_bf16_f32 v{PK+tt*4+r}, v{DK+tt*4+r}, v{DK+(2+tt)*4+r}')
        A.i(f'buffer_store_dwordx4 v[{PK+tt*4}:{PK+tt*4+3}], v{VST}, {WSR}, s{sT0} offen offset:{tt*256} sc1')
    for t in range(2):
        for tt in range(2):
            d = DV + (t * 2 + tt) * 4
            A.i(f'v_cvt_pk_bf16_f32 v{PK+8+t*4+tt*2}, v{d}, v{d+1}')
            A.i(f'v_cvt_pk_bf16_f32 v{PK+8+t*4+tt*2+1}, v{d+2}, v{d+3}')
        A.i(f'buffer_store_dwordx4 v[{PK+8+t*4}:{PK+8+t*4+3}], v1, {WSR}, s{sT1} offen offset:{t*1024} sc1')
    A.i(f's_xor_b32 s72, s72, {XBS}')
    A.i(f's_add_u32 s{sS}, s{sS}, 1')
    A.i('s_waitcnt vmcnt(4)')
    A.i(f's_cmp_lt_u32 s{sS}, 64')
    A.i(f's_cbranch_scc1 {Ltop}')
    if sy.on:
        A.i('s_waitcnt vmcnt(0)')
        A.i('s_barrier')
        Ls = A.newlabel('KVpub')
        A.i(f's_cmp_lg_u32 s{sW}, 0')
        A.i(f's_cbranch_scc1 {Ls}')
        sy.publish(A, VFL, VT_, sS)
        A.label(Ls)


def role_mod(A, sy, sidx):
    end = A.newlabel('Lmodend')
    srd(A, S_A, P_C, 1024)
    srd(A, S_B, P_WMOD, 512 * 6144)
    A.i(f's_lshl_b32 s{sT0}, s{sW}, 6')
    A.i(f'v_add_u32 v2, s{sT0}, v0')
    A.i('v_and_b32 v3, 7, v2')
    A.i('v_lshrrev_b32 v4, 3, v2')
    A.i('v_lshlrev_b32 v5, 5, v4')
    A.i(f'buffer_load_dwordx4 v[8:11], v5, s[{S_A}:{S_A+3}], 0 offen')
    A.i(f'buffer_load_dwordx4 v[12:15], v5, s[{S_A}:{S_A+3}], 0 offen offset:16')
    A.i(f's_mov_b32 s{sT1}, {16*6144}')
    A.i(f'v_mul_lo_u32 v6, v4, s{sT1}')
    A.i('v_lshl_add_u32 v6, v3, 4, v6')
    A.i(f's_lshl_b32 s{sT1}, s{sidx}, 7')
    for i in range(16):
        A.i(f's_add_u32 s{sT0}, s{sT1}, {i*6144}')
        A.i(f'buffer_load_dwordx4 v[{64+4*i}:{67+4*i}], v6, s[{S_B}:{S_B+3}], s{sT0} offen')
    A.i('s_waitcnt vmcnt(16)')
    for i in range(8):
        unpack(A, 16 + 2 * i, 17 + 2 * i, 8 + i)
    for i in range(16):
        A.i(f'v_mul_f32 v{32+i}, s{sLOG2E}, v{16+i}')
    for i in range(16):
        A.i(f'v_exp_f32 v{32+i}, -v{32+i}')
    for i in range(16):
        A.i(f'v_add_f32 v{32+i}, 1.0, v{32+i}')
    for i in range(16):
        A.i(f'v_rcp_f32 v{32+i}, v{32+i}')
    for i in range(16):
        A.i(f'v_mul_f32 v{16+i}, v{16+i}, v{32+i}')
    for i in range(8):
        round2(A, 16 + 2 * i, 17 + 2 * i, 48)
    for j in range(8):
        A.i(f'v_mov_b32 v{32+j}, 0')
    for i in range(16):
        A.i(f's_waitcnt vmcnt({15-i})')
        for d in range(4):
            unpack(A, 48, 49, 64 + 4 * i + d)
            A.i(f'v_fmac_f32 v{32+2*d}, v{16+i}, v48')
            A.i(f'v_fmac_f32 v{33+2*d}, v{16+i}, v49')
    A.i('v_lshlrev_b32 v5, 8, v4')
    A.i('v_lshl_add_u32 v5, v3, 5, v5')
    A.i('ds_write_b128 v5, v[32:35]')
    A.i('ds_write_b128 v5, v[36:39] offset:16')
    A.i('s_waitcnt lgkmcnt(0)')
    A.i('s_barrier')
    A.i(f's_cmp_lg_u32 s{sW}, 0')
    A.i(f's_cbranch_scc1 {end}')
    A.i('v_lshlrev_b32 v5, 2, v0')
    for i in range(32):
        A.i(f'ds_read_b32 v{64+i}, v5 offset:{i*256}')
        if i == 14 or i == 29:
            A.i('s_waitcnt lgkmcnt(0)')
    A.i('s_waitcnt lgkmcnt(0)')
    for st in (16, 8, 4, 2, 1):
        for i in range(st):
            A.i(f'v_add_f32 v{64+i}, v{64+i}, v{64+st+i}')
    A.i('v_cvt_pk_bf16_f32 v64, v64, v64')
    A.i('v_lshlrev_b32 v64, 16, v64')
    A.i(f's_lshl_b32 s{sT0}, s{sidx}, 8')
    A.i(f's_add_u32 s{sT0}, s{sT0}, {MOD:#x}')
    A.i(f'buffer_store_dword v64, v5, {WSR}, s{sT0} offen sc1')
    ready_wait(A, 6, 7)
    A.i(f's_lshl_b32 s{sT0}, s{sidx}, 7')
    A.i(f's_add_u32 s{sT0}, s{sT0}, {F_MOD:#x}')
    A.i('v_mov_b32 v6, 1')
    A.i('s_mov_b64 exec, 1')
    A.i(f'buffer_store_dword v6, off, {WSR}, s{sT0} sc1')
    A.i('s_mov_b64 exec, -1')
    sy.trace(A, 6, None, imm=0)
    A.label(end)


def role_zero(A):
    for i in range(4):
        A.i(f'v_mov_b32 v{4+i}, 0')
    A.i(f's_lshl_b32 s{sT0}, s{sW}, 10')
    A.i(f's_add_u32 s{sT0}, s{sT0}, {FLAGS:#x}')
    for i in range(NFLAG * FL // 4096):
        A.i(f'buffer_store_dwordx4 v[4:7], v1, {WSR}, s{sT0} offen sc1')
        A.i(f's_add_u32 s{sT0}, s{sT0}, 4096')
    A.i('s_waitcnt vmcnt(0)')
    A.i('s_barrier')
    A.i('v_mov_b32 v5, 1')
    A.i('s_mov_b64 exec, 1')
    A.i(f'global_store_dword v4, v5, s[{P_DBG}:{P_DBG+1}] offset:{DBG_READY} sc1')
    A.i('s_mov_b64 exec, -1')


def mod_wait(A, sy, first, count, va, vt):
    ready_wait(A, va, vt)
    A.i(f'v_min_u32 v{va}, {count-1}, v0')
    A.i(f'v_lshlrev_b32 v{va}, 7, v{va}')
    A.i(f'v_add_u32 v{va}, {F_MOD + first*FL:#x}, v{va}')
    A.i(f's_mov_b32 s{sT2}, 1')
    sy.wait(A, va, vt, sT2)


def defer_to_chain(A, sy, va, vt):
    if not getattr(sy, 'single', False) or 'defer' not in getattr(sy, 'opts', set()):
        return
    ready_wait(A, va, vt)
    A.i(f's_and_b32 s{sT0}, s{sR}, 31')
    A.i(f's_lshl_b32 s{sT0}, s{sT0}, 7')
    A.i(f's_add_u32 s{sT0}, s{sT0}, {F_CI:#x}')
    A.i(f'v_mov_b32 v{va}, s{sT0}')
    A.i(f's_mov_b32 s{sT2}, 1')
    sy.wait(A, va, vt, sT2, sleep=8)


def staged_load(A, chunks, vdma, vrd, slds, nslots, tmp, ptmp, pre_issue=None, extra_out=0):
    def issue(c):
        srd_s, sbase, offs, _, _ = chunks[c]
        assert len(offs) == 4
        A.i(f's_add_u32 s{sT1}, s{slds}, {(c % nslots) * 4096}')
        for i, off in enumerate(offs):
            if i:
                A.i(f's_add_u32 s{sT1}, s{sT1}, 1024')
            A.i(f's_mov_b32 m0, s{sT1}')
            A.i(f's_add_u32 s{sT0}, s{sbase}, {off:#x}')
            A.i(f'buffer_load_dwordx4 v{vdma}, s[{srd_s}:{srd_s+3}], s{sT0} offen lds')
    n = len(chunks)
    for c in range(min(nslots, n)):
        issue(c)
    if pre_issue:
        pre_issue()
    for c in range(n):
        younger = 4 * (min(c + nslots, n) - c - 1)
        A.i(f's_waitcnt vmcnt({younger})')
        outs = chunks[c][3]
        for k in range(8):
            blk = (c % nslots) * 16 + 2 * k
            A.i(f'ds_read2st64_b32 {vr(tmp + 2*k, 2)}, v{vrd} offset0:{blk} offset1:{blk+1}')
        for k in range(8):
            A.i(f's_waitcnt lgkmcnt({7-k})')
            lo, hi = outs[k]
            perm_to(A, lo, tmp + 2 * k + 1, tmp + 2 * k, f's{SELLO}', ptmp)
            perm_to(A, hi, tmp + 2 * k + 1, tmp + 2 * k, f's{SELHI}', ptmp + 1)
        if chunks[c][4]:
            chunks[c][4]()
        if c + nslots < n:
            issue(c + nslots)


def dense_chunks(srd_s, sbase, rs, nks, wbase):
    ch = []
    for k2 in range(0, nks, 2):
        offs = [(32 * (k2 + (i >> 1)) + 4 * (i & 1)) * rs for i in range(4)]
        outs = []
        for kk in range(2):
            for i in range(4):
                ks = k2 + kk
                outs.append((wbase + (ks * 2) * 4 + i, wbase + (ks * 2 + 1) * 4 + i))
        ch.append((srd_s, sbase, offs, outs, None))
    return ch


def dense_stage_setup(A, vdma, vrd, slds, rs, lds0, tmp):
    A.i(f'v_bfe_u32 v{tmp}, v0, 2, 2')
    A.i(f'v_lshlrev_b32 v{tmp}, 3, v{tmp}')
    A.i(f'v_lshrrev_b32 v{vdma}, 4, v0')
    A.i(f'v_add_u32 v{tmp}, v{tmp}, v{vdma}')
    A.i(f's_mov_b32 s{sT0}, {rs}')
    A.i(f'v_mul_lo_u32 v{vdma}, v{tmp}, s{sT0}')
    A.i(f'v_and_b32 v{tmp}, 3, v0')
    A.i(f'v_lshl_add_u32 v{vdma}, v{tmp}, 4, v{vdma}')
    A.i(f's_lshl_b32 s{slds}, s{sW}, 15')
    if lds0:
        A.i(f's_add_u32 s{slds}, s{slds}, {lds0}')
    A.i(f'v_lshlrev_b32 v{vrd}, 2, v0')
    A.i(f'v_add_u32 v{vrd}, s{slds}, v{vrd}')
```

```python
from common import *
from roles import load_weights, staged_load, WSR

L_MEM = 131072
L_KX = 139264
L_VX = 147456
L_OI = 155648
L_QI = L_OI + 2048
L_KI = L_QI + 2304
L_SEL = L_KI + 2304 + 64
L_VI = L_QI
QS = 288

vWV, vL2, vKX, vIDX, vQW, vQR, vPST, vX1, vX2, vVW, vOR, vOW, vLW, vT0 = range(2, 16)
vPF = 0
RA, RB, RC, RD = 16, 48, 80, 112
WK, WV, WQR, WOR = 256, 384, 128, 192
sPC, sPC2, sMC, sFLG, sKVF, sKVS, sOUT, sNX, sDST, sRST, sH1, sFA = range(72, 84)
sHF = 84
sLF = 86
sIO = 88
sSC2 = 90
sRP, sRM = 92, 93
sKS, sVS, sPFA, sPFD = 94, 95, 96, 97
sD2, sNV, sS1 = 65, 71, 3


def emit(A, x):
    if callable(x):
        x()
    else:
        A.i(x)


def mix(A, mf, fill, per=2, start=0):
    fill = list(fill)
    for k, m in enumerate(mf):
        emit(A, m)
        if k >= start:
            for _ in range(per):
                if fill:
                    emit(A, fill.pop(0))
    for f in fill:
        emit(A, f)


def role_chain(A, sy, end, nsteps=64):
    opts = getattr(sy, 'opts', set())
    sH = sR
    srd(A, S_A, P_WQ, 512 * 8192)
    srd(A, S_B, P_WK, 512 * 8192)
    srd(A, S_C, P_WV, 512 * 8192)
    srd(A, S_D, P_WO, 4096 * 1024)
    G, N, G1, TT, TA, TB, WA, WB, LN = 16, 17, 18, 19, 20, 21, 32, 33, 34
    A.i(f'v_mov_b32 v{LN}, v0')
    A.i(f'v_lshrrev_b32 v{G}, 4, v0')
    A.i(f'v_and_b32 v{N}, 15, v0')
    A.i(f'v_and_b32 v{G1}, 1, v{G}')
    A.i(f'v_lshrrev_b32 v{TT}, 5, v0')
    A.i(f'v_lshlrev_b32 v{vPF}, 3, v1')
    A.i(f's_lshl_b32 s{sT0}, s{sW}, 15')
    A.i(f'v_add_u32 v{vWV}, s{sT0}, v1')
    A.i(f'v_add_u32 v{vL2}, {L_MEM}, v1')
    A.i(f's_lshl_b32 s{sT0}, s{sW}, 11')
    A.i(f'v_add_u32 v{vLW}, s{sT0}, v{vL2}')
    A.i(f'v_lshlrev_b32 v{vKX}, 9, v{G}')
    A.i(f'v_lshl_add_u32 v{vKX}, v{N}, 4, v{vKX}')
    A.i(f'v_add_u32 v{vKX}, {L_KX}, v{vKX}')
    A.i(f's_mov_b32 s{sHF}, 0xff00ff00')
    A.i(f's_mov_b32 s{sHF+1}, 0xff00ff00')
    A.i(f's_mov_b32 s{sLF}, 0x00ff00ff')
    A.i(f's_mov_b32 s{sLF+1}, 0x00ff00ff')
    A.i(f's_mov_b32 s{sSC2}, {SCALE:#x}')
    A.i(f's_mov_b32 s{sSC2+1}, {SCALE:#x}')
    A.i(f's_cmp_eq_u32 s{sW}, 3')
    A.i(f's_cselect_b32 s{sIO}, 1, 0')
    A.i(f's_mov_b32 s{sIO+1}, 0')
    A.i(f'v_mov_b32 v{vIDX}, 0x4444')
    A.i(f'v_mov_b32 v{TA}, 0xeeee')
    A.i(f'v_cndmask_b32 v{vIDX}, v{vIDX}, v{TA}, s[{sHF}:{sHF+1}]')
    A.i(f'v_lshlrev_b32 v{TA}, 1, v{G1}')
    A.i(f'v_add_u32 v{TA}, v{TA}, v{TT}')
    A.i(f'v_mul_u32_u24 v{vQW}, {2*QS}, v{TA}')
    A.i(f'v_lshl_add_u32 v{vQW}, v{N}, 2, v{vQW}')
    A.i(f's_lshl_b32 s{sT0}, s{sW}, 6')
    A.i(f's_add_u32 s{sT0}, s{sT0}, {L_QI}')
    A.i(f'v_add_u32 v{vQW}, s{sT0}, v{vQW}')
    A.i(f'v_lshrrev_b32 v{vPST}, 1, v{N}')
    A.i(f'v_lshlrev_b32 v{vPST}, 13, v{vPST}')
    A.i(f'v_lshl_add_u32 v{vPST}, v{G}, 4, v{vPST}')
    A.i(f'v_and_b32 v{TB}, 1, v{N}')
    A.i(f'v_lshl_add_u32 v{vPST}, v{TB}, 6, v{vPST}')
    A.i(f's_lshl_b32 s{sT0}, s{sW}, 16')
    A.i(f's_lshl_b32 s{sT1}, s{sH}, 7')
    A.i(f's_add_u32 s{sT0}, s{sT0}, s{sT1}')
    A.i(f'v_add_u32 v{vPST}, s{sT0}, v{vPST}')
    A.i(f'v_lshlrev_b32 v{vVW}, 8, v{TT}')
    A.i(f'v_lshl_add_u32 v{vVW}, v{N}, 4, v{vVW}')
    A.i(f'v_lshl_add_u32 v{vVW}, v{G1}, 3, v{vVW}')
    A.i(f's_lshl_b32 s{sT0}, s{sW}, 9')
    A.i(f's_add_u32 s{sT0}, s{sT0}, {L_VI}')
    A.i(f'v_add_u32 v{vVW}, s{sT0}, v{vVW}')
    A.i(f'v_and_b32 v{TA}, 7, v{N}')
    A.i(f'v_mul_u32_u24 v{vQR}, {QS}, v{TA}')
    A.i(f'v_lshl_add_u32 v{vQR}, v{G}, 4, v{vQR}')
    A.i(f'v_add_u32 v{vQR}, {L_QI}, v{vQR}')
    A.i(f'v_lshlrev_b32 v{vOR}, 7, v{G}')
    A.i(f'v_lshl_add_u32 v{vOR}, v{TA}, 4, v{vOR}')
    A.i(f'v_add_u32 v{vOR}, {L_OI}, v{vOR}')
    A.i(f's_lshl_b32 s{sT0}, s{sW}, 9')
    A.i(f'v_add_u32 v{vOW}, s{sT0}, v{vOR}')
    A.i(f'v_lshlrev_b32 v{vX1}, 6, v{TB}')
    A.i(f'v_lshl_add_u32 v{vX1}, v{G1}, 4, v{vX1}')
    A.i(f'v_bfe_u32 v{TA}, v{N}, 2, 1')
    A.i(f'v_lshl_add_u32 v{vX1}, v{TA}, 7, v{vX1}')
    A.i(f'v_bfe_u32 v{TA}, v{N}, 1, 1')
    A.i(f'v_lshl_add_u32 v{vX1}, v{TA}, 3, v{vX1}')
    A.i(f's_lshl_b32 s{sT0}, s{sH}, 8')
    A.i(f's_and_b32 s{sT1}, s{sW}, 1')
    A.i(f's_lshl_b32 s{sT2}, s{sT1}, 5')
    A.i(f's_add_u32 s{sT0}, s{sT0}, s{sT2}')
    A.i(f'v_add_u32 v{vX1}, s{sT0}, v{vX1}')
    A.i(f'v_mov_b32 v{vX2}, 0')
    A.i(f's_lshl_b32 s{sH1}, s{sH}, 13')
    A.i(f's_lshl_b32 s{sT2}, s{sT1}, 12')
    A.i(f's_add_u32 s{sH1}, s{sH1}, s{sT2}')
    A.i(f's_lshl_b32 s{sT0}, s{sH}, 7')
    A.i(f's_add_u32 s{sKVF}, s{sT0}, {F_KV:#x}')
    A.i(f's_add_u32 s{sFLG}, s{sT0}, {F_CH:#x}')
    A.i(f's_lshl_b32 s{sT0}, s{sH}, 11')
    A.i(f's_lshr_b32 s{sT2}, s{sW}, 1')
    A.i(f's_lshl_b32 s{sT2}, s{sT2}, 22')
    A.i(f's_add_u32 s{sOUT}, s{sT0}, s{sT2}')
    A.i(f's_lshl_b32 s{sT2}, s{sT1}, 10')
    A.i(f's_add_u32 s{sOUT}, s{sOUT}, s{sT2}')
    A.i(f's_add_u32 s{sOUT}, s{sOUT}, {KM:#x}')
    A.i(f's_lshl_b32 s{sT0}, s{sH}, 13')
    A.i(f's_lshl_b32 s{sT2}, s{sW}, 11')
    A.i(f's_add_u32 s{sRST}, s{sT0}, s{sT2}')
    A.i(f's_add_u32 s{sNX}, s{sRST}, {KX:#x}')
    A.i(f's_add_u32 s{sDST}, s{sT2}, {L_KX}')
    A.i(f's_lshl_b32 s{sPFD}, s{sT1}, 24')
    A.i(f's_sub_u32 s{sPFD}, s{sPFD}, s{sT2}')
    A.i(f's_mov_b32 s{sKVS}, {0 if sy.on else 64}')
    A.i(f's_mov_b32 s{sKS}, 0')
    A.i(f's_mov_b32 s{sVS}, 0')
    A.i(f'v_lshlrev_b32 v{TA}, 1, v{G1}')
    A.i(f'v_add_u32 v{TA}, v{TA}, v{TT}')
    A.i(f'v_lshlrev_b32 v{vX2}, 9, v{TA}')
    A.i(f'v_lshl_add_u32 v{vX2}, v{N}, 2, v{vX2}')
    A.i(f's_lshl_b32 s{sT0}, s{sW}, 6')
    A.i(f'v_add_u32 v{vX2}, s{sT0}, v{vX2}')
    A.i(f'v_add_u32 v{vVW}, {VM-KM-L_VI:#x}, v{vVW}')
    A.i(f's_lshl_b32 s{sOUT}, s{sH}, 11')
    A.i(f's_add_u32 s{sOUT}, s{sOUT}, {KM - 0x10000:#x}')
    for c in range(4):
        A.i(f'v_mov_b32 v{24+c}, 0')
        A.i(f'v_cmp_eq_u32 vcc, {2*c}, v{N}')
        A.i(f'v_mov_b32 v{TA}, 0x3f80')
        A.i(f'v_cndmask_b32 v{24+c}, v{24+c}, v{TA}, vcc')
        A.i(f'v_cmp_eq_u32 vcc, {2*c+1}, v{N}')
        A.i(f'v_mov_b32 v{TA}, 0x3f800000')
        A.i(f'v_cndmask_b32 v{24+c}, v{24+c}, v{TA}, vcc')
    A.i(f'ds_write_b128 v{vL2}, v[24:27] offset:{L_SEL-L_MEM}')
    single = getattr(sy, 'single', False)
    if single:
        for i in range(4):
            A.i(f'v_mov_b32 v{24+i}, -1')
        A.i(f's_lshl_b32 s{sT0}, s{sW}, 18')
        A.i(f's_lshl_b32 s{sT1}, s{sH}, 13')
        A.i(f's_add_u32 s{sT0}, s{sT0}, s{sT1}')
        A.i(f's_add_u32 s{sT0}, s{sT0}, {XP:#x}')
        A.i(f's_add_u32 s{sT1}, s{sT0}, 4096')
        for i in range(8):
            A.i(f'buffer_store_dwordx4 v[24:27], v1, {WSR}, s{sT0 if i < 4 else sT1} offen offset:{(i&3)*1024}')
        A.i(f's_lshl_b32 s{sT0}, s{sW}, 13')
        A.i(f's_lshl_b32 s{sT1}, s{sH}, 8')
        A.i(f's_add_u32 s{sT0}, s{sT0}, s{sT1}')
        A.i(f's_add_u32 s{sT0}, s{sT0}, {XM:#x}')
        A.i('s_mov_b64 exec, 0xffff')
        A.i(f'buffer_store_dwordx4 v[24:27], v1, {WSR}, s{sT0} offen')
        A.i('s_mov_b64 exec, -1')
    A.i(f'v_lshrrev_b32 v{TA}, 1, v{G}')
    A.i(f'v_lshlrev_b32 v{WA}, 17, v{TA}')
    A.i(f'v_lshl_add_u32 v{WA}, v{G1}, 15, v{WA}')
    A.i(f'v_lshl_add_u32 v{WA}, v{N}, 2, v{WA}')
    A.i(f'v_lshlrev_b32 v{WB}, 12, v{G}')
    A.i(f'v_lshl_add_u32 v{WB}, v{N}, 4, v{WB}')
    sWA, sWB = sT4, sT5
    A.i(f's_lshl_b32 s{sWA}, s{sH}, 8')
    A.i(f's_lshl_b32 s{sT0}, s{sW}, 6')
    A.i(f's_add_u32 s{sWA}, s{sWA}, s{sT0}')
    A.i(f's_lshl_b32 s{sWB}, s{sH}, 17')
    A.i(f's_lshl_b32 s{sT0}, s{sW}, 8')
    A.i(f's_add_u32 s{sWB}, s{sWB}, s{sT0}')

    sWAp, sWBp = [4, 5, 6, 7], [8, 9, 10, 11]
    A.i(f's_mov_b32 s12, s{P_MEM0}')
    A.i(f's_mov_b32 s13, s{P_MEM0+1}')
    for p in range(4):
        A.i(f's_xor_b32 s{sT0}, s{sW}, {p}')
        A.i(f's_lshl_b32 s{sT1}, s{sT0}, 20')
        A.i(f's_add_u32 s{sWAp[p]}, s{sWA}, s{sT1}')
        A.i(f's_lshl_b32 s{sT1}, s{sT0}, 15')
        A.i(f's_add_u32 s{sWBp[p]}, s{sWB}, s{sT1}')

    def mem_units(srd_s, dst, ks_list):
        u = []
        for ks in ks_list:
            for r in range(8):
                d0 = 64 * (ks & 1) + 32 * (r >> 2) + 8 * (r & 1) + 2 * ((r >> 1) & 1)
                u.append((srd_s, WA, sWAp[ks >> 1], d0 * 8192, (d0 + 1) * 8192, 1,
                          [(dst(ks * 2) + r, 0, f's{SELLO}'), (dst(ks * 2 + 1) + r, 0, f's{SELHI}')]))
        return u

    def o_units(dst, ks_list):
        u = []
        for ks in ks_list:
            for uu in range(4):
                e0 = 16 * (uu >> 1) + 2 * (uu & 1)
                outs = []
                for cg in range(4):
                    for st in range(2):
                        outs.append((dst(ks * 4 + cg) + 2 * uu + st, 2 * st + (cg >> 1),
                                     f's{SELHI if (cg & 1) else SELLO}'))
                u.append((S_D, WB, sWBp[ks], e0 * 1024, (e0 + 1) * 1024, 4, outs))
        return u

    WO_STREAM = [0, 1, 2, 3, 4, 13, 14, 15]
    def spill(first_reg, nfrag, lds_frag0):
        for f in range(nfrag):
            for hq in range(2):
                A.i(f'ds_write_b128 v{vWV}, {vr(first_reg + f*8 + hq*4, 4)} offset:{(lds_frag0 + f)*2048 + hq*1024}')
            A.i('s_waitcnt lgkmcnt(0)')
    def spill_u(first_u, lds_frag):
        for hq in range(2):
            A.i(f'ds_write_b128 v{vWV}, {ur(first_u + hq*4, 4)} offset:{lds_frag*2048 + hq*1024}')
    def o_home(p):
        return (WV + WO_STREAM.index(p) * 8) if p in WO_STREAM else WOR + (p - 5) * 8
    def q_home(f):
        return (WV + 64 + f * 8) if f < 8 else WQR + (f - 8) * 8
    load_weights(A, o_units(o_home, range(4)) + mem_units(S_A, q_home, range(8)) + mem_units(S_B, lambda f: WK + f * 8, range(8)), 48, 32, 22)
    for k in range(8):
        spill_u(WV + k * 8, 8 + k)
        spill_u(WV + 64 + k * 8, k)
        A.i('s_waitcnt lgkmcnt(0)')
    if single:
        ready_wait(A, 24, 25)
        A.i('s_barrier')
        A.i(f's_lshl_b32 s{sT0}, s{sH}, 7')
        A.i(f's_add_u32 s{sT0}, s{sT0}, {F_CI:#x}')
        A.i('v_mov_b32 v24, 1')
        A.i(f's_mov_b64 exec, s[{sIO}:{sIO+1}]')
        A.i(f'buffer_store_dword v24, off, {WSR}, s{sT0} sc1')
        A.i('s_mov_b64 exec, -1')
    load_weights(A, mem_units(S_C, lambda f: WV + f * 8, range(8)), 48, 32, 22)
    sy.trace(A, vT0, None, imm=102, wave=0)
    if single:
        A.i(f'v_and_b32 v24, 31, v{LN}')
        A.i('v_lshlrev_b32 v24, 7, v24')
        A.i(f'v_add_u32 v24, {F_CI:#x}, v24')
        A.i(f's_mov_b32 s{sT2}, 1')
        sy.wait(A, 24, 25, sT2)
    sy.trace(A, vT0, None, imm=101, wave=0)
    srd(A, S_A, 12, 8192)
    A.i(f's_mov_b32 s{sS}, 0')
    A.i(f'v_and_b32 v{vT0}, 7, v{LN}')
    A.i(f'v_lshlrev_b32 v{vT0}, 10, v{vT0}')
    A.i(f'v_lshrrev_b32 v{TA}, 3, v{LN}')
    A.i(f'v_lshl_add_u32 v{vT0}, v{TA}, 4, v{vT0}')
    A.i(f's_lshl_b32 s{sT0}, s{sW}, 8')
    for i in range(2):
        A.i(f'buffer_load_dwordx4 {vr(RA+4*i,4)}, v{vT0}, s[{S_A}:{S_A+3}], s{sT0} offen offset:{i*128}')
    A.i('s_waitcnt vmcnt(0)')
    for i in range(2):
        A.i(f'ds_write_b128 v{vLW}, {vr(RA+4*i,4)} offset:{i*1024}')
    A.i('s_waitcnt lgkmcnt(0)')

    slow = []
    def kv_wait(sseg, r0, r1):
        if sy.on:
            Lok, Lp = A.newlabel('CHkvok'), A.newlabel('CHkvp')
            A.i(f's_cmp_gt_u32 s{sKVS}, s{sseg}')
            A.i(f's_cbranch_scc0 {Lp}')
            A.label(Lok)
            slow.append((Lp, Lok, sseg, r0, r1))

    def kv_dma(which):
        A.i(f's_mov_b32 m0, s{sD2 if which else sDST}')
        for i in range(2):
            A.i(f'buffer_load_dwordx4 v1, {WSR}, s{sNV if which else sNX} offen offset:{i*1024} sc1 lds')

    A.i(f's_add_u32 s{sD2}, s{sDST}, {L_VX-L_KX}')
    A.i(f's_add_u32 s{sNV}, s{sNX}, {VT-KX:#x}')
    kv_wait(sS, 34, 35)
    kv_dma(0)
    kv_dma(1)

    stamps = []
    Lfin = A.newlabel('CHfin')
    Lcut = A.newlabel('CHcut')
    def stamp(name):
        if ('cut' + name) in opts:
            A.i(f's_cmp_eq_u32 s{sS}, {nsteps-1}')
            A.i(f's_cbranch_scc1 {Lfin}')
            A.i(f's_branch {Lcut}')

    prof = 'prof' in opts
    def ts(k):
        if prof:
            A.i(f's_memtime s[{4+2*k}:{5+2*k}]')
    def cnt(k):
        if prof:
            A.i(f's_add_u32 s{28+k}, s{28+k}, 1')
    if prof:
        for k in range(4, 32):
            A.i(f's_mov_b32 s{k}, 0')
    AQ, AK, AV = RD, RD + 8, RD
    MA = RA
    XQ = RB
    S1, S2 = RB + 24, RB + 28
    QF, KR = RC, RC + 16
    S0, PM0, PM1 = RD + 8, RD + 12, RD + 14
    P4, VXF, OP, WD = RC, RC + 4, RC + 12, RC + 16
    OD, OA = RB + 24, RA
    PK = RC
    YS = [RB, RB + 8, RB + 16, RA + 16, RA + 24]

    def frag_read(reg, lf, tag):
        return [lambda: A.ds(f'ds_read_b128 {vr(reg,4)}, v{vWV} offset:{lf*2048}', tag),
                lambda: A.ds(f'ds_read_b128 {vr(reg+4,4)}, v{vWV} offset:{lf*2048+1024}', tag)]

    def pre_step():
        for f in range(8):
            for x in frag_read(XQ + 8 * f, f, 'xq'):
                x()
            A.i(f'v_mov_b64 {vr(RD+2*f,2)}, 0')

    def step_scalars(addr=True):
        A.i(f's_and_b32 s{sT0}, s{sS}, 3')
        A.i(f's_lshl_b32 s{sPC}, s{sT0}, 18')
        A.i(f's_add_u32 s{sPC}, s{sPC}, {XP:#x}')
        A.i(f's_add_u32 s{sPC2}, s{sPC}, 4096')
        A.i(f's_lshl_b32 s{sMC}, s{sT0}, 13')
        A.i(f's_add_u32 s{sMC}, s{sMC}, {XM:#x}')
        A.i(f's_add_u32 s{sT2}, s{sS}, 8')
        A.i(f's_cmp_gt_u32 s{sKVS}, s{sT2}')
        A.i(f's_cselect_b32 s{sFA}, {FLAGS + 8*FL:#x}, s{sKVF}')
        for p in range(1, 4):
            if addr:
                A.i(f'v_xor_b32 v{RA+8*p}, {p << 11:#x}, v{vLW}')
        A.i(f's_add_u32 s{sOUT}, s{sOUT}, 0x10000')
        A.i(f's_add_u32 s{sS1}, s{sS}, 1')
        A.i(f's_min_u32 s{sS1}, s{sS1}, 63')
        A.i(f's_add_u32 s{sT1}, s{sNX}, s{sPFD}')
        A.i(f's_add_u32 s{sNX}, s{sNX}, 0x40000')
        A.i(f's_add_u32 s{sNV}, s{sNV}, 0x40000')
        A.i(f's_add_u32 s{sPFA}, s{sT1}, 0x80000')
        A.i(f's_add_u32 s{sT2}, s{sS}, 2')
        A.i(f's_cmp_gt_u32 s{sKVS}, s{sT2}')
        A.i(f's_cselect_b32 s{sPFA}, s{sPFA}, s{sT1}')
        A.i(f's_add_u32 s{sT0}, s{sS}, 3')
        A.i(f's_and_b32 s{sT0}, s{sT0}, 3')
        A.i(f's_lshl_b32 s{sT0}, s{sT0}, 18')
        A.i(f's_add_u32 s{sT0}, s{sT0}, s{sRST}')
        A.i(f's_add_u32 s{sRP}, s{sT0}, {XP:#x}')
        A.i(f's_xor_b32 s{sRM}, s{sMC}, 0x4000')
        A.i(f's_lshl_b32 s{sT1}, s{sH}, 8')
        A.i(f's_add_u32 s{sRM}, s{sRM}, s{sT1}')

    pre_step()
    step_scalars()
    kv_wait(sS1, RA + 27, RA + 28)
    Ltop = A.newlabel('CHtop')
    if sy.tr and not prof:
        A.i('s_memtime s[4:5]')
    A.i('s_waitcnt vmcnt(0)')
    A.wl_all()
    A.label(Ltop)
    _orig_i = A.i
    def _filt(text):
        for t in text.split('\n'):
            if 'novm' in opts and t.startswith('buffer_') and 's101' not in t:
                continue
            if 'nokv' in opts and ('buffer_store' in t and 'sc1' in t):
                continue
            if 'nodma' in opts and (' lds' in t and 'buffer_load' in t):
                continue
            if 'nopf' in opts and t.startswith('buffer_load_dword v') and 'offen' in t:
                t = t.replace(f's{sPFA}', f's{sMC}')
            if 'plainkv' in opts and ('buffer_store' in t and 'sc1' in t):
                t = t.replace(' sc1', '')
            _orig_i(t)
    A.i = _filt
    def sm(acc, a, w):
        return f'v_smfmac_f32_16x16x64_bf16 {vr(acc,4)}, {vr(a,4)}, {ur(w,8)}, v{vIDX}'
    def wq(f):
        return XQ + 8 * f if f < 8 else WQR + 8 * (f - 8)
    for f in range(4):
        A.i(sm(AQ + 4 * (f & 1), MA + 4 * (f >> 1), wq(f)))
    A.i('s_waitcnt lgkmcnt(0)')
    A.i('s_barrier')
    stamp('Ba')
    ts(4)
    Lxo = A.newlabel('CHxo')
    if 'xonly' in opts:
        A.i(f's_cmp_eq_u32 s{sS}, {nsteps-1}')
        A.i(f's_cbranch_scc1 {Lfin}')
        A.i(f'v_mov_b64 {vr(RC+4,2)}, -1')
        A.i(f'v_mov_b64 {vr(RC+6,2)}, -1')
        A.i(f'buffer_store_dwordx4 {vr(RC+4,4)}, v1, {WSR}, s{sRP} offen')
        A.i(f'buffer_store_dwordx4 {vr(RC+4,4)}, v1, {WSR}, s{sRP} offen offset:1024')
        A.i('s_mov_b64 exec, 0xffff')
        A.i(f'buffer_store_dwordx4 {vr(RC+4,4)}, v1, {WSR}, s{sRM} offen')
        A.i('s_mov_b64 exec, -1')
        for r in range(0, 16, 2):
            A.i(f'v_mov_b64 {vr(RC+16+r,2)}, 0')
        for _ in range(getattr(sy, 'dx', 16)):
            A.i('s_nop 15')
        A.i(f's_branch {Lxo}')
    for p in range(1, 4):
        A.ds(f'ds_read_b128 {vr(MA+8*p+4,4)}, v{RA+8*p} offset:1024', ('ma', 2 * p + 1))
        A.ds(f'ds_read_b128 {vr(MA+8*p,4)}, v{RA+8*p}', ('ma', 2 * p))
    for f in range(2):
        A.i(sm(AK + 4 * (f & 1), MA + 4 * (f >> 1), WK + f * 8))
    A.i(f'buffer_load_dword v{vT0}, v{vPF}, {WSR}, s{sPFA} offen sc1')
    if sy.on:
        A.i(f'buffer_load_dword v{vT0}, off, {WSR}, s{sFA} sc1')
    for f in range(2, 4):
        A.i(sm(AK + 4 * (f & 1), MA + 4 * (f >> 1), WK + f * 8))
    def kx_read(j):
        A.ds(f'ds_read_b128 {vr(KR+(j&3)*4,4)}, v{vKX} offset:{(j>>1)*2048+(j&1)*256}', ('kx', j))
    mf = []
    for ks in range(2, 8):
        if ks in (2, 4, 6):
            mf.append(lambda ks=ks: (A.wl(('ma', ks)), A.i(sm(AQ, MA + 4 * ks, wq(ks * 2)))))
        else:
            mf.append(sm(AQ, MA + 4 * ks, wq(ks * 2)))
        mf.append(sm(AQ + 4, MA + 4 * ks, wq(ks * 2 + 1)))
    fill = []
    for k in range(3):
        fill += frag_read(YS[k], 8 + k, ('y', k))
    fill += [lambda j=j: kx_read(j) for j in range(2)]
    mix(A, mf, fill, per=1, start=4)
    stamp('Qdone')

    def fold_qk(acc, off, t0, t1):
        f = []
        for t in range(2):
            f.append(f'v_permlane32_swap_b32 v{acc+4*t}, v{acc+4*t+2}')
            f.append(f'v_permlane32_swap_b32 v{acc+4*t+1}, v{acc+4*t+3}')
        for t in range(2):
            f.append(f'v_pk_add_f32 {vr(acc+4*t,2)}, {vr(acc+4*t,2)}, {vr(acc+4*t+2,2)}')
        f.append(f'v_cvt_pk_bf16_f32 v{t0}, v{acc}, v{acc+4}')
        f.append(f'v_cvt_pk_bf16_f32 v{t1}, v{acc+1}, v{acc+5}')
        f.append(lambda: A.ds(f'ds_write2_b32 v{vQW}, v{t0}, v{t1} offset0:0 offset1:{QS//4}', 'w') if off == 0 else
                 (A.ds(f'ds_write_b32 v{vQW}, v{t0} offset:{off}', 'w'), A.ds(f'ds_write_b32 v{vQW}, v{t1} offset:{off+QS}', 'w')))
        return f

    mf = []
    for ks in range(2, 8):
        mf.append(sm(AK, MA + 4 * ks, WK + (ks * 2) * 8))
        mf.append(sm(AK + 4, MA + 4 * ks, WK + (ks * 2 + 1) * 8))
    mix(A, mf[:3], [lambda j=j: kx_read(j) for j in range(2, 4)], per=1)
    mix(A, mf[3:8], fold_qk(AQ, 0, AQ + 2, AQ + 3), per=2)
    mix(A, mf[8:11], [f'v_mov_b64 {vr(AV+r,2)}, 0' for r in (0, 4, 6)], per=1)
    A.wl('w')
    A.i('s_barrier')
    stamp('Bb')
    emit(A, mf[11])
    for ks in range(4):
        A.ds(f'ds_read_b128 {vr(QF+4*ks,4)}, v{vQR} offset:{ks*64}', ('q', ks))
    A.i(f'v_mov_b64 {vr(AV+2,2)}, 0')
    if sy.on:
        A.i(f'v_mov_b32 v{S2}, s{sS}')
        A.i(f's_mov_b64 exec, s[{sIO}:{sIO+1}]')
        A.i(f'buffer_store_dword v{S2}, off, {WSR}, s{sFLG} sc1')
        A.i('s_mov_b64 exec, -1')
    early = False
    tag = False
    iow = 'iow' in opts
    iod = 'iod' in opts
    stamp('Kdone')

    vstate = {'f': 0}
    def vstep():
        f = 15 - vstate['f']
        ks, t = f >> 1, f & 1
        A.i(sm(AV + 4 * t, MA + 4 * ks, WV + f * 8))
        vstate['f'] += 1

    def smx(j):
        ks, kt = j >> 1, j & 1
        S = S2 if kt else S1
        c = '0' if ks == 0 else vr(S, 4)
        def f():
            A.wl(('kx', j))
            A.wl(('q', ks))
            A.i(f'v_mfma_f32_16x16x32_bf16 {vr(S,4)}, {vr(KR+(j&3)*4,4)}, {vr(QF+4*ks,4)}, {c}')
            if j + 4 < 8:
                kx_read(j + 4)
        return f
    for x in fold_qk(AK, L_KI - L_QI, AK + 2, AK + 3):
        emit(A, x)
    if early:
        A.i(f'buffer_store_dwordx4 {vr(S2,4)}, v1, {WSR}, s{sRP} offen offset:1024')
        A.i('s_mov_b64 exec, 0xffff')
        A.i(f'buffer_store_dwordx4 {vr(S2,4)}, v1, {WSR}, s{sRM} offen')
        A.i('s_mov_b64 exec, -1')
    A.wl(('q', 3))
    for j in range(4):
        smx(j)()
    A.wl('w')
    A.i('s_barrier')
    stamp('Bc')
    vstep()
    A.i(f'buffer_store_dword v{AK+2}, v{vX2}, {WSR}, s{sOUT} offen sc1')
    A.i(f'buffer_store_dword v{AK+3}, v{vX2}, {WSR}, s{sOUT} offen offset:256 sc1')
    A.wl(('kx', 7))
    for j in range(4, 8):
        smx(j)()
        A.ds(f'ds_read_b128 {vr(KR+4*(j-4),4)}, v{vQR} offset:{L_KI-L_QI+(j-4)*64}', ('km', j - 4))
    SX = S1
    T0, T1, T2 = S2, S2 + 1, S0 + 2
    def r1(a):
        return f'v_cvt_pk_bf16_f32 v{a}, 0, v{a}'
    vstep()
    A.i(f'v_mov_b64 {vr(PM0,2)}, 0')
    vstep()
    A.i(f'v_mov_b64 {vr(PM1,2)}, 0')
    fx = [f'v_cndmask_b32 v{S1+r}, v{S1+r}, v{S2+r}, s[{sHF}:{sHF+1}]' for r in range(4)]
    fx += [r1(SX + r) for r in range(4)]
    fx += [f'v_mul_f32 v{SX+r}, s{sSCALE}, v{SX+r}' for r in range(4)]
    fx += [r1(SX + r) for r in range(4)]
    fx += [f'v_max3_f32 v{T0}, v{SX}, v{SX+1}, v{SX+2}']
    s0 = []
    for ks in range(4):
        c = '0' if ks == 0 else vr(S0, 4)
        s0.append(lambda ks=ks, c=c: (A.wl(('km', ks if ks != 1 else 3)), A.i(f'v_mfma_f32_16x16x32_bf16 {vr(S0,4)}, {vr(KR+4*ks,4)}, {vr(QF+4*ks,4)}, {c}')))
    mix(A, s0, fx[:8], per=2)
    stamp('S0')
    for t in range(2):
        A.ds(f'ds_read_b128 {vr(VXF+4*t,4)}, v{vLW} offset:{L_VX-L_MEM+t*1024}', ('vx', t))
    for x in fx[8:]:
        emit(A, x)
    wz = [f'v_mov_b64 {vr(WD+r,2)}, 0' for r in range(0, 16, 2)]
    f = [f'v_cndmask_b32 v{S0}, v{S0}, v{S0+2}, s[{sHF}:{sHF+1}]', f'v_cndmask_b32 v{S0+1}, v{S0+1}, v{S0+3}, s[{sHF}:{sHF+1}]',
         r1(S0), r1(S0 + 1), f'v_mul_f32 v{S0}, s{sSCALE}, v{S0}', f'v_mul_f32 v{S0+1}, s{sSCALE}, v{S0+1}', r1(S0), r1(S0 + 1),
         f'v_max3_f32 v{T1}, v{SX+3}, v{S0}, v{S0+1}', f'v_max_f32 v{T0}, v{T0}, v{T1}',
         vstep, wz[0],
         f'v_max_f32_dpp v{T0}, v{T0}, v{T0} row_ror:8 row_mask:0xf bank_mask:0xf',
         f'v_mov_b32 v{T1}, v{T0}', vstep, wz[1], f'v_permlane32_swap_b32 v{T0}, v{T1}', f'v_max_f32 v{T0}, v{T0}, v{T1}',
         f'v_mov_b32 v{T1}, v{T0}', vstep, wz[2], f'v_permlane16_swap_b32 v{T0}, v{T1}', f'v_max_f32 v{T0}, v{T0}, v{T1}',
         f'v_mul_f32 v{T0}, s{sLOG2E}, v{T0}']
    vals = [SX, SX + 1, SX + 2, SX + 3, S0, S0 + 1]
    for a in vals:
        f += [f'v_fma_f32 v{a}, v{a}, s{sLOG2E}, -v{T0}', vstep]
    yr = frag_read(YS[3], 8 + 3, ('y', 3)) + frag_read(YS[4], 8 + 4, ('y', 4))
    f += [yr[0], vstep]
    f += [f'v_exp_f32 v{a}, v{a}' for a in vals]
    f += [f'v_pk_add_f32 {vr(T0,2)}, {vr(SX,2)}, {vr(SX+2,2)}', f'v_add_f32 v{T2}, v{S0}, v{S0+1}', f'v_add_f32 v{T0}, v{T0}, v{T1}',
          f'v_fma_f32 v{T0}, v{T2}, 0.5, v{T0}', vstep, wz[3],
          f'v_add_f32_dpp v{T0}, v{T0}, v{T0} row_ror:8 row_mask:0xf bank_mask:0xf',
          f'v_mov_b32 v{T1}, v{T0}', vstep, wz[4], f'v_permlane32_swap_b32 v{T0}, v{T1}', f'v_add_f32 v{T0}, v{T0}, v{T1}',
          f'v_mov_b32 v{T1}, v{T0}', vstep, wz[5], f'v_permlane16_swap_b32 v{T0}, v{T1}', f'v_add_f32 v{T0}, v{T0}, v{T1}',
          f'v_rcp_f32 v{T0}, v{T0}', yr[1]]
    f += [f'v_pk_mul_f32 {vr(a,2)}, {vr(a,2)}, {vr(T0,2)} op_sel_hi:[1,0]' for a in (SX, SX + 2, S0)]
    f += [f'v_cvt_pk_bf16_f32 v{P4}, v{SX}, v{SX+1}', f'v_cvt_pk_bf16_f32 v{P4+1}, v{SX+2}, v{SX+3}',
          f'v_cvt_pk_bf16_f32 v{T2}, v{S0}, v{S0+1}',
          f'v_mov_b32_dpp v{P4+2}, v{P4} row_ror:8 row_mask:0xf bank_mask:0xf',
          f'v_mov_b32_dpp v{P4+3}, v{P4+1} row_ror:8 row_mask:0xf bank_mask:0xf']
    for x in f:
        emit(A, x)
    assert vstate['f'] == 16, vstate
    pmv = [f'v_mov_b32_dpp v{PM0}, v{T2} quad_perm:[0,1,2,3] row_mask:0x3 bank_mask:0xf',
           f'v_mov_b32_dpp v{PM0+1}, v{T2} row_ror:8 row_mask:0x3 bank_mask:0xf',
           f'v_mov_b32_dpp v{PM1}, v{T2} quad_perm:[0,1,2,3] row_mask:0xc bank_mask:0xf',
           f'v_mov_b32_dpp v{PM1+1}, v{T2} row_ror:8 row_mask:0xc bank_mask:0xf']
    g = [f'v_permlane32_swap_b32 v{AV+r}, v{AV+4+r}' for r in range(4)]
    g += [f'v_pk_add_f32 {vr(AV,2)}, {vr(AV,2)}, {vr(AV+4,2)}', f'v_pk_add_f32 {vr(AV+2,2)}, {vr(AV+2,2)}, {vr(AV+6,2)}']
    g += [f'v_cvt_pk_bf16_f32 v{AV+4}, v{AV}, v{AV+1}', f'v_cvt_pk_bf16_f32 v{AV+5}, v{AV+2}, v{AV+3}']
    stamp('P')
    for x in g[:2]:
        emit(A, x)
    A.wl(('vx', 1))
    A.i(f'v_mfma_f32_16x16x32_bf16 {vr(OD,4)}, {vr(VXF,4)}, {vr(P4,4)}, 0')
    for x in g[2:4]:
        emit(A, x)
    A.i(f'v_mfma_f32_16x16x32_bf16 {vr(OD+4,4)}, {vr(VXF+4,4)}, {vr(P4,4)}, 0')
    for x in g[4:] + pmv:
        emit(A, x)
    A.i(f'v_mfma_f32_16x16x16_bf16 {vr(OD,4)}, {vr(AV+4,2)}, {vr(PM0,2)}, {vr(OD,4)}')
    A.i(f'v_mfma_f32_16x16x16_bf16 {vr(OD+4,4)}, {vr(AV+4,2)}, {vr(PM1,2)}, {vr(OD+4,4)}')
    A.i(f'buffer_store_dwordx2 {vr(AV+4,2)}, v{vVW}, {WSR}, s{sOUT} offen sc1')
    if not iod:
        A.i(f's_mov_b32 m0, s{sD2}')
        for i in range(2):
            A.i(f'buffer_load_dwordx4 v1, {WSR}, s{sNV} offen offset:{i*1024} sc1 lds')
        A.i(f's_mov_b32 m0, s{sDST}')
    SEN = RC + 4
    for x in [yr[2], yr[3], wz[6], wz[7]] + ([] if iow else [f'v_mov_b64 {vr(SEN,2)}, -1', f'v_mov_b64 {vr(SEN+2,2)}, -1']):
        emit(A, x)
    for c in range(4):
        A.i(f'v_cvt_pk_bf16_f32 v{OP+c}, v{OD+c}, v{OD+4+c}')
    A.i(f's_mov_b64 exec, s[{sLF}:{sLF+1}]')
    A.ds(f'ds_write_b128 v{vOW}, {vr(OP,4)}', 'w')
    A.i('s_mov_b64 exec, -1')
    for c in range(4):
        A.i(f'v_mov_b32_dpp v{OP+c}, v{OP+c} row_ror:8 row_mask:0xf bank_mask:0xc')
    for p in range(1, 4):
        A.i(f'v_xor_b32 v{OA+4*p}, {p << 9:#x}, v{vOW}')
    def wo_step(p):
        ks, cg = p >> 2, p & 3
        if p == 4:
            A.wl(('o', 1))
        if p == 8:
            A.wl(('o', 3))
        if p < 5:
            w = YS[p]
        elif p < 13:
            w = WOR + (p - 5) * 8
        else:
            w = YS[p - 13]
            if p == 13:
                A.wl(('y', 15))
        A.i(sm(WD + 4 * cg, OP if ks == 0 else OA + 4 * ks, w))
    wo_step(0)
    if not iow:
        A.i(f'buffer_store_dwordx4 {vr(SEN,4)}, v1, {WSR}, s{sRP} offen')
    wo_step(1)
    A.wl_all()
    A.i('s_barrier')
    for ks in range(1, 4):
        A.ds(f'ds_read_b128 {vr(OA+4*ks,4)}, v{OA+4*ks}', ('o', ks))
    wo_step(2)
    if not iow:
        A.i(f'buffer_store_dwordx4 {vr(SEN,4)}, v1, {WSR}, s{sRP} offen offset:1024')
    wo_step(3)
    if not iow:
        A.i('s_mov_b64 exec, 0xffff')
        A.i(f'buffer_store_dwordx4 {vr(SEN,4)}, v1, {WSR}, s{sRM} offen')
        A.i('s_mov_b64 exec, -1')
    if not iod:
        for i in range(2):
            A.i(f'buffer_load_dwordx4 v1, {WSR}, s{sNX} offen offset:{i*1024} sc1 lds')
    stamp('Bd')
    yy = []
    for k in range(3):
        yy += frag_read(YS[k], 8 + 5 + k, ('y', 13 + k))
    for p in range(4, 16):
        wo_step(p)
        if yy:
            yy.pop(0)()
    if 'xonly' in opts:
        A.label(Lxo)
    for r in range(4):
        A.i(f'v_cvt_pk_bf16_f32 v{PK+2*r}, v{WD+r}, v{WD+4+r}')
        if tag:
            A.i(f'v_and_or_b32 v{PK+2*r}, v{PK+2*r}, -2, s{sFA}')
    for r in range(4):
        A.i(f'v_cvt_pk_bf16_f32 v{PK+2*r+1}, v{WD+8+r}, v{WD+12+r}')
        if tag:
            A.i(f'v_and_or_b32 v{PK+2*r+1}, v{PK+2*r+1}, -2, s{sFA}')
        if r == 1:
            A.i(f'buffer_store_dwordx4 {vr(PK,4)}, v{vPST}, {WSR}, s{sPC} offen')
    A.i(f'buffer_store_dwordx4 {vr(PK+4,4)}, v{vPST}, {WSR}, s{sPC2} offen')
    stamp('Wo')
    if prof:
        ts(5)
        A.i('s_waitcnt lgkmcnt(0)')
        for k in range(5):
            A.i(f's_sub_u32 s{sT0}, s{4+2*(k+1)}, s{4+2*k}')
            A.i(f's_cmp_gt_u32 s{sS}, 4')
            A.i(f's_cselect_b32 s{sT0}, s{sT0}, 0')
            A.i(f's_add_u32 s{20+k}, s{20+k}, s{sT0}')
        A.i('s_mov_b32 s4, s14')
    SELR, RS, HA, IMG = RA + 16, RA + 20, RA, RA + 28
    Lbe = A.newlabel('CHbe')
    A.ds(f'ds_read_b128 {vr(SELR,4)}, v{vL2} offset:{L_SEL-L_MEM}', 'sel')
    if sy.on:
        A.i('s_waitcnt vmcnt(%d)' % (12 - (3 if iow else 0) - (4 if iod else 0)))
        A.i(f'v_readfirstlane_b32 s{sT0}, v{vT0}')
        A.i(f's_max_u32 s{sKVS}, s{sKVS}, s{sT0}')
    sy.trace(A, RD, sS, imm=0, wave=3)
    if iod:
        A.i(f's_mov_b32 m0, s{sD2}')
        for i in range(2):
            A.i(f'buffer_load_dwordx4 v1, {WSR}, s{sNV} offen offset:{i*1024} sc1 lds')
        A.i(f's_mov_b32 m0, s{sDST}')
        for i in range(2):
            A.i(f'buffer_load_dwordx4 v1, {WSR}, s{sNX} offen offset:{i*1024} sc1 lds')
    pre_step()
    A.i(f's_add_u32 s{sT5}, s{sPC}, s{sH1}')
    A.i(f's_lshl_b32 s{sT3}, s{sW}, 11')
    A.i(f's_add_u32 s{sT3}, s{sT3}, s{sMC}')
    A.i(f's_mov_b32 s{sT4}, s{sMC}')

    CT = RA + 26
    def chain_max(H, n):
        A.i(f'v_max3_u32 v{CT}, v{H}, v{H+1}, v{H+2}')
        for k in range(3, n - 1, 2):
            A.i(f'v_max3_u32 v{CT}, v{CT}, v{H+k}, v{H+k+1}')
        A.i(f'v_max_u32 v{CT}, v{CT}, v{H+n-1}')
    KF = getattr(sy, 'dk', 2)

    A.wl_all()
    Lio = A.newlabel('CHio')
    A.i(f's_cmp_ge_u32 s{sW}, 2')
    A.i(f's_cbranch_scc1 {Lio if iow else Lbe}')
    if getattr(sy, 'd1', 4):
        A.i(f's_sleep {getattr(sy, "d1", 4)}')
    Lp1, Lok1 = A.newlabel('CHp1'), A.newlabel('CHok1')
    def h1_loads():
        for L in range(4):
            A.i(f'buffer_load_dwordx4 {vr(HA+4*L,4)}, v1, {WSR}, s{sT5} offen offset:{L*1024} sc1')
    def h1_mfma(waits):
        for L in range(4):
            if waits:
                A.i(f's_waitcnt vmcnt({3-L})')
            c = '0' if L == 0 else vr(RS, 4)
            A.i(f'v_mfma_f32_16x16x32_bf16 {vr(RS,4)}, {vr(SELR,4)}, {vr(HA+4*L,4)}, {c}')
    h1_loads()
    h1_mfma(True)
    chain_max(HA, 16)
    A.i(f'v_cmpx_eq_u32 vcc, -1, v{CT}')
    A.i(f's_cbranch_execz {Lok1}')
    if 'nox' not in opts:
        A.label(Lp1)
        cnt(0)
        h1_loads()
        A.i(f's_waitcnt vmcnt({4*KF})')
        chain_max(HA, 16)
        A.i(f'v_cmpx_eq_u32 vcc, -1, v{CT}')
        A.i(f's_cbranch_execnz {Lp1}')
    A.i('s_mov_b64 exec, -1')
    h1_mfma(False)
    A.label(Lok1)
    A.i('s_mov_b64 exec, -1')
    for r in range(4):
        A.i(f'v_add_f32_dpp v{RS+r}, v{RS+r}, v{RS+r} row_ror:8 row_mask:0xf bank_mask:0xf')
    A.i('s_mov_b64 exec, 0x00ff00ff')
    A.i(f'v_cvt_pk_bf16_f32 v{RS}, v{RS}, v{RS+1}')
    A.i(f'v_cvt_pk_bf16_f32 v{RS+1}, v{RS+2}, v{RS+3}')
    A.i(f'buffer_store_dwordx2 {vr(RS,2)}, v{vX1}, {WSR}, s{sT4} offen')
    A.i('s_mov_b64 exec, -1')
    if iow:
        A.i(f's_branch {Lbe}')
        A.label(Lio)
        A.i(f'v_mov_b64 {vr(HA,2)}, -1')
        A.i(f'v_mov_b64 {vr(HA+2,2)}, -1')
        A.i(f's_sub_u32 s{sT0}, s{sRP}, s{sRST}')
        A.i(f's_add_u32 s{sT0}, s{sT0}, s{sH1}')
        for L in range(4):
            A.i(f'buffer_store_dwordx4 {vr(HA,4)}, v1, {WSR}, s{sT0} offen offset:{L*1024}')
        A.i('s_mov_b64 exec, 0xffff')
        A.i(f'buffer_store_dwordx4 {vr(HA,4)}, v1, {WSR}, s{sRM} offen')
        A.i('s_mov_b64 exec, -1')
    A.label(Lbe)
    ts(1)
    A.i('s_barrier')
    ts(2)
    A.i(f's_add_u32 s{sS}, s{sS}, 1')
    step_scalars(addr=False)
    kv_wait(sS1, RA + 27, RA + 28)
    if getattr(sy, 'd2', 2):
        A.i(f's_sleep {getattr(sy, "d2", 2)}')
    Lp2, Lok2 = A.newlabel('CHp2'), A.newlabel('CHok2')
    def h2_loads():
        for i in range(2):
            A.i(f'buffer_load_dwordx4 {vr(HA+4*i,4)}, v1, {WSR}, s{sT3} offen offset:{i*1024} sc1')
    h2_loads()
    for i in range(2):
        A.i(f's_waitcnt vmcnt({1-i})')
        A.i(f'ds_write_b128 v{vLW}, {vr(HA+4*i,4)} offset:{i*1024}')
    chain_max(HA, 8)
    for p in range(1, 4):
        A.i(f'v_xor_b32 v{RA+8*p}, {p << 11:#x}, v{vLW}')
    A.i(f'v_cmpx_eq_u32 vcc, -1, v{CT}')
    A.i(f's_cbranch_execz {Lok2}')
    if 'nox' not in opts:
        A.i(f's_mov_b64 s[40:41], exec')
        A.label(Lp2)
        cnt(1)
        h2_loads()
        A.i(f's_waitcnt vmcnt({2*KF})')
        chain_max(HA, 8)
        A.i(f'v_cmpx_eq_u32 vcc, -1, v{CT}')
        A.i(f's_cbranch_execnz {Lp2}')
        A.i('s_mov_b64 exec, s[40:41]')
        for i in range(2):
            A.i(f'ds_write_b128 v{vLW}, {vr(HA+4*i,4)} offset:{i*1024}')
    A.label(Lok2)
    A.i('s_mov_b64 exec, -1')
    ts(3)
    A.i(f's_cmp_lg_u32 s{sS}, {nsteps-1}')
    A.i(f's_cbranch_scc1 {Ltop}')
    A.lq = []
    for f in range(4):
        A.i(sm(AK + 4 * (f & 1), MA + 4 * (f >> 1), WK + f * 8))
    A.i('s_waitcnt lgkmcnt(0)')
    A.i('s_barrier')
    for p in range(1, 4):
        A.i(f'ds_read_b128 {vr(MA+8*p+4,4)}, v{RA+8*p} offset:1024')
        A.i(f'ds_read_b128 {vr(MA+8*p,4)}, v{RA+8*p}')
    if sy.on:
        A.i(f'v_mov_b32 v{S2}, s{sS}')
        A.i(f's_mov_b64 exec, s[{sIO}:{sIO+1}]')
        A.i(f'buffer_store_dword v{S2}, off, {WSR}, s{sFLG} sc1')
        A.i('s_mov_b64 exec, -1')
    for f in range(4):
        A.i(sm(AV + 4 * (f & 1), MA + 4 * (f >> 1), WV + f * 8))
    A.i('s_waitcnt lgkmcnt(0)')
    for f in range(4, 16):
        A.i(sm(AK + 4 * (f & 1), MA + 4 * (f >> 1), WK + f * 8))
    kf = fold_qk(AK, 0, AK + 2, AK + 3)[:-1]
    kf += [f'buffer_store_dword v{AK+2}, v{vX2}, {WSR}, s{sOUT} offen sc1',
           f'buffer_store_dword v{AK+3}, v{vX2}, {WSR}, s{sOUT} offen offset:256 sc1']
    mix(A, [sm(AV + 4 * (f & 1), MA + 4 * (f >> 1), WV + f * 8) for f in range(4, 16)], kf, per=1, start=2)
    for x in g:
        emit(A, x)
    A.i(f'buffer_store_dwordx2 {vr(AV+4,2)}, v{vVW}, {WSR}, s{sOUT} offen sc1')
    A.i(f's_branch {Lfin}')
    A.label(Lcut)
    A.i(f's_add_u32 s{sS}, s{sS}, 1')
    sy.trace(A, RD, sS, imm=0, wave=3)
    A.wl_all()
    A.i(f's_branch {Ltop}')
    A.i = _orig_i
    A.label(Lfin)
    if sy.tr and not prof:
        A.i('s_memtime s[6:7]')
        A.i('s_waitcnt lgkmcnt(0)')
        A.i('s_sub_u32 s6, s6, s4')
        A.i(f'v_mov_b32 v{vT0}, s6')
        A.i(f'buffer_store_dword v{vT0}, off, {WSR}, s100 offset:{120*4}')
    if prof:
        A.i(f's_lshl_b32 s101, s{sW}, 6')
        A.i('s_add_u32 s101, s101, s100')
        A.i('s_mov_b64 exec, 1')
        for k in range(10):
            A.i(f'v_mov_b32 v{vT0}, s{20+k}')
            A.i(f'buffer_store_dword v{vT0}, off, {WSR}, s101 offset:{512+4*k}')
        A.i('s_mov_b64 exec, -1')
    if sy.on:
        A.i('s_waitcnt vmcnt(0)')
        A.i('s_barrier')
        A.i(f's_add_u32 s{sT0}, s{sS}, 1')
        A.i(f'v_mov_b32 v{vT0}, s{sT0}')
        A.i(f's_mov_b64 exec, s[{sIO}:{sIO+1}]')
        A.i(f'buffer_store_dword v{vT0}, off, {WSR}, s{sFLG} sc1')
        A.i('s_mov_b64 exec, -1')
    A.i(f's_branch {end}')
    for Lp, Lok, sseg, r0, r1 in slow:
        A.label(Lp)
        A.i(f'buffer_load_dword v{r0}, off, {WSR}, s{sKVF} sc1')
        A.i('s_waitcnt vmcnt(0)')
        A.i(f'v_readfirstlane_b32 s{sKVS}, v{r0}')
        A.i(f's_cmp_gt_u32 s{sKVS}, s{sseg}')
        A.i(f's_cbranch_scc1 {Lok}')
        A.i(f's_branch {Lp}')
```

```python
from common import *
from roles import *

F_L = FLAGS + 272 * FL
NPX = 4


def role_post(A, sy, sX):
    WOW, F1W, F2W = 256, 384, 128
    sB = sS if 'bigscratch' in getattr(sy, 'opts', set()) else sX
    VPC, VLW, VLR, VSTP, VFQ, VFL, VT_, VDMA = 2, 3, 4, 5, 6, 7, 8, 10
    VRD, VSTG, VST2, VLR2, VF3, V32, GB = 11, 19, 20, 21, 22, 23, 24
    CG = 240
    sKB, sPRT, sOSRC, sGUD, sGUS, sFB, sC28 = 72, 73, 74, 75, 76, 77, 78
    defer_to_chain(A, sy, 28, 29)
    srd(A, S_A, P_WO, 4096 * 1024)
    srd(A, S_B, P_WG, 512 * 3584)
    srd(A, S_C, P_WU, 512 * 3584)
    srd(A, S_D, P_WD, 1792 * 1024)
    natural_setup(A, 28, 29, 1024, 30)
    A.i(f's_lshr_b32 s80, s{sR}, 3')
    A.i(f's_and_b32 s81, s{sR}, 7')
    A.i(f's_lshl_b32 s{sKB}, s80, 2')
    A.i(f's_add_u32 s{sKB}, s{sKB}, s{sW}')
    A.i(f's_lshl_b32 s82, s{sKB}, 18')
    A.i(f's_lshl_b32 s{sT0}, s81, 7')
    A.i(f's_add_u32 s82, s82, s{sT0}')
    load_weights(A, natural_units(S_A, 28, 82, 1024, 8, 4, WOW, 29), 64, 32, 30)
    natural_setup(A, 28, 29, 3584, 30)
    A.i(f's_min_u32 s{sC28}, s{sR}, 27')
    A.i(f's_lshl_b32 s82, s{sC28}, 7')
    A.i(f's_lshl_b32 s{sT0}, s{sW}, 5')
    A.i(f's_add_u32 s82, s82, s{sT0}')
    ug = natural_units(S_B, 28, 82, 3584, 16, 1, F1W, 29, tile_index=lambda ks, t: ks * 2)
    uu = natural_units(S_C, 28, 82, 3584, 16, 1, F1W, 29, tile_index=lambda ks, t: ks * 2 + 1)
    load_weights(A, ug + uu, 64, 32, 30)
    lane_woff(A, 28, 1024, 4, 30)
    A.i(f's_lshr_b32 s83, s{sR}, 1')
    A.i(f's_and_b32 s84, s{sR}, 1')
    A.i(f's_mul_i32 s82, s{sW}, {448*1024}')
    A.i(f's_lshl_b32 s{sT0}, s83, 6')
    A.i(f's_add_u32 s82, s82, s{sT0}')
    load_weights(A, paired_units(S_D, 28, 82, 1024, 14, F2W), 64, 32, 30)
    srd(A, S_A, P_X, 2048 * 1024)
    srd(A, S_B, P_OUT, 2048 * 1024)
    if getattr(sy, 'single', False):
        mod_wait(A, sy, 0, 48, 28, 29)
    G, T = 28, 29
    A.i(f'v_lshrrev_b32 v{G}, 4, v0')
    A.i(f'v_and_b32 v{T}, 15, v0')
    A.i(f'v_lshlrev_b32 v{VPC}, 9, v{G}')
    A.i(f'v_lshl_add_u32 v{VPC}, v{T}, 4, v{VPC}')
    A.i(f'v_lshlrev_b32 v{V32}, 5, v0')
    A.i(f'v_lshlrev_b32 v{VSTP}, 11, v{T}')
    A.i(f'v_lshl_add_u32 v{VSTP}, v{G}, 4, v{VSTP}')
    A.i(f's_lshl_b32 s{sT0}, s81, 8')
    A.i(f's_lshl_b32 s{sT1}, s{sW}, 6')
    A.i(f's_add_u32 s{sT0}, s{sT0}, s{sT1}')
    A.i(f's_lshl_b32 s{sT1}, s80, 16')
    A.i(f's_add_u32 s{sT0}, s{sT0}, s{sT1}')
    A.i(f's_add_u32 s{sPRT}, s{sT0}, {PART:#x}')
    RED = 65536
    A.i(f's_lshl_b32 s{sT0}, s{sW}, 13')
    A.i(f's_add_u32 s{sT0}, s{sT0}, {RED}')
    A.i(f'v_add_u32 v{VLW}, s{sT0}, v1')
    A.i(f's_lshl_b32 s{sT0}, s{sW}, 11')
    A.i(f's_add_u32 s{sT0}, s{sT0}, {RED}')
    A.i(f'v_add_u32 v{VLR}, s{sT0}, v1')
    A.i(f'v_and_b32 v30, 1, v0')
    A.i(f'v_lshlrev_b32 v30, 8, v30')
    A.i(f's_lshl_b32 s{sT0}, s{sKB}, 9')
    A.i(f's_add_u32 s{sT0}, s{sT0}, {F_QA:#x}')
    A.i(f'v_add_u32 v{VFQ}, s{sT0}, v30')
    A.i(f's_lshl_b32 s{sOSRC}, s{sKB}, 14')
    A.i(f's_add_u32 s{sOSRC}, s{sOSRC}, {OB:#x}')
    A.i(f's_mul_i32 s{sFB}, s{sX}, {96*FL}')
    A.i(f's_add_u32 s{sFB}, s{sFB}, {F_L:#x}')
    A.i(f'v_and_b32 v{VFL}, 31, v0')
    A.i(f'v_lshlrev_b32 v{VFL}, 7, v{VFL}')
    A.i(f'v_add_u32 v{VFL}, s{sFB}, v{VFL}')
    A.i(f'v_and_b32 v{VF3}, 7, v0')
    A.i(f'v_min_u32 v{VF3}, 6, v{VF3}')
    A.i(f'v_lshlrev_b32 v{VF3}, 7, v{VF3}')
    A.i(f's_mul_i32 s{sT0}, s{sW}, {7*FL}')
    A.i(f's_add_u32 s{sT0}, s{sT0}, s{sFB}')
    A.i(f's_add_u32 s{sT0}, s{sT0}, {64*FL}')
    A.i(f'v_add_u32 v{VF3}, s{sT0}, v{VF3}')
    A.i(f's_lshl_b32 s{sT0}, s{sR}, 7')
    A.i(f's_add_u32 s{sFB}, s{sFB}, s{sT0}')
    t1_setup(A, VDMA, VRD)
    A.i(f'v_lshrrev_b32 v{VSTG}, 5, v0')
    A.i(f'v_lshlrev_b32 v{VSTG}, 9, v{VSTG}')
    A.i(f'v_lshl_add_u32 v{VSTG}, v{T}, 4, v{VSTG}')
    A.i(f'v_bfe_u32 v30, v0, 4, 1')
    A.i(f'v_lshl_add_u32 v{VSTG}, v30, 3, v{VSTG}')
    A.i(f's_lshl_b32 s{sGUD}, s{sC28}, 12')
    A.i(f's_lshl_b32 s{sT0}, s{sW}, 10')
    A.i(f's_add_u32 s{sGUD}, s{sGUD}, s{sT0}')
    A.i(f's_add_u32 s{sGUD}, s{sGUD}, {GU:#x}')
    A.i(f'v_lshlrev_b32 v{VST2}, 10, v{T}')
    A.i(f'v_lshl_add_u32 v{VST2}, v{G}, 4, v{VST2}')
    A.i(f's_lshl_b32 s{sT0}, s84, 14')
    A.i(f's_lshl_b32 s{sT1}, s83, 6')
    A.i(f's_add_u32 s{sT0}, s{sT0}, s{sT1}')
    A.i(f's_lshl_b32 s{sT1}, s{sW}, 2')
    A.i(f's_add_u32 s{sT0}, s{sT0}, s{sT1}')
    A.i(f'v_add_u32 v{VST2}, s{sT0}, v{VST2}')
    A.i(f's_add_u32 s{sT0}, s{sT1}, {RED}')
    A.i(f'v_add_u32 v{VLR2}, s{sT0}, v1')
    A.i(f's_mul_i32 s{sGUS}, s{sW}, {56*512}')
    A.i(f's_lshl_b32 s{sT0}, s84, 8')
    A.i(f's_add_u32 s{sGUS}, s{sGUS}, s{sT0}')
    A.i(f's_add_u32 s{sGUS}, s{sGUS}, {GU:#x}')
    A.i(f'v_lshlrev_b32 v30, 5, v{G}')
    A.i(f's_lshl_b32 s{sT0}, s83, 7')
    A.i(f's_lshl_b32 s{sT1}, s{sW}, 3')
    A.i(f's_add_u32 s{sT0}, s{sT0}, s{sT1}')
    A.i(f's_add_u32 s{sT0}, s{sT0}, {MOD + 5*2048:#x}')
    A.i(f'buffer_load_dwordx2 {vr(GB,2)}, v30, {WSR}, s{sT0} offen sc1')
    SBL = 131072
    for dst, which in ((CG, 2), (CG + 8, 4), (32, 3)):
        A.i(f's_mov_b32 s{sT0}, {MOD + which*2048:#x}')
        A.i(f'buffer_load_dwordx4 {vr(dst,4)}, v{V32}, {WSR}, s{sT0} offen sc1')
        A.i(f'buffer_load_dwordx4 {vr(dst+4,4)}, v{V32}, {WSR}, s{sT0} offen offset:16 sc1')
    A.i('s_waitcnt vmcnt(0)')
    one_plus(A, CG + 8, VT_)
    A.i(f'v_add_u32 v26, {SBL}, v{V32}')
    A.i('ds_write_b128 v26, v[32:35]')
    A.i('ds_write_b128 v26, v[36:39] offset:16')
    A.i('s_waitcnt lgkmcnt(0)')
    A.i(f's_mov_b32 s{sS}, s{sX}')

    def lpublish(stage):
        Ls = A.newlabel('PSpub')
        A.i(f's_cmp_lg_u32 s{sW}, 0')
        A.i(f's_cbranch_scc1 {Ls}')
        A.i(f'v_mov_b32 v{VT_}, s{sT2}')
        A.i(f's_add_u32 s{sT0}, s{sFB}, {stage*32*FL}')
        A.i('s_mov_b64 exec, 1')
        A.i(f'buffer_store_dword v{VT_}, off, {WSR}, s{sT0}')
        A.i('s_mov_b64 exec, -1')
        sy.trace(A, VT_, sS, imm=1 + 64 * stage)
        A.label(Ls)

    def lwait(vaddr, off):
        L, L2 = A.newlabel('PSw'), A.newlabel('PSwd')
        A.i(f's_mov_b32 s{sT0}, {off}')
        A.label(L)
        A.i(f'buffer_load_dword v{VT_}, v{vaddr}, {WSR}, s{sT0} offen sc1')
        A.i('s_waitcnt vmcnt(0)')
        A.i(f'v_cmp_le_u32 vcc, s{sT2}, v{VT_}')
        A.i('s_cmp_eq_u64 vcc, exec')
        A.i(f's_cbranch_scc0 {L}')

    Ltop = A.newlabel('PStop')
    A.label(Ltop)
    A.i(f's_add_u32 s{sT2}, s{sS}, 1')
    XF, D, RD_ = 32, 96, 32
    A.i(f's_lshl_b32 s79, s{sS}, 5')
    A.i(f's_add_u32 s79, s79, s{sR}')
    A.i(f's_lshl_b32 s79, s79, 10')
    A.i(f'buffer_load_dwordx4 v[28:31], v1, s[{S_A}:{S_A+3}], s79 offen')
    A.i(f's_lshl_b32 s88, s{sB}, 5')
    A.i(f's_add_u32 s88, s88, s{sR}')
    A.i('s_lshl_b32 s88, s88, 10')
    if sy.on:
        A.i(f's_and_b32 s{sT0}, s{sS}, 1')
        A.i(f's_lshl_b32 s{sT0}, s{sT0}, 7')
        A.i(f'v_add_u32 v27, s{sT0}, v{VFQ}')
        sy.wait(A, 27, VT_, sT2)
    A.i(f's_lshl_b32 s{sT0}, s{sS}, 18')
    A.i(f's_add_u32 s{sT0}, s{sT0}, s{sOSRC}')
    A.i(f's_add_u32 s{sT1}, s{sT0}, 4096')
    A.i(f's_add_u32 s{sT3}, s{sT0}, 8192')
    A.i(f's_add_u32 s{sT4}, s{sT0}, 12288')
    for tt in range(2):
        for ks in range(8):
            so = (sT0, sT1, sT3, sT4)[ks >> 1]
            A.i(f'buffer_load_dwordx4 {vr(XF+(ks*2+tt)*4,4)}, v{VPC}, {WSR}, s{so} offen offset:{(ks&1)*2048+tt*256} sc1')
    for tt in range(2):
        for ks in range(8):
            A.i(f's_waitcnt vmcnt({15-(tt*8+ks)})')
            for t in range(4):
                d = vr(D + (t * 2 + tt) * 4, 4)
                c = '0' if ks == 0 else d
                A.i(f'v_mfma_f32_16x16x32_bf16 {d}, {ur(WOW+(ks*4+t)*4,4)}, {vr(XF+(ks*2+tt)*4,4)}, {c}')
            if tt == 1 and 1 <= ks <= 4:
                q = (ks - 1) * 2
                A.i(f'ds_write_b128 v{VLW}, {vr(D+q*4,4)} offset:{q*1024}')
    for t in range(4):
        q = t * 2 + 1
        A.i(f'ds_write_b128 v{VLW}, {vr(D+q*4,4)} offset:{q*1024}')
    A.i('s_waitcnt lgkmcnt(0)')
    A.i('s_barrier')
    for u in range(2):
        for w2 in range(4):
            A.i(f'ds_read_b128 {vr(RD_+(u*4+w2)*4,4)}, v{VLR} offset:{w2*8192+u*1024}')
    A.i(f's_lshl_b32 s{sT0}, s{sB}, 18')
    A.i(f's_add_u32 s{sT0}, s{sT0}, s{sPRT}')
    A.i(f's_add_u32 s{sT1}, s{sT0}, {16*2048}')
    for u in range(2):
        A.i(f's_waitcnt lgkmcnt({4-4*u})')
        b = RD_ + u * 16
        for r in (0, 2):
            A.i(f'v_pk_add_f32 {vr(b+r,2)}, {vr(b+r,2)}, {vr(b+4+r,2)}')
            A.i(f'v_pk_add_f32 {vr(b+8+r,2)}, {vr(b+8+r,2)}, {vr(b+12+r,2)}')
        for r in (0, 2):
            A.i(f'v_pk_add_f32 {vr(b+r,2)}, {vr(b+r,2)}, {vr(b+8+r,2)}')
        A.i(f'buffer_store_dwordx4 {vr(b,4)}, v{VSTP}, {WSR}, s{sT0 if u == 0 else sT1} offen')
    A.i('s_waitcnt vmcnt(0)')
    A.i('s_barrier')
    lpublish(0)
    Lf1 = A.newlabel('PSf1')
    A.i(f's_cmp_lg_u32 s{sW}, 1')
    A.i(f's_cbranch_scc1 {Lf1}')
    X, TT_, PK, PT, SH = 32, 40, 52, 64, 96
    A.i(f'ds_read_b128 {vr(SH,4)}, v26')
    A.i(f'ds_read_b128 {vr(SH+4,4)}, v26 offset:16')
    lwait(VFL, 0)
    A.i(f's_lshl_b32 s{sT0}, s{sB}, 18')
    A.i(f's_lshl_b32 s{sT1}, s{sR}, 11')
    A.i(f's_add_u32 s{sT0}, s{sT0}, s{sT1}')
    A.i(f's_add_u32 s{sT0}, s{sT0}, {PART:#x}')
    for kq in range(4):
        if kq:
            A.i(f's_add_u32 s{sT0}, s{sT0}, 0x10000')
        A.i(f'buffer_load_dwordx4 {vr(PT+kq*8,4)}, v{V32}, {WSR}, s{sT0} offen sc1')
        A.i(f'buffer_load_dwordx4 {vr(PT+kq*8+4,4)}, v{V32}, {WSR}, s{sT0} offen offset:16 sc1')
    for j in range(4):
        unpack(A, X + 2 * j, X + 2 * j + 1, 28 + j)
    A.i('s_waitcnt vmcnt(0) lgkmcnt(0)')
    for j in range(0, 8, 2):
        A.i(f'v_pk_add_f32 {vr(PT+j,2)}, {vr(PT+j,2)}, {vr(PT+8+j,2)}')
        A.i(f'v_pk_add_f32 {vr(PT+16+j,2)}, {vr(PT+16+j,2)}, {vr(PT+24+j,2)}')
    for j in range(0, 8, 2):
        A.i(f'v_pk_add_f32 {vr(PT+j,2)}, {vr(PT+j,2)}, {vr(PT+16+j,2)}')
    for j in range(8):
        A.i(f'v_cvt_pk_bf16_f32 v{PT+j}, 0, v{PT+j}')
    for j in range(8):
        A.i(f'v_mul_f32 v{PT+j}, v{PT+j}, v{CG+j}')
    for j in range(8):
        A.i(f'v_cvt_pk_bf16_f32 v{PT+j}, 0, v{PT+j}')
    for j in range(8):
        A.i(f'v_add_f32 v{X+j}, v{X+j}, v{PT+j}')
    for j in range(4):
        A.i(f'v_cvt_pk_bf16_f32 v{28+j}, v{X+2*j}, v{X+2*j+1}')
    A.i(f's_add_u32 s{sT0}, s88, {X1:#x}')
    A.i(f'buffer_store_dwordx4 v[28:31], v1, {WSR}, s{sT0} offen')
    for j in range(8):
        A.i(f'v_cvt_pk_bf16_f32 v{X+j}, 0, v{X+j}')
    ln_core(A, X, TT_, CG + 8, SH, PK)
    A.i(f's_add_u32 s{sT0}, s88, {H2:#x}')
    A.i(f'buffer_store_dwordx4 {vr(PK,4)}, v1, {WSR}, s{sT0} offen')
    A.i('s_waitcnt vmcnt(0)')
    A.i(f'v_mov_b32 v{VT_}, s{sT2}')
    A.i(f's_add_u32 s{sT0}, s{sFB}, {32*FL}')
    A.i('s_mov_b64 exec, 1')
    A.i(f'buffer_store_dword v{VT_}, off, {WSR}, s{sT0}')
    A.i('s_mov_b64 exec, -1')
    sy.trace(A, VT_, sS, imm=1 + 64)
    A.label(Lf1)
    Lf2 = A.newlabel('PSf2')
    A.i(f's_cmp_ge_u32 s{sR}, 28')
    A.i(f's_cbranch_scc1 {Lf2}')
    A.i(f'v_and_b32 v27, 7, v0')
    A.i(f'v_lshlrev_b32 v27, 7, v27')
    A.i(f's_lshl_b32 s{sT1}, s{sR}, 7')
    A.i(f's_sub_u32 s{sT1}, s{sFB}, s{sT1}')
    A.i(f's_lshl_b32 s{sT0}, s{sW}, 10')
    A.i(f's_add_u32 s{sT1}, s{sT1}, s{sT0}')
    A.i(f'v_add_u32 v27, s{sT1}, v27')
    lwait(27, 32 * FL)
    A.i(f's_lshl_b32 s85, s{sB}, 15')
    A.i(f's_add_u32 s85, s85, {H2:#x}')
    A.i('s_mov_b32 s86, 0')
    t1_dma(A, VDMA, VT_, 85, 86)
    A.i('s_waitcnt vmcnt(0)')
    A.i('s_barrier')
    XF1, D1, PK1, T1 = 32, 64, 80, 88
    t1_compute(A, VRD, VRD, XF1, F1W, D1, swapped=True)
    g = [D1 + i for i in range(8)]
    u = [D1 + 8 + i for i in range(8)]
    for k in range(8):
        A.i(f'v_cvt_pk_bf16_f32 v{g[k]}, 0, v{g[k]}')
    for k in range(8):
        A.i(f'v_mul_f32 v{T1+k}, s{sLOG2E}, v{g[k]}')
    for k in range(8):
        A.i(f'v_exp_f32 v{T1+k}, -v{T1+k}')
    for k in range(8):
        A.i(f'v_cvt_pk_bf16_f32 v{u[k]}, 0, v{u[k]}')
    for k in range(8):
        A.i(f'v_add_f32 v{T1+k}, 1.0, v{T1+k}')
    for k in range(8):
        A.i(f'v_rcp_f32 v{T1+k}, v{T1+k}')
    for k in range(8):
        A.i(f'v_mul_f32 v{g[k]}, v{g[k]}, v{T1+k}')
    for k in range(8):
        A.i(f'v_cvt_pk_bf16_f32 v{g[k]}, 0, v{g[k]}')
    for k in range(8):
        A.i(f'v_mul_f32 v{g[k]}, v{g[k]}, v{u[k]}')
    for k in range(4):
        A.i(f'v_cvt_pk_bf16_f32 v{PK1+k}, v{g[2*k]}, v{g[2*k+1]}')
    A.i(f's_mul_i32 s{sT0}, s{sB}, 114688')
    A.i(f's_add_u32 s{sT0}, s{sT0}, s{sGUD}')
    for tt in range(2):
        A.i(f'buffer_store_dwordx2 {vr(PK1+2*tt,2)}, v{VSTG}, {WSR}, s{sT0} offen offset:{tt*256}')
    A.i('s_waitcnt vmcnt(0)')
    A.i('s_barrier')
    lpublish(2)
    A.label(Lf2)
    XF2, D2, R2, XR = 32, 96, 104, 112
    lwait(VF3, 0)
    A.i(f's_mul_i32 s{sT0}, s{sB}, 114688')
    A.i(f's_add_u32 s{sT0}, s{sT0}, s{sGUS}')
    for ks in range(14):
        if ks and (ks & 1) == 0:
            A.i(f's_add_u32 s{sT0}, s{sT0}, 4096')
        A.i(f'buffer_load_dwordx4 {vr(XF2+ks*4,4)}, v{VPC}, {WSR}, s{sT0} offen offset:{(ks&1)*2048} sc1')
    A.i(f's_lshl_b32 s85, s{sS}, 15')
    A.i(f's_lshl_b32 s{sT0}, s{sB}, 15')
    A.i(f's_add_u32 s{sT0}, s{sT0}, {X1:#x}')
    A.i(f'buffer_load_dword v{XR}, v{VST2}, {WSR}, s{sT0} offen sc1')
    for ks in range(14):
        A.i(f's_waitcnt vmcnt({14-ks})')
        for t in range(2):
            d = vr(D2 + t * 4, 4)
            c = '0' if ks == 0 else d
            A.i(f'v_mfma_f32_16x16x32_bf16 {d}, {ur(F2W+(ks*2+t)*4,4)}, {vr(XF2+ks*4,4)}, {c}')
    for t in range(2):
        A.i(f'ds_write_b128 v{VLW}, {vr(D2+t*4,4)} offset:{t*1024}')
    A.i('s_waitcnt lgkmcnt(0)')
    A.i('s_barrier')
    for t in range(2):
        for w2 in range(4):
            A.i(f'ds_read_b32 v{R2+t*4+w2}, v{VLR2} offset:{w2*8192+t*1024}')
    A.i('s_waitcnt vmcnt(0) lgkmcnt(0)')
    A.i('s_barrier')
    for t in range(2):
        b = R2 + t * 4
        A.i(f'v_pk_add_f32 {vr(b,2)}, {vr(b,2)}, {vr(b+2,2)}')
        A.i(f'v_add_f32 v{b}, v{b}, v{b+1}')
    f = [R2, R2 + 4]
    for k in range(2):
        A.i(f'v_cvt_pk_bf16_f32 v{f[k]}, 0, v{f[k]}')
    for k in range(2):
        A.i(f'v_mul_f32 v{f[k]}, v{f[k]}, v{GB+k}')
    for k in range(2):
        A.i(f'v_cvt_pk_bf16_f32 v{f[k]}, 0, v{f[k]}')
    unpack(A, R2 + 1, R2 + 2, XR)
    A.i(f'v_add_f32 v{f[0]}, v{f[0]}, v{R2+1}')
    A.i(f'v_add_f32 v{f[1]}, v{f[1]}, v{R2+2}')
    A.i(f'v_cvt_pk_bf16_f32 v{XR}, v{f[0]}, v{f[1]}')
    A.i(f'buffer_store_dword v{XR}, v{VST2}, s[{S_B}:{S_B+3}], s85 offen')
    sy.trace(A, VT_, sS, imm=1 + 192 - 1, wave=0)
    A.i(f's_add_u32 s{sS}, s{sS}, {NPX}')
    A.i(f's_cmp_lt_u32 s{sS}, 64')
    A.i(f's_cbranch_scc1 {Ltop}')
```

```python
from common import *
from roles import load_weights, staged_load, WSR

L_MEM = 131072
L_KX = 139264
L_VX = 147456
L_OI = 155648
L_QI = L_OI + 2048
L_KI = L_QI + 2304
L_SEL = L_KI + 2304 + 64
L_VI = L_QI
QS = 288

vWV, vL2, vKX, vIDX, vQW, vQR, vPST, vX1, vX2, vVW, vOR, vOW, vLW, vT0 = range(2, 16)
vPF = 0
RA, RB, RC, RD = 16, 48, 80, 112
WK, WV, WQR, WOR = 256, 384, 128, 192
sPC, sPC2, sMC, sFLG, sKVF, sKVS, sOUT, sNX, sDST, sRST, sH1, sFA = range(72, 84)
sHF = 84
sLF = 86
sIO = 88
sSC2 = 90
sRP, sRM = 92, 93
sKS, sVS, sPFA, sPFD = 94, 95, 96, 97
sD2, sNV, sS1 = 65, 71, 3


def emit(A, x):
    if callable(x):
        x()
    else:
        A.i(x)


def mix(A, mf, fill, per=2, start=0):
    fill = list(fill)
    for k, m in enumerate(mf):
        emit(A, m)
        if k >= start:
            for _ in range(per):
                if fill:
                    emit(A, fill.pop(0))
    for f in fill:
        emit(A, f)


def role_chain(A, sy, end, nsteps=64):
    opts = getattr(sy, 'opts', set())
    sH = sR
    srd(A, S_A, P_WQ, 512 * 8192)
    srd(A, S_B, P_WK, 512 * 8192)
    srd(A, S_C, P_WV, 512 * 8192)
    srd(A, S_D, P_WO, 4096 * 1024)
    G, N, G1, TT, TA, TB, WA, WB, LN = 16, 17, 18, 19, 20, 21, 32, 33, 34
    A.i(f'v_mov_b32 v{LN}, v0')
    A.i(f'v_lshrrev_b32 v{G}, 4, v0')
    A.i(f'v_and_b32 v{N}, 15, v0')
    A.i(f'v_and_b32 v{G1}, 1, v{G}')
    A.i(f'v_lshrrev_b32 v{TT}, 5, v0')
    A.i(f'v_lshlrev_b32 v{vPF}, 3, v1')
    A.i(f's_lshl_b32 s{sT0}, s{sW}, 15')
    A.i(f'v_add_u32 v{vWV}, s{sT0}, v1')
    A.i(f'v_add_u32 v{vL2}, {L_MEM}, v1')
    A.i(f's_lshl_b32 s{sT0}, s{sW}, 11')
    A.i(f'v_add_u32 v{vLW}, s{sT0}, v{vL2}')
    A.i(f'v_lshlrev_b32 v{vKX}, 9, v{G}')
    A.i(f'v_lshl_add_u32 v{vKX}, v{N}, 4, v{vKX}')
    A.i(f'v_add_u32 v{vKX}, {L_KX}, v{vKX}')
    A.i(f's_mov_b32 s{sHF}, 0xff00ff00')
    A.i(f's_mov_b32 s{sHF+1}, 0xff00ff00')
    A.i(f's_mov_b32 s{sLF}, 0x00ff00ff')
    A.i(f's_mov_b32 s{sLF+1}, 0x00ff00ff')
    A.i(f's_mov_b32 s{sSC2}, {SCALE:#x}')
    A.i(f's_mov_b32 s{sSC2+1}, {SCALE:#x}')
    A.i(f's_cmp_eq_u32 s{sW}, 3')
    A.i(f's_cselect_b32 s{sIO}, 1, 0')
    A.i(f's_mov_b32 s{sIO+1}, 0')
    A.i(f'v_mov_b32 v{vIDX}, 0x4444')
    A.i(f'v_mov_b32 v{TA}, 0xeeee')
    A.i(f'v_cndmask_b32 v{vIDX}, v{vIDX}, v{TA}, s[{sHF}:{sHF+1}]')
    A.i(f'v_lshlrev_b32 v{TA}, 1, v{G1}')
    A.i(f'v_add_u32 v{TA}, v{TA}, v{TT}')
    A.i(f'v_mul_u32_u24 v{vQW}, {2*QS}, v{TA}')
    A.i(f'v_lshl_add_u32 v{vQW}, v{N}, 2, v{vQW}')
    A.i(f's_lshl_b32 s{sT0}, s{sW}, 6')
    A.i(f's_add_u32 s{sT0}, s{sT0}, {L_QI}')
    A.i(f'v_add_u32 v{vQW}, s{sT0}, v{vQW}')
    A.i(f'v_lshrrev_b32 v{vPST}, 1, v{N}')
    A.i(f'v_lshlrev_b32 v{vPST}, 13, v{vPST}')
    A.i(f'v_lshl_add_u32 v{vPST}, v{G}, 4, v{vPST}')
    A.i(f'v_and_b32 v{TB}, 1, v{N}')
    A.i(f'v_lshl_add_u32 v{vPST}, v{TB}, 6, v{vPST}')
    A.i(f's_lshl_b32 s{sT0}, s{sW}, 16')
    A.i(f's_lshl_b32 s{sT1}, s{sH}, 7')
    A.i(f's_add_u32 s{sT0}, s{sT0}, s{sT1}')
    A.i(f'v_add_u32 v{vPST}, s{sT0}, v{vPST}')
    A.i(f'v_lshlrev_b32 v{vVW}, 8, v{TT}')
    A.i(f'v_lshl_add_u32 v{vVW}, v{N}, 4, v{vVW}')
    A.i(f'v_lshl_add_u32 v{vVW}, v{G1}, 3, v{vVW}')
    A.i(f's_lshl_b32 s{sT0}, s{sW}, 9')
    A.i(f's_add_u32 s{sT0}, s{sT0}, {L_VI}')
    A.i(f'v_add_u32 v{vVW}, s{sT0}, v{vVW}')
    A.i(f'v_and_b32 v{TA}, 7, v{N}')
    A.i(f'v_mul_u32_u24 v{vQR}, {QS}, v{TA}')
    A.i(f'v_lshl_add_u32 v{vQR}, v{G}, 4, v{vQR}')
    A.i(f'v_add_u32 v{vQR}, {L_QI}, v{vQR}')
    A.i(f'v_lshlrev_b32 v{vOR}, 7, v{G}')
    A.i(f'v_lshl_add_u32 v{vOR}, v{TA}, 4, v{vOR}')
    A.i(f'v_add_u32 v{vOR}, {L_OI}, v{vOR}')
    A.i(f's_lshl_b32 s{sT0}, s{sW}, 9')
    A.i(f'v_add_u32 v{vOW}, s{sT0}, v{vOR}')
    A.i(f'v_lshlrev_b32 v{vX1}, 6, v{TB}')
    A.i(f'v_lshl_add_u32 v{vX1}, v{G1}, 4, v{vX1}')
    A.i(f'v_bfe_u32 v{TA}, v{N}, 2, 1')
    A.i(f'v_lshl_add_u32 v{vX1}, v{TA}, 7, v{vX1}')
    A.i(f'v_bfe_u32 v{TA}, v{N}, 1, 1')
    A.i(f'v_lshl_add_u32 v{vX1}, v{TA}, 3, v{vX1}')
    A.i(f's_lshl_b32 s{sT0}, s{sH}, 8')
    A.i(f's_and_b32 s{sT1}, s{sW}, 1')
    A.i(f's_lshl_b32 s{sT2}, s{sT1}, 5')
    A.i(f's_add_u32 s{sT0}, s{sT0}, s{sT2}')
    A.i(f'v_add_u32 v{vX1}, s{sT0}, v{vX1}')
    A.i(f'v_mov_b32 v{vX2}, 0')
    A.i(f's_lshl_b32 s{sH1}, s{sH}, 13')
    A.i(f's_lshl_b32 s{sT2}, s{sT1}, 12')
    A.i(f's_add_u32 s{sH1}, s{sH1}, s{sT2}')
    A.i(f's_lshl_b32 s{sT0}, s{sH}, 7')
    A.i(f's_add_u32 s{sKVF}, s{sT0}, {F_KV:#x}')
    A.i(f's_add_u32 s{sFLG}, s{sT0}, {F_CH:#x}')
    A.i(f's_lshl_b32 s{sT0}, s{sH}, 11')
    A.i(f's_lshr_b32 s{sT2}, s{sW}, 1')
    A.i(f's_lshl_b32 s{sT2}, s{sT2}, 22')
    A.i(f's_add_u32 s{sOUT}, s{sT0}, s{sT2}')
    A.i(f's_lshl_b32 s{sT2}, s{sT1}, 10')
    A.i(f's_add_u32 s{sOUT}, s{sOUT}, s{sT2}')
    A.i(f's_add_u32 s{sOUT}, s{sOUT}, {KM:#x}')
    A.i(f's_lshl_b32 s{sT0}, s{sH}, 13')
    A.i(f's_lshl_b32 s{sT2}, s{sW}, 11')
    A.i(f's_add_u32 s{sRST}, s{sT0}, s{sT2}')
    A.i(f's_add_u32 s{sNX}, s{sRST}, {KX:#x}')
    A.i(f's_add_u32 s{sDST}, s{sT2}, {L_KX}')
    A.i(f's_lshl_b32 s{sPFD}, s{sT1}, 24')
    A.i(f's_sub_u32 s{sPFD}, s{sPFD}, s{sT2}')
    A.i(f's_mov_b32 s{sKVS}, {0 if sy.on else 64}')
    A.i(f's_mov_b32 s{sKS}, 0')
    A.i(f's_mov_b32 s{sVS}, 0')
    A.i(f'v_lshlrev_b32 v{TA}, 1, v{G1}')
    A.i(f'v_add_u32 v{TA}, v{TA}, v{TT}')
    A.i(f'v_lshlrev_b32 v{vX2}, 9, v{TA}')
    A.i(f'v_lshl_add_u32 v{vX2}, v{N}, 2, v{vX2}')
    A.i(f's_lshl_b32 s{sT0}, s{sW}, 6')
    A.i(f'v_add_u32 v{vX2}, s{sT0}, v{vX2}')
    A.i(f'v_add_u32 v{vVW}, {VM-KM-L_VI:#x}, v{vVW}')
    A.i(f's_lshl_b32 s{sOUT}, s{sH}, 11')
    A.i(f's_add_u32 s{sOUT}, s{sOUT}, {KM - 0x10000:#x}')
    for c in range(4):
        A.i(f'v_mov_b32 v{24+c}, 0')
        A.i(f'v_cmp_eq_u32 vcc, {2*c}, v{N}')
        A.i(f'v_mov_b32 v{TA}, 0x3f80')
        A.i(f'v_cndmask_b32 v{24+c}, v{24+c}, v{TA}, vcc')
        A.i(f'v_cmp_eq_u32 vcc, {2*c+1}, v{N}')
        A.i(f'v_mov_b32 v{TA}, 0x3f800000')
        A.i(f'v_cndmask_b32 v{24+c}, v{24+c}, v{TA}, vcc')
    A.i(f'ds_write_b128 v{vL2}, v[24:27] offset:{L_SEL-L_MEM}')
    single = getattr(sy, 'single', False)
    if single:
        for i in range(4):
            A.i(f'v_mov_b32 v{24+i}, -1')
        A.i(f's_lshl_b32 s{sT0}, s{sW}, 18')
        A.i(f's_lshl_b32 s{sT1}, s{sH}, 13')
        A.i(f's_add_u32 s{sT0}, s{sT0}, s{sT1}')
        A.i(f's_add_u32 s{sT0}, s{sT0}, {XP:#x}')
        A.i(f's_add_u32 s{sT1}, s{sT0}, 4096')
        for i in range(8):
            A.i(f'buffer_store_dwordx4 v[24:27], v1, {WSR}, s{sT0 if i < 4 else sT1} offen offset:{(i&3)*1024}')
        A.i(f's_lshl_b32 s{sT0}, s{sW}, 13')
        A.i(f's_lshl_b32 s{sT1}, s{sH}, 8')
        A.i(f's_add_u32 s{sT0}, s{sT0}, s{sT1}')
        A.i(f's_add_u32 s{sT0}, s{sT0}, {XM:#x}')
        A.i('s_mov_b64 exec, 0xffff')
        A.i(f'buffer_store_dwordx4 v[24:27], v1, {WSR}, s{sT0} offen')
        A.i('s_mov_b64 exec, -1')
    A.i(f'v_lshrrev_b32 v{TA}, 1, v{G}')
    A.i(f'v_lshlrev_b32 v{WA}, 17, v{TA}')
    A.i(f'v_lshl_add_u32 v{WA}, v{G1}, 15, v{WA}')
    A.i(f'v_lshl_add_u32 v{WA}, v{N}, 2, v{WA}')
    A.i(f'v_lshlrev_b32 v{WB}, 12, v{G}')
    A.i(f'v_lshl_add_u32 v{WB}, v{N}, 4, v{WB}')
    sWA, sWB = sT4, sT5
    A.i(f's_lshl_b32 s{sWA}, s{sH}, 8')
    A.i(f's_lshl_b32 s{sT0}, s{sW}, 6')
    A.i(f's_add_u32 s{sWA}, s{sWA}, s{sT0}')
    A.i(f's_lshl_b32 s{sWB}, s{sH}, 17')
    A.i(f's_lshl_b32 s{sT0}, s{sW}, 8')
    A.i(f's_add_u32 s{sWB}, s{sWB}, s{sT0}')

    sWAp, sWBp = [4, 5, 6, 7], [8, 9, 10, 11]
    A.i(f's_mov_b32 s12, s{P_MEM0}')
    A.i(f's_mov_b32 s13, s{P_MEM0+1}')
    for p in range(4):
        A.i(f's_xor_b32 s{sT0}, s{sW}, {p}')
        A.i(f's_lshl_b32 s{sT1}, s{sT0}, 20')
        A.i(f's_add_u32 s{sWAp[p]}, s{sWA}, s{sT1}')
        A.i(f's_lshl_b32 s{sT1}, s{sT0}, 15')
        A.i(f's_add_u32 s{sWBp[p]}, s{sWB}, s{sT1}')

    def mem_units(srd_s, dst, ks_list):
        u = []
        for ks in ks_list:
            for r in range(8):
                d0 = 64 * (ks & 1) + 32 * (r >> 2) + 8 * (r & 1) + 2 * ((r >> 1) & 1)
                u.append((srd_s, WA, sWAp[ks >> 1], d0 * 8192, (d0 + 1) * 8192, 1,
                          [(dst(ks * 2) + r, 0, f's{SELLO}'), (dst(ks * 2 + 1) + r, 0, f's{SELHI}')]))
        return u

    def o_units(dst, ks_list):
        u = []
        for ks in ks_list:
            for uu in range(4):
                e0 = 16 * (uu >> 1) + 2 * (uu & 1)
                outs = []
                for cg in range(4):
                    for st in range(2):
                        outs.append((dst(ks * 4 + cg) + 2 * uu + st, 2 * st + (cg >> 1),
                                     f's{SELHI if (cg & 1) else SELLO}'))
                u.append((S_D, WB, sWBp[ks], e0 * 1024, (e0 + 1) * 1024, 4, outs))
        return u

    WO_STREAM = [0, 1, 2, 3, 4, 13, 14, 15]
    def spill(first_reg, nfrag, lds_frag0):
        for f in range(nfrag):
            for hq in range(2):
                A.i(f'ds_write_b128 v{vWV}, {vr(first_reg + f*8 + hq*4, 4)} offset:{(lds_frag0 + f)*2048 + hq*1024}')
            A.i('s_waitcnt lgkmcnt(0)')
    def spill_u(first_u, lds_frag):
        for hq in range(2):
            A.i(f'ds_write_b128 v{vWV}, {ur(first_u + hq*4, 4)} offset:{lds_frag*2048 + hq*1024}')
    def o_home(p):
        return (WV + WO_STREAM.index(p) * 8) if p in WO_STREAM else WOR + (p - 5) * 8
    def q_home(f):
        return (WV + 64 + f * 8) if f < 8 else WQR + (f - 8) * 8
    load_weights(A, o_units(o_home, range(4)) + mem_units(S_A, q_home, range(8)) + mem_units(S_B, lambda f: WK + f * 8, range(8)), 48, 32, 22)
    for k in range(8):
        spill_u(WV + k * 8, 8 + k)
        spill_u(WV + 64 + k * 8, k)
        A.i('s_waitcnt lgkmcnt(0)')
    if single:
        ready_wait(A, 24, 25)
        A.i('s_barrier')
        A.i(f's_lshl_b32 s{sT0}, s{sH}, 7')
        A.i(f's_add_u32 s{sT0}, s{sT0}, {F_CI:#x}')
        A.i('v_mov_b32 v24, 1')
        A.i(f's_mov_b64 exec, s[{sIO}:{sIO+1}]')
        A.i(f'buffer_store_dword v24, off, {WSR}, s{sT0} sc1')
        A.i('s_mov_b64 exec, -1')
    load_weights(A, mem_units(S_C, lambda f: WV + f * 8, range(8)), 48, 32, 22)
    sy.trace(A, vT0, None, imm=102, wave=0)
    if 'dbg' in opts:
        dbg_stamp(A, 3, 24, 25)
    if single:
        A.i(f'v_and_b32 v24, 31, v{LN}')
        A.i('v_lshlrev_b32 v24, 7, v24')
        A.i(f'v_add_u32 v24, {F_CI:#x}, v24')
        A.i(f's_mov_b32 s{sT2}, 1')
        sy.wait(A, 24, 25, sT2)
    sy.trace(A, vT0, None, imm=101, wave=0)
    srd(A, S_A, 12, 8192)
    A.i(f's_mov_b32 s{sS}, 0')
    A.i(f'v_and_b32 v{vT0}, 7, v{LN}')
    A.i(f'v_lshlrev_b32 v{vT0}, 10, v{vT0}')
    A.i(f'v_lshrrev_b32 v{TA}, 3, v{LN}')
    A.i(f'v_lshl_add_u32 v{vT0}, v{TA}, 4, v{vT0}')
    A.i(f's_lshl_b32 s{sT0}, s{sW}, 8')
    for i in range(2):
        A.i(f'buffer_load_dwordx4 {vr(RA+4*i,4)}, v{vT0}, s[{S_A}:{S_A+3}], s{sT0} offen offset:{i*128}')
    A.i('s_waitcnt vmcnt(0)')
    for i in range(2):
        A.i(f'ds_write_b128 v{vLW}, {vr(RA+4*i,4)} offset:{i*1024}')
    A.i('s_waitcnt lgkmcnt(0)')

    slow = []
    def kv_wait(sseg, r0, r1):
        if sy.on:
            Lok, Lp = A.newlabel('CHkvok'), A.newlabel('CHkvp')
            A.i(f's_cmp_gt_u32 s{sKVS}, s{sseg}')
            A.i(f's_cbranch_scc0 {Lp}')
            A.label(Lok)
            slow.append((Lp, Lok, sseg, r0, r1))

    def kv_dma(which):
        A.i(f's_mov_b32 m0, s{sD2 if which else sDST}')
        for i in range(2):
            A.i(f'buffer_load_dwordx4 v1, {WSR}, s{sNV if which else sNX} offen offset:{i*1024} sc1 lds')

    A.i(f's_add_u32 s{sD2}, s{sDST}, {L_VX-L_KX}')
    A.i(f's_add_u32 s{sNV}, s{sNX}, {VT-KX:#x}')
    kv_wait(sS, 34, 35)
    kv_dma(0)
    kv_dma(1)

    stamps = []
    Lfin = A.newlabel('CHfin')
    Lcut = A.newlabel('CHcut')
    def stamp(name):
        if ('cut' + name) in opts:
            A.i(f's_cmp_eq_u32 s{sS}, {nsteps-1}')
            A.i(f's_cbranch_scc1 {Lfin}')
            A.i(f's_branch {Lcut}')

    prof = 'prof' in opts
    def ts(k):
        if prof:
            A.i(f's_memtime s[{4+2*k}:{5+2*k}]')
    def cnt(k):
        if prof:
            A.i(f's_add_u32 s{28+k}, s{28+k}, 1')
    if prof:
        for k in range(4, 32):
            A.i(f's_mov_b32 s{k}, 0')
    AQ, AK, AV = RD, RD + 8, RD
    MA = RA
    XQ = RB
    S1, S2 = RB + 24, RB + 28
    QF, KR = RC, RC + 16
    S0, PM0, PM1 = RD + 8, RD + 12, RD + 14
    P4, VXF, OP, WD = RC, RC + 4, RC + 12, RC + 16
    OD, OA = RB + 24, RA
    PK = RC
    YS = [RB, RB + 8, RB + 16, RA + 16, RA + 24]

    def frag_read(reg, lf, tag):
        return [lambda: A.ds(f'ds_read_b128 {vr(reg,4)}, v{vWV} offset:{lf*2048}', tag),
                lambda: A.ds(f'ds_read_b128 {vr(reg+4,4)}, v{vWV} offset:{lf*2048+1024}', tag)]

    def pre_step():
        for f in range(8):
            for x in frag_read(XQ + 8 * f, f, 'xq'):
                x()
            A.i(f'v_mov_b64 {vr(RD+2*f,2)}, 0')

    def step_scalars(addr=True):
        A.i(f's_and_b32 s{sT0}, s{sS}, 3')
        A.i(f's_lshl_b32 s{sPC}, s{sT0}, 18')
        A.i(f's_add_u32 s{sPC}, s{sPC}, {XP:#x}')
        A.i(f's_add_u32 s{sPC2}, s{sPC}, 4096')
        A.i(f's_lshl_b32 s{sMC}, s{sT0}, 13')
        A.i(f's_add_u32 s{sMC}, s{sMC}, {XM:#x}')
        A.i(f's_add_u32 s{sT2}, s{sS}, 8')
        A.i(f's_cmp_gt_u32 s{sKVS}, s{sT2}')
        A.i(f's_cselect_b32 s{sFA}, {FLAGS + 8*FL:#x}, s{sKVF}')
        for p in range(1, 4):
            if addr:
                A.i(f'v_xor_b32 v{RA+8*p}, {p << 11:#x}, v{vLW}')
        A.i(f's_add_u32 s{sOUT}, s{sOUT}, 0x10000')
        A.i(f's_add_u32 s{sS1}, s{sS}, 1')
        A.i(f's_min_u32 s{sS1}, s{sS1}, 63')
        A.i(f's_add_u32 s{sT1}, s{sNX}, s{sPFD}')
        A.i(f's_add_u32 s{sNX}, s{sNX}, 0x40000')
        A.i(f's_add_u32 s{sNV}, s{sNV}, 0x40000')
        A.i(f's_add_u32 s{sPFA}, s{sT1}, 0x80000')
        A.i(f's_add_u32 s{sT2}, s{sS}, 2')
        A.i(f's_cmp_gt_u32 s{sKVS}, s{sT2}')
        A.i(f's_cselect_b32 s{sPFA}, s{sPFA}, s{sT1}')
        A.i(f's_add_u32 s{sT0}, s{sS}, 3')
        A.i(f's_and_b32 s{sT0}, s{sT0}, 3')
        A.i(f's_lshl_b32 s{sT0}, s{sT0}, 18')
        A.i(f's_add_u32 s{sT0}, s{sT0}, s{sRST}')
        A.i(f's_add_u32 s{sRP}, s{sT0}, {XP:#x}')
        A.i(f's_xor_b32 s{sRM}, s{sMC}, 0x4000')
        A.i(f's_lshl_b32 s{sT1}, s{sH}, 8')
        A.i(f's_add_u32 s{sRM}, s{sRM}, s{sT1}')

    pre_step()
    step_scalars()
    kv_wait(sS1, RA + 27, RA + 28)
    Ltop = A.newlabel('CHtop')
    if sy.tr and not prof:
        A.i('s_memtime s[4:5]')
    if 'dbg' in opts:
        dbg_stamp(A, 4, RA + 27, RA + 28)
    A.i('s_waitcnt vmcnt(0)')
    A.wl_all()
    A.label(Ltop)
    _orig_i = A.i
    def _filt(text):
        for t in text.split('\n'):
            if 'novm' in opts and t.startswith('buffer_') and 's101' not in t:
                continue
            if 'nokv' in opts and ('buffer_store' in t and 'sc1' in t):
                continue
            if 'nodma' in opts and (' lds' in t and 'buffer_load' in t):
                continue
            if 'nopf' in opts and t.startswith('buffer_load_dword v') and 'offen' in t:
                t = t.replace(f's{sPFA}', f's{sMC}')
            if 'plainkv' in opts and ('buffer_store' in t and 'sc1' in t):
                t = t.replace(' sc1', '')
            _orig_i(t)
    A.i = _filt
    def sm(acc, a, w):
        return f'v_smfmac_f32_16x16x64_bf16 {vr(acc,4)}, {vr(a,4)}, {ur(w,8)}, v{vIDX}'
    def wq(f):
        return XQ + 8 * f if f < 8 else WQR + 8 * (f - 8)
    for f in range(4):
        A.i(sm(AQ + 4 * (f & 1), MA + 4 * (f >> 1), wq(f)))
    A.i('s_waitcnt lgkmcnt(0)')
    A.i('s_barrier')
    stamp('Ba')
    ts(4)
    Lxo = A.newlabel('CHxo')
    if 'xonly' in opts:
        A.i(f's_cmp_eq_u32 s{sS}, {nsteps-1}')
        A.i(f's_cbranch_scc1 {Lfin}')
        A.i(f'v_mov_b64 {vr(RC+4,2)}, -1')
        A.i(f'v_mov_b64 {vr(RC+6,2)}, -1')
        A.i(f'buffer_store_dwordx4 {vr(RC+4,4)}, v1, {WSR}, s{sRP} offen')
        A.i(f'buffer_store_dwordx4 {vr(RC+4,4)}, v1, {WSR}, s{sRP} offen offset:1024')
        A.i('s_mov_b64 exec, 0xffff')
        A.i(f'buffer_store_dwordx4 {vr(RC+4,4)}, v1, {WSR}, s{sRM} offen')
        A.i('s_mov_b64 exec, -1')
        for r in range(0, 16, 2):
            A.i(f'v_mov_b64 {vr(RC+16+r,2)}, 0')
        for _ in range(getattr(sy, 'dx', 16)):
            A.i('s_nop 15')
        A.i(f's_branch {Lxo}')
    for p in range(1, 4):
        A.ds(f'ds_read_b128 {vr(MA+8*p+4,4)}, v{RA+8*p} offset:1024', ('ma', 2 * p + 1))
        A.ds(f'ds_read_b128 {vr(MA+8*p,4)}, v{RA+8*p}', ('ma', 2 * p))
    for f in range(2):
        A.i(sm(AK + 4 * (f & 1), MA + 4 * (f >> 1), WK + f * 8))
    A.i(f'buffer_load_dword v{vT0}, v{vPF}, {WSR}, s{sPFA} offen sc1')
    if sy.on:
        A.i(f'buffer_load_dword v{vT0}, off, {WSR}, s{sFA} sc1')
    for f in range(2, 4):
        A.i(sm(AK + 4 * (f & 1), MA + 4 * (f >> 1), WK + f * 8))
    def kx_read(j):
        A.ds(f'ds_read_b128 {vr(KR+(j&3)*4,4)}, v{vKX} offset:{(j>>1)*2048+(j&1)*256}', ('kx', j))
    mf = []
    for ks in range(2, 8):
        if ks in (2, 4, 6):
            mf.append(lambda ks=ks: (A.wl(('ma', ks)), A.i(sm(AQ, MA + 4 * ks, wq(ks * 2)))))
        else:
            mf.append(sm(AQ, MA + 4 * ks, wq(ks * 2)))
        mf.append(sm(AQ + 4, MA + 4 * ks, wq(ks * 2 + 1)))
    fill = []
    for k in range(3):
        fill += frag_read(YS[k], 8 + k, ('y', k))
    fill += [lambda j=j: kx_read(j) for j in range(2)]
    mix(A, mf, fill, per=1, start=4)
    stamp('Qdone')

    def fold_qk(acc, off, t0, t1):
        f = []
        for t in range(2):
            f.append(f'v_permlane32_swap_b32 v{acc+4*t}, v{acc+4*t+2}')
            f.append(f'v_permlane32_swap_b32 v{acc+4*t+1}, v{acc+4*t+3}')
        for t in range(2):
            f.append(f'v_pk_add_f32 {vr(acc+4*t,2)}, {vr(acc+4*t,2)}, {vr(acc+4*t+2,2)}')
        f.append(f'v_cvt_pk_bf16_f32 v{t0}, v{acc}, v{acc+4}')
        f.append(f'v_cvt_pk_bf16_f32 v{t1}, v{acc+1}, v{acc+5}')
        f.append(lambda: A.ds(f'ds_write2_b32 v{vQW}, v{t0}, v{t1} offset0:0 offset1:{QS//4}', 'w') if off == 0 else
                 (A.ds(f'ds_write_b32 v{vQW}, v{t0} offset:{off}', 'w'), A.ds(f'ds_write_b32 v{vQW}, v{t1} offset:{off+QS}', 'w')))
        return f

    mf = []
    for ks in range(2, 8):
        mf.append(sm(AK, MA + 4 * ks, WK + (ks * 2) * 8))
        mf.append(sm(AK + 4, MA + 4 * ks, WK + (ks * 2 + 1) * 8))
    mix(A, mf[:3], [lambda j=j: kx_read(j) for j in range(2, 4)], per=1)
    mix(A, mf[3:8], fold_qk(AQ, 0, AQ + 2, AQ + 3), per=2)
    mix(A, mf[8:11], [f'v_mov_b64 {vr(AV+r,2)}, 0' for r in (0, 4, 6)], per=1)
    A.wl('w')
    A.i('s_barrier')
    stamp('Bb')
    emit(A, mf[11])
    for ks in range(4):
        A.ds(f'ds_read_b128 {vr(QF+4*ks,4)}, v{vQR} offset:{ks*64}', ('q', ks))
    A.i(f'v_mov_b64 {vr(AV+2,2)}, 0')
    if sy.on:
        A.i(f'v_mov_b32 v{S2}, s{sS}')
        A.i(f's_mov_b64 exec, s[{sIO}:{sIO+1}]')
        A.i(f'buffer_store_dword v{S2}, off, {WSR}, s{sFLG} sc1')
        A.i('s_mov_b64 exec, -1')
    early = False
    tag = False
    rsa = 'rsa' in opts
    rsc = 'norsc' not in opts
    iow = 'iow' in opts
    norst = iow or rsa or rsc
    iod = 'iod' in opts
    def resets(q):
        return [f'v_mov_b64 {vr(q,2)}, -1', f'v_mov_b64 {vr(q+2,2)}, -1',
                f'buffer_store_dwordx4 {vr(q,4)}, v1, {WSR}, s{sRP} offen',
                f'buffer_store_dwordx4 {vr(q,4)}, v1, {WSR}, s{sRP} offen offset:1024',
                f's_mov_b64 exec, 0xffff\nbuffer_store_dwordx4 {vr(q,4)}, v1, {WSR}, s{sRM} offen\ns_mov_b64 exec, -1']
    if rsa:
        for x in resets(S1):
            emit(A, x)
    stamp('Kdone')

    vstate = {'f': 0}
    def vstep():
        f = 15 - vstate['f']
        ks, t = f >> 1, f & 1
        A.i(sm(AV + 4 * t, MA + 4 * ks, WV + f * 8))
        vstate['f'] += 1

    def smx(j):
        ks, kt = j >> 1, j & 1
        S = S2 if kt else S1
        c = '0' if ks == 0 else vr(S, 4)
        def f():
            A.wl(('kx', j))
            A.wl(('q', ks))
            A.i(f'v_mfma_f32_16x16x32_bf16 {vr(S,4)}, {vr(KR+(j&3)*4,4)}, {vr(QF+4*ks,4)}, {c}')
            if j + 4 < 8:
                kx_read(j + 4)
        return f
    for x in fold_qk(AK, L_KI - L_QI, AK + 2, AK + 3):
        emit(A, x)
    if early:
        A.i(f'buffer_store_dwordx4 {vr(S2,4)}, v1, {WSR}, s{sRP} offen offset:1024')
        A.i('s_mov_b64 exec, 0xffff')
        A.i(f'buffer_store_dwordx4 {vr(S2,4)}, v1, {WSR}, s{sRM} offen')
        A.i('s_mov_b64 exec, -1')
    A.wl(('q', 3))
    for j in range(4):
        smx(j)()
    A.wl('w')
    A.i('s_barrier')
    stamp('Bc')
    vstep()
    A.i(f'buffer_store_dword v{AK+2}, v{vX2}, {WSR}, s{sOUT} offen sc1')
    A.i(f'buffer_store_dword v{AK+3}, v{vX2}, {WSR}, s{sOUT} offen offset:256 sc1')
    A.wl(('kx', 7))
    for j in range(4, 8):
        smx(j)()
        A.ds(f'ds_read_b128 {vr(KR+4*(j-4),4)}, v{vQR} offset:{L_KI-L_QI+(j-4)*64}', ('km', j - 4))
    SX = S1
    T0, T1, T2 = S2, S2 + 1, S0 + 2
    def r1(a):
        return f'v_cvt_pk_bf16_f32 v{a}, 0, v{a}'
    vstep()
    A.i(f'v_mov_b64 {vr(PM0,2)}, 0')
    vstep()
    A.i(f'v_mov_b64 {vr(PM1,2)}, 0')
    fx = [f'v_cndmask_b32 v{S1+r}, v{S1+r}, v{S2+r}, s[{sHF}:{sHF+1}]' for r in range(4)]
    fx += [r1(SX + r) for r in range(4)]
    fx += [f'v_mul_f32 v{SX+r}, s{sSCALE}, v{SX+r}' for r in range(4)]
    fx += [r1(SX + r) for r in range(4)]
    fx += [f'v_max3_f32 v{T0}, v{SX}, v{SX+1}, v{SX+2}']
    s0 = []
    for ks in range(4):
        c = '0' if ks == 0 else vr(S0, 4)
        s0.append(lambda ks=ks, c=c: (A.wl(('km', ks if ks != 1 else 3)), A.i(f'v_mfma_f32_16x16x32_bf16 {vr(S0,4)}, {vr(KR+4*ks,4)}, {vr(QF+4*ks,4)}, {c}')))
    mix(A, s0, fx[:8], per=2)
    stamp('S0')
    for t in range(2):
        A.ds(f'ds_read_b128 {vr(VXF+4*t,4)}, v{vLW} offset:{L_VX-L_MEM+t*1024}', ('vx', t))
    if rsc:
        for x in resets(OP):
            emit(A, x)
    for x in fx[8:]:
        emit(A, x)
    wz = [f'v_mov_b64 {vr(WD+r,2)}, 0' for r in range(0, 16, 2)]
    f = [f'v_cndmask_b32 v{S0}, v{S0}, v{S0+2}, s[{sHF}:{sHF+1}]', f'v_cndmask_b32 v{S0+1}, v{S0+1}, v{S0+3}, s[{sHF}:{sHF+1}]',
         r1(S0), r1(S0 + 1), f'v_mul_f32 v{S0}, s{sSCALE}, v{S0}', f'v_mul_f32 v{S0+1}, s{sSCALE}, v{S0+1}', r1(S0), r1(S0 + 1),
         f'v_max3_f32 v{T1}, v{SX+3}, v{S0}, v{S0+1}', f'v_max_f32 v{T0}, v{T0}, v{T1}',
         vstep, wz[0],
         f'v_max_f32_dpp v{T0}, v{T0}, v{T0} row_ror:8 row_mask:0xf bank_mask:0xf',
         f'v_mov_b32 v{T1}, v{T0}', vstep, wz[1], f'v_permlane32_swap_b32 v{T0}, v{T1}', f'v_max_f32 v{T0}, v{T0}, v{T1}',
         f'v_mov_b32 v{T1}, v{T0}', vstep, wz[2], f'v_permlane16_swap_b32 v{T0}, v{T1}', f'v_max_f32 v{T0}, v{T0}, v{T1}',
         f'v_mul_f32 v{T0}, s{sLOG2E}, v{T0}']
    vals = [SX, SX + 1, SX + 2, SX + 3, S0, S0 + 1]
    for a in vals:
        f += [f'v_fma_f32 v{a}, v{a}, s{sLOG2E}, -v{T0}', vstep]
    yr = frag_read(YS[3], 8 + 3, ('y', 3)) + frag_read(YS[4], 8 + 4, ('y', 4))
    f += [yr[0], vstep]
    f += [f'v_exp_f32 v{a}, v{a}' for a in vals]
    f += [f'v_pk_add_f32 {vr(T0,2)}, {vr(SX,2)}, {vr(SX+2,2)}', f'v_add_f32 v{T2}, v{S0}, v{S0+1}', f'v_add_f32 v{T0}, v{T0}, v{T1}',
          f'v_fma_f32 v{T0}, v{T2}, 0.5, v{T0}', vstep, wz[3],
          f'v_add_f32_dpp v{T0}, v{T0}, v{T0} row_ror:8 row_mask:0xf bank_mask:0xf',
          f'v_mov_b32 v{T1}, v{T0}', vstep, wz[4], f'v_permlane32_swap_b32 v{T0}, v{T1}', f'v_add_f32 v{T0}, v{T0}, v{T1}',
          f'v_mov_b32 v{T1}, v{T0}', vstep, wz[5], f'v_permlane16_swap_b32 v{T0}, v{T1}', f'v_add_f32 v{T0}, v{T0}, v{T1}',
          f'v_rcp_f32 v{T0}, v{T0}', yr[1]]
    f += [f'v_pk_mul_f32 {vr(a,2)}, {vr(a,2)}, {vr(T0,2)} op_sel_hi:[1,0]' for a in (SX, SX + 2, S0)]
    f += [f'v_cvt_pk_bf16_f32 v{P4}, v{SX}, v{SX+1}', f'v_cvt_pk_bf16_f32 v{P4+1}, v{SX+2}, v{SX+3}',
          f'v_cvt_pk_bf16_f32 v{T2}, v{S0}, v{S0+1}',
          f'v_mov_b32_dpp v{P4+2}, v{P4} row_ror:8 row_mask:0xf bank_mask:0xf',
          f'v_mov_b32_dpp v{P4+3}, v{P4+1} row_ror:8 row_mask:0xf bank_mask:0xf']
    for x in f:
        emit(A, x)
    assert vstate['f'] == 16, vstate
    pmv = [f'v_mov_b32_dpp v{PM0}, v{T2} quad_perm:[0,1,2,3] row_mask:0x3 bank_mask:0xf',
           f'v_mov_b32_dpp v{PM0+1}, v{T2} row_ror:8 row_mask:0x3 bank_mask:0xf',
           f'v_mov_b32_dpp v{PM1}, v{T2} quad_perm:[0,1,2,3] row_mask:0xc bank_mask:0xf',
           f'v_mov_b32_dpp v{PM1+1}, v{T2} row_ror:8 row_mask:0xc bank_mask:0xf']
    g = [f'v_permlane32_swap_b32 v{AV+r}, v{AV+4+r}' for r in range(4)]
    g += [f'v_pk_add_f32 {vr(AV,2)}, {vr(AV,2)}, {vr(AV+4,2)}', f'v_pk_add_f32 {vr(AV+2,2)}, {vr(AV+2,2)}, {vr(AV+6,2)}']
    g += [f'v_cvt_pk_bf16_f32 v{AV+4}, v{AV}, v{AV+1}', f'v_cvt_pk_bf16_f32 v{AV+5}, v{AV+2}, v{AV+3}']
    stamp('P')
    for x in g[:2]:
        emit(A, x)
    A.wl(('vx', 1))
    A.i(f'v_mfma_f32_16x16x32_bf16 {vr(OD,4)}, {vr(VXF,4)}, {vr(P4,4)}, 0')
    for x in g[2:4]:
        emit(A, x)
    A.i(f'v_mfma_f32_16x16x32_bf16 {vr(OD+4,4)}, {vr(VXF+4,4)}, {vr(P4,4)}, 0')
    for x in g[4:] + pmv:
        emit(A, x)
    A.i(f'v_mfma_f32_16x16x16_bf16 {vr(OD,4)}, {vr(AV+4,2)}, {vr(PM0,2)}, {vr(OD,4)}')
    A.i(f'v_mfma_f32_16x16x16_bf16 {vr(OD+4,4)}, {vr(AV+4,2)}, {vr(PM1,2)}, {vr(OD+4,4)}')
    A.i(f'buffer_store_dwordx2 {vr(AV+4,2)}, v{vVW}, {WSR}, s{sOUT} offen sc1')
    if not iod:
        A.i(f's_mov_b32 m0, s{sD2}')
        for i in range(2):
            A.i(f'buffer_load_dwordx4 v1, {WSR}, s{sNV} offen offset:{i*1024} sc1 lds')
        A.i(f's_mov_b32 m0, s{sDST}')
    SEN = RC + 4
    for x in [yr[2], yr[3], wz[6], wz[7]] + ([] if norst else [f'v_mov_b64 {vr(SEN,2)}, -1', f'v_mov_b64 {vr(SEN+2,2)}, -1']):
        emit(A, x)
    for c in range(4):
        A.i(f'v_cvt_pk_bf16_f32 v{OP+c}, v{OD+c}, v{OD+4+c}')
    A.i(f's_mov_b64 exec, s[{sLF}:{sLF+1}]')
    A.ds(f'ds_write_b128 v{vOW}, {vr(OP,4)}', 'w')
    A.i('s_mov_b64 exec, -1')
    for c in range(4):
        A.i(f'v_mov_b32_dpp v{OP+c}, v{OP+c} row_ror:8 row_mask:0xf bank_mask:0xc')
    for p in range(1, 4):
        A.i(f'v_xor_b32 v{OA+4*p}, {p << 9:#x}, v{vOW}')
    def wo_step(p):
        ks, cg = p >> 2, p & 3
        if p == 4:
            A.wl(('o', 1))
        if p == 8:
            A.wl(('o', 3))
        if p < 5:
            w = YS[p]
        elif p < 13:
            w = WOR + (p - 5) * 8
        else:
            w = YS[p - 13]
            if p == 13:
                A.wl(('y', 15))
        A.i(sm(WD + 4 * cg, OP if ks == 0 else OA + 4 * ks, w))
    wo_step(0)
    if not norst:
        A.i(f'buffer_store_dwordx4 {vr(SEN,4)}, v1, {WSR}, s{sRP} offen')
    wo_step(1)
    A.wl_all()
    A.i('s_barrier')
    for ks in range(1, 4):
        A.ds(f'ds_read_b128 {vr(OA+4*ks,4)}, v{OA+4*ks}', ('o', ks))
    wo_step(2)
    if not norst:
        A.i(f'buffer_store_dwordx4 {vr(SEN,4)}, v1, {WSR}, s{sRP} offen offset:1024')
    wo_step(3)
    if not norst:
        A.i('s_mov_b64 exec, 0xffff')
        A.i(f'buffer_store_dwordx4 {vr(SEN,4)}, v1, {WSR}, s{sRM} offen')
        A.i('s_mov_b64 exec, -1')
    if not iod:
        for i in range(2):
            A.i(f'buffer_load_dwordx4 v1, {WSR}, s{sNX} offen offset:{i*1024} sc1 lds')
    stamp('Bd')
    yy = []
    for k in range(3):
        yy += frag_read(YS[k], 8 + 5 + k, ('y', 13 + k))
    for p in range(4, 16):
        wo_step(p)
        if yy:
            yy.pop(0)()
    if 'xonly' in opts:
        A.label(Lxo)
    for r in range(4):
        A.i(f'v_cvt_pk_bf16_f32 v{PK+2*r}, v{WD+r}, v{WD+4+r}')
        if tag:
            A.i(f'v_and_or_b32 v{PK+2*r}, v{PK+2*r}, -2, s{sFA}')
    for r in range(4):
        A.i(f'v_cvt_pk_bf16_f32 v{PK+2*r+1}, v{WD+8+r}, v{WD+12+r}')
        if tag:
            A.i(f'v_and_or_b32 v{PK+2*r+1}, v{PK+2*r+1}, -2, s{sFA}')
        if r == 1:
            A.i(f'buffer_store_dwordx4 {vr(PK,4)}, v{vPST}, {WSR}, s{sPC} offen')
    A.i(f'buffer_store_dwordx4 {vr(PK+4,4)}, v{vPST}, {WSR}, s{sPC2} offen')
    stamp('Wo')
    if prof:
        ts(5)
        A.i('s_waitcnt lgkmcnt(0)')
        for k in range(5):
            A.i(f's_sub_u32 s{sT0}, s{4+2*(k+1)}, s{4+2*k}')
            A.i(f's_cmp_gt_u32 s{sS}, 4')
            A.i(f's_cselect_b32 s{sT0}, s{sT0}, 0')
            A.i(f's_add_u32 s{20+k}, s{20+k}, s{sT0}')
        A.i('s_mov_b32 s4, s14')
    SELR, RS, HA, IMG = RA + 16, RA + 20, RA, RA + 28
    Lbe = A.newlabel('CHbe')
    A.ds(f'ds_read_b128 {vr(SELR,4)}, v{vL2} offset:{L_SEL-L_MEM}', 'sel')
    if sy.on:
        A.i('s_waitcnt vmcnt(%d)' % (12 - (3 if iow else 0) - (4 if iod else 0)))
        A.i(f'v_readfirstlane_b32 s{sT0}, v{vT0}')
        A.i(f's_max_u32 s{sKVS}, s{sKVS}, s{sT0}')
    sy.trace(A, RD, sS, imm=0, wave=3)
    if iod:
        A.i(f's_mov_b32 m0, s{sD2}')
        for i in range(2):
            A.i(f'buffer_load_dwordx4 v1, {WSR}, s{sNV} offen offset:{i*1024} sc1 lds')
        A.i(f's_mov_b32 m0, s{sDST}')
        for i in range(2):
            A.i(f'buffer_load_dwordx4 v1, {WSR}, s{sNX} offen offset:{i*1024} sc1 lds')
    pre_step()
    A.i(f's_add_u32 s{sT5}, s{sPC}, s{sH1}')
    A.i(f's_lshl_b32 s{sT3}, s{sW}, 11')
    A.i(f's_add_u32 s{sT3}, s{sT3}, s{sMC}')
    A.i(f's_mov_b32 s{sT4}, s{sMC}')

    CT = RA + 26
    def chain_max(H, n):
        A.i(f'v_max3_u32 v{CT}, v{H}, v{H+1}, v{H+2}')
        for k in range(3, n - 1, 2):
            A.i(f'v_max3_u32 v{CT}, v{CT}, v{H+k}, v{H+k+1}')
        A.i(f'v_max_u32 v{CT}, v{CT}, v{H+n-1}')
    KF = getattr(sy, 'dk', 2)

    A.wl_all()
    Lio = A.newlabel('CHio')
    A.i(f's_cmp_ge_u32 s{sW}, 2')
    A.i(f's_cbranch_scc1 {Lio if iow else Lbe}')
    if getattr(sy, 'd1', 4):
        A.i(f's_sleep {getattr(sy, "d1", 4)}')
    Lp1, Lok1 = A.newlabel('CHp1'), A.newlabel('CHok1')
    def h1_loads():
        for L in range(4):
            A.i(f'buffer_load_dwordx4 {vr(HA+4*L,4)}, v1, {WSR}, s{sT5} offen offset:{L*1024} sc1')
    def h1_mfma(waits):
        for L in range(4):
            if waits:
                A.i(f's_waitcnt vmcnt({3-L})')
            c = '0' if L == 0 else vr(RS, 4)
            A.i(f'v_mfma_f32_16x16x32_bf16 {vr(RS,4)}, {vr(SELR,4)}, {vr(HA+4*L,4)}, {c}')
    h1_loads()
    h1_mfma(True)
    chain_max(HA, 16)
    A.i(f'v_cmpx_eq_u32 vcc, -1, v{CT}')
    A.i(f's_cbranch_execz {Lok1}')
    if 'nox' not in opts:
        A.label(Lp1)
        cnt(0)
        h1_loads()
        A.i(f's_waitcnt vmcnt({4*KF})')
        chain_max(HA, 16)
        A.i(f'v_cmpx_eq_u32 vcc, -1, v{CT}')
        A.i(f's_cbranch_execnz {Lp1}')
    A.i('s_mov_b64 exec, -1')
    h1_mfma(False)
    A.label(Lok1)
    A.i('s_mov_b64 exec, -1')
    for r in range(4):
        A.i(f'v_add_f32_dpp v{RS+r}, v{RS+r}, v{RS+r} row_ror:8 row_mask:0xf bank_mask:0xf')
    A.i('s_mov_b64 exec, 0x00ff00ff')
    A.i(f'v_cvt_pk_bf16_f32 v{RS}, v{RS}, v{RS+1}')
    A.i(f'v_cvt_pk_bf16_f32 v{RS+1}, v{RS+2}, v{RS+3}')
    A.i(f'buffer_store_dwordx2 {vr(RS,2)}, v{vX1}, {WSR}, s{sT4} offen')
    A.i('s_mov_b64 exec, -1')
    if iow:
        A.i(f's_branch {Lbe}')
        A.label(Lio)
        A.i(f'v_mov_b64 {vr(HA,2)}, -1')
        A.i(f'v_mov_b64 {vr(HA+2,2)}, -1')
        A.i(f's_sub_u32 s{sT0}, s{sRP}, s{sRST}')
        A.i(f's_add_u32 s{sT0}, s{sT0}, s{sH1}')
        for L in range(4):
            A.i(f'buffer_store_dwordx4 {vr(HA,4)}, v1, {WSR}, s{sT0} offen offset:{L*1024}')
        A.i('s_mov_b64 exec, 0xffff')
        A.i(f'buffer_store_dwordx4 {vr(HA,4)}, v1, {WSR}, s{sRM} offen')
        A.i('s_mov_b64 exec, -1')
    A.label(Lbe)
    ts(1)
    A.i('s_barrier')
    ts(2)
    A.i(f's_add_u32 s{sS}, s{sS}, 1')
    step_scalars(addr=False)
    kv_wait(sS1, RA + 27, RA + 28)
    if getattr(sy, 'd2', 2):
        A.i(f's_sleep {getattr(sy, "d2", 2)}')
    Lp2, Lok2 = A.newlabel('CHp2'), A.newlabel('CHok2')
    def h2_loads():
        for i in range(2):
            A.i(f'buffer_load_dwordx4 {vr(HA+4*i,4)}, v1, {WSR}, s{sT3} offen offset:{i*1024} sc1')
    h2_loads()
    for i in range(2):
        A.i(f's_waitcnt vmcnt({1-i})')
        A.i(f'ds_write_b128 v{vLW}, {vr(HA+4*i,4)} offset:{i*1024}')
    chain_max(HA, 8)
    for p in range(1, 4):
        A.i(f'v_xor_b32 v{RA+8*p}, {p << 11:#x}, v{vLW}')
    A.i(f'v_cmpx_eq_u32 vcc, -1, v{CT}')
    A.i(f's_cbranch_execz {Lok2}')
    if 'nox' not in opts:
        A.i(f's_mov_b64 s[40:41], exec')
        A.label(Lp2)
        cnt(1)
        h2_loads()
        A.i(f's_waitcnt vmcnt({2*KF})')
        chain_max(HA, 8)
        A.i(f'v_cmpx_eq_u32 vcc, -1, v{CT}')
        A.i(f's_cbranch_execnz {Lp2}')
        A.i('s_mov_b64 exec, s[40:41]')
        for i in range(2):
            A.i(f'ds_write_b128 v{vLW}, {vr(HA+4*i,4)} offset:{i*1024}')
    A.label(Lok2)
    A.i('s_mov_b64 exec, -1')
    ts(3)
    A.i(f's_cmp_lg_u32 s{sS}, {nsteps-1}')
    A.i(f's_cbranch_scc1 {Ltop}')
    A.lq = []
    for f in range(4):
        A.i(sm(AK + 4 * (f & 1), MA + 4 * (f >> 1), WK + f * 8))
    A.i('s_waitcnt lgkmcnt(0)')
    A.i('s_barrier')
    for p in range(1, 4):
        A.i(f'ds_read_b128 {vr(MA+8*p+4,4)}, v{RA+8*p} offset:1024')
        A.i(f'ds_read_b128 {vr(MA+8*p,4)}, v{RA+8*p}')
    if sy.on:
        A.i(f'v_mov_b32 v{S2}, s{sS}')
        A.i(f's_mov_b64 exec, s[{sIO}:{sIO+1}]')
        A.i(f'buffer_store_dword v{S2}, off, {WSR}, s{sFLG} sc1')
        A.i('s_mov_b64 exec, -1')
    for f in range(4):
        A.i(sm(AV + 4 * (f & 1), MA + 4 * (f >> 1), WV + f * 8))
    A.i('s_waitcnt lgkmcnt(0)')
    for f in range(4, 16):
        A.i(sm(AK + 4 * (f & 1), MA + 4 * (f >> 1), WK + f * 8))
    kf = fold_qk(AK, 0, AK + 2, AK + 3)[:-1]
    kf += [f'buffer_store_dword v{AK+2}, v{vX2}, {WSR}, s{sOUT} offen sc1',
           f'buffer_store_dword v{AK+3}, v{vX2}, {WSR}, s{sOUT} offen offset:256 sc1']
    mix(A, [sm(AV + 4 * (f & 1), MA + 4 * (f >> 1), WV + f * 8) for f in range(4, 16)], kf, per=1, start=2)
    for x in g:
        emit(A, x)
    A.i(f'buffer_store_dwordx2 {vr(AV+4,2)}, v{vVW}, {WSR}, s{sOUT} offen sc1')
    A.i(f's_branch {Lfin}')
    A.label(Lcut)
    A.i(f's_add_u32 s{sS}, s{sS}, 1')
    sy.trace(A, RD, sS, imm=0, wave=3)
    A.wl_all()
    A.i(f's_branch {Ltop}')
    A.i = _orig_i
    A.label(Lfin)
    if 'dbg' in opts:
        dbg_stamp(A, 5, RC, RC + 1)
    if sy.tr and not prof:
        A.i('s_memtime s[6:7]')
        A.i('s_waitcnt lgkmcnt(0)')
        A.i('s_sub_u32 s6, s6, s4')
        A.i(f'v_mov_b32 v{vT0}, s6')
        A.i(f'buffer_store_dword v{vT0}, off, {WSR}, s100 offset:{120*4}')
    if prof:
        A.i(f's_lshl_b32 s101, s{sW}, 6')
        A.i('s_add_u32 s101, s101, s100')
        A.i('s_mov_b64 exec, 1')
        for k in range(10):
            A.i(f'v_mov_b32 v{vT0}, s{20+k}')
            A.i(f'buffer_store_dword v{vT0}, off, {WSR}, s101 offset:{512+4*k}')
        A.i('s_mov_b64 exec, -1')
    if sy.on:
        A.i('s_waitcnt vmcnt(0)')
        A.i('s_barrier')
        A.i(f's_add_u32 s{sT0}, s{sS}, 1')
        A.i(f'v_mov_b32 v{vT0}, s{sT0}')
        A.i(f's_mov_b64 exec, s[{sIO}:{sIO+1}]')
        A.i(f'buffer_store_dword v{vT0}, off, {WSR}, s{sFLG} sc1')
        A.i('s_mov_b64 exec, -1')
    A.i(f's_branch {end}')
    for Lp, Lok, sseg, r0, r1 in slow:
        A.label(Lp)
        A.i(f'buffer_load_dword v{r0}, off, {WSR}, s{sKVF} sc1')
        A.i('s_waitcnt vmcnt(0)')
        A.i(f'v_readfirstlane_b32 s{sKVS}, v{r0}')
        A.i(f's_cmp_gt_u32 s{sKVS}, s{sseg}')
        A.i(f's_cbranch_scc1 {Lok}')
        A.i(f's_branch {Lp}')
```

```python
from asmdsl import *

H = 0x0000000
H2 = 0x0200000
X1 = 0x0400000
MOD = 0x0600000
FLAGS = 0x0610000
XM = 0x06F8000
XP = 0x0700000
KM = 0x0800000
VM = 0x0C00000
KX = 0x1000000
VT = 0x2000000
OB = 0x3000000
PART = 0x4000000
GU = 0x5000000
TRACE = 0x6000000
WS_BYTES = 0x10000000

FL = 128
F_TICKET = FLAGS + 0 * FL
F_H = FLAGS + 16 * FL
F_KV = FLAGS + 80 * FL
F_CH = FLAGS + 144 * FL
F_QA = FLAGS + 208 * FL
F_MOD = FLAGS + 656 * FL
F_CI = FLAGS + 704 * FL
NFLAG = 768
F_WO = FLAGS + 272 * FL
F_R = FLAGS + 304 * FL
F_F1 = FLAGS + 320 * FL

P_X, P_MEM0, P_WQ, P_WK, P_WV, P_WO, P_SEG, P_BX, P_WG, P_WU, P_WD, P_C, P_WMOD, P_OUT, P_DBG, P_WS = [4 + 2 * i for i in range(16)]
S_WS, S_A, S_B, S_C, S_D = 36, 40, 44, 48, 52
sR, sW, sS = 56, 57, 58
sT0, sT1, sT2, sT3, sT4, sT5 = 59, 60, 61, 62, 63, 64
SELLO, SELHI = 66, 67
sHIM = 68
sLOG2E = 69
sSCALE = 70

LOG2E = 0x3fb8aa3b
SCALE = 0x3db504f3


def srd(A, s, ptr, nbytes):
    A.i(f's_mov_b32 s{s}, s{ptr}')
    A.i(f's_and_b32 s{s+1}, s{ptr+1}, 0xffff')
    A.i(f's_mov_b32 s{s+2}, {nbytes:#x}')
    A.i(f's_mov_b32 s{s+3}, 0x20000')


def prologue(A, nwg, end_label):
    A.i(f's_cmp_ge_u32 s2, {nwg}')
    A.i(f's_cbranch_scc1 {end_label}')
    A.i('s_load_dwordx16 s[4:19], s[0:1], 0')
    A.i('s_load_dwordx16 s[20:35], s[0:1], 64')
    A.i('v_lshrrev_b32 v1, 6, v0')
    A.i(f'v_readfirstlane_b32 s{sW}, v1')
    A.i('v_and_b32 v0, 63, v0')
    A.i('v_lshlrev_b32 v1, 4, v0')
    A.i(f's_mov_b32 s{SELLO}, 0x05040100')
    A.i(f's_mov_b32 s{SELHI}, 0x07060302')
    A.i(f's_mov_b32 s{sHIM}, 0xffff0000')
    A.i(f's_mov_b32 s{sLOG2E}, {LOG2E:#x}')
    A.i(f's_mov_b32 s{sSCALE}, {SCALE:#x}')
    A.i('s_waitcnt lgkmcnt(0)')
    srd(A, S_WS, P_WS, WS_BYTES)
    for s in (S_A, S_B, S_C, S_D):
        srd(A, s, P_WS, WS_BYTES)


def unpack(A, lo, hi, src):
    A.i(f'v_lshlrev_b32 v{lo}, 16, v{src}')
    A.i(f'v_and_b32 v{hi}, s{sHIM}, v{src}')


def round2(A, a, b, tmp):
    A.i(f'v_cvt_pk_bf16_f32 v{tmp}, v{a}, v{b}')
    A.i(f'v_lshlrev_b32 v{a}, 16, v{tmp}')
    A.i(f'v_and_b32 v{b}, s{sHIM}, v{tmp}')


def move_to(A, dst_u, src_v):
    if dst_u >= 256:
        A.i(f'v_accvgpr_write_b32 a{dst_u-256}, v{src_v}')
    elif dst_u != src_v:
        A.i(f'v_mov_b32 v{dst_u}, v{src_v}')


def perm_to(A, dst_u, hi_src, lo_src, sel, tmp):
    if dst_u >= 256:
        A.i(f'v_perm_b32 v{tmp}, v{hi_src}, v{lo_src}, {sel}')
        A.i(f'v_accvgpr_write_b32 a{dst_u-256}, v{tmp}')
    else:
        A.i(f'v_perm_b32 v{dst_u}, v{hi_src}, v{lo_src}, {sel}')


def wave_sum(A, v, sdst):
    for sh in (1, 2, 4, 8):
        A.i(f'v_add_f32_dpp v{v}, v{v}, v{v} row_shr:{sh} row_mask:0xf bank_mask:0xf bound_ctrl:0')
    A.i(f'v_add_f32_dpp v{v}, v{v}, v{v} row_bcast:15 row_mask:0xa bank_mask:0xf')
    A.i(f'v_add_f32_dpp v{v}, v{v}, v{v} row_bcast:31 row_mask:0xc bank_mask:0xf')
    A.i(f'v_readlane_b32 s{sdst}, v{v}, 63')


class Sync:
    def __init__(self, enabled, trace=False):
        self.on = enabled
        self.tr = trace
        self.pub_base = 0

    def trace(self, A, vtmp, sidx=None, imm=0, wave=None, lim=None):
        if not self.tr:
            return
        L = None
        if wave is not None:
            L = A.newlabel('Ltr')
            A.i(f's_cmp_lg_u32 s{sW}, {wave}')
            A.i(f's_cbranch_scc1 {L}')
            if lim:
                A.i(f's_cmp_ge_u32 s{sidx}, {lim}')
                A.i(f's_cbranch_scc1 {L}')
        A.i('s_memrealtime s[98:99]')
        if sidx is not None:
            A.i(f's_lshl_b32 s101, s{sidx}, 2')
            A.i(f's_add_u32 s101, s101, s100')
        else:
            A.i('s_mov_b32 s101, s100')
        A.i('s_waitcnt lgkmcnt(0)')
        A.i(f'v_mov_b32 v{vtmp}, s98')
        A.i('s_mov_b64 exec, 1')
        A.i(f'buffer_store_dword v{vtmp}, off, s[{S_WS}:{S_WS+3}], s101 offset:{imm*4}')
        A.i('s_mov_b64 exec, -1')
        if L:
            A.label(L)

    def publish(self, A, vaddr, vtmp, sval):
        if not self.on:
            return
        A.i(f'v_mov_b32 v{vtmp}, s{sval}')
        A.i('s_mov_b64 exec, 1')
        A.i(f'buffer_store_dword v{vtmp}, v{vaddr}, s[{S_WS}:{S_WS+3}], 0 offen sc1')
        A.i('s_mov_b64 exec, -1')
        self.trace(A, vtmp, sval, imm=self.pub_base)

    def wait(self, A, vaddr, vtmp, sneed, sleep=1):
        if not self.on:
            return
        L = A.newlabel('Lw')
        L2 = A.newlabel('Lwd')
        A.label(L)
        A.i(f'buffer_load_dword v{vtmp}, v{vaddr}, s[{S_WS}:{S_WS+3}], 0 offen sc1')
        A.i('s_waitcnt vmcnt(0)')
        A.i(f'v_cmp_le_u32 vcc, s{sneed}, v{vtmp}')
        A.i('s_cmp_eq_u64 vcc, exec')
        A.i(f's_cbranch_scc1 {L2}')
        sleep = getattr(self, 'dsl', sleep)
        if sleep:
            A.i(f's_sleep {sleep}')
        A.i(f's_branch {L}')
        A.label(L2)


DBG_READY = 4


def ready_wait(A, vz, vt):
    L = A.newlabel('Lrdy')
    A.i(f'v_mov_b32 v{vz}, 0')
    A.label(L)
    A.i(f'global_load_dword v{vt}, v{vz}, s[{P_DBG}:{P_DBG+1}] offset:{DBG_READY} sc1')
    A.i('s_waitcnt vmcnt(0)')
    A.i(f'v_cmp_ne_u32 vcc, 0, v{vt}')
    A.i('s_cmp_eq_u64 vcc, exec')
    A.i(f's_cbranch_scc0 {L}')


def dbg_stamp(A, word, vt, vz):
    A.i('s_memrealtime s[98:99]')
    A.i('s_waitcnt lgkmcnt(0)')
    A.i(f'v_mov_b32 v{vt}, s98')
    A.i(f'v_mov_b32 v{vz}, 0')
    A.i('s_mov_b64 exec, 1')
    A.i(f'global_atomic_umax v{vz}, v{vt}, s[{P_DBG}:{P_DBG+1}] offset:{word*4}')
    A.i('s_mov_b64 exec, -1')
```

```python
from common import *

WSR = f's[{S_WS}:{S_WS+3}]'


def load_weights(A, units, tmp0, batch_regs, ptmp):
    ring = 2 * batch_regs
    GR = 8
    ngroups = ring // GR
    groups = []
    cur, used = [], 0
    for u in units:
        w = u[5]
        if used + 2 * w > GR:
            groups.append(cur)
            cur, used = [], 0
        cur.append((u, used))
        used += 2 * w
    if cur:
        groups.append(cur)

    def issue(gi):
        base = tmp0 + (gi % ngroups) * GR
        for (srd_s, voff, sbase, off0, off1, w, outs), at in groups[gi]:
            for k, off in enumerate((off0, off1)):
                A.i(f's_add_u32 s{sT0}, s{sbase}, {off:#x}')
                mn = {1: 'buffer_load_dword', 2: 'buffer_load_dwordx2', 4: 'buffer_load_dwordx4'}[w]
                A.i(f'{mn} {vr(base + at + k * w, w)}, v{voff}, s[{srd_s}:{srd_s+3}], s{sT0} offen')

    depth = ngroups - 1
    for gi in range(min(depth, len(groups))):
        issue(gi)
    for gi in range(len(groups)):
        if gi + depth < len(groups):
            issue(gi + depth)
        younger = sum(2 * len(groups[k]) for k in range(gi + 1, min(gi + depth + 1, len(groups))))
        A.i(f's_waitcnt vmcnt({min(younger, 63)})')
        base = tmp0 + (gi % ngroups) * GR
        for (srd_s, voff, sbase, off0, off1, w, outs), at in groups[gi]:
            for n, (dst, dw, sel) in enumerate(outs):
                perm_to(A, dst, base + at + w + dw, base + at + dw, sel, ptmp + (n & 1))


def role_init(A, end):
    Lfill = A.newlabel('Lfill')
    A.i(f's_cmp_ge_u32 s2, 48')
    A.i(f's_cbranch_scc1 {Lfill}')
    srd(A, S_A, P_C, 1024)
    srd(A, S_B, P_WMOD, 512 * 6144)
    A.i(f's_lshl_b32 s{sT0}, s{sW}, 6')
    A.i(f'v_add_u32 v2, s{sT0}, v0')
    A.i('v_and_b32 v3, 7, v2')
    A.i('v_lshrrev_b32 v4, 3, v2')
    A.i('v_lshlrev_b32 v5, 5, v4')
    A.i(f'buffer_load_dwordx4 v[8:11], v5, s[{S_A}:{S_A+3}], 0 offen')
    A.i(f'buffer_load_dwordx4 v[12:15], v5, s[{S_A}:{S_A+3}], 0 offen offset:16')
    A.i(f's_mov_b32 s{sT1}, {16*6144}')
    A.i(f'v_mul_lo_u32 v6, v4, s{sT1}')
    A.i('v_lshl_add_u32 v6, v3, 4, v6')
    A.i(f's_lshl_b32 s{sT1}, s2, 7')
    for i in range(16):
        A.i(f's_add_u32 s{sT0}, s{sT1}, {i*6144}')
        A.i(f'buffer_load_dwordx4 v[{64+4*i}:{67+4*i}], v6, s[{S_B}:{S_B+3}], s{sT0} offen')
    A.i('s_waitcnt vmcnt(16)')
    for i in range(8):
        unpack(A, 16 + 2 * i, 17 + 2 * i, 8 + i)
    for i in range(16):
        A.i(f'v_mul_f32 v{32+i}, s{sLOG2E}, v{16+i}')
    for i in range(16):
        A.i(f'v_exp_f32 v{32+i}, -v{32+i}')
    for i in range(16):
        A.i(f'v_add_f32 v{32+i}, 1.0, v{32+i}')
    for i in range(16):
        A.i(f'v_rcp_f32 v{32+i}, v{32+i}')
    for i in range(16):
        A.i(f'v_mul_f32 v{16+i}, v{16+i}, v{32+i}')
    for i in range(8):
        round2(A, 16 + 2 * i, 17 + 2 * i, 48)
    for j in range(8):
        A.i(f'v_mov_b32 v{32+j}, 0')
    for i in range(16):
        A.i(f's_waitcnt vmcnt({15-i})')
        for d in range(4):
            unpack(A, 48, 49, 64 + 4 * i + d)
            A.i(f'v_fmac_f32 v{32+2*d}, v{16+i}, v48')
            A.i(f'v_fmac_f32 v{33+2*d}, v{16+i}, v49')
    A.i('v_lshlrev_b32 v5, 8, v4')
    A.i('v_lshl_add_u32 v5, v3, 5, v5')
    A.i('ds_write_b128 v5, v[32:35]')
    A.i('ds_write_b128 v5, v[36:39] offset:16')
    A.i('s_waitcnt lgkmcnt(0)')
    A.i('s_barrier')
    A.i(f's_cmp_lg_u32 s{sW}, 0')
    A.i(f's_cbranch_scc1 {end}')
    A.i('v_lshlrev_b32 v5, 2, v0')
    for i in range(32):
        A.i(f'ds_read_b32 v{64+i}, v5 offset:{i*256}')
        if i == 14 or i == 29:
            A.i('s_waitcnt lgkmcnt(0)')
    A.i('s_waitcnt lgkmcnt(0)')
    for st in (16, 8, 4, 2, 1):
        for i in range(st):
            A.i(f'v_add_f32 v{64+i}, v{64+i}, v{64+st+i}')
    A.i('v_cvt_pk_bf16_f32 v64, v64, v64')
    A.i('v_lshlrev_b32 v64, 16, v64')
    A.i(f's_lshl_b32 s{sT0}, s2, 8')
    A.i(f's_add_u32 s{sT0}, s{sT0}, {MOD:#x}')
    A.i(f'buffer_store_dword v64, v5, {WSR}, s{sT0} offen')
    A.i(f's_branch {end}')
    A.label(Lfill)
    A.i(f's_sub_u32 s{sT0}, s2, 48')
    A.i(f's_lshl_b32 s{sT1}, s{sT0}, 14')
    A.i(f's_add_u32 s{sT2}, s{sT1}, {XM:#x}')
    A.i(f's_add_u32 s{sT3}, s{sT1}, {FLAGS - 66*16384:#x}')
    A.i(f's_cmp_lt_u32 s{sT0}, 66')
    A.i(f's_cselect_b32 s{sT2}, s{sT2}, s{sT3}')
    A.i(f's_cselect_b32 s{sT3}, -1, 0')
    A.i(f's_lshl_b32 s{sT1}, s{sW}, 12')
    A.i(f's_add_u32 s{sT2}, s{sT2}, s{sT1}')
    for i in range(4):
        A.i(f'v_mov_b32 v{4+i}, s{sT3}')
    for i in range(4):
        A.i(f'buffer_store_dwordx4 v[4:7], v1, {WSR}, s{sT2} offen offset:{i*1024}')
    A.i(f's_branch {end}')


def load_mod8(A, dst, which):
    A.i(f's_mov_b32 s{sT0}, {MOD + which*2048:#x}')
    A.i(f'buffer_load_dwordx4 v[{dst}:{dst+3}], v2, {WSR}, s{sT0} offen sc1')
    A.i(f'buffer_load_dwordx4 v[{dst+4}:{dst+7}], v2, {WSR}, s{sT0} offen offset:16 sc1')


def one_plus(A, c, tmp):
    for j in range(8):
        A.i(f'v_add_f32 v{c+j}, 1.0, v{c+j}')
    for j in range(4):
        round2(A, c + 2 * j, c + 2 * j + 1, tmp)


def ln_core(A, x, t, c1, sh, out):
    A.i(f'v_add_f32 v{t}, v{x}, v{x+1}')
    A.i(f'v_add_f32 v{t+1}, v{x+2}, v{x+3}')
    A.i(f'v_add_f32 v{t+2}, v{x+4}, v{x+5}')
    A.i(f'v_add_f32 v{t+3}, v{x+6}, v{x+7}')
    A.i(f'v_add_f32 v{t}, v{t}, v{t+1}')
    A.i(f'v_add_f32 v{t+2}, v{t+2}, v{t+3}')
    A.i(f'v_add_f32 v{t}, v{t}, v{t+2}')
    wave_sum(A, t, sT4)
    A.i(f'v_mov_b32 v{t+8}, 0x3b000000')
    A.i(f'v_mul_f32 v{t+9}, s{sT4}, v{t+8}')
    for j in range(8):
        A.i(f'v_sub_f32 v{t+j}, v{x+j}, v{t+9}')
    A.i(f'v_mul_f32 v{t}, v{t}, v{t}')
    A.i(f'v_mul_f32 v{t+1}, v{t+1}, v{t+1}')
    for j in range(2, 8):
        A.i(f'v_fmac_f32 v{t+(j&1)}, v{t+j}, v{t+j}')
    A.i(f'v_add_f32 v{t}, v{t}, v{t+1}')
    wave_sum(A, t, sT4)
    A.i(f'v_mul_f32 v{t+8}, s{sT4}, v{t+8}')
    round2(A, t + 8, t + 9, t)
    A.i(f'v_add_f32 v{t+8}, 0x3727c5ac, v{t+8}')
    A.i(f'v_cvt_pk_bf16_f32 v{t+8}, v{t+8}, v{t+8}')
    A.i(f'v_lshlrev_b32 v{t+8}, 16, v{t+8}')
    A.i(f'v_sqrt_f32 v{t+8}, v{t+8}')
    A.i(f'v_cvt_pk_bf16_f32 v{t+8}, v{t+8}, v{t+8}')
    A.i(f'v_lshlrev_b32 v{t+8}, 16, v{t+8}')
    A.i(f'v_rcp_f32 v{t+8}, v{t+8}')
    for j in range(8):
        A.i(f'v_sub_f32 v{x+j}, v{x+j}, v{t+9}')
    for j in range(4):
        round2(A, x + 2 * j, x + 2 * j + 1, t + j)
    for j in range(8):
        A.i(f'v_mul_f32 v{x+j}, v{x+j}, v{t+8}')
    for j in range(4):
        round2(A, x + 2 * j, x + 2 * j + 1, t + j)
    for j in range(8):
        A.i(f'v_mul_f32 v{x+j}, v{x+j}, v{c1+j}')
    for j in range(4):
        round2(A, x + 2 * j, x + 2 * j + 1, t + j)
    for j in range(8):
        A.i(f'v_add_f32 v{x+j}, v{x+j}, v{sh+j}')
    for j in range(4):
        A.i(f'v_cvt_pk_bf16_f32 v{out+j}, v{x+2*j}, v{x+2*j+1}')


def role_ln1(A, sy, sidx):
    srd(A, S_A, P_X, 2048 * 1024)
    A.i('v_lshlrev_b32 v2, 5, v0')
    A.i(f's_lshl_b32 s{sT1}, s{sidx}, 2')
    A.i(f's_add_u32 s{sT1}, s{sT1}, s{sW}')
    A.i(f's_lshl_b32 s{sT1}, s{sT1}, 10')
    for q in range(8):
        A.i(f's_add_u32 s{sT0}, s{sT1}, {q*256*1024:#x}')
        A.i(f'buffer_load_dwordx4 v[{64+4*q}:{67+4*q}], v1, s[{S_A}:{S_A+3}], s{sT0} offen')
    if getattr(sy, 'single', False):
        mod_wait(A, sy, 0, 16, 3, 4)
    load_mod8(A, 8, 1)
    load_mod8(A, 16, 0)
    A.i(f's_lshl_b32 s{sT0}, s{sidx}, 7')
    A.i(f's_add_u32 s{sT0}, s{sT0}, {F_H:#x}')
    A.i(f'v_mov_b32 v3, s{sT0}')
    A.i('s_waitcnt vmcnt(0)')
    one_plus(A, 8, 4)
    for q in range(8):
        for j in range(4):
            unpack(A, 24 + 2 * j, 25 + 2 * j, 64 + 4 * q + j)
        ln_core(A, 24, 32, 8, 16, 44 + 4 * (q & 1))
        A.i(f's_add_u32 s{sT0}, s{sT1}, {H + q*256*1024:#x}')
        A.i(f'buffer_store_dwordx4 v[{44+4*(q&1)}:{47+4*(q&1)}], v1, {WSR}, s{sT0} offen sc1')
        if sy.on and q in (0, 3, 7):
            A.i('s_waitcnt vmcnt(0)')
            A.i('s_barrier')
            Ls = A.newlabel('Lln')
            A.i(f's_cmp_lg_u32 s{sW}, 0')
            A.i(f's_cbranch_scc1 {Ls}')
            A.i(f's_mov_b32 s{sT0}, {q+1}')
            sy.publish(A, 3, 4, sT0)
            A.label(Ls)


XB0 = 0
XBS = 32768


def t1_setup(A, vdma, vrd, swap_odd=False):
    A.i(f's_and_b32 s{sT0}, s{sW}, 1')
    A.i(f's_lshl_b32 s{sT1}, s{sT0}, 7')
    A.i(f'v_xor_b32 v{vdma}, s{sT1}, v1')
    A.i(f'v_and_b32 v{vrd+7}, 15, v0')
    A.i(f'v_lshrrev_b32 v{vrd+6}, 4, v0')
    A.i(f'v_xor_b32 v{vrd+6}, v{vrd+6}, v{vrd+7}')
    A.i(f'v_lshlrev_b32 v{vrd+6}, 4, v{vrd+6}')
    A.i(f'v_lshl_or_b32 v{vrd+7}, v{vrd+7}, 10, v{vrd+6}')
    if swap_odd:
        A.i(f's_lshl_b32 s{sT1}, s{sT0}, 14')
        A.i(f'v_xor_b32 v{vrd+7}, s{sT1}, v{vrd+7}')
    for k in range(4):
        A.i(f'v_xor_b32 v{vrd+k}, {k*64}, v{vrd+7}')
    for k in range(3, -1, -1):
        A.i(f'v_xor_b32 v{vrd+4+k}, 0x4000, v{vrd+k}')


def t1_dma(A, vdma, vtmp, ssrc, sbuf):
    A.i(f's_lshl_b32 s{sT0}, s{sW}, 13')
    A.i(f's_add_u32 s{sT1}, s{sT0}, s{ssrc}')
    A.i(f's_add_u32 s{sT0}, s{sT0}, s{sbuf}')
    A.i(f's_mov_b32 m0, s{sT0}')
    for i in range(8):
        if i == 4:
            A.i(f's_add_u32 s{sT0}, s{sT0}, 4096')
            A.i(f's_add_u32 s{sT1}, s{sT1}, 4096')
            A.i(f's_mov_b32 m0, s{sT0}')
        A.i(f'v_xor_b32 v{vtmp+(i&1)}, {i*16}, v{vdma}')
        A.i(f'buffer_load_dwordx4 v{vtmp+(i&1)}, {WSR}, s{sT1} offen offset:{(i&3)*1024} sc1 lds')


def t1_compute(A, vrd, vabuf, xf, wbase, dbase, swapped, mid=None):
    def rd(ks):
        for tt in range(2):
            A.i(f'ds_read_b128 {vr(xf + (ks & 3) * 8 + tt * 4, 4)}, v{vabuf + tt*4 + (ks & 3)} offset:{(ks >> 2) * 256}')
    for ks in range(3):
        rd(ks)
    for ks in range(16):
        if ks + 3 < 16:
            rd(ks + 3)
            A.i('s_waitcnt lgkmcnt(6)')
        else:
            A.i(f's_waitcnt lgkmcnt({2 * (15 - ks)})')
        for t in range(2):
            for tt in range(2):
                d = ur(dbase + (t * 2 + tt) * 4, 4)
                w = ur(wbase + (ks * 2 + t) * 4, 4)
                x = vr(xf + (ks & 3) * 8 + tt * 4, 4)
                c = '0' if ks == 0 else d
                if swapped:
                    A.i(f'v_mfma_f32_16x16x32_bf16 {d}, {w}, {x}, {c}')
                else:
                    A.i(f'v_mfma_f32_16x16x32_bf16 {d}, {x}, {w}, {c}')
        if mid is not None:
            mid(ks)


def paired_units(srd_s, voff, sbase, rs, nks, wbase):
    units = []
    for ks in range(nks):
        for i in range(4):
            r0 = 32 * ks + 2 * i
            units.append((srd_s, voff, sbase, r0 * rs, (r0 + 1) * rs, 1,
                          [(wbase + (ks * 2 + 0) * 4 + i, 0, f's{SELLO}'), (wbase + (ks * 2 + 1) * 4 + i, 0, f's{SELHI}')]))
    return units


def lane_woff(A, dst, rs, colbytes, tmp):
    A.i(f'v_lshrrev_b32 v{tmp}, 4, v0')
    A.i(f's_mov_b32 s{sT0}, {8*rs}')
    A.i(f'v_mul_lo_u32 v{dst}, v{tmp}, s{sT0}')
    A.i(f'v_and_b32 v{tmp}, 15, v0')
    A.i(f'v_mul_u32_u24 v{tmp}, {colbytes}, v{tmp}')
    A.i(f'v_add_u32 v{dst}, v{dst}, v{tmp}')


def h_flag_addr(A, vdst, sseg, stmp):
    A.i(f's_and_b32 s{stmp}, s{sseg}, 7')
    A.i(f's_lshl_b32 s{stmp}, s{stmp}, 10')
    A.i(f's_add_u32 s{stmp}, s{stmp}, {F_H:#x}')
    A.i(f'v_and_b32 v{vdst}, 7, v0')
    A.i(f'v_lshlrev_b32 v{vdst}, 7, v{vdst}')
    A.i(f'v_add_u32 v{vdst}, s{stmp}, v{vdst}')


def t1_loop(A, sy, name, seg0, segstep, src_base, wait_src, body, vdma, vrd, vab, vtmp, vflag):
    Ltop, Lhave, Lnopf, Lend = (A.newlabel(name + x) for x in ('top', 'have', 'nopf', 'end'))
    A.i(f's_mov_b32 s72, {XB0}')
    A.i('s_mov_b32 s73, 0')
    A.label(Ltop)
    A.i('s_cmp_lg_u32 s73, 0')
    A.i(f's_cbranch_scc1 {Lhave}')
    wait_src(sS, True, None)
    A.i(f's_lshl_b32 s75, s{sS}, 15')
    A.i(f's_add_u32 s75, s75, {src_base:#x}')
    t1_dma(A, vdma, vtmp, 75, 72)
    A.label(Lhave)
    A.i('s_waitcnt vmcnt(0)')
    A.i('s_barrier')
    for k in range(8):
        A.i(f'v_add_u32 v{vab+k}, s72, v{vrd+k}')
    A.i('s_mov_b32 s73, 0')
    A.i(f's_add_u32 s74, s{sS}, {segstep}')
    A.i('s_cmp_ge_u32 s74, 64')
    A.i(f's_cbranch_scc1 {Lnopf}')
    wait_src(74, False, Lnopf)
    A.i('s_lshl_b32 s75, s74, 15')
    A.i(f's_add_u32 s75, s75, {src_base:#x}')
    A.i(f's_xor_b32 s76, s72, {XBS}')
    t1_dma(A, vdma, vtmp, 75, 76)
    A.i('s_mov_b32 s73, 1')
    A.label(Lnopf)
    body()
    if sy.on:
        A.i('s_waitcnt vmcnt(0)')
    A.i('s_barrier')
    if sy.on:
        Ls = A.newlabel(name + 'pub')
        A.i(f's_cmp_lg_u32 s{sW}, 0')
        A.i(f's_cbranch_scc1 {Ls}')
        A.i(f's_add_u32 s{sT0}, s{sS}, 1')
        sy.publish(A, vflag, vtmp, sT0)
        A.label(Ls)
    A.i(f's_xor_b32 s72, s72, {XBS}')
    A.i(f's_add_u32 s{sS}, s{sS}, {segstep}')
    A.i(f's_cmp_lt_u32 s{sS}, 64')
    A.i(f's_cbranch_scc1 {Ltop}')
    A.label(Lend)


def flag_test(A, sy, vaddr, vtmp, sneed, blocking, Lnot):
    if not sy.on:
        return
    if blocking:
        sy.wait(A, vaddr, vtmp, sneed)
    else:
        A.i(f'buffer_load_dword v{vtmp}, v{vaddr}, {WSR}, 0 offen sc1')
        A.i('s_waitcnt vmcnt(0)')
        A.i(f'v_cmp_le_u32 vcc, s{sneed}, v{vtmp}')
        A.i('s_cmp_eq_u64 vcc, exec')
        A.i(f's_cbranch_scc0 {Lnot}')


def make_wait_h(A, sy, va, vtmp):
    def wait_src(sseg, blocking, Lnot):
        if not sy.on:
            return
        h_flag_addr(A, va, sseg, sT0)
        A.i(f's_lshr_b32 s{sT2}, s{sseg}, 3')
        A.i(f's_add_u32 s{sT2}, s{sT2}, 1')
        flag_test(A, sy, va, vtmp, sT2, blocking, Lnot)
    return wait_src


def role_kv(A, sy, is_v):
    name = 'V' if is_v else 'K'
    srd(A, S_A, P_WV if is_v else P_WK, 512 * 8192)
    VDMA, VRD, VAB, VT_, VFL, VST, VWA = 2, 4, 12, 20, 22, 23, 24
    XF, D, PK = 32, 64, 80
    lane_woff(A, 3, 8192, 4, 4)
    A.i(f's_lshl_b32 s77, s{sR}, 8')
    A.i(f's_lshl_b32 s{sT0}, s{sW}, 6')
    A.i(f's_add_u32 s77, s77, s{sT0}')
    load_weights(A, paired_units(S_A, 3, 77, 8192, 16, 256), 128, 32, 4)
    t1_setup(A, VDMA, VRD)
    A.i(f's_lshl_b32 s{sT0}, s{sR}, 7')
    A.i(f's_add_u32 s{sT0}, s{sT0}, {F_KV + (32*FL if is_v else 0):#x}')
    A.i(f'v_mov_b32 v{VFL}, s{sT0}')
    if is_v:
        A.i(f's_lshl_b32 s77, s{sR}, 13')
        A.i(f's_lshl_b32 s{sT0}, s{sW}, 11')
        A.i(f's_add_u32 s77, s77, s{sT0}')
        A.i(f's_add_u32 s77, s77, {VT:#x}')
        A.i(f'v_mov_b32 v{VST}, v1')
    else:
        A.i(f's_lshl_b32 s77, s{sR}, 13')
        A.i(f's_lshl_b32 s{sT0}, s{sW}, 11')
        A.i(f's_add_u32 s77, s77, s{sT0}')
        A.i(f's_add_u32 s77, s77, {KX:#x}')
        A.i(f'v_lshrrev_b32 v{VST}, 4, v0')
        A.i(f'v_lshlrev_b32 v{VST}, 9, v{VST}')
        A.i(f'v_and_b32 v{VT_}, 15, v0')
        A.i(f'v_lshl_add_u32 v{VST}, v{VT_}, 4, v{VST}')
    A.i(f's_mov_b32 s{sS}, 0')

    def body():
        t1_compute(A, VRD, VAB, XF, 256, D, swapped=not is_v)
        A.i(f's_lshl_b32 s{sT0}, s{sS}, 18')
        A.i(f's_add_u32 s{sT0}, s{sT0}, s77')
        if is_v:
            for t in range(2):
                for tt in range(2):
                    d = D + (t * 2 + tt) * 4
                    A.i(f'v_cvt_pk_bf16_f32 v{PK+t*4+tt*2}, v{d}, v{d+1}')
                    A.i(f'v_cvt_pk_bf16_f32 v{PK+t*4+tt*2+1}, v{d+2}, v{d+3}')
                A.i(f'buffer_store_dwordx4 v[{PK+t*4}:{PK+t*4+3}], v{VST}, {WSR}, s{sT0} offen offset:{t*1024} sc1')
        else:
            for tt in range(2):
                for r in range(4):
                    A.i(f'v_cvt_pk_bf16_f32 v{PK+tt*4+r}, v{D+tt*4+r}, v{D+(2+tt)*4+r}')
                A.i(f'buffer_store_dwordx4 v[{PK+tt*4}:{PK+tt*4+3}], v{VST}, {WSR}, s{sT0} offen offset:{tt*256} sc1')

    t1_loop(A, sy, name, 0, 1, H, make_wait_h(A, sy, VWA, VT_), body, VDMA, VRD, VAB, VT_, VFL)


def score_round(A, regs, tmp):
    for a, b in zip(regs[0::2], regs[1::2]):
        round2(A, a, b, tmp)
    for a in regs:
        A.i(f'v_mul_f32 v{a}, s{sSCALE}, v{a}')
    for a, b in zip(regs[0::2], regs[1::2]):
        round2(A, a, b, tmp)


def xlane(A, op, v, t):
    A.i(f'v_mov_b32 v{t}, v{v}')
    A.i(f'v_permlane32_swap_b32 v{v}, v{t}')
    A.i(f'{op} v{v}, v{v}, v{t}')
    A.i(f'v_mov_b32 v{t}, v{v}')
    A.i(f'v_permlane16_swap_b32 v{v}, v{t}')
    A.i(f'{op} v{v}, v{v}, v{t}')


QIMG = 65536


def role_qa(A, sy):
    srd(A, S_A, P_WQ, 512 * 8192)
    VDMA, VRD, VAB, VT_, VFL, VWA = 2, 4, 12, 20, 22, 24
    VQW, VQR, VKX, VKM, VVM, VOST, VFKV, VFCH = 23, 25, 26, 27, 28, 29, 30, 31
    XF, D, PK = 32, 64, 80
    KF, VF, QF, KMF, VMF = 96, 128, 144, 160, 176
    S1, S2, S0, PX, PY, PM, OD, TM = 184, 188, 192, 196, 200, 204, 208, 224
    sH = 78
    if 'pfw' in getattr(sy, 'opts', set()):
        srd(A, S_B, P_WO, 4096 * 1024)
        srd(A, S_C, P_WK, 4096 * 1024)
        srd(A, S_D, P_WV, 4096 * 1024)
        A.i(f's_lshl_b32 s{sT0}, s{sR}, 12')
        A.i(f's_lshl_b32 s{sT1}, s{sW}, 10')
        A.i(f's_add_u32 s{sT1}, s{sT0}, s{sT1}')
        n = 0
        for sd in (S_B, S_A, S_C, S_D):
            A.i(f's_mov_b32 s{sT0}, s{sT1}')
            for i in range(16):
                if n >= 32:
                    A.i('s_waitcnt vmcnt(31)')
                A.i(f'buffer_load_dwordx4 {vr(128+4*(n%32),4)}, v1, s[{sd}:{sd+3}], s{sT0} offen')
                A.i(f's_add_u32 s{sT0}, s{sT0}, 0x40000')
                n += 1
        A.i('s_waitcnt vmcnt(0)')
    A.i(f's_lshr_b32 s{sH}, s{sR}, 1')
    dense_stage_setup(A, 3, 4, 79, 8192, 0, 5)
    A.i(f's_lshl_b32 s77, s{sH}, 8')
    A.i(f's_lshl_b32 s{sT0}, s{sW}, 6')
    A.i(f's_add_u32 s77, s77, s{sT0}')
    if 'deferqa' in getattr(sy, 'opts', set()):
        defer_to_chain(A, sy, 6, 7)
    staged_load(A, dense_chunks(S_A, 77, 8192, 16, 256), 3, 4, 79, 8, 128, 6)
    A.i('s_barrier')
    t1_setup(A, VDMA, VRD)
    A.i(f's_lshl_b32 s{sT0}, s{sR}, 7')
    A.i(f's_add_u32 s{sT0}, s{sT0}, {F_QA:#x}')
    A.i(f'v_mov_b32 v{VFL}, s{sT0}')
    A.i(f'v_lshrrev_b32 v{TM}, 4, v0')
    A.i(f'v_and_b32 v{TM+1}, 15, v0')
    A.i(f'v_lshlrev_b32 v{VKX}, 9, v{TM}')
    A.i(f'v_lshl_add_u32 v{VKX}, v{TM+1}, 4, v{VKX}')
    A.i(f's_lshl_b32 s{sT0}, s{sW}, 11')
    A.i(f's_add_u32 s{sT0}, s{sT0}, {QIMG}')
    A.i(f'v_add_u32 v{VQW}, s{sT0}, v{VKX}')
    A.i(f's_and_b32 s79, s{sW}, 1')
    A.i(f's_lshr_b32 s80, s{sW}, 1')
    A.i(f's_lshl_b32 s{sT0}, s79, 8')
    A.i(f's_add_u32 s{sT1}, s{sT0}, {QIMG}')
    A.i(f'v_add_u32 v{VQR}, s{sT1}, v{VKX}')
    A.i(f's_lshl_b32 s{sT1}, s80, 12')
    A.i(f's_add_u32 s{sT1}, s{sT1}, s{sT0}')
    A.i(f'v_add_u32 v{VOST}, s{sT1}, v{VKX}')
    A.i(f'v_lshrrev_b32 v{TM+2}, 2, v{TM+1}')
    A.i(f'v_and_b32 v{TM+3}, 1, v{TM+1}')
    A.i(f'v_lshl_add_u32 v{TM+2}, v{TM+2}, 1, v{TM+3}')
    A.i(f'v_lshlrev_b32 v{TM+2}, 8, v{TM+2}')
    A.i(f'v_lshl_add_u32 v{VKM}, v{TM}, 4, v{TM+2}')
    A.i(f'v_lshlrev_b32 v{VVM}, 4, v{TM+1}')
    A.i(f'v_lshl_add_u32 v{VVM}, v{TM}, 2, v{VVM}')
    A.i(f's_lshl_b32 s{sT0}, s80, 10')
    A.i(f'v_add_u32 v{VVM}, s{sT0}, v{VVM}')
    A.i(f'v_and_b32 v{TM+2}, 1, v0')
    A.i(f'v_lshlrev_b32 v{TM+2}, 12, v{TM+2}')
    A.i(f's_lshl_b32 s{sT0}, s{sH}, 7')
    A.i(f's_add_u32 s{sT1}, s{sT0}, {F_KV:#x}')
    A.i(f'v_mov_b32 v{VFKV}, s{sT1}')
    A.i(f's_add_u32 s{sT1}, s{sT0}, {F_CH:#x}')
    A.i(f'v_mov_b32 v{VFCH}, s{sT1}')
    A.i(f's_lshl_b32 s{sT0}, s79, 4')
    A.i(f'v_lshlrev_b32 v{TM+2}, 2, v{TM}')
    A.i(f'v_sub_u32 v{TM+2}, v{TM+1}, v{TM+2}')
    A.i(f'v_add_u32 v{TM+2}, s{sT0}, v{TM+2}')
    for i in range(8):
        A.i(f'v_cmp_le_i32 s[{82+2*i}:{83+2*i}], {16*(i>>2)+(i&3)}, v{TM+2}')
    A.i(f'v_mov_b32 v{PM+1}, 0')
    A.i(f's_and_b32 s{sS}, s{sR}, 1')
    if getattr(sy, 'single', False):
        ready_wait(A, VWA, VT_)

    def body():
        A.i(f's_add_u32 s{sT2}, s{sS}, 1')
        sy.wait(A, VFKV, VT_, sT2)
        A.i(f's_lshl_b32 s81, s{sS}, 18')
        A.i(f's_lshl_b32 s{sT0}, s{sH}, 13')
        A.i(f's_add_u32 s81, s81, s{sT0}')
        A.i(f's_add_u32 s{sT0}, s81, {KX:#x}')
        A.i(f's_add_u32 s{sT1}, s{sT0}, 4096')
        for kt in range(2):
            for ks in range(4):
                so = sT0 if ks < 2 else sT1
                A.i(f'buffer_load_dwordx4 {vr(KF+(kt*4+ks)*4,4)}, v{VKX}, {WSR}, s{so} offen offset:{(ks&1)*2048+kt*256} sc1')
        A.i(f's_lshl_b32 s{sT0}, s80, 12')
        A.i(f's_add_u32 s{sT0}, s{sT0}, s81')
        A.i(f's_add_u32 s{sT0}, s{sT0}, {VT:#x}')
        for i in range(4):
            A.i(f'buffer_load_dwordx4 {vr(VF+i*4,4)}, v1, {WSR}, s{sT0} offen offset:{i*1024} sc1')
        t1_compute(A, VRD, VAB, XF, 256, D, swapped=True)
        for tt in range(2):
            for r in range(4):
                A.i(f'v_cvt_pk_bf16_f32 v{PK+tt*4+r}, v{D+tt*4+r}, v{D+(2+tt)*4+r}')
            A.i(f'ds_write_b128 v{VQW}, v[{PK+tt*4}:{PK+tt*4+3}] offset:{tt*256}')
        A.i('s_waitcnt lgkmcnt(0)')
        A.i('s_barrier')
        for ks in range(4):
            A.i(f'ds_read_b128 {vr(QF+ks*4,4)}, v{VQR} offset:{ks*2048}')
        A.i('s_waitcnt vmcnt(0) lgkmcnt(0)')
        for kt, S in ((0, S1), (1, S2)):
            for ks in range(4):
                c = '0' if ks == 0 else vr(S, 4)
                A.i(f'v_mfma_f32_16x16x32_bf16 {vr(S,4)}, {vr(KF+(kt*4+ks)*4,4)}, {vr(QF+ks*4,4)}, {c}')
        xs = [S1 + i for i in range(8)]
        score_round(A, xs, TM)
        A.i(f'v_mov_b32 v{TM}, 0xce6e6b28')
        for i in range(8):
            A.i(f'v_cndmask_b32 v{S1+i}, v{TM}, v{S1+i}, s[{82+2*i}:{83+2*i}]')
        A.i(f'v_max3_f32 v{TM+2}, v{S1}, v{S1+1}, v{S1+2}')
        A.i(f'v_max3_f32 v{TM+2}, v{TM+2}, v{S1+3}, v{S1+4}')
        A.i(f'v_max3_f32 v{TM+2}, v{TM+2}, v{S1+5}, v{S1+6}')
        A.i(f'v_max_f32 v{TM+2}, v{TM+2}, v{S1+7}')
        A.i(f's_add_u32 s{sT2}, s{sS}, 1')
        sy.wait(A, VFCH, VT_, sT2)
        A.i(f's_lshr_b32 s{sT0}, s81, 2')
        A.i(f's_add_u32 s{sT1}, s{sT0}, {VM:#x}')
        A.i(f's_add_u32 s{sT0}, s{sT0}, {KM:#x}')
        for ks in range(4):
            A.i(f'buffer_load_dwordx4 {vr(KMF+ks*4,4)}, v{VKM}, {WSR}, s{sT0} offen offset:{ks*64} sc1')
        for i in range(4):
            A.i(f'buffer_load_dword v{VMF+2*i}, v{VVM}, {WSR}, s{sT1} offen offset:{i*256} sc1')
            A.i(f'v_mov_b32 v{VMF+2*i+1}, 0')
        for ks in range(4):
            A.i(f's_waitcnt vmcnt({7-ks})')
            c = '0' if ks == 0 else vr(S0, 4)
            A.i(f'v_mfma_f32_16x16x32_bf16 {vr(S0,4)}, {vr(KMF+ks*4,4)}, {vr(QF+ks*4,4)}, {c}')
        score_round(A, [S0, S0 + 1], TM)
        A.i(f'v_max3_f32 v{TM+2}, v{TM+2}, v{S0}, v{S0+1}')
        xlane(A, 'v_max_f32', TM + 2, TM + 3)
        vals = xs + [S0, S0 + 1]
        A.i(f'v_mul_f32 v{TM+2}, s{sLOG2E}, v{TM+2}')
        for a in vals:
            A.i(f'v_fma_f32 v{a}, v{a}, s{sLOG2E}, -v{TM+2}')
        for a in vals:
            A.i(f'v_exp_f32 v{a}, v{a}')
        A.i(f'v_add_f32 v{TM+2}, v{vals[0]}, v{vals[1]}')
        A.i(f'v_add_f32 v{TM+4}, v{vals[2]}, v{vals[3]}')
        for k in range(4, 10, 2):
            A.i(f'v_add_f32 v{TM+2}, v{TM+2}, v{vals[k]}')
            A.i(f'v_add_f32 v{TM+4}, v{TM+4}, v{vals[k+1]}')
        A.i(f'v_add_f32 v{TM+2}, v{TM+2}, v{TM+4}')
        xlane(A, 'v_add_f32', TM + 2, TM + 3)
        A.i(f'v_rcp_f32 v{TM+2}, v{TM+2}')
        for a in vals:
            A.i(f'v_mul_f32 v{a}, v{a}, v{TM+2}')
        for k in range(4):
            A.i(f'v_cvt_pk_bf16_f32 v{PX+k}, v{S1+2*k}, v{S1+2*k+1}')
        A.i(f'v_cvt_pk_bf16_f32 v{PM}, v{S0}, v{S0+1}')
        A.i('s_waitcnt vmcnt(0)')
        for i in range(4):
            p = PX
            A.i(f'v_mfma_f32_16x16x32_bf16 {vr(OD+4*i,4)}, {vr(VF+4*i,4)}, {vr(p,4)}, 0')
        for i in range(4):
            A.i(f'v_mfma_f32_16x16x16_bf16 {vr(OD+4*i,4)}, {vr(VMF+2*i,2)}, {vr(PM,2)}, {vr(OD+4*i,4)}')
        A.i(f's_add_u32 s{sT0}, s81, {OB:#x}')
        for u in range(2):
            for r in range(4):
                A.i(f'v_cvt_pk_bf16_f32 v{PK+u*4+r}, v{OD+8*u+r}, v{OD+8*u+4+r}')
            A.i(f'buffer_store_dwordx4 v[{PK+u*4}:{PK+u*4+3}], v{VOST}, {WSR}, s{sT0} offen offset:{u*2048} sc1')

    t1_loop(A, sy, 'QA', 0, 2, H, make_wait_h(A, sy, VWA, VT_), body, VDMA, VRD, VAB, VT_, VFL)


def natural_units(srd_s, voff, sbase, rs, nks, ntiles, wbase, vsel, tile_stride=32, tile_index=None):
    units = []
    for ks in range(nks):
        for t in range(ntiles):
            for i in range(4):
                r0 = 32 * ks + 2 * i
                idx = tile_index(ks, t) if tile_index else ks * ntiles + t
                units.append((srd_s, voff, sbase, r0 * rs + t * tile_stride, (r0 + 1) * rs + t * tile_stride, 1,
                              [(wbase + idx * 4 + i, 0, f'v{vsel}')]))
    return units


def natural_setup(A, voff, vsel, rs, tmp):
    A.i(f'v_lshrrev_b32 v{tmp}, 4, v0')
    A.i(f's_mov_b32 s{sT0}, {8*rs}')
    A.i(f'v_mul_lo_u32 v{voff}, v{tmp}, s{sT0}')
    A.i(f'v_and_b32 v{tmp}, 14, v0')
    A.i(f'v_lshl_add_u32 v{voff}, v{tmp}, 1, v{voff}')
    A.i(f'v_and_b32 v{tmp}, 1, v0')
    A.i(f'v_cmp_eq_u32 vcc, 1, v{tmp}')
    A.i(f'v_mov_b32 v{vsel}, s{SELLO}')
    A.i(f'v_mov_b32 v{tmp}, s{SELHI}')
    A.i(f'v_cndmask_b32 v{vsel}, v{vsel}, v{tmp}, vcc')


def role_wo(A, sy):
    srd(A, S_A, P_WO, 4096 * 1024)
    VPC, VFL, VFQ, VT_, VLW, VLR, VST = 2, 5, 6, 7, 8, 9, 10
    XF, D, RD = 32, 96, 128
    natural_setup(A, 3, 4, 1024, 5)
    A.i(f's_lshr_b32 s78, s{sR}, 3')
    A.i(f's_and_b32 s79, s{sR}, 7')
    A.i(f's_lshl_b32 s80, s78, 2')
    A.i(f's_add_u32 s80, s80, s{sW}')
    A.i(f's_lshl_b32 s77, s80, 18')
    A.i(f's_lshl_b32 s{sT0}, s79, 7')
    A.i(f's_add_u32 s77, s77, s{sT0}')
    load_weights(A, natural_units(S_A, 3, 77, 1024, 8, 4, 256, 4), 128, 32, 6)
    A.i(f'v_lshrrev_b32 v{VT_}, 4, v0')
    A.i(f'v_lshlrev_b32 v{VPC}, 9, v{VT_}')
    A.i(f'v_and_b32 v{VST}, 15, v0')
    A.i(f'v_lshl_add_u32 v{VPC}, v{VST}, 4, v{VPC}')
    A.i(f'v_lshlrev_b32 v{VST}, 11, v{VST}')
    A.i(f'v_lshl_add_u32 v{VST}, v{VT_}, 4, v{VST}')
    A.i(f's_lshl_b32 s{sT0}, s79, 8')
    A.i(f's_lshl_b32 s{sT1}, s{sW}, 6')
    A.i(f's_add_u32 s{sT0}, s{sT0}, s{sT1}')
    A.i(f's_lshl_b32 s{sT1}, s78, 16')
    A.i(f's_add_u32 s{sT0}, s{sT0}, s{sT1}')
    A.i(f's_add_u32 s81, s{sT0}, {PART:#x}')
    A.i(f's_lshl_b32 s{sT0}, s{sW}, 13')
    A.i(f'v_add_u32 v{VLW}, s{sT0}, v1')
    A.i(f's_lshl_b32 s{sT0}, s{sW}, 11')
    A.i(f'v_add_u32 v{VLR}, s{sT0}, v1')
    A.i(f's_lshl_b32 s{sT0}, s{sR}, 7')
    A.i(f's_add_u32 s{sT0}, s{sT0}, {F_WO:#x}')
    A.i(f'v_mov_b32 v{VFL}, s{sT0}')
    A.i(f'v_and_b32 v{VT_}, 1, v0')
    A.i(f'v_lshlrev_b32 v{VT_}, 8, v{VT_}')
    A.i(f's_lshl_b32 s{sT0}, s80, 9')
    A.i(f's_add_u32 s{sT0}, s{sT0}, {F_QA:#x}')
    A.i(f'v_add_u32 v{VFQ}, s{sT0}, v{VT_}')
    A.i(f's_lshl_b32 s82, s80, 14')
    A.i(f's_add_u32 s82, s82, {OB:#x}')
    A.i(f's_mov_b32 s{sS}, 0')
    Ltop = A.newlabel('WOtop')
    A.label(Ltop)
    if sy.on:
        A.i(f's_and_b32 s{sT0}, s{sS}, 1')
        A.i(f's_lshl_b32 s{sT0}, s{sT0}, 7')
        A.i(f'v_add_u32 v11, s{sT0}, v{VFQ}')
        A.i(f's_add_u32 s{sT2}, s{sS}, 1')
        sy.wait(A, 11, VT_, sT2)
        sy.trace(A, VT_, sS, imm=110, wave=0, lim=40)
    A.i(f's_lshl_b32 s{sT0}, s{sS}, 18')
    A.i(f's_add_u32 s{sT0}, s{sT0}, s82')
    for ks in range(8):
        if ks and (ks & 1) == 0:
            A.i(f's_add_u32 s{sT0}, s{sT0}, 4096')
        for tt in range(2):
            A.i(f'buffer_load_dwordx4 {vr(XF+(ks*2+tt)*4,4)}, v{VPC}, {WSR}, s{sT0} offen offset:{(ks&1)*2048+tt*256} sc1')
    for ks in range(8):
        A.i(f's_waitcnt vmcnt({14-2*ks})')
        for t in range(4):
            for tt in range(2):
                d = vr(D + (t * 2 + tt) * 4, 4)
                c = '0' if ks == 0 else d
                A.i(f'v_mfma_f32_16x16x32_bf16 {d}, {ur(256+(ks*4+t)*4,4)}, {vr(XF+(ks*2+tt)*4,4)}, {c}')
    sy.trace(A, VT_, sS, imm=150, wave=0, lim=40)
    for q in range(8):
        A.i(f'ds_write_b128 v{VLW}, {vr(D+q*4,4)} offset:{q*1024}')
    A.i('s_waitcnt lgkmcnt(0)')
    A.i('s_barrier')
    for u in range(2):
        for w2 in range(4):
            A.i(f'ds_read_b128 {vr(RD+(u*4+w2)*4,4)}, v{VLR} offset:{w2*8192+u*1024}')
    A.i(f's_lshl_b32 s{sT0}, s{sS}, 18')
    A.i(f's_add_u32 s{sT0}, s{sT0}, s81')
    A.i(f's_add_u32 s{sT1}, s{sT0}, {16*2048}')
    for u in range(2):
        A.i(f's_waitcnt lgkmcnt({4-4*u})')
        b = RD + u * 16
        for r in range(4):
            A.i(f'v_add_f32 v{b+r}, v{b+r}, v{b+4+r}')
            A.i(f'v_add_f32 v{b+8+r}, v{b+8+r}, v{b+12+r}')
        for r in range(4):
            A.i(f'v_add_f32 v{b+r}, v{b+r}, v{b+8+r}')
        A.i(f'buffer_store_dwordx4 {vr(b,4)}, v{VST}, {WSR}, s{sT0 if u == 0 else sT1} offen sc1')
    sy.trace(A, VT_, sS, imm=190, wave=0, lim=40)
    if sy.on:
        A.i('s_waitcnt vmcnt(0)')
    A.i('s_barrier')
    if sy.on:
        Ls = A.newlabel('WOpub')
        A.i(f's_cmp_lg_u32 s{sW}, 0')
        A.i(f's_cbranch_scc1 {Ls}')
        A.i(f's_add_u32 s{sT0}, s{sS}, 1')
        sy.publish(A, VFL, VT_, sT0)
        A.label(Ls)
    A.i(f's_add_u32 s{sS}, s{sS}, 1')
    A.i(f's_cmp_lt_u32 s{sS}, 64')
    A.i(f's_cbranch_scc1 {Ltop}')


def role_r(A, sy):
    srd(A, S_A, P_X, 2048 * 1024)
    VFL, VFW, VT_ = 3, 4, 5
    GA, C1, SH, X, T, PK, XR, PT = 8, 16, 24, 32, 40, 52, 56, 64
    A.i('v_lshlrev_b32 v2, 5, v0')
    load_mod8(A, GA, 2)
    load_mod8(A, C1, 4)
    load_mod8(A, SH, 3)
    A.i(f's_and_b32 s78, s{sR}, 7')
    A.i(f's_lshl_b32 s78, s78, 2')
    A.i(f's_add_u32 s78, s78, s{sW}')
    A.i(f's_lshl_b32 s{sT0}, s{sR}, 7')
    A.i(f's_add_u32 s{sT0}, s{sT0}, {F_R:#x}')
    A.i(f'v_mov_b32 v{VFL}, s{sT0}')
    A.i(f'v_and_b32 v{VFW}, 31, v0')
    A.i(f'v_lshlrev_b32 v{VFW}, 7, v{VFW}')
    A.i(f'v_add_u32 v{VFW}, {F_WO:#x}, v{VFW}')
    A.i('s_waitcnt vmcnt(0)')
    one_plus(A, C1, VT_)
    A.i(f's_lshr_b32 s{sS}, s{sR}, 3')
    Ltop = A.newlabel('Rtop')
    A.label(Ltop)
    A.i(f's_lshl_b32 s79, s{sS}, 5')
    A.i(f's_add_u32 s79, s79, s78')
    A.i(f's_lshl_b32 s79, s79, 10')
    A.i(f'buffer_load_dwordx4 {vr(XR,4)}, v1, s[{S_A}:{S_A+3}], s79 offen')
    A.i(f's_add_u32 s{sT2}, s{sS}, 1')
    sy.wait(A, VFW, VT_, sT2)
    A.i(f's_lshl_b32 s{sT0}, s{sS}, 18')
    A.i(f's_lshl_b32 s{sT1}, s78, 11')
    A.i(f's_add_u32 s{sT0}, s{sT0}, s{sT1}')
    A.i(f's_add_u32 s{sT0}, s{sT0}, {PART:#x}')
    for kq in range(4):
        if kq:
            A.i(f's_add_u32 s{sT0}, s{sT0}, 0x10000')
        A.i(f'buffer_load_dwordx4 {vr(PT+kq*8,4)}, v2, {WSR}, s{sT0} offen sc1')
        A.i(f'buffer_load_dwordx4 {vr(PT+kq*8+4,4)}, v2, {WSR}, s{sT0} offen offset:16 sc1')
    A.i('s_waitcnt vmcnt(0)')
    for j in range(8):
        A.i(f'v_add_f32 v{PT+j}, v{PT+j}, v{PT+8+j}')
        A.i(f'v_add_f32 v{PT+16+j}, v{PT+16+j}, v{PT+24+j}')
    for j in range(8):
        A.i(f'v_add_f32 v{PT+j}, v{PT+j}, v{PT+16+j}')
    for j in range(4):
        round2(A, PT + 2 * j, PT + 2 * j + 1, T + j)
    for j in range(8):
        A.i(f'v_mul_f32 v{PT+j}, v{PT+j}, v{GA+j}')
    for j in range(4):
        round2(A, PT + 2 * j, PT + 2 * j + 1, T + j)
    for j in range(4):
        unpack(A, X + 2 * j, X + 2 * j + 1, XR + j)
    for j in range(8):
        A.i(f'v_add_f32 v{X+j}, v{X+j}, v{PT+j}')
    for j in range(4):
        A.i(f'v_cvt_pk_bf16_f32 v{XR+j}, v{X+2*j}, v{X+2*j+1}')
    A.i(f's_add_u32 s{sT0}, s79, {X1:#x}')
    A.i(f'buffer_store_dwordx4 {vr(XR,4)}, v1, {WSR}, s{sT0} offen sc1')
    for j in range(4):
        unpack(A, X + 2 * j, X + 2 * j + 1, XR + j)
    ln_core(A, X, T, C1, SH, PK)
    A.i(f's_add_u32 s{sT0}, s79, {H2:#x}')
    A.i(f'buffer_store_dwordx4 {vr(PK,4)}, v1, {WSR}, s{sT0} offen sc1')
    A.i('s_waitcnt vmcnt(0)')
    if sy.on:
        A.i('s_barrier')
        Ls = A.newlabel('Rpub')
        A.i(f's_cmp_lg_u32 s{sW}, 0')
        A.i(f's_cbranch_scc1 {Ls}')
        A.i(f's_add_u32 s{sT0}, s{sS}, 1')
        sy.publish(A, VFL, VT_, sT0)
        A.label(Ls)
    A.i(f's_add_u32 s{sS}, s{sS}, 2')
    A.i(f's_cmp_lt_u32 s{sS}, 64')
    A.i(f's_cbranch_scc1 {Ltop}')


def role_f1(A, sy):
    srd(A, S_A, P_WG, 512 * 3584)
    srd(A, S_B, P_WU, 512 * 3584)
    VDMA, VRD, VAB, VT_, VFL, VST, VWA = 2, 4, 12, 20, 22, 23, 24
    XF, D, PK, T = 32, 64, 80, 88
    natural_setup(A, 3, 25, 3584, 4)
    A.i(f's_lshl_b32 s77, s{sR}, 7')
    A.i(f's_lshl_b32 s{sT0}, s{sW}, 5')
    A.i(f's_add_u32 s77, s77, s{sT0}')
    ug = natural_units(S_A, 3, 77, 3584, 16, 1, 256, 25, tile_index=lambda ks, t: ks * 2)
    uu = natural_units(S_B, 3, 77, 3584, 16, 1, 256, 25, tile_index=lambda ks, t: ks * 2 + 1)
    load_weights(A, ug + uu, 128, 32, 4)
    t1_setup(A, VDMA, VRD)
    A.i(f's_lshl_b32 s{sT0}, s{sR}, 7')
    A.i(f's_add_u32 s{sT0}, s{sT0}, {F_F1:#x}')
    A.i(f'v_mov_b32 v{VFL}, s{sT0}')
    A.i(f'v_lshrrev_b32 v{VST}, 5, v0')
    A.i(f'v_lshlrev_b32 v{VST}, 9, v{VST}')
    A.i(f'v_and_b32 v{VT_}, 15, v0')
    A.i(f'v_lshl_add_u32 v{VST}, v{VT_}, 4, v{VST}')
    A.i(f'v_bfe_u32 v{VT_}, v0, 4, 1')
    A.i(f'v_lshl_add_u32 v{VST}, v{VT_}, 3, v{VST}')
    A.i(f's_lshl_b32 s77, s{sR}, 12')
    A.i(f's_lshl_b32 s{sT0}, s{sW}, 10')
    A.i(f's_add_u32 s77, s77, s{sT0}')
    A.i(f's_add_u32 s77, s77, {GU:#x}')
    A.i(f's_mov_b32 s{sS}, 0')

    def wait_src(sseg, blocking, Lnot):
        if not sy.on:
            return
        A.i(f's_and_b32 s{sT0}, s{sseg}, 1')
        A.i(f's_lshl_b32 s{sT0}, s{sT0}, 10')
        A.i(f's_add_u32 s{sT0}, s{sT0}, {F_R:#x}')
        A.i(f'v_and_b32 v{VWA}, 7, v0')
        A.i(f'v_lshlrev_b32 v{VWA}, 7, v{VWA}')
        A.i(f'v_add_u32 v{VWA}, s{sT0}, v{VWA}')
        A.i(f's_add_u32 s{sT2}, s{sseg}, 1')
        flag_test(A, sy, VWA, VT_, sT2, blocking, Lnot)

    def body():
        t1_compute(A, VRD, VAB, XF, 256, D, swapped=True)
        g = [D + i for i in range(8)]
        u = [D + 8 + i for i in range(8)]
        for k in range(0, 8, 2):
            round2(A, g[k], g[k + 1], T)
        for k in range(8):
            A.i(f'v_mul_f32 v{T+k}, s{sLOG2E}, v{g[k]}')
        for k in range(8):
            A.i(f'v_exp_f32 v{T+k}, -v{T+k}')
        for k in range(0, 8, 2):
            round2(A, u[k], u[k + 1], PK)
        for k in range(8):
            A.i(f'v_add_f32 v{T+k}, 1.0, v{T+k}')
        for k in range(8):
            A.i(f'v_rcp_f32 v{T+k}, v{T+k}')
        for k in range(8):
            A.i(f'v_mul_f32 v{g[k]}, v{g[k]}, v{T+k}')
        for k in range(0, 8, 2):
            round2(A, g[k], g[k + 1], T)
        for k in range(8):
            A.i(f'v_mul_f32 v{g[k]}, v{g[k]}, v{u[k]}')
        for k in range(4):
            A.i(f'v_cvt_pk_bf16_f32 v{PK+k}, v{g[2*k]}, v{g[2*k+1]}')
        A.i(f's_mul_i32 s{sT0}, s{sS}, 114688')
        A.i(f's_add_u32 s{sT0}, s{sT0}, s77')
        for tt in range(2):
            A.i(f'buffer_store_dwordx2 v[{PK+2*tt}:{PK+2*tt+1}], v{VST}, {WSR}, s{sT0} offen offset:{tt*256} sc1')

    t1_loop(A, sy, 'F1', 0, 1, H2, wait_src, body, VDMA, VRD, VAB, VT_, VFL)


def role_f2(A, sy):
    srd(A, S_A, P_WD, 1792 * 1024)
    srd(A, S_B, P_OUT, 2048 * 1024)
    VPC, VFQ, VT_, VLW, VLR, VST, GB = 2, 6, 7, 8, 9, 10, 12
    XF, D, RD, XR = 32, 144, 160, 176
    lane_woff(A, 3, 1024, 4, 4)
    A.i(f's_mul_i32 s77, s{sW}, {448*1024}')
    A.i(f's_lshl_b32 s{sT0}, s{sR}, 6')
    A.i(f's_add_u32 s77, s77, s{sT0}')
    load_weights(A, paired_units(S_A, 3, 77, 1024, 14, 256), 128, 32, 4)
    A.i(f'v_lshrrev_b32 v{VT_}, 4, v0')
    A.i(f'v_lshlrev_b32 v{VPC}, 9, v{VT_}')
    A.i(f'v_and_b32 v{VST}, 15, v0')
    A.i(f'v_lshl_add_u32 v{VPC}, v{VST}, 4, v{VPC}')
    A.i(f's_and_b32 s78, s{sW}, 1')
    A.i(f's_lshr_b32 s79, s{sW}, 1')
    A.i(f'v_lshlrev_b32 v{VST}, 10, v{VST}')
    A.i(f'v_lshl_add_u32 v{VST}, v{VT_}, 4, v{VST}')
    A.i(f's_lshl_b32 s{sT0}, s78, 14')
    A.i(f's_lshl_b32 s{sT1}, s{sR}, 6')
    A.i(f's_add_u32 s{sT0}, s{sT0}, s{sT1}')
    A.i(f's_lshl_b32 s{sT1}, s79, 3')
    A.i(f's_add_u32 s{sT0}, s{sT0}, s{sT1}')
    A.i(f'v_add_u32 v{VST}, s{sT0}, v{VST}')
    A.i(f'v_lshlrev_b32 v{VT_}, 5, v{VT_}')
    A.i(f's_lshl_b32 s{sT0}, s{sR}, 7')
    A.i(f's_lshl_b32 s{sT1}, s79, 4')
    A.i(f's_add_u32 s{sT0}, s{sT0}, s{sT1}')
    A.i(f's_add_u32 s{sT0}, s{sT0}, {MOD + 5*2048:#x}')
    A.i(f'buffer_load_dwordx4 {vr(GB,4)}, v{VT_}, {WSR}, s{sT0} offen sc1')
    A.i(f's_lshl_b32 s{sT0}, s{sW}, 12')
    A.i(f'v_add_u32 v{VLW}, s{sT0}, v1')
    A.i(f's_lshl_b32 s{sT0}, s78, 10')
    A.i(f's_lshl_b32 s{sT1}, s79, 3')
    A.i(f's_add_u32 s{sT0}, s{sT0}, s{sT1}')
    A.i(f'v_add_u32 v{VLR}, s{sT0}, v1')
    A.i(f'v_and_b32 v{VFQ}, 7, v0')
    A.i(f'v_min_u32 v{VFQ}, 6, v{VFQ}')
    A.i(f'v_lshlrev_b32 v{VFQ}, 7, v{VFQ}')
    A.i(f's_mul_i32 s{sT0}, s{sW}, {7*FL}')
    A.i(f's_add_u32 s{sT0}, s{sT0}, {F_F1:#x}')
    A.i(f'v_add_u32 v{VFQ}, s{sT0}, v{VFQ}')
    A.i(f's_mul_i32 s82, s{sW}, {56*512}')
    A.i(f's_add_u32 s82, s82, {GU:#x}')
    A.i(f's_mov_b32 s{sS}, 0')
    Ltop = A.newlabel('F2top')
    A.label(Ltop)
    A.i(f's_add_u32 s{sT2}, s{sS}, 1')
    sy.wait(A, VFQ, VT_, sT2)
    A.i(f's_mul_i32 s{sT0}, s{sS}, 114688')
    A.i(f's_add_u32 s{sT0}, s{sT0}, s82')
    for ks in range(14):
        if ks and (ks & 1) == 0:
            A.i(f's_add_u32 s{sT0}, s{sT0}, 4096')
        for tt in range(2):
            A.i(f'buffer_load_dwordx4 {vr(XF+(ks*2+tt)*4,4)}, v{VPC}, {WSR}, s{sT0} offen offset:{(ks&1)*2048+tt*256} sc1')
    A.i(f's_lshl_b32 s83, s{sS}, 15')
    A.i(f's_add_u32 s{sT0}, s83, {X1:#x}')
    A.i(f'buffer_load_dwordx2 {vr(XR,2)}, v{VST}, {WSR}, s{sT0} offen sc1')
    for ks in range(14):
        A.i(f's_waitcnt vmcnt({27-2*ks})')
        for t in range(2):
            for tt in range(2):
                d = vr(D + (t * 2 + tt) * 4, 4)
                c = '0' if ks == 0 else d
                A.i(f'v_mfma_f32_16x16x32_bf16 {d}, {ur(256+(ks*2+t)*4,4)}, {vr(XF+(ks*2+tt)*4,4)}, {c}')
    for q in range(4):
        A.i(f'ds_write_b128 v{VLW}, {vr(D+q*4,4)} offset:{q*1024}')
    A.i('s_waitcnt lgkmcnt(0)')
    A.i('s_barrier')
    for t in range(2):
        for w2 in range(4):
            A.i(f'ds_read_b64 {vr(RD+(t*4+w2)*2,2)}, v{VLR} offset:{w2*4096+t*2048}')
    A.i('s_waitcnt vmcnt(0) lgkmcnt(0)')
    A.i('s_barrier')
    for t in range(2):
        b = RD + t * 8
        for r in range(2):
            A.i(f'v_add_f32 v{b+r}, v{b+r}, v{b+2+r}')
            A.i(f'v_add_f32 v{b+4+r}, v{b+4+r}, v{b+6+r}')
        for r in range(2):
            A.i(f'v_add_f32 v{b+r}, v{b+r}, v{b+4+r}')
    f = [RD, RD + 8, RD + 1, RD + 9]
    round2(A, f[0], f[1], VT_)
    round2(A, f[2], f[3], VT_)
    for k in range(4):
        A.i(f'v_mul_f32 v{f[k]}, v{f[k]}, v{GB+k}')
    round2(A, f[0], f[1], VT_)
    round2(A, f[2], f[3], VT_)
    unpack(A, RD + 2, RD + 3, XR)
    unpack(A, RD + 4, RD + 5, XR + 1)
    for k in range(4):
        A.i(f'v_add_f32 v{f[k]}, v{f[k]}, v{RD+2+k}')
    A.i(f'v_cvt_pk_bf16_f32 v{XR}, v{f[0]}, v{f[1]}')
    A.i(f'v_cvt_pk_bf16_f32 v{XR+1}, v{f[2]}, v{f[3]}')
    A.i(f'buffer_store_dwordx2 {vr(XR,2)}, v{VST}, s[{S_B}:{S_B+3}], s83 offen')
    sy.trace(A, VT_, sS, imm=1, wave=0)
    A.i(f's_add_u32 s{sS}, s{sS}, 1')
    A.i(f's_cmp_lt_u32 s{sS}, 64')
    A.i(f's_cbranch_scc1 {Ltop}')


def h_wait_simple(A, sy, sseg, va, vtmp):
    if not sy.on:
        return
    Lok, Lall = A.newlabel('Hok'), A.newlabel('Hall')
    A.i('s_cmp_lg_u32 s87, 0')
    A.i(f's_cbranch_scc1 {Lok}')
    A.i(f's_cmp_ge_u32 s{sseg}, 8')
    A.i(f's_cbranch_scc1 {Lall}')
    h_flag_addr(A, va, sseg, sT0)
    A.i(f's_mov_b32 s{sT2}, 1')
    sy.wait(A, va, vtmp, sT2)
    A.i(f's_branch {Lok}')
    A.label(Lall)
    A.i(f'v_lshlrev_b32 v{va}, 7, v0')
    A.i(f'v_add_u32 v{va}, {F_H:#x}, v{va}')
    A.i(f's_mov_b32 s{sT2}, 8')
    sy.wait(A, va, vtmp, sT2)
    A.i('s_mov_b32 s87, 1')
    A.label(Lok)


def role_kv2(A, sy):
    srd(A, S_A, P_WK, 512 * 8192)
    srd(A, S_B, P_WV, 512 * 8192)
    VDMA, VRD, VAB, VT_, VFL, VST, VWA = 2, 4, 12, 20, 22, 23, 24
    XF, DK, DV, PK = 32, 64, 80, 96
    WKb, WVb = 256, 384
    dense_stage_setup(A, 3, 4, 78, 8192, 0, 5)
    A.i(f's_lshl_b32 s77, s{sR}, 8')
    A.i(f's_lshl_b32 s{sT0}, s{sW}, 6')
    A.i(f's_add_u32 s77, s77, s{sT0}')
    staged_load(A, dense_chunks(S_A, 77, 8192, 16, WKb) + dense_chunks(S_B, 77, 8192, 16, WVb), 3, 4, 78, 8, 128, 6)
    A.i('s_barrier')
    sy.trace(A, 5, None, imm=101, wave=0)
    t1_setup(A, VDMA, VRD)
    A.i(f's_lshl_b32 s{sT0}, s{sR}, 7')
    A.i(f's_add_u32 s{sT0}, s{sT0}, {F_KV:#x}')
    A.i(f'v_mov_b32 v{VFL}, s{sT0}')
    A.i(f's_lshl_b32 s77, s{sR}, 13')
    A.i(f's_lshl_b32 s{sT0}, s{sW}, 11')
    A.i(f's_add_u32 s77, s77, s{sT0}')
    A.i(f's_add_u32 s77, s77, {KX:#x}')
    A.i(f'v_lshrrev_b32 v{VST}, 4, v0')
    A.i(f'v_lshlrev_b32 v{VST}, 9, v{VST}')
    A.i(f'v_and_b32 v{VT_}, 15, v0')
    A.i(f'v_lshl_add_u32 v{VST}, v{VT_}, 4, v{VST}')
    A.i(f's_mov_b32 s{sS}, 0')
    A.i('s_mov_b32 s87, 0')
    A.i(f's_mov_b32 s72, {XB0}')
    if getattr(sy, 'single', False):
        ready_wait(A, VWA, VT_)
        A.i(f'v_add_u32 v{VWA}, {32*FL}, v{VFL}')
        A.i(f'v_mov_b32 v{VT_}, 1')
        A.i('s_mov_b64 exec, 1')
        A.i(f'buffer_store_dword v{VT_}, v{VWA}, {WSR}, 0 offen sc1')
        A.i('s_mov_b64 exec, -1')
    A.i('s_mov_b32 s74, 8')
    h_wait_simple(A, sy, 74, VWA, VT_)
    A.i(f's_mov_b32 s75, {H:#x}')
    t1_dma(A, VDMA, VT_, 75, 72)
    A.i('s_waitcnt vmcnt(0)')
    Ltop, Lnopf = A.newlabel('KVtop'), A.newlabel('KVnopf')
    A.label(Ltop)
    A.i('s_barrier')
    for k in range(8):
        A.i(f'v_add_u32 v{VAB+k}, s72, v{VRD+k}')

    def rd(ks):
        for tt in range(2):
            A.i(f'ds_read_b128 {vr(XF + (ks & 3) * 8 + tt * 4, 4)}, v{VAB + tt*4 + (ks & 3)} offset:{(ks >> 2) * 256}')
    for ks in range(3):
        rd(ks)
    for ks in range(16):
        if ks + 3 < 16:
            rd(ks + 3)
            A.i('s_waitcnt lgkmcnt(6)')
        else:
            A.i(f's_waitcnt lgkmcnt({2 * (15 - ks)})')
        for t in range(2):
            for tt in range(2):
                x = vr(XF + (ks & 3) * 8 + tt * 4, 4)
                d = vr(DK + (t * 2 + tt) * 4, 4)
                A.i(f'v_mfma_f32_16x16x32_bf16 {d}, {ur(WKb + (ks*2+t)*4, 4)}, {x}, {"0" if ks == 0 else d}')
                d = vr(DV + (t * 2 + tt) * 4, 4)
                A.i(f'v_mfma_f32_16x16x32_bf16 {d}, {x}, {ur(WVb + (ks*2+t)*4, 4)}, {"0" if ks == 0 else d}')
        if ks == 5:
            A.i('s_waitcnt vmcnt(0)')
            A.i('s_barrier')
            if sy.on:
                Ls = A.newlabel('KVpub')
                A.i(f's_cmp_lg_u32 s{sW}, 0')
                A.i(f's_cbranch_scc1 {Ls}')
                sy.publish(A, VFL, VT_, sS)
                A.label(Ls)
            A.i(f's_add_u32 s74, s{sS}, 1')
            A.i('s_cmp_ge_u32 s74, 64')
            A.i(f's_cbranch_scc1 {Lnopf}')
            h_wait_simple(A, sy, 74, VWA, VT_)
            A.i('s_lshl_b32 s75, s74, 15')
            A.i(f's_add_u32 s75, s75, {H:#x}')
            A.i(f's_xor_b32 s76, s72, {XBS}')
            t1_dma(A, VDMA, VT_, 75, 76)
            A.label(Lnopf)
    A.i(f's_lshl_b32 s{sT0}, s{sS}, 18')
    A.i(f's_add_u32 s{sT0}, s{sT0}, s77')
    A.i(f's_add_u32 s{sT1}, s{sT0}, {VT-KX:#x}')
    for tt in range(2):
        for r in range(4):
            A.i(f'v_cvt_pk_bf16_f32 v{PK+tt*4+r}, v{DK+tt*4+r}, v{DK+(2+tt)*4+r}')
        A.i(f'buffer_store_dwordx4 v[{PK+tt*4}:{PK+tt*4+3}], v{VST}, {WSR}, s{sT0} offen offset:{tt*256} sc1')
    for t in range(2):
        for tt in range(2):
            d = DV + (t * 2 + tt) * 4
            A.i(f'v_cvt_pk_bf16_f32 v{PK+8+t*4+tt*2}, v{d}, v{d+1}')
            A.i(f'v_cvt_pk_bf16_f32 v{PK+8+t*4+tt*2+1}, v{d+2}, v{d+3}')
        A.i(f'buffer_store_dwordx4 v[{PK+8+t*4}:{PK+8+t*4+3}], v1, {WSR}, s{sT1} offen offset:{t*1024} sc1')
    A.i(f's_xor_b32 s72, s72, {XBS}')
    A.i(f's_add_u32 s{sS}, s{sS}, 1')
    if sy.on:
        Lq, Ls = A.newlabel('KVq'), A.newlabel('KVpub')
        A.i(f's_cmp_gt_u32 s{sS}, 2')
        A.i(f's_cbranch_scc1 {Lq}')
        A.i('s_waitcnt vmcnt(0)')
        A.i('s_barrier')
        A.i(f's_cmp_lg_u32 s{sW}, 0')
        A.i(f's_cbranch_scc1 {Lq}')
        tr = sy.tr
        sy.tr = False
        sy.publish(A, VFL, VT_, sS)
        sy.tr = tr
        A.label(Lq)
    A.i('s_waitcnt vmcnt(4)')
    A.i(f's_cmp_lt_u32 s{sS}, 64')
    A.i(f's_cbranch_scc1 {Ltop}')
    if sy.on:
        A.i('s_waitcnt vmcnt(0)')
        A.i('s_barrier')
        Ls = A.newlabel('KVpub')
        A.i(f's_cmp_lg_u32 s{sW}, 0')
        A.i(f's_cbranch_scc1 {Ls}')
        sy.publish(A, VFL, VT_, sS)
        A.label(Ls)


def role_mod(A, sy, sidx):
    end = A.newlabel('Lmodend')
    srd(A, S_A, P_C, 1024)
    srd(A, S_B, P_WMOD, 512 * 6144)
    A.i(f's_lshl_b32 s{sT0}, s{sW}, 6')
    A.i(f'v_add_u32 v2, s{sT0}, v0')
    A.i('v_and_b32 v3, 7, v2')
    A.i('v_lshrrev_b32 v4, 3, v2')
    A.i('v_lshlrev_b32 v5, 5, v4')
    A.i(f'buffer_load_dwordx4 v[8:11], v5, s[{S_A}:{S_A+3}], 0 offen')
    A.i(f'buffer_load_dwordx4 v[12:15], v5, s[{S_A}:{S_A+3}], 0 offen offset:16')
    A.i(f's_mov_b32 s{sT1}, {16*6144}')
    A.i(f'v_mul_lo_u32 v6, v4, s{sT1}')
    A.i('v_lshl_add_u32 v6, v3, 4, v6')
    A.i(f's_lshl_b32 s{sT1}, s{sidx}, 7')
    for i in range(16):
        A.i(f's_add_u32 s{sT0}, s{sT1}, {i*6144}')
        A.i(f'buffer_load_dwordx4 v[{64+4*i}:{67+4*i}], v6, s[{S_B}:{S_B+3}], s{sT0} offen')
    A.i('s_waitcnt vmcnt(16)')
    for i in range(8):
        unpack(A, 16 + 2 * i, 17 + 2 * i, 8 + i)
    for i in range(16):
        A.i(f'v_mul_f32 v{32+i}, s{sLOG2E}, v{16+i}')
    for i in range(16):
        A.i(f'v_exp_f32 v{32+i}, -v{32+i}')
    for i in range(16):
        A.i(f'v_add_f32 v{32+i}, 1.0, v{32+i}')
    for i in range(16):
        A.i(f'v_rcp_f32 v{32+i}, v{32+i}')
    for i in range(16):
        A.i(f'v_mul_f32 v{16+i}, v{16+i}, v{32+i}')
    for i in range(8):
        round2(A, 16 + 2 * i, 17 + 2 * i, 48)
    for j in range(8):
        A.i(f'v_mov_b32 v{32+j}, 0')
    for i in range(16):
        A.i(f's_waitcnt vmcnt({15-i})')
        for d in range(4):
            unpack(A, 48, 49, 64 + 4 * i + d)
            A.i(f'v_fmac_f32 v{32+2*d}, v{16+i}, v48')
            A.i(f'v_fmac_f32 v{33+2*d}, v{16+i}, v49')
    A.i('v_lshlrev_b32 v5, 8, v4')
    A.i('v_lshl_add_u32 v5, v3, 5, v5')
    A.i('ds_write_b128 v5, v[32:35]')
    A.i('ds_write_b128 v5, v[36:39] offset:16')
    A.i('s_waitcnt lgkmcnt(0)')
    A.i('s_barrier')
    A.i(f's_cmp_lg_u32 s{sW}, 0')
    A.i(f's_cbranch_scc1 {end}')
    A.i('v_lshlrev_b32 v5, 2, v0')
    for i in range(32):
        A.i(f'ds_read_b32 v{64+i}, v5 offset:{i*256}')
        if i == 14 or i == 29:
            A.i('s_waitcnt lgkmcnt(0)')
    A.i('s_waitcnt lgkmcnt(0)')
    for st in (16, 8, 4, 2, 1):
        for i in range(st):
            A.i(f'v_add_f32 v{64+i}, v{64+i}, v{64+st+i}')
    A.i('v_cvt_pk_bf16_f32 v64, v64, v64')
    A.i('v_lshlrev_b32 v64, 16, v64')
    A.i(f's_lshl_b32 s{sT0}, s{sidx}, 8')
    A.i(f's_add_u32 s{sT0}, s{sT0}, {MOD:#x}')
    A.i(f'buffer_store_dword v64, v5, {WSR}, s{sT0} offen sc1')
    ready_wait(A, 6, 7)
    A.i(f's_lshl_b32 s{sT0}, s{sidx}, 7')
    A.i(f's_add_u32 s{sT0}, s{sT0}, {F_MOD:#x}')
    A.i('v_mov_b32 v6, 1')
    A.i('s_mov_b64 exec, 1')
    A.i(f'buffer_store_dword v6, off, {WSR}, s{sT0} sc1')
    A.i('s_mov_b64 exec, -1')
    sy.trace(A, 6, None, imm=0)
    A.label(end)


def role_zero(A):
    for i in range(4):
        A.i(f'v_mov_b32 v{4+i}, 0')
    A.i(f's_lshl_b32 s{sT0}, s{sW}, 10')
    A.i(f's_add_u32 s{sT0}, s{sT0}, {FLAGS:#x}')
    for i in range(NFLAG * FL // 4096):
        A.i(f'buffer_store_dwordx4 v[4:7], v1, {WSR}, s{sT0} offen sc1')
        A.i(f's_add_u32 s{sT0}, s{sT0}, 4096')
    A.i('s_waitcnt vmcnt(0)')
    A.i('s_barrier')
    A.i('v_mov_b32 v5, 1')
    A.i('s_mov_b64 exec, 1')
    A.i(f'global_store_dword v4, v5, s[{P_DBG}:{P_DBG+1}] offset:{DBG_READY} sc1')
    A.i('s_mov_b64 exec, -1')


def mod_wait(A, sy, first, count, va, vt):
    ready_wait(A, va, vt)
    A.i(f'v_min_u32 v{va}, {count-1}, v0')
    A.i(f'v_lshlrev_b32 v{va}, 7, v{va}')
    A.i(f'v_add_u32 v{va}, {F_MOD + first*FL:#x}, v{va}')
    A.i(f's_mov_b32 s{sT2}, 1')
    sy.wait(A, va, vt, sT2)


def defer_to_chain(A, sy, va, vt):
    if not getattr(sy, 'single', False) or 'defer' not in getattr(sy, 'opts', set()):
        return
    ready_wait(A, va, vt)
    A.i(f's_and_b32 s{sT0}, s{sR}, 31')
    A.i(f's_lshl_b32 s{sT0}, s{sT0}, 7')
    A.i(f's_add_u32 s{sT0}, s{sT0}, {F_KV + 32*FL:#x}')
    A.i(f'v_mov_b32 v{va}, s{sT0}')
    A.i(f's_mov_b32 s{sT2}, 1')
    sy.wait(A, va, vt, sT2, sleep=8)


def staged_load(A, chunks, vdma, vrd, slds, nslots, tmp, ptmp, pre_issue=None, extra_out=0):
    def issue(c):
        srd_s, sbase, offs, _, _ = chunks[c]
        assert len(offs) == 4
        A.i(f's_add_u32 s{sT1}, s{slds}, {(c % nslots) * 4096}')
        for i, off in enumerate(offs):
            if i:
                A.i(f's_add_u32 s{sT1}, s{sT1}, 1024')
            A.i(f's_mov_b32 m0, s{sT1}')
            A.i(f's_add_u32 s{sT0}, s{sbase}, {off:#x}')
            A.i(f'buffer_load_dwordx4 v{vdma}, s[{srd_s}:{srd_s+3}], s{sT0} offen lds')
    n = len(chunks)
    for c in range(min(nslots, n)):
        issue(c)
    if pre_issue:
        pre_issue()
    for c in range(n):
        younger = 4 * (min(c + nslots, n) - c - 1)
        A.i(f's_waitcnt vmcnt({younger})')
        outs = chunks[c][3]
        for k in range(8):
            blk = (c % nslots) * 16 + 2 * k
            A.i(f'ds_read2st64_b32 {vr(tmp + 2*k, 2)}, v{vrd} offset0:{blk} offset1:{blk+1}')
        for k in range(8):
            A.i(f's_waitcnt lgkmcnt({7-k})')
            lo, hi = outs[k]
            perm_to(A, lo, tmp + 2 * k + 1, tmp + 2 * k, f's{SELLO}', ptmp)
            perm_to(A, hi, tmp + 2 * k + 1, tmp + 2 * k, f's{SELHI}', ptmp + 1)
        if chunks[c][4]:
            chunks[c][4]()
        if c + nslots < n:
            issue(c + nslots)


def dense_chunks(srd_s, sbase, rs, nks, wbase):
    ch = []
    for k2 in range(0, nks, 2):
        offs = [(32 * (k2 + (i >> 1)) + 4 * (i & 1)) * rs for i in range(4)]
        outs = []
        for kk in range(2):
            for i in range(4):
                ks = k2 + kk
                outs.append((wbase + (ks * 2) * 4 + i, wbase + (ks * 2 + 1) * 4 + i))
        ch.append((srd_s, sbase, offs, outs, None))
    return ch


def dense_stage_setup(A, vdma, vrd, slds, rs, lds0, tmp):
    A.i(f'v_bfe_u32 v{tmp}, v0, 2, 2')
    A.i(f'v_lshlrev_b32 v{tmp}, 3, v{tmp}')
    A.i(f'v_lshrrev_b32 v{vdma}, 4, v0')
    A.i(f'v_add_u32 v{tmp}, v{tmp}, v{vdma}')
    A.i(f's_mov_b32 s{sT0}, {rs}')
    A.i(f'v_mul_lo_u32 v{vdma}, v{tmp}, s{sT0}')
    A.i(f'v_and_b32 v{tmp}, 3, v0')
    A.i(f'v_lshl_add_u32 v{vdma}, v{tmp}, 4, v{vdma}')
    A.i(f's_lshl_b32 s{slds}, s{sW}, 15')
    if lds0:
        A.i(f's_add_u32 s{slds}, s{slds}, {lds0}')
    A.i(f'v_lshlrev_b32 v{vrd}, 2, v0')
    A.i(f'v_add_u32 v{vrd}, s{slds}, v{vrd}')
```

```python
import sys
from common import *
import roles, chain, post

NAME = 'adaLN_cond__memory_aug_recurrent_mem_tr__swiglu_ffn__prompt'
HEADER = open('cdna_kernels/%s.s.ref' % NAME).read().split('; Override launch')[0]
L_TICK = 163584
LDS_ALL = 163840


def kd(name, vgpr=512, accum=256, sgpr=102):
    return f'''.section .rodata,"a"
.p2align 6
.amdhsa_kernel {name}
  .amdhsa_next_free_vgpr {vgpr}
  .amdhsa_next_free_sgpr {sgpr}
  .amdhsa_accum_offset {accum}
  .amdhsa_group_segment_fixed_size 0
  .amdhsa_kernarg_size 128
  .amdhsa_user_sgpr_count 2
  .amdhsa_user_sgpr_kernarg_segment_ptr 1
  .amdhsa_system_sgpr_workgroup_id_x 1
  .amdhsa_float_denorm_mode_32 3
.end_amdhsa_kernel
.text
'''


def start(A, name):
    A.raw(f'.globl {name}\n.p2align 8\n.type {name},@function\n{name}:')
    A.hist = []


def ticket(A, single=False):
    L = A.newlabel('Ltk')
    A.i(f's_getreg_b32 s{sT3}, hwreg(HW_REG_XCC_ID, 0, 4)')
    A.i(f's_and_b32 s{sT3}, s{sT3}, 7')
    A.i(f'v_mov_b32 v2, {L_TICK}')
    A.i(f's_cmp_lg_u32 s{sW}, 0')
    A.i(f's_cbranch_scc1 {L}')
    A.i('v_mov_b32 v3, 1')
    A.i('s_mov_b64 exec, 1')
    if single:
        A.i(f's_lshl_b32 s{sT0}, s{sT3}, 5')
        A.i(f'v_mov_b32 v4, s{sT0}')
        A.i(f'global_atomic_add v3, v4, v3, s[{P_DBG}:{P_DBG+1}] sc0')
    else:
        A.i(f's_lshl_b32 s{sT0}, s{sT3}, 7')
        A.i(f's_add_u32 s{sT0}, s{sT0}, {F_TICKET:#x}')
        A.i(f'buffer_atomic_add v3, off, {roles.WSR}, s{sT0} sc0')
    A.i('s_waitcnt vmcnt(0)')
    A.i('ds_write_b32 v2, v3')
    A.i('s_mov_b64 exec, -1')
    A.i('s_waitcnt lgkmcnt(0)')
    A.label(L)
    A.i('s_barrier')
    A.i('ds_read_b32 v3, v2')
    A.i('s_waitcnt lgkmcnt(0)')
    A.i(f'v_readfirstlane_b32 s{sT4}, v3')


def build(mode):
    A = Asm()
    launches = []
    kds = []

    def kernel(name, nwg, body, lds, vgpr=512, accum=256):
        start(A, name)
        end = A.newlabel('Lend')
        if mode.startswith('trace'):
            A.i('s_memrealtime s[96:97]')
        prologue(A, nwg, end)
        body(end)
        A.label(end)
        A.i('s_endpgm')
        if name == 'main_kernel':
            A.raw('Lcode_end:')
        launches.append(f'; @launch kernel={name} grid=({nwg},1,1) block=(256,1,1) lds={lds}')
        kds.append(kd(name, vgpr, accum))

    single = not (mode.startswith('cb') or mode == 'multi' or 'two' in mode)
    if not single:
        kernel('init_kernel', 120, lambda end: roles.role_init(A, end), 8192, 128, 128)
    if mode.startswith('cb'):
        sy = Sync(False, trace=True)
        sy.opts = set(mode.split('_')[1:])
        for o in sy.opts:
            if o[0] == 'd' and '=' in o:
                setattr(sy, o.split('=')[0], int(o.split('=')[1]))

        def chain_body(end):
            ticket(A)
            A.i(f's_cmp_lg_u32 s{sT3}, 0')
            A.i(f's_cbranch_scc1 {end}')
            A.i(f's_cmp_ge_u32 s{sT4}, 32')
            A.i(f's_cbranch_scc1 {end}')
            A.i(f's_mov_b32 s{sR}, s{sT4}')
            A.i(f's_lshl_b32 s100, s{sT4}, 10')
            A.i(f's_add_u32 s100, s100, {TRACE:#x}')
            chain.role_chain(A, sy, end)
        kernel('chain_kernel', 256, chain_body, LDS_ALL)
    elif mode == 'multi':
        sy = Sync(False)

        def simple(fn):
            def body(end):
                A.i(f's_mov_b32 s{sR}, s2')
                fn()
            return body
        kernel('ln1_kernel', 64, simple(lambda: roles.role_ln1(A, sy, sR)), 0)
        kernel('k_kernel', 32, simple(lambda: roles.role_kv(A, sy, False)), LDS_ALL)
        kernel('v_kernel', 32, simple(lambda: roles.role_kv(A, sy, True)), LDS_ALL)

        def chain_body(end):
            ticket(A)
            A.i(f's_cmp_lg_u32 s{sT3}, 0')
            A.i(f's_cbranch_scc1 {end}')
            A.i(f's_cmp_ge_u32 s{sT4}, 32')
            A.i(f's_cbranch_scc1 {end}')
            A.i(f's_mov_b32 s{sR}, s{sT4}')
            chain.role_chain(A, sy, end)
        kernel('chain_kernel', 256, chain_body, LDS_ALL)
        kernel('qa_kernel', 64, simple(lambda: roles.role_qa(A, sy)), LDS_ALL)
        kernel('wo_kernel', 32, simple(lambda: roles.role_wo(A, sy)), LDS_ALL)
        kernel('r_kernel', 16, simple(lambda: roles.role_r(A, sy)), 0)
        kernel('f1_kernel', 28, simple(lambda: roles.role_f1(A, sy)), LDS_ALL)
        kernel('f2_kernel', 16, simple(lambda: roles.role_f2(A, sy)), LDS_ALL)
    else:
        sy = Sync(True, trace=mode.startswith('trace'))
        sy.opts = set(mode.split('_')[1:])
        for o in sy.opts:
            if o[0] == 'd' and '=' in o:
                setattr(sy, o.split('=')[0], int(o.split('=')[1]))

        sy.single = single

        def main_body(end):
            if 'code' in sy.opts:
                A.i('s_getpc_b64 s[40:41]')
                A.i('s_and_b32 s40, s40, 0xffffff00')
                A.i('s_and_b32 s41, s41, 0xffff')
                A.i('s_mov_b32 s42, Lcode_end-main_kernel-512')
                A.i('s_lshr_b32 s59, s2, 3')
                A.i('s_and_b32 s59, s59, 31')
                A.i('s_lshl_b32 s59, s59, 12')
                A.i(f's_lshl_b32 s60, s{sW}, 10')
                A.i('s_add_u32 s59, s59, s60')
                A.i('buffer_load_dwordx4 v[8:11], v1, s[40:43], s59 offen')
            ticket(A, single)
            if 'dbg' in sy.opts:
                dbg_stamp(A, 2, 3, 4)
            A.i(f's_cmp_ge_u32 s{sT4}, 32')
            A.i(f's_cbranch_scc1 {end}')
            A.i(f's_mov_b32 s{sR}, s{sT4}')
            if sy.tr:
                A.i(f's_lshl_b32 s100, s{sT3}, 5')
                A.i(f's_add_u32 s100, s100, s{sT4}')
                A.i('s_lshl_b32 s100, s100, 10')
                A.i(f's_add_u32 s100, s100, {TRACE:#x}')
                sy.trace(A, 3, None, imm=255, wave=0)
                A.i('v_mov_b32 v3, s96')
                A.i(f'buffer_store_dword v3, off, {roles.WSR}, s100 offset:{254*4}')
            labs = [A.newlabel('Lx%d' % i) for i in range(8)]
            for x in range(1, 8):
                A.i(f's_cmp_eq_u32 s{sT3}, {x}')
                A.i(f's_cbranch_scc1 {labs[x]}')
            chain.role_chain(A, sy, end)
            A.label(labs[1])
            roles.role_kv2(A, sy)
            A.i(f's_branch {end}')
            A.label(labs[3])
            A.i(f's_add_u32 s{sR}, s{sR}, 32')
            A.label(labs[2])
            roles.role_qa(A, sy)
            A.i(f's_branch {end}')
            A.label(labs[5])
            A.i(f's_add_u32 s{sR}, s{sR}, 32')
            A.label(labs[4])
            A.i(f's_mov_b32 s90, s{sT3}')
            sy.pub_base = -1 if False else 240
            roles.role_ln1(A, sy, sR)
            sy.pub_base = 0
            A.i(f's_and_b32 s{sR}, s{sR}, 31')
            A.i(f's_mov_b32 s{sT3}, s90')
            Lpost = A.newlabel('Lpost')
            A.i(f's_branch {Lpost}')
            A.label(labs[7])
            A.i(f's_add_u32 s{sR}, s{sR}, 32')
            A.label(labs[6])
            if single:
                Lnomod, Lnoz = A.newlabel('Lnomod'), A.newlabel('Lnoz')
                A.i(f's_mov_b32 s90, s{sT3}')
                A.i(f's_cmp_ge_u32 s{sR}, 48')
                A.i(f's_cbranch_scc1 {Lnomod}')
                roles.role_mod(A, sy, sR)
                A.i('s_barrier')
                A.label(Lnomod)
                A.i(f's_cmp_lg_u32 s{sR}, 48')
                A.i(f's_cbranch_scc1 {Lnoz}')
                roles.role_zero(A)
                A.label(Lnoz)
                A.i(f's_mov_b32 s{sT3}, s90')
            A.i(f's_and_b32 s{sR}, s{sR}, 31')
            A.label(Lpost)
            A.i(f's_sub_u32 s90, s{sT3}, 4')
            post.role_post(A, sy, 90)
            if 'dbg' in sy.opts:
                dbg_stamp(A, 6, 3, 4)
        kernel('main_kernel', 256, main_body, LDS_ALL)
    out = HEADER + '\n'.join(launches) + '\n'
    out += '.amdgcn_target "amdgcn-amd-amdhsa--gfx950"\n.text\n'
    out += A.text()
    out += ''.join(kds)
    return out, A


if __name__ == '__main__':
    mode = sys.argv[1]
    path = sys.argv[2]
    out, A = build(mode)
    open(path, 'w').write(out)
    print('instructions', A.ninstr, 'nop states', A.nops, 'bytes', len(out))
```

```python
from common import *
from roles import load_weights, staged_load, WSR

L_MEM = 131072
L_KX = 139264
L_VX = 147456
L_OI = 155648
L_QI = L_OI + 2048
L_KI = L_QI + 2304
L_SEL = L_KI + 2304 + 64
L_VI = L_QI
QS = 288

vWV, vL2, vKX, vIDX, vQW, vQR, vPST, vX1, vX2, vVW, vOR, vOW, vLW, vT0 = range(2, 16)
vPF = 0
RA, RB, RC, RD = 16, 48, 80, 112
WK, WV, WQR, WOR = 256, 384, 128, 192
sPC, sPC2, sMC, sFLG, sKVF, sKVS, sOUT, sNX, sDST, sRST, sH1, sFA = range(72, 84)
sHF = 84
sLF = 86
sIO = 88
sSC2 = 90
sRP, sRM = 92, 93
sKS, sVS, sPFA, sPFD = 94, 95, 96, 97
sD2, sNV, sS1 = 65, 71, 3
sTG, sTGP = 16, 17


def emit(A, x):
    if callable(x):
        x()
    else:
        A.i(x)


def mix(A, mf, fill, per=2, start=0):
    fill = list(fill)
    for k, m in enumerate(mf):
        emit(A, m)
        if k >= start:
            for _ in range(per):
                if fill:
                    emit(A, fill.pop(0))
    for f in fill:
        emit(A, f)


def role_chain(A, sy, end, nsteps=64):
    opts = getattr(sy, 'opts', set())
    sH = sR
    srd(A, S_A, P_WQ, 512 * 8192)
    srd(A, S_B, P_WK, 512 * 8192)
    srd(A, S_C, P_WV, 512 * 8192)
    srd(A, S_D, P_WO, 4096 * 1024)
    G, N, G1, TT, TA, TB, WA, WB, LN = 16, 17, 18, 19, 20, 21, 32, 33, 34
    A.i(f'v_mov_b32 v{LN}, v0')
    A.i(f'v_lshrrev_b32 v{G}, 4, v0')
    A.i(f'v_and_b32 v{N}, 15, v0')
    A.i(f'v_and_b32 v{G1}, 1, v{G}')
    A.i(f'v_lshrrev_b32 v{TT}, 5, v0')
    A.i(f'v_lshlrev_b32 v{vPF}, 3, v1')
    A.i(f's_lshl_b32 s{sT0}, s{sW}, 15')
    A.i(f'v_add_u32 v{vWV}, s{sT0}, v1')
    A.i(f'v_add_u32 v{vL2}, {L_MEM}, v1')
    A.i(f's_lshl_b32 s{sT0}, s{sW}, 11')
    A.i(f'v_add_u32 v{vLW}, s{sT0}, v{vL2}')
    A.i(f'v_lshlrev_b32 v{vKX}, 9, v{G}')
    A.i(f'v_lshl_add_u32 v{vKX}, v{N}, 4, v{vKX}')
    A.i(f'v_add_u32 v{vKX}, {L_KX}, v{vKX}')
    A.i(f's_mov_b32 s{sHF}, 0xff00ff00')
    A.i(f's_mov_b32 s{sHF+1}, 0xff00ff00')
    A.i(f's_mov_b32 s{sLF}, 0x00ff00ff')
    A.i(f's_mov_b32 s{sLF+1}, 0x00ff00ff')
    A.i(f's_mov_b32 s{sSC2}, {SCALE:#x}')
    A.i(f's_mov_b32 s{sSC2+1}, {SCALE:#x}')
    A.i(f's_cmp_eq_u32 s{sW}, 3')
    A.i(f's_cselect_b32 s{sIO}, 1, 0')
    A.i(f's_mov_b32 s{sIO+1}, 0')
    A.i(f'v_mov_b32 v{vIDX}, 0x4444')
    A.i(f'v_mov_b32 v{TA}, 0xeeee')
    A.i(f'v_cndmask_b32 v{vIDX}, v{vIDX}, v{TA}, s[{sHF}:{sHF+1}]')
    A.i(f'v_lshlrev_b32 v{TA}, 1, v{G1}')
    A.i(f'v_add_u32 v{TA}, v{TA}, v{TT}')
    A.i(f'v_mul_u32_u24 v{vQW}, {2*QS}, v{TA}')
    A.i(f'v_lshl_add_u32 v{vQW}, v{N}, 2, v{vQW}')
    A.i(f's_lshl_b32 s{sT0}, s{sW}, 6')
    A.i(f's_add_u32 s{sT0}, s{sT0}, {L_QI}')
    A.i(f'v_add_u32 v{vQW}, s{sT0}, v{vQW}')
    A.i(f'v_lshrrev_b32 v{vPST}, 1, v{N}')
    A.i(f'v_lshlrev_b32 v{vPST}, 13, v{vPST}')
    A.i(f'v_lshl_add_u32 v{vPST}, v{G}, 4, v{vPST}')
    A.i(f'v_and_b32 v{TB}, 1, v{N}')
    A.i(f'v_lshl_add_u32 v{vPST}, v{TB}, 6, v{vPST}')
    A.i(f's_lshl_b32 s{sT0}, s{sW}, 16')
    A.i(f's_lshl_b32 s{sT1}, s{sH}, 7')
    A.i(f's_add_u32 s{sT0}, s{sT0}, s{sT1}')
    A.i(f'v_add_u32 v{vPST}, s{sT0}, v{vPST}')
    A.i(f'v_lshlrev_b32 v{vVW}, 8, v{TT}')
    A.i(f'v_lshl_add_u32 v{vVW}, v{N}, 4, v{vVW}')
    A.i(f'v_lshl_add_u32 v{vVW}, v{G1}, 3, v{vVW}')
    A.i(f's_lshl_b32 s{sT0}, s{sW}, 9')
    A.i(f's_add_u32 s{sT0}, s{sT0}, {L_VI}')
    A.i(f'v_add_u32 v{vVW}, s{sT0}, v{vVW}')
    A.i(f'v_and_b32 v{TA}, 7, v{N}')
    A.i(f'v_mul_u32_u24 v{vQR}, {QS}, v{TA}')
    A.i(f'v_lshl_add_u32 v{vQR}, v{G}, 4, v{vQR}')
    A.i(f'v_add_u32 v{vQR}, {L_QI}, v{vQR}')
    A.i(f'v_lshlrev_b32 v{vOR}, 7, v{G}')
    A.i(f'v_lshl_add_u32 v{vOR}, v{TA}, 4, v{vOR}')
    A.i(f'v_add_u32 v{vOR}, {L_OI}, v{vOR}')
    A.i(f's_lshl_b32 s{sT0}, s{sW}, 9')
    A.i(f'v_add_u32 v{vOW}, s{sT0}, v{vOR}')
    A.i(f'v_lshlrev_b32 v{vX1}, 6, v{TB}')
    A.i(f'v_lshl_add_u32 v{vX1}, v{G1}, 4, v{vX1}')
    A.i(f'v_bfe_u32 v{TA}, v{N}, 2, 1')
    A.i(f'v_lshl_add_u32 v{vX1}, v{TA}, 7, v{vX1}')
    A.i(f'v_bfe_u32 v{TA}, v{N}, 1, 1')
    A.i(f'v_lshl_add_u32 v{vX1}, v{TA}, 3, v{vX1}')
    A.i(f's_lshl_b32 s{sT0}, s{sH}, 8')
    A.i(f's_and_b32 s{sT1}, s{sW}, 1')
    A.i(f's_lshl_b32 s{sT2}, s{sT1}, 5')
    A.i(f's_add_u32 s{sT0}, s{sT0}, s{sT2}')
    A.i(f'v_add_u32 v{vX1}, s{sT0}, v{vX1}')
    A.i(f'v_mov_b32 v{vX2}, 0')
    A.i(f's_lshl_b32 s{sH1}, s{sH}, 13')
    A.i(f's_lshl_b32 s{sT2}, s{sT1}, 12')
    A.i(f's_add_u32 s{sH1}, s{sH1}, s{sT2}')
    A.i(f's_lshl_b32 s{sT0}, s{sH}, 7')
    A.i(f's_add_u32 s{sKVF}, s{sT0}, {F_KV:#x}')
    A.i(f's_add_u32 s{sFLG}, s{sT0}, {F_CH:#x}')
    A.i(f's_lshl_b32 s{sT0}, s{sH}, 11')
    A.i(f's_lshr_b32 s{sT2}, s{sW}, 1')
    A.i(f's_lshl_b32 s{sT2}, s{sT2}, 22')
    A.i(f's_add_u32 s{sOUT}, s{sT0}, s{sT2}')
    A.i(f's_lshl_b32 s{sT2}, s{sT1}, 10')
    A.i(f's_add_u32 s{sOUT}, s{sOUT}, s{sT2}')
    A.i(f's_add_u32 s{sOUT}, s{sOUT}, {KM:#x}')
    A.i(f's_lshl_b32 s{sT0}, s{sH}, 13')
    A.i(f's_lshl_b32 s{sT2}, s{sW}, 11')
    A.i(f's_add_u32 s{sRST}, s{sT0}, s{sT2}')
    A.i(f's_add_u32 s{sNX}, s{sRST}, {KX:#x}')
    A.i(f's_add_u32 s{sDST}, s{sT2}, {L_KX}')
    A.i(f's_lshl_b32 s{sPFD}, s{sT1}, 24')
    A.i(f's_sub_u32 s{sPFD}, s{sPFD}, s{sT2}')
    A.i(f's_mov_b32 s{sKVS}, {0 if sy.on else 64}')
    A.i(f's_cmp_eq_u32 s{sW}, 2')
    A.i(f's_cselect_b32 s{sKS}, 0xffff, %s' % ('0xffff' if 'allm' in opts else '0'))
    A.i(f's_mov_b32 s{sVS}, 0')
    A.i(f'v_lshlrev_b32 v{TA}, 1, v{G1}')
    A.i(f'v_add_u32 v{TA}, v{TA}, v{TT}')
    A.i(f'v_lshlrev_b32 v{vX2}, 9, v{TA}')
    A.i(f'v_lshl_add_u32 v{vX2}, v{N}, 3, v{vX2}')
    A.i(f's_lshl_b32 s{sT0}, s{sW}, 7')
    A.i(f'v_add_u32 v{vX2}, s{sT0}, v{vX2}')
    A.i(f'v_add_u32 v{vVW}, {VM-KM-L_VI:#x}, v{vVW}')
    A.i(f's_lshl_b32 s{sOUT}, s{sH}, 11')
    A.i(f's_add_u32 s{sOUT}, s{sOUT}, {KM - 0x10000:#x}')
    for c in range(4):
        A.i(f'v_mov_b32 v{24+c}, 0')
        A.i(f'v_cmp_eq_u32 vcc, {2*c}, v{N}')
        A.i(f'v_mov_b32 v{TA}, 0x3f80')
        A.i(f'v_cndmask_b32 v{24+c}, v{24+c}, v{TA}, vcc')
        A.i(f'v_cmp_eq_u32 vcc, {2*c+1}, v{N}')
        A.i(f'v_mov_b32 v{TA}, 0x3f800000')
        A.i(f'v_cndmask_b32 v{24+c}, v{24+c}, v{TA}, vcc')
    A.i(f'ds_write_b128 v{vL2}, v[24:27] offset:{L_SEL-L_MEM}')
    single = getattr(sy, 'single', False)
    if single:
        for i in range(4):
            A.i(f'v_mov_b32 v{24+i}, -1')
        A.i(f's_add_u32 s{sT0}, s{sRST}, {XP:#x}')
        for i in range(2):
            A.i(f'buffer_store_dwordx4 v[24:27], v1, {WSR}, s{sT0} offen offset:{i*1024}')
        A.i(f's_lshl_b32 s{sT0}, s{sW}, 13')
        A.i(f's_lshl_b32 s{sT1}, s{sH}, 8')
        A.i(f's_add_u32 s{sT0}, s{sT0}, s{sT1}')
        A.i(f's_add_u32 s{sT0}, s{sT0}, {XM:#x}')
        A.i('s_mov_b64 exec, 0xffff')
        A.i(f'buffer_store_dwordx4 v[24:27], v1, {WSR}, s{sT0} offen')
        A.i('s_mov_b64 exec, -1')
    A.i(f'v_lshrrev_b32 v{TA}, 1, v{G}')
    A.i(f'v_lshlrev_b32 v{WA}, 17, v{TA}')
    A.i(f'v_lshl_add_u32 v{WA}, v{G1}, 15, v{WA}')
    A.i(f'v_lshl_add_u32 v{WA}, v{N}, 2, v{WA}')
    A.i(f'v_lshlrev_b32 v{WB}, 12, v{G}')
    A.i(f'v_lshl_add_u32 v{WB}, v{N}, 4, v{WB}')
    sWA, sWB = sT4, sT5
    A.i(f's_lshl_b32 s{sWA}, s{sH}, 8')
    A.i(f's_lshl_b32 s{sT0}, s{sW}, 6')
    A.i(f's_add_u32 s{sWA}, s{sWA}, s{sT0}')
    A.i(f's_lshl_b32 s{sWB}, s{sH}, 17')
    A.i(f's_lshl_b32 s{sT0}, s{sW}, 8')
    A.i(f's_add_u32 s{sWB}, s{sWB}, s{sT0}')

    sWAp, sWBp = [4, 5, 6, 7], [8, 9, 10, 11]
    A.i(f's_mov_b32 s12, s{P_MEM0}')
    A.i(f's_mov_b32 s13, s{P_MEM0+1}')
    for p in range(4):
        A.i(f's_xor_b32 s{sT0}, s{sW}, {p}')
        A.i(f's_lshl_b32 s{sT1}, s{sT0}, 20')
        A.i(f's_add_u32 s{sWAp[p]}, s{sWA}, s{sT1}')
        A.i(f's_lshl_b32 s{sT1}, s{sT0}, 15')
        A.i(f's_add_u32 s{sWBp[p]}, s{sWB}, s{sT1}')

    def mem_units(srd_s, dst, ks_list):
        u = []
        for ks in ks_list:
            for r in range(8):
                d0 = 64 * (ks & 1) + 32 * (r >> 2) + 8 * (r & 1) + 2 * ((r >> 1) & 1)
                u.append((srd_s, WA, sWAp[ks >> 1], d0 * 8192, (d0 + 1) * 8192, 1,
                          [(dst(ks * 2) + r, 0, f's{SELLO}'), (dst(ks * 2 + 1) + r, 0, f's{SELHI}')]))
        return u

    def o_units(dst, ks_list):
        u = []
        for ks in ks_list:
            for uu in range(4):
                e0 = 16 * (uu >> 1) + 2 * (uu & 1)
                outs = []
                for cg in range(4):
                    for st in range(2):
                        outs.append((dst(ks * 4 + cg) + 2 * uu + st, 2 * st + (cg >> 1),
                                     f's{SELHI if (cg & 1) else SELLO}'))
                u.append((S_D, WB, sWBp[ks], e0 * 1024, (e0 + 1) * 1024, 4, outs))
        return u

    WO_STREAM = [0, 1, 2, 3, 4, 13, 14, 15]
    def spill(first_reg, nfrag, lds_frag0):
        for f in range(nfrag):
            for hq in range(2):
                A.i(f'ds_write_b128 v{vWV}, {vr(first_reg + f*8 + hq*4, 4)} offset:{(lds_frag0 + f)*2048 + hq*1024}')
            A.i('s_waitcnt lgkmcnt(0)')
    def spill_u(first_u, lds_frag):
        for hq in range(2):
            A.i(f'ds_write_b128 v{vWV}, {ur(first_u + hq*4, 4)} offset:{lds_frag*2048 + hq*1024}')
    def o_home(p):
        return (WV + WO_STREAM.index(p) * 8) if p in WO_STREAM else WOR + (p - 5) * 8
    def q_home(f):
        return (WV + 64 + f * 8) if f < 8 else WQR + (f - 8) * 8
    load_weights(A, o_units(o_home, range(4)) + mem_units(S_A, q_home, range(8)) + mem_units(S_B, lambda f: WK + f * 8, range(8)), 48, 32, 22)
    for k in range(8):
        spill_u(WV + k * 8, 8 + k)
        spill_u(WV + 64 + k * 8, k)
        A.i('s_waitcnt lgkmcnt(0)')
    if single:
        ready_wait(A, 24, 25)
        A.i('s_barrier')
        A.i(f's_lshl_b32 s{sT0}, s{sH}, 7')
        A.i(f's_add_u32 s{sT0}, s{sT0}, {F_CI:#x}')
        A.i('v_mov_b32 v24, 1')
        A.i(f's_mov_b64 exec, s[{sIO}:{sIO+1}]')
        A.i(f'buffer_store_dword v24, off, {WSR}, s{sT0} sc1')
        A.i('s_mov_b64 exec, -1')
    load_weights(A, mem_units(S_C, lambda f: WV + f * 8, range(8)), 48, 32, 22)
    sy.trace(A, vT0, None, imm=102, wave=0)
    if 'dbg' in opts:
        dbg_stamp(A, 3, 24, 25)
    if single:
        A.i(f'v_and_b32 v24, 31, v{LN}')
        A.i('v_lshlrev_b32 v24, 7, v24')
        A.i(f'v_add_u32 v24, {F_CI:#x}, v24')
        A.i(f's_mov_b32 s{sT2}, 1')
        sy.wait(A, 24, 25, sT2)
    sy.trace(A, vT0, None, imm=101, wave=0)
    srd(A, S_A, 12, 8192)
    A.i(f's_mov_b32 s{sS}, 0')
    A.i(f'v_and_b32 v{vT0}, 7, v{LN}')
    A.i(f'v_lshlrev_b32 v{vT0}, 10, v{vT0}')
    A.i(f'v_lshrrev_b32 v{TA}, 3, v{LN}')
    A.i(f'v_lshl_add_u32 v{vT0}, v{TA}, 4, v{vT0}')
    A.i(f's_lshl_b32 s{sT0}, s{sW}, 8')
    for i in range(2):
        A.i(f'buffer_load_dwordx4 {vr(RA+4*i,4)}, v{vT0}, s[{S_A}:{S_A+3}], s{sT0} offen offset:{i*128}')
    A.i('s_waitcnt vmcnt(0)')
    for i in range(2):
        A.i(f'ds_write_b128 v{vLW}, {vr(RA+4*i,4)} offset:{i*1024}')
    A.i('s_waitcnt lgkmcnt(0)')

    slow = []
    def kv_wait(sseg, r0, r1):
        if sy.on:
            Lok, Lp = A.newlabel('CHkvok'), A.newlabel('CHkvp')
            A.i(f's_cmp_gt_u32 s{sKVS}, s{sseg}')
            A.i(f's_cbranch_scc0 {Lp}')
            A.label(Lok)
            slow.append((Lp, Lok, sseg, r0, r1))

    def kv_dma(which):
        A.i(f's_mov_b32 m0, s{sD2 if which else sDST}')
        for i in range(2):
            A.i(f'buffer_load_dwordx4 v1, {WSR}, s{sNV if which else sNX} offen offset:{i*1024} sc1 lds')

    A.i(f's_add_u32 s{sD2}, s{sDST}, {L_VX-L_KX}')
    A.i(f's_add_u32 s{sNV}, s{sNX}, {VT-KX:#x}')
    kv_wait(sS, 34, 35)
    kv_dma(0)
    kv_dma(1)

    stamps = []
    Lfin = A.newlabel('CHfin')
    Lcut = A.newlabel('CHcut')
    def stamp(name):
        if ('cut' + name) in opts:
            A.i(f's_cmp_eq_u32 s{sS}, {nsteps-1}')
            A.i(f's_cbranch_scc1 {Lfin}')
            A.i(f's_branch {Lcut}')

    prof = 'prof' in opts
    def ts(k):
        if prof:
            A.i(f's_memtime s[{4+2*k}:{5+2*k}]')
    def cnt(k):
        if prof:
            A.i(f's_add_u32 s{28+k}, s{28+k}, 1')
    if prof:
        for k in range(4, 32):
            A.i(f's_mov_b32 s{k}, 0')
    AQ, AK, AV = RD, RD + 8, RD
    MA = RA
    XQ = RB
    S1, S2 = RB + 24, RB + 28
    QF, KR = RC, RC + 16
    S0, PM0, PM1 = RD + 8, RD + 12, RD + 14
    P4, VXF, OP, WD = RC, RC + 4, RC + 12, RC + 16
    OD, OA = RB + 24, RA
    PK = RC
    YS = [RB, RB + 8, RB + 16, RA + 16, RA + 24]

    def frag_read(reg, lf, tag):
        return [lambda: A.ds(f'ds_read_b128 {vr(reg,4)}, v{vWV} offset:{lf*2048}', tag),
                lambda: A.ds(f'ds_read_b128 {vr(reg+4,4)}, v{vWV} offset:{lf*2048+1024}', tag)]

    def pre_step():
        for f in range(8):
            for x in frag_read(XQ + 8 * f, f, 'xq'):
                x()
            A.i(f'v_mov_b64 {vr(RD+2*f,2)}, 0')

    def step_scalars(addr=True):
        A.i(f's_and_b32 s{sT0}, s{sS}, 3')
        A.i(f's_lshl_b32 s{sMC}, s{sT0}, 13')
        A.i(f's_add_u32 s{sMC}, s{sMC}, {XM:#x}')
        A.i(f's_and_b32 s{sTG}, s{sS}, 1')
        A.i(f's_add_u32 s{sT2}, s{sS}, 8')
        A.i(f's_cmp_gt_u32 s{sKVS}, s{sT2}')
        A.i(f's_cselect_b32 s{sFA}, {FLAGS + 8*FL:#x}, s{sKVF}')
        for p in range(1, 4):
            if addr:
                A.i(f'v_xor_b32 v{RA+8*p}, {p << 11:#x}, v{vLW}')
        A.i(f's_add_u32 s{sOUT}, s{sOUT}, 0x10000')
        A.i(f's_add_u32 s{sS1}, s{sS}, 1')
        A.i(f's_min_u32 s{sS1}, s{sS1}, 63')
        A.i(f's_add_u32 s{sT1}, s{sNX}, s{sPFD}')
        A.i(f's_add_u32 s{sNX}, s{sNX}, 0x40000')
        A.i(f's_add_u32 s{sNV}, s{sNV}, 0x40000')
        A.i(f's_add_u32 s{sPFA}, s{sT1}, 0x80000')
        A.i(f's_add_u32 s{sT2}, s{sS}, 2')
        A.i(f's_cmp_gt_u32 s{sKVS}, s{sT2}')
        A.i(f's_cselect_b32 s{sPFA}, s{sPFA}, s{sT1}')
        A.i(f's_xor_b32 s{sRM}, s{sMC}, 0x4000')
        A.i(f's_lshl_b32 s{sT1}, s{sH}, 8')
        A.i(f's_add_u32 s{sRM}, s{sRM}, s{sT1}')

    A.i(f's_mov_b32 s{sPC}, {XP:#x}')
    A.i(f's_mov_b32 s{sPC2}, {XP+4096:#x}')
    pre_step()
    step_scalars()
    kv_wait(sS1, RA + 27, RA + 28)
    Ltop = A.newlabel('CHtop')
    if sy.tr and not prof:
        A.i('s_memtime s[4:5]')
    if 'dbg' in opts:
        dbg_stamp(A, 4, RA + 27, RA + 28)
    A.i('s_waitcnt vmcnt(0)')
    A.wl_all()
    A.label(Ltop)
    _orig_i = A.i
    def _filt(text):
        for t in text.split('\n'):
            if 'novm' in opts and t.startswith('buffer_') and 's101' not in t:
                continue
            if 'nokv' in opts and ('buffer_store' in t and 'sc1' in t):
                continue
            if 'nodma' in opts and (' lds' in t and 'buffer_load' in t):
                continue
            if 'nopf' in opts and t.startswith('buffer_load_dword v') and 'offen' in t:
                t = t.replace(f's{sPFA}', f's{sMC}')
            if 'plainkv' in opts and ('buffer_store' in t and 'sc1' in t):
                t = t.replace(' sc1', '')
            _orig_i(t)
    A.i = _filt
    def sm(acc, a, w):
        return f'v_smfmac_f32_16x16x64_bf16 {vr(acc,4)}, {vr(a,4)}, {ur(w,8)}, v{vIDX}'
    def wq(f):
        return XQ + 8 * f if f < 8 else WQR + 8 * (f - 8)
    for f in range(4):
        A.i(sm(AQ + 4 * (f & 1), MA + 4 * (f >> 1), wq(f)))
    A.i('s_waitcnt lgkmcnt(0)')
    A.i('s_barrier')
    stamp('Ba')
    ts(4)
    Lxo = A.newlabel('CHxo')
    if 'xonly' in opts:
        A.i(f's_cmp_eq_u32 s{sS}, {nsteps-1}')
        A.i(f's_cbranch_scc1 {Lfin}')
        A.i(f'v_mov_b64 {vr(RC+4,2)}, -1')
        A.i(f'v_mov_b64 {vr(RC+6,2)}, -1')
        A.i(f'buffer_store_dwordx4 {vr(RC+4,4)}, v1, {WSR}, s{sRP} offen')
        A.i(f'buffer_store_dwordx4 {vr(RC+4,4)}, v1, {WSR}, s{sRP} offen offset:1024')
        A.i('s_mov_b64 exec, 0xffff')
        A.i(f'buffer_store_dwordx4 {vr(RC+4,4)}, v1, {WSR}, s{sRM} offen')
        A.i('s_mov_b64 exec, -1')
        for r in range(0, 16, 2):
            A.i(f'v_mov_b64 {vr(RC+16+r,2)}, 0')
        for _ in range(getattr(sy, 'dx', 16)):
            A.i('s_nop 15')
        A.i(f's_branch {Lxo}')
    for p in range(1, 4):
        A.ds(f'ds_read_b128 {vr(MA+8*p+4,4)}, v{RA+8*p} offset:1024', ('ma', 2 * p + 1))
        A.ds(f'ds_read_b128 {vr(MA+8*p,4)}, v{RA+8*p}', ('ma', 2 * p))
    for f in range(2):
        A.i(sm(AK + 4 * (f & 1), MA + 4 * (f >> 1), WK + f * 8))
    A.i(f'buffer_load_dword v{vT0}, v{vPF}, {WSR}, s{sPFA} offen sc1')
    if sy.on:
        A.i(f'buffer_load_dword v{vT0}, off, {WSR}, s{sFA} sc1')
    for f in range(2, 4):
        A.i(sm(AK + 4 * (f & 1), MA + 4 * (f >> 1), WK + f * 8))
    def kx_read(j):
        A.ds(f'ds_read_b128 {vr(KR+(j&3)*4,4)}, v{vKX} offset:{(j>>1)*2048+(j&1)*256}', ('kx', j))
    mf = []
    for ks in range(2, 8):
        if ks in (2, 4, 6):
            mf.append(lambda ks=ks: (A.wl(('ma', ks)), A.i(sm(AQ, MA + 4 * ks, wq(ks * 2)))))
        else:
            mf.append(sm(AQ, MA + 4 * ks, wq(ks * 2)))
        mf.append(sm(AQ + 4, MA + 4 * ks, wq(ks * 2 + 1)))
    fill = []
    for k in range(3):
        fill += frag_read(YS[k], 8 + k, ('y', k))
    fill += [lambda j=j: kx_read(j) for j in range(2)]
    mix(A, mf, fill, per=1, start=4)
    stamp('Qdone')

    def fold_qk(acc, off, t0, t1):
        f = []
        for t in range(2):
            f.append(f'v_permlane32_swap_b32 v{acc+4*t}, v{acc+4*t+2}')
            f.append(f'v_permlane32_swap_b32 v{acc+4*t+1}, v{acc+4*t+3}')
        for t in range(2):
            f.append(f'v_pk_add_f32 {vr(acc+4*t,2)}, {vr(acc+4*t,2)}, {vr(acc+4*t+2,2)}')
        f.append(f'v_cvt_pk_bf16_f32 v{t0}, v{acc}, v{acc+4}')
        f.append(f'v_cvt_pk_bf16_f32 v{t1}, v{acc+1}, v{acc+5}')
        f.append(lambda: A.ds(f'ds_write2_b32 v{vQW}, v{t0}, v{t1} offset0:0 offset1:{QS//4}', 'w') if off == 0 else
                 (A.ds(f'ds_write_b32 v{vQW}, v{t0} offset:{off}', 'w'), A.ds(f'ds_write_b32 v{vQW}, v{t1} offset:{off+QS}', 'w')))
        return f

    mf = []
    for ks in range(2, 8):
        mf.append(sm(AK, MA + 4 * ks, WK + (ks * 2) * 8))
        mf.append(sm(AK + 4, MA + 4 * ks, WK + (ks * 2 + 1) * 8))
    mix(A, mf[:3], [lambda j=j: kx_read(j) for j in range(2, 4)], per=1)
    mix(A, mf[3:8], fold_qk(AQ, 0, AQ + 2, AQ + 3), per=2)
    mix(A, mf[8:11], [f'v_mov_b64 {vr(AV+r,2)}, 0' for r in (0, 4, 6)], per=1)
    A.wl('w')
    A.i('s_barrier')
    stamp('Bb')
    emit(A, mf[11])
    for ks in range(4):
        A.ds(f'ds_read_b128 {vr(QF+4*ks,4)}, v{vQR} offset:{ks*64}', ('q', ks))
    A.i(f'v_mov_b64 {vr(AV+2,2)}, 0')
    if sy.on:
        A.i(f'v_mov_b32 v{S2}, s{sS}')
        A.i(f's_mov_b64 exec, s[{sIO}:{sIO+1}]')
        A.i(f'buffer_store_dword v{S2}, off, {WSR}, s{sFLG} sc1')
        A.i('s_mov_b64 exec, -1')
    early = False
    tag = True
    rsa = 'rsa' in opts
    rsc = 'norsc' not in opts
    iow = 'iow' in opts
    norst = iow or rsa or rsc
    iod = 'iod' in opts
    def resets(q):
        r = [f'v_mov_b64 {vr(q,2)}, -1', f'v_mov_b64 {vr(q+2,2)}, -1']
        if not tag:
            r += [f'buffer_store_dwordx4 {vr(q,4)}, v1, {WSR}, s{sRP} offen',
                  f'buffer_store_dwordx4 {vr(q,4)}, v1, {WSR}, s{sRP} offen offset:1024']
        return r + [f's_mov_b64 exec, s[{sKS}:{sVS}]\nbuffer_store_dwordx4 {vr(q,4)}, v1, {WSR}, s{sRM} offen\ns_mov_b64 exec, -1']
    if rsa:
        for x in resets(S1):
            emit(A, x)
    stamp('Kdone')

    vstate = {'f': 0}
    def vstep():
        f = 15 - vstate['f']
        ks, t = f >> 1, f & 1
        A.i(sm(AV + 4 * t, MA + 4 * ks, WV + f * 8))
        vstate['f'] += 1

    def smx(j):
        ks, kt = j >> 1, j & 1
        S = S2 if kt else S1
        c = '0' if ks == 0 else vr(S, 4)
        def f():
            A.wl(('kx', j))
            A.wl(('q', ks))
            A.i(f'v_mfma_f32_16x16x32_bf16 {vr(S,4)}, {vr(KR+(j&3)*4,4)}, {vr(QF+4*ks,4)}, {c}')
            if j + 4 < 8:
                kx_read(j + 4)
        return f
    for x in fold_qk(AK, L_KI - L_QI, AK + 2, AK + 3):
        emit(A, x)
    if early:
        A.i(f'buffer_store_dwordx4 {vr(S2,4)}, v1, {WSR}, s{sRP} offen offset:1024')
        A.i('s_mov_b64 exec, 0xffff')
        A.i(f'buffer_store_dwordx4 {vr(S2,4)}, v1, {WSR}, s{sRM} offen')
        A.i('s_mov_b64 exec, -1')
    A.wl(('q', 3))
    for j in range(4):
        smx(j)()
    A.wl('w')
    A.i('s_barrier')
    stamp('Bc')
    vstep()
    A.i(f'buffer_store_dwordx2 {vr(AK+2,2)}, v{vX2}, {WSR}, s{sOUT} offen sc1')
    A.wl(('kx', 7))
    for j in range(4, 8):
        smx(j)()
        A.ds(f'ds_read_b128 {vr(KR+4*(j-4),4)}, v{vQR} offset:{L_KI-L_QI+(j-4)*64}', ('km', j - 4))
    SX = S1
    T0, T1, T2 = S2, S2 + 1, S0 + 2
    def r1(a):
        return f'v_cvt_pk_bf16_f32 v{a}, 0, v{a}'
    vstep()
    A.i(f'v_mov_b64 {vr(PM0,2)}, 0')
    vstep()
    A.i(f'v_mov_b64 {vr(PM1,2)}, 0')
    fx = [f'v_cndmask_b32 v{S1+r}, v{S1+r}, v{S2+r}, s[{sHF}:{sHF+1}]' for r in range(4)]
    fx += [r1(SX + r) for r in range(4)]
    fx += [f'v_mul_f32 v{SX+r}, s{sSCALE}, v{SX+r}' for r in range(4)]
    fx += [r1(SX + r) for r in range(4)]
    fx += [f'v_max3_f32 v{T0}, v{SX}, v{SX+1}, v{SX+2}']
    s0 = []
    for ks in range(4):
        c = '0' if ks == 0 else vr(S0, 4)
        s0.append(lambda ks=ks, c=c: (A.wl(('km', ks if ks != 1 else 3)), A.i(f'v_mfma_f32_16x16x32_bf16 {vr(S0,4)}, {vr(KR+4*ks,4)}, {vr(QF+4*ks,4)}, {c}')))
    mix(A, s0, fx[:8], per=2)
    stamp('S0')
    for t in range(2):
        A.ds(f'ds_read_b128 {vr(VXF+4*t,4)}, v{vLW} offset:{L_VX-L_MEM+t*1024}', ('vx', t))
    if rsc:
        for x in resets(OP):
            emit(A, x)
    for x in fx[8:]:
        emit(A, x)
    wz = [f'v_mov_b64 {vr(WD+r,2)}, 0' for r in range(0, 16, 2)]
    f = [f'v_cndmask_b32 v{S0}, v{S0}, v{S0+2}, s[{sHF}:{sHF+1}]', f'v_cndmask_b32 v{S0+1}, v{S0+1}, v{S0+3}, s[{sHF}:{sHF+1}]',
         r1(S0), r1(S0 + 1), f'v_mul_f32 v{S0}, s{sSCALE}, v{S0}', f'v_mul_f32 v{S0+1}, s{sSCALE}, v{S0+1}', r1(S0), r1(S0 + 1),
         f'v_max3_f32 v{T1}, v{SX+3}, v{S0}, v{S0+1}', f'v_max_f32 v{T0}, v{T0}, v{T1}',
         vstep, wz[0],
         f'v_max_f32_dpp v{T0}, v{T0}, v{T0} row_ror:8 row_mask:0xf bank_mask:0xf',
         f'v_mov_b32 v{T1}, v{T0}', vstep, wz[1], f'v_permlane32_swap_b32 v{T0}, v{T1}', f'v_max_f32 v{T0}, v{T0}, v{T1}',
         f'v_mov_b32 v{T1}, v{T0}', vstep, wz[2], f'v_permlane16_swap_b32 v{T0}, v{T1}', f'v_max_f32 v{T0}, v{T0}, v{T1}',
         f'v_mul_f32 v{T0}, s{sLOG2E}, v{T0}']
    vals = [SX, SX + 1, SX + 2, SX + 3, S0, S0 + 1]
    for a in vals:
        f += [f'v_fma_f32 v{a}, v{a}, s{sLOG2E}, -v{T0}', vstep]
    yr = frag_read(YS[3], 8 + 3, ('y', 3)) + frag_read(YS[4], 8 + 4, ('y', 4))
    f += [yr[0], vstep]
    f += [f'v_exp_f32 v{a}, v{a}' for a in vals]
    f += [f'v_pk_add_f32 {vr(T0,2)}, {vr(SX,2)}, {vr(SX+2,2)}', f'v_add_f32 v{T2}, v{S0}, v{S0+1}', f'v_add_f32 v{T0}, v{T0}, v{T1}',
          f'v_fma_f32 v{T0}, v{T2}, 0.5, v{T0}', vstep, wz[3],
          f'v_add_f32_dpp v{T0}, v{T0}, v{T0} row_ror:8 row_mask:0xf bank_mask:0xf',
          f'v_mov_b32 v{T1}, v{T0}', vstep, wz[4], f'v_permlane32_swap_b32 v{T0}, v{T1}', f'v_add_f32 v{T0}, v{T0}, v{T1}',
          f'v_mov_b32 v{T1}, v{T0}', vstep, wz[5], f'v_permlane16_swap_b32 v{T0}, v{T1}', f'v_add_f32 v{T0}, v{T0}, v{T1}',
          f'v_rcp_f32 v{T0}, v{T0}', yr[1]]
    f += [f'v_pk_mul_f32 {vr(a,2)}, {vr(a,2)}, {vr(T0,2)} op_sel_hi:[1,0]' for a in (SX, SX + 2, S0)]
    f += [f'v_cvt_pk_bf16_f32 v{P4}, v{SX}, v{SX+1}', f'v_cvt_pk_bf16_f32 v{P4+1}, v{SX+2}, v{SX+3}',
          f'v_cvt_pk_bf16_f32 v{T2}, v{S0}, v{S0+1}',
          f'v_mov_b32_dpp v{P4+2}, v{P4} row_ror:8 row_mask:0xf bank_mask:0xf',
          f'v_mov_b32_dpp v{P4+3}, v{P4+1} row_ror:8 row_mask:0xf bank_mask:0xf']
    for x in f:
        emit(A, x)
    assert vstate['f'] == 16, vstate
    pmv = [f'v_mov_b32_dpp v{PM0}, v{T2} quad_perm:[0,1,2,3] row_mask:0x3 bank_mask:0xf',
           f'v_mov_b32_dpp v{PM0+1}, v{T2} row_ror:8 row_mask:0x3 bank_mask:0xf',
           f'v_mov_b32_dpp v{PM1}, v{T2} quad_perm:[0,1,2,3] row_mask:0xc bank_mask:0xf',
           f'v_mov_b32_dpp v{PM1+1}, v{T2} row_ror:8 row_mask:0xc bank_mask:0xf']
    g = [f'v_permlane32_swap_b32 v{AV+r}, v{AV+4+r}' for r in range(4)]
    g += [f'v_pk_add_f32 {vr(AV,2)}, {vr(AV,2)}, {vr(AV+4,2)}', f'v_pk_add_f32 {vr(AV+2,2)}, {vr(AV+2,2)}, {vr(AV+6,2)}']
    g += [f'v_cvt_pk_bf16_f32 v{AV+4}, v{AV}, v{AV+1}', f'v_cvt_pk_bf16_f32 v{AV+5}, v{AV+2}, v{AV+3}']
    stamp('P')
    for x in g[:2]:
        emit(A, x)
    A.wl(('vx', 1))
    A.i(f'v_mfma_f32_16x16x32_bf16 {vr(OD,4)}, {vr(VXF,4)}, {vr(P4,4)}, 0')
    for x in g[2:4]:
        emit(A, x)
    A.i(f'v_mfma_f32_16x16x32_bf16 {vr(OD+4,4)}, {vr(VXF+4,4)}, {vr(P4,4)}, 0')
    for x in g[4:] + pmv:
        emit(A, x)
    A.i(f'v_mfma_f32_16x16x16_bf16 {vr(OD,4)}, {vr(AV+4,2)}, {vr(PM0,2)}, {vr(OD,4)}')
    A.i(f'v_mfma_f32_16x16x16_bf16 {vr(OD+4,4)}, {vr(AV+4,2)}, {vr(PM1,2)}, {vr(OD+4,4)}')
    A.i(f'buffer_store_dwordx2 {vr(AV+4,2)}, v{vVW}, {WSR}, s{sOUT} offen sc1')
    if not iod:
        A.i(f's_mov_b32 m0, s{sD2}')
        for i in range(2):
            A.i(f'buffer_load_dwordx4 v1, {WSR}, s{sNV} offen offset:{i*1024} sc1 lds')
        A.i(f's_mov_b32 m0, s{sDST}')
    SEN = RC + 4
    for x in [yr[2], yr[3], wz[6], wz[7]] + ([] if norst else [f'v_mov_b64 {vr(SEN,2)}, -1', f'v_mov_b64 {vr(SEN+2,2)}, -1']):
        emit(A, x)
    for c in range(4):
        A.i(f'v_cvt_pk_bf16_f32 v{OP+c}, v{OD+c}, v{OD+4+c}')
    A.i(f's_mov_b64 exec, s[{sLF}:{sLF+1}]')
    A.ds(f'ds_write_b128 v{vOW}, {vr(OP,4)}', 'w')
    A.i('s_mov_b64 exec, -1')
    for c in range(4):
        A.i(f'v_mov_b32_dpp v{OP+c}, v{OP+c} row_ror:8 row_mask:0xf bank_mask:0xc')
    for p in range(1, 4):
        A.i(f'v_xor_b32 v{OA+4*p}, {p << 9:#x}, v{vOW}')
    def wo_step(p):
        ks, cg = p >> 2, p & 3
        if p == 4:
            A.wl(('o', 1))
        if p == 8:
            A.wl(('o', 3))
        if p < 5:
            w = YS[p]
        elif p < 13:
            w = WOR + (p - 5) * 8
        else:
            w = YS[p - 13]
            if p == 13:
                A.wl(('y', 15))
        A.i(sm(WD + 4 * cg, OP if ks == 0 else OA + 4 * ks, w))
    wo_step(0)
    if not norst:
        A.i(f'buffer_store_dwordx4 {vr(SEN,4)}, v1, {WSR}, s{sRP} offen')
    wo_step(1)
    A.wl_all()
    A.i('s_barrier')
    for ks in range(1, 4):
        A.ds(f'ds_read_b128 {vr(OA+4*ks,4)}, v{OA+4*ks}', ('o', ks))
    wo_step(2)
    if not norst:
        A.i(f'buffer_store_dwordx4 {vr(SEN,4)}, v1, {WSR}, s{sRP} offen offset:1024')
    wo_step(3)
    if not norst:
        A.i('s_mov_b64 exec, 0xffff')
        A.i(f'buffer_store_dwordx4 {vr(SEN,4)}, v1, {WSR}, s{sRM} offen')
        A.i('s_mov_b64 exec, -1')
    if not iod:
        for i in range(2):
            A.i(f'buffer_load_dwordx4 v1, {WSR}, s{sNX} offen offset:{i*1024} sc1 lds')
    stamp('Bd')
    yy = []
    for k in range(3):
        yy += frag_read(YS[k], 8 + 5 + k, ('y', 13 + k))
    for p in range(4, 16):
        wo_step(p)
        if yy:
            yy.pop(0)()
    if 'xonly' in opts:
        A.label(Lxo)
    for r in range(4):
        A.i(f'v_cvt_pk_bf16_f32 v{PK+2*r}, v{WD+r}, v{WD+4+r}')
        if tag:
            A.i(f'v_and_or_b32 v{PK+2*r}, v{PK+2*r}, -2, s{sTG}')
    for r in range(4):
        A.i(f'v_cvt_pk_bf16_f32 v{PK+2*r+1}, v{WD+8+r}, v{WD+12+r}')
        if tag:
            A.i(f'v_and_or_b32 v{PK+2*r+1}, v{PK+2*r+1}, -2, s{sTG}')
        if r == 1:
            A.i(f'buffer_store_dwordx4 {vr(PK,4)}, v{vPST}, {WSR}, s{sPC} offen')
    A.i(f'buffer_store_dwordx4 {vr(PK+4,4)}, v{vPST}, {WSR}, s{sPC2} offen')
    stamp('Wo')
    if prof:
        ts(5)
        A.i('s_waitcnt lgkmcnt(0)')
        for k in range(5):
            A.i(f's_sub_u32 s{sT0}, s{4+2*(k+1)}, s{4+2*k}')
            A.i(f's_cmp_gt_u32 s{sS}, 4')
            A.i(f's_cselect_b32 s{sT0}, s{sT0}, 0')
            A.i(f's_add_u32 s{20+k}, s{20+k}, s{sT0}')
        A.i('s_mov_b32 s4, s14')
    SELR, RS, HA, IMG = RA + 16, RA + 20, RA, RA + 28
    Lbe = A.newlabel('CHbe')
    A.ds(f'ds_read_b128 {vr(SELR,4)}, v{vL2} offset:{L_SEL-L_MEM}', 'sel')
    if sy.on:
        A.i('s_waitcnt vmcnt(%d)' % (8 - (4 if iod else 0)))
        A.i(f'v_readfirstlane_b32 s{sT0}, v{vT0}')
        A.i(f's_max_u32 s{sKVS}, s{sKVS}, s{sT0}')
    sy.trace(A, RD, sS, imm=0, wave=3)
    if iod:
        A.i(f's_mov_b32 m0, s{sD2}')
        for i in range(2):
            A.i(f'buffer_load_dwordx4 v1, {WSR}, s{sNV} offen offset:{i*1024} sc1 lds')
        A.i(f's_mov_b32 m0, s{sDST}')
        for i in range(2):
            A.i(f'buffer_load_dwordx4 v1, {WSR}, s{sNX} offen offset:{i*1024} sc1 lds')
    pre_step()
    A.i(f's_add_u32 s{sT5}, s{sPC}, s{sH1}')
    A.i(f's_lshl_b32 s{sT3}, s{sW}, 11')
    A.i(f's_add_u32 s{sT3}, s{sT3}, s{sMC}')
    A.i(f's_mov_b32 s{sT4}, s{sMC}')

    CT = RA + 25
    def chain_max(H, n):
        A.i(f'v_max3_u32 v{CT}, v{H}, v{H+1}, v{H+2}')
        for k in range(3, n - 1, 2):
            A.i(f'v_max3_u32 v{CT}, v{CT}, v{H+k}, v{H+k+1}')
        A.i(f'v_max_u32 v{CT}, v{CT}, v{H+n-1}')
    KF = getattr(sy, 'dk', 2)

    A.wl_all()
    Lio = A.newlabel('CHio')
    A.i(f's_cmp_ge_u32 s{sW}, 2')
    A.i(f's_cbranch_scc1 {Lio if iow else Lbe}')
    if getattr(sy, 'd1', 4):
        A.i(f's_sleep {getattr(sy, "d1", 4)}')
    Lp1, Lok1 = A.newlabel('CHp1'), A.newlabel('CHok1')
    def h1_loads():
        for L in range(4):
            A.i(f'buffer_load_dwordx4 {vr(HA+4*L,4)}, v1, {WSR}, s{sT5} offen offset:{L*1024} sc1')
    def h1_mfma(waits):
        for L in range(4):
            if waits:
                A.i(f's_waitcnt vmcnt({3-L})')
            c = '0' if L == 0 else vr(RS, 4)
            A.i(f'v_mfma_f32_16x16x32_bf16 {vr(RS,4)}, {vr(SELR,4)}, {vr(HA+4*L,4)}, {c}')
            if waits:
                for k in (4 * L, 4 * L + 2):
                    A.i(f'v_bitop3_b32 v{RA+24+k//2}, v{HA+k}, v{HA+k+1}, s{sTG} bitop3:0x7e')
    TB_ = RA + 24
    def h1_test(pre=False):
        if tag:
            if not pre:
                for k in range(0, 16, 2):
                    A.i(f'v_bitop3_b32 v{TB_+k//2}, v{HA+k}, v{HA+k+1}, s{sTG} bitop3:0x7e')
            A.i(f'v_or3_b32 v{TB_}, v{TB_}, v{TB_+1}, v{TB_+2}')
            A.i(f'v_or3_b32 v{TB_+3}, v{TB_+3}, v{TB_+4}, v{TB_+5}')
            A.i(f'v_or3_b32 v{TB_}, v{TB_}, v{TB_+6}, v{TB_+7}')
            A.i(f'v_or_b32 v{CT}, v{TB_}, v{TB_+3}')
            A.i(f'v_and_b32 v{CT}, 1, v{CT}')
            A.i(f'v_cmpx_ne_u32 vcc, 0, v{CT}')
        else:
            chain_max(HA, 16)
            A.i(f'v_cmpx_eq_u32 vcc, -1, v{CT}')
    h1_loads()
    h1_mfma(True)
    h1_test(pre=True)
    A.i(f's_cbranch_execz {Lok1}')
    if 'nox' not in opts:
        A.label(Lp1)
        cnt(0)
        h1_loads()
        A.i(f's_waitcnt vmcnt({4*KF})')
        h1_test()
        A.i(f's_cbranch_execnz {Lp1}')
    A.i('s_mov_b64 exec, -1')
    h1_mfma(False)
    A.label(Lok1)
    A.i('s_mov_b64 exec, -1')
    for r in range(4):
        A.i(f'v_add_f32_dpp v{RS+r}, v{RS+r}, v{RS+r} row_ror:8 row_mask:0xf bank_mask:0xf')
    A.i('s_mov_b64 exec, 0x00ff00ff')
    A.i(f'v_cvt_pk_bf16_f32 v{RS}, v{RS}, v{RS+1}')
    A.i(f'v_cvt_pk_bf16_f32 v{RS+1}, v{RS+2}, v{RS+3}')
    A.i(f'buffer_store_dwordx2 {vr(RS,2)}, v{vX1}, {WSR}, s{sT4} offen')
    A.i('s_mov_b64 exec, -1')
    if iow:
        A.i(f's_branch {Lbe}')
        A.label(Lio)
        A.i(f'v_mov_b64 {vr(HA,2)}, -1')
        A.i(f'v_mov_b64 {vr(HA+2,2)}, -1')
        A.i(f's_sub_u32 s{sT0}, s{sRP}, s{sRST}')
        A.i(f's_add_u32 s{sT0}, s{sT0}, s{sH1}')
        for L in range(4):
            A.i(f'buffer_store_dwordx4 {vr(HA,4)}, v1, {WSR}, s{sT0} offen offset:{L*1024}')
        A.i('s_mov_b64 exec, 0xffff')
        A.i(f'buffer_store_dwordx4 {vr(HA,4)}, v1, {WSR}, s{sRM} offen')
        A.i('s_mov_b64 exec, -1')
    A.label(Lbe)
    ts(1)
    A.i('s_barrier')
    ts(2)
    A.i(f's_add_u32 s{sS}, s{sS}, 1')
    step_scalars(addr=False)
    kv_wait(sS1, RA + 27, RA + 28)
    if getattr(sy, 'd2', 2):
        A.i(f's_sleep {getattr(sy, "d2", 2)}')
    Lp2, Lok2 = A.newlabel('CHp2'), A.newlabel('CHok2')
    def h2_loads():
        for i in range(2):
            A.i(f'buffer_load_dwordx4 {vr(HA+4*i,4)}, v1, {WSR}, s{sT3} offen offset:{i*1024} sc1')
    h2_loads()
    for i in range(2):
        A.i(f's_waitcnt vmcnt({1-i})')
        A.i(f'ds_write_b128 v{vLW}, {vr(HA+4*i,4)} offset:{i*1024}')
    chain_max(HA, 8)
    for p in range(1, 4):
        A.i(f'v_xor_b32 v{RA+8*p}, {p << 11:#x}, v{vLW}')
    A.i(f'v_cmpx_eq_u32 vcc, -1, v{CT}')
    A.i(f's_cbranch_execz {Lok2}')
    if 'nox' not in opts:
        A.i(f's_mov_b64 s[40:41], exec')
        A.label(Lp2)
        cnt(1)
        h2_loads()
        A.i(f's_waitcnt vmcnt({2*KF})')
        chain_max(HA, 8)
        A.i(f'v_cmpx_eq_u32 vcc, -1, v{CT}')
        A.i(f's_cbranch_execnz {Lp2}')
        A.i('s_mov_b64 exec, s[40:41]')
        for i in range(2):
            A.i(f'ds_write_b128 v{vLW}, {vr(HA+4*i,4)} offset:{i*1024}')
    A.label(Lok2)
    A.i('s_mov_b64 exec, -1')
    ts(3)
    A.i(f's_cmp_lg_u32 s{sS}, {nsteps-1}')
    A.i(f's_cbranch_scc1 {Ltop}')
    A.lq = []
    for f in range(4):
        A.i(sm(AK + 4 * (f & 1), MA + 4 * (f >> 1), WK + f * 8))
    A.i('s_waitcnt lgkmcnt(0)')
    A.i('s_barrier')
    for p in range(1, 4):
        A.i(f'ds_read_b128 {vr(MA+8*p+4,4)}, v{RA+8*p} offset:1024')
        A.i(f'ds_read_b128 {vr(MA+8*p,4)}, v{RA+8*p}')
    if sy.on:
        A.i(f'v_mov_b32 v{S2}, s{sS}')
        A.i(f's_mov_b64 exec, s[{sIO}:{sIO+1}]')
        A.i(f'buffer_store_dword v{S2}, off, {WSR}, s{sFLG} sc1')
        A.i('s_mov_b64 exec, -1')
    for f in range(4):
        A.i(sm(AV + 4 * (f & 1), MA + 4 * (f >> 1), WV + f * 8))
    A.i('s_waitcnt lgkmcnt(0)')
    for f in range(4, 16):
        A.i(sm(AK + 4 * (f & 1), MA + 4 * (f >> 1), WK + f * 8))
    kf = fold_qk(AK, 0, AK + 2, AK + 3)[:-1]
    kf += [f'buffer_store_dwordx2 {vr(AK+2,2)}, v{vX2}, {WSR}, s{sOUT} offen sc1']
    mix(A, [sm(AV + 4 * (f & 1), MA + 4 * (f >> 1), WV + f * 8) for f in range(4, 16)], kf, per=1, start=2)
    for x in g:
        emit(A, x)
    A.i(f'buffer_store_dwordx2 {vr(AV+4,2)}, v{vVW}, {WSR}, s{sOUT} offen sc1')
    A.i(f's_branch {Lfin}')
    A.label(Lcut)
    A.i(f's_add_u32 s{sS}, s{sS}, 1')
    sy.trace(A, RD, sS, imm=0, wave=3)
    A.wl_all()
    A.i(f's_branch {Ltop}')
    A.i = _orig_i
    A.label(Lfin)
    if 'dbg' in opts:
        dbg_stamp(A, 5, RC, RC + 1)
    if sy.tr and not prof:
        A.i('s_memtime s[6:7]')
        A.i('s_waitcnt lgkmcnt(0)')
        A.i('s_sub_u32 s6, s6, s4')
        A.i(f'v_mov_b32 v{vT0}, s6')
        A.i(f'buffer_store_dword v{vT0}, off, {WSR}, s100 offset:{120*4}')
    if prof:
        A.i(f's_lshl_b32 s101, s{sW}, 6')
        A.i('s_add_u32 s101, s101, s100')
        A.i('s_mov_b64 exec, 1')
        for k in range(10):
            A.i(f'v_mov_b32 v{vT0}, s{20+k}')
            A.i(f'buffer_store_dword v{vT0}, off, {WSR}, s101 offset:{512+4*k}')
        A.i('s_mov_b64 exec, -1')
    if sy.on:
        A.i('s_waitcnt vmcnt(0)')
        A.i('s_barrier')
        A.i(f's_add_u32 s{sT0}, s{sS}, 1')
        A.i(f'v_mov_b32 v{vT0}, s{sT0}')
        A.i(f's_mov_b64 exec, s[{sIO}:{sIO+1}]')
        A.i(f'buffer_store_dword v{vT0}, off, {WSR}, s{sFLG} sc1')
        A.i('s_mov_b64 exec, -1')
    A.i(f's_branch {end}')
    for Lp, Lok, sseg, r0, r1 in slow:
        A.label(Lp)
        A.i(f'buffer_load_dword v{r0}, off, {WSR}, s{sKVF} sc1')
        A.i('s_waitcnt vmcnt(0)')
        A.i(f'v_readfirstlane_b32 s{sKVS}, v{r0}')
        A.i(f's_cmp_gt_u32 s{sKVS}, s{sseg}')
        A.i(f's_cbranch_scc1 {Lok}')
        A.i(f's_branch {Lp}')
```

```python
from common import *

WSR = f's[{S_WS}:{S_WS+3}]'


def load_weights(A, units, tmp0, batch_regs, ptmp):
    ring = 2 * batch_regs
    GR = 8
    ngroups = ring // GR
    groups = []
    cur, used = [], 0
    for u in units:
        w = u[5]
        if used + 2 * w > GR:
            groups.append(cur)
            cur, used = [], 0
        cur.append((u, used))
        used += 2 * w
    if cur:
        groups.append(cur)

    def issue(gi):
        base = tmp0 + (gi % ngroups) * GR
        for (srd_s, voff, sbase, off0, off1, w, outs), at in groups[gi]:
            for k, off in enumerate((off0, off1)):
                A.i(f's_add_u32 s{sT0}, s{sbase}, {off:#x}')
                mn = {1: 'buffer_load_dword', 2: 'buffer_load_dwordx2', 4: 'buffer_load_dwordx4'}[w]
                A.i(f'{mn} {vr(base + at + k * w, w)}, v{voff}, s[{srd_s}:{srd_s+3}], s{sT0} offen')

    depth = ngroups - 1
    for gi in range(min(depth, len(groups))):
        issue(gi)
    for gi in range(len(groups)):
        if gi + depth < len(groups):
            issue(gi + depth)
        younger = sum(2 * len(groups[k]) for k in range(gi + 1, min(gi + depth + 1, len(groups))))
        A.i(f's_waitcnt vmcnt({min(younger, 63)})')
        base = tmp0 + (gi % ngroups) * GR
        for (srd_s, voff, sbase, off0, off1, w, outs), at in groups[gi]:
            for n, (dst, dw, sel) in enumerate(outs):
                perm_to(A, dst, base + at + w + dw, base + at + dw, sel, ptmp + (n & 1))


def role_init(A, end):
    Lfill = A.newlabel('Lfill')
    A.i(f's_cmp_ge_u32 s2, 48')
    A.i(f's_cbranch_scc1 {Lfill}')
    srd(A, S_A, P_C, 1024)
    srd(A, S_B, P_WMOD, 512 * 6144)
    A.i(f's_lshl_b32 s{sT0}, s{sW}, 6')
    A.i(f'v_add_u32 v2, s{sT0}, v0')
    A.i('v_and_b32 v3, 7, v2')
    A.i('v_lshrrev_b32 v4, 3, v2')
    A.i('v_lshlrev_b32 v5, 5, v4')
    A.i(f'buffer_load_dwordx4 v[8:11], v5, s[{S_A}:{S_A+3}], 0 offen')
    A.i(f'buffer_load_dwordx4 v[12:15], v5, s[{S_A}:{S_A+3}], 0 offen offset:16')
    A.i(f's_mov_b32 s{sT1}, {16*6144}')
    A.i(f'v_mul_lo_u32 v6, v4, s{sT1}')
    A.i('v_lshl_add_u32 v6, v3, 4, v6')
    A.i(f's_lshl_b32 s{sT1}, s2, 7')
    for i in range(16):
        A.i(f's_add_u32 s{sT0}, s{sT1}, {i*6144}')
        A.i(f'buffer_load_dwordx4 v[{64+4*i}:{67+4*i}], v6, s[{S_B}:{S_B+3}], s{sT0} offen')
    A.i('s_waitcnt vmcnt(16)')
    for i in range(8):
        unpack(A, 16 + 2 * i, 17 + 2 * i, 8 + i)
    for i in range(16):
        A.i(f'v_mul_f32 v{32+i}, s{sLOG2E}, v{16+i}')
    for i in range(16):
        A.i(f'v_exp_f32 v{32+i}, -v{32+i}')
    for i in range(16):
        A.i(f'v_add_f32 v{32+i}, 1.0, v{32+i}')
    for i in range(16):
        A.i(f'v_rcp_f32 v{32+i}, v{32+i}')
    for i in range(16):
        A.i(f'v_mul_f32 v{16+i}, v{16+i}, v{32+i}')
    for i in range(8):
        round2(A, 16 + 2 * i, 17 + 2 * i, 48)
    for j in range(8):
        A.i(f'v_mov_b32 v{32+j}, 0')
    for i in range(16):
        A.i(f's_waitcnt vmcnt({15-i})')
        for d in range(4):
            unpack(A, 48, 49, 64 + 4 * i + d)
            A.i(f'v_fmac_f32 v{32+2*d}, v{16+i}, v48')
            A.i(f'v_fmac_f32 v{33+2*d}, v{16+i}, v49')
    A.i('v_lshlrev_b32 v5, 8, v4')
    A.i('v_lshl_add_u32 v5, v3, 5, v5')
    A.i('ds_write_b128 v5, v[32:35]')
    A.i('ds_write_b128 v5, v[36:39] offset:16')
    A.i('s_waitcnt lgkmcnt(0)')
    A.i('s_barrier')
    A.i(f's_cmp_lg_u32 s{sW}, 0')
    A.i(f's_cbranch_scc1 {end}')
    A.i('v_lshlrev_b32 v5, 2, v0')
    for i in range(32):
        A.i(f'ds_read_b32 v{64+i}, v5 offset:{i*256}')
        if i == 14 or i == 29:
            A.i('s_waitcnt lgkmcnt(0)')
    A.i('s_waitcnt lgkmcnt(0)')
    for st in (16, 8, 4, 2, 1):
        for i in range(st):
            A.i(f'v_add_f32 v{64+i}, v{64+i}, v{64+st+i}')
    A.i('v_cvt_pk_bf16_f32 v64, v64, v64')
    A.i('v_lshlrev_b32 v64, 16, v64')
    A.i(f's_lshl_b32 s{sT0}, s2, 8')
    A.i(f's_add_u32 s{sT0}, s{sT0}, {MOD:#x}')
    A.i(f'buffer_store_dword v64, v5, {WSR}, s{sT0} offen')
    A.i(f's_branch {end}')
    A.label(Lfill)
    A.i(f's_sub_u32 s{sT0}, s2, 48')
    A.i(f's_lshl_b32 s{sT1}, s{sT0}, 14')
    A.i(f's_add_u32 s{sT2}, s{sT1}, {XM:#x}')
    A.i(f's_add_u32 s{sT3}, s{sT1}, {FLAGS - 66*16384:#x}')
    A.i(f's_cmp_lt_u32 s{sT0}, 66')
    A.i(f's_cselect_b32 s{sT2}, s{sT2}, s{sT3}')
    A.i(f's_cselect_b32 s{sT3}, -1, 0')
    A.i(f's_lshl_b32 s{sT1}, s{sW}, 12')
    A.i(f's_add_u32 s{sT2}, s{sT2}, s{sT1}')
    for i in range(4):
        A.i(f'v_mov_b32 v{4+i}, s{sT3}')
    for i in range(4):
        A.i(f'buffer_store_dwordx4 v[4:7], v1, {WSR}, s{sT2} offen offset:{i*1024}')
    A.i(f's_branch {end}')


def load_mod8(A, dst, which):
    A.i(f's_mov_b32 s{sT0}, {MOD + which*2048:#x}')
    A.i(f'buffer_load_dwordx4 v[{dst}:{dst+3}], v2, {WSR}, s{sT0} offen sc1')
    A.i(f'buffer_load_dwordx4 v[{dst+4}:{dst+7}], v2, {WSR}, s{sT0} offen offset:16 sc1')


def one_plus(A, c, tmp):
    for j in range(8):
        A.i(f'v_add_f32 v{c+j}, 1.0, v{c+j}')
    for j in range(4):
        round2(A, c + 2 * j, c + 2 * j + 1, tmp)


def ln_core(A, x, t, c1, sh, out):
    A.i(f'v_add_f32 v{t}, v{x}, v{x+1}')
    A.i(f'v_add_f32 v{t+1}, v{x+2}, v{x+3}')
    A.i(f'v_add_f32 v{t+2}, v{x+4}, v{x+5}')
    A.i(f'v_add_f32 v{t+3}, v{x+6}, v{x+7}')
    A.i(f'v_add_f32 v{t}, v{t}, v{t+1}')
    A.i(f'v_add_f32 v{t+2}, v{t+2}, v{t+3}')
    A.i(f'v_add_f32 v{t}, v{t}, v{t+2}')
    wave_sum(A, t, sT4)
    A.i(f'v_mov_b32 v{t+8}, 0x3b000000')
    A.i(f'v_mul_f32 v{t+9}, s{sT4}, v{t+8}')
    for j in range(8):
        A.i(f'v_sub_f32 v{t+j}, v{x+j}, v{t+9}')
    A.i(f'v_mul_f32 v{t}, v{t}, v{t}')
    A.i(f'v_mul_f32 v{t+1}, v{t+1}, v{t+1}')
    for j in range(2, 8):
        A.i(f'v_fmac_f32 v{t+(j&1)}, v{t+j}, v{t+j}')
    A.i(f'v_add_f32 v{t}, v{t}, v{t+1}')
    wave_sum(A, t, sT4)
    A.i(f'v_mul_f32 v{t+8}, s{sT4}, v{t+8}')
    round2(A, t + 8, t + 9, t)
    A.i(f'v_add_f32 v{t+8}, 0x3727c5ac, v{t+8}')
    A.i(f'v_cvt_pk_bf16_f32 v{t+8}, v{t+8}, v{t+8}')
    A.i(f'v_lshlrev_b32 v{t+8}, 16, v{t+8}')
    A.i(f'v_sqrt_f32 v{t+8}, v{t+8}')
    A.i(f'v_cvt_pk_bf16_f32 v{t+8}, v{t+8}, v{t+8}')
    A.i(f'v_lshlrev_b32 v{t+8}, 16, v{t+8}')
    A.i(f'v_rcp_f32 v{t+8}, v{t+8}')
    for j in range(8):
        A.i(f'v_sub_f32 v{x+j}, v{x+j}, v{t+9}')
    for j in range(4):
        round2(A, x + 2 * j, x + 2 * j + 1, t + j)
    for j in range(8):
        A.i(f'v_mul_f32 v{x+j}, v{x+j}, v{t+8}')
    for j in range(4):
        round2(A, x + 2 * j, x + 2 * j + 1, t + j)
    for j in range(8):
        A.i(f'v_mul_f32 v{x+j}, v{x+j}, v{c1+j}')
    for j in range(4):
        round2(A, x + 2 * j, x + 2 * j + 1, t + j)
    for j in range(8):
        A.i(f'v_add_f32 v{x+j}, v{x+j}, v{sh+j}')
    for j in range(4):
        A.i(f'v_cvt_pk_bf16_f32 v{out+j}, v{x+2*j}, v{x+2*j+1}')


def role_ln1(A, sy, sidx):
    srd(A, S_A, P_X, 2048 * 1024)
    A.i('v_lshlrev_b32 v2, 5, v0')
    A.i(f's_lshl_b32 s{sT1}, s{sidx}, 2')
    A.i(f's_add_u32 s{sT1}, s{sT1}, s{sW}')
    A.i(f's_lshl_b32 s{sT1}, s{sT1}, 10')
    for q in range(8):
        A.i(f's_add_u32 s{sT0}, s{sT1}, {q*256*1024:#x}')
        A.i(f'buffer_load_dwordx4 v[{64+4*q}:{67+4*q}], v1, s[{S_A}:{S_A+3}], s{sT0} offen')
    if getattr(sy, 'single', False):
        mod_wait(A, sy, 0, 16, 3, 4)
    load_mod8(A, 8, 1)
    load_mod8(A, 16, 0)
    A.i(f's_lshl_b32 s{sT0}, s{sidx}, 7')
    A.i(f's_add_u32 s{sT0}, s{sT0}, {F_H:#x}')
    A.i(f'v_mov_b32 v3, s{sT0}')
    A.i('s_waitcnt vmcnt(0)')
    one_plus(A, 8, 4)
    for q in range(8):
        for j in range(4):
            unpack(A, 24 + 2 * j, 25 + 2 * j, 64 + 4 * q + j)
        ln_core(A, 24, 32, 8, 16, 44 + 4 * (q & 1))
        A.i(f's_add_u32 s{sT0}, s{sT1}, {H + q*256*1024:#x}')
        A.i(f'buffer_store_dwordx4 v[{44+4*(q&1)}:{47+4*(q&1)}], v1, {WSR}, s{sT0} offen sc1')
        if sy.on and q in (0, 3, 7):
            A.i('s_waitcnt vmcnt(0)')
            A.i('s_barrier')
            Ls = A.newlabel('Lln')
            A.i(f's_cmp_lg_u32 s{sW}, 0')
            A.i(f's_cbranch_scc1 {Ls}')
            A.i(f's_mov_b32 s{sT0}, {q+1}')
            sy.publish(A, 3, 4, sT0)
            A.label(Ls)


XB0 = 0
XBS = 32768


def t1_setup(A, vdma, vrd, swap_odd=False):
    A.i(f's_and_b32 s{sT0}, s{sW}, 1')
    A.i(f's_lshl_b32 s{sT1}, s{sT0}, 7')
    A.i(f'v_xor_b32 v{vdma}, s{sT1}, v1')
    A.i(f'v_and_b32 v{vrd+7}, 15, v0')
    A.i(f'v_lshrrev_b32 v{vrd+6}, 4, v0')
    A.i(f'v_xor_b32 v{vrd+6}, v{vrd+6}, v{vrd+7}')
    A.i(f'v_lshlrev_b32 v{vrd+6}, 4, v{vrd+6}')
    A.i(f'v_lshl_or_b32 v{vrd+7}, v{vrd+7}, 10, v{vrd+6}')
    if swap_odd:
        A.i(f's_lshl_b32 s{sT1}, s{sT0}, 14')
        A.i(f'v_xor_b32 v{vrd+7}, s{sT1}, v{vrd+7}')
    for k in range(4):
        A.i(f'v_xor_b32 v{vrd+k}, {k*64}, v{vrd+7}')
    for k in range(3, -1, -1):
        A.i(f'v_xor_b32 v{vrd+4+k}, 0x4000, v{vrd+k}')


def t1_dma(A, vdma, vtmp, ssrc, sbuf):
    A.i(f's_lshl_b32 s{sT0}, s{sW}, 13')
    A.i(f's_add_u32 s{sT1}, s{sT0}, s{ssrc}')
    A.i(f's_add_u32 s{sT0}, s{sT0}, s{sbuf}')
    A.i(f's_mov_b32 m0, s{sT0}')
    for i in range(8):
        if i == 4:
            A.i(f's_add_u32 s{sT0}, s{sT0}, 4096')
            A.i(f's_add_u32 s{sT1}, s{sT1}, 4096')
            A.i(f's_mov_b32 m0, s{sT0}')
        A.i(f'v_xor_b32 v{vtmp+(i&1)}, {i*16}, v{vdma}')
        A.i(f'buffer_load_dwordx4 v{vtmp+(i&1)}, {WSR}, s{sT1} offen offset:{(i&3)*1024} sc1 lds')


def t1_compute(A, vrd, vabuf, xf, wbase, dbase, swapped, mid=None):
    def rd(ks):
        for tt in range(2):
            A.i(f'ds_read_b128 {vr(xf + (ks & 3) * 8 + tt * 4, 4)}, v{vabuf + tt*4 + (ks & 3)} offset:{(ks >> 2) * 256}')
    for ks in range(3):
        rd(ks)
    for ks in range(16):
        if ks + 3 < 16:
            rd(ks + 3)
            A.i('s_waitcnt lgkmcnt(6)')
        else:
            A.i(f's_waitcnt lgkmcnt({2 * (15 - ks)})')
        for t in range(2):
            for tt in range(2):
                d = ur(dbase + (t * 2 + tt) * 4, 4)
                w = ur(wbase + (ks * 2 + t) * 4, 4)
                x = vr(xf + (ks & 3) * 8 + tt * 4, 4)
                c = '0' if ks == 0 else d
                if swapped:
                    A.i(f'v_mfma_f32_16x16x32_bf16 {d}, {w}, {x}, {c}')
                else:
                    A.i(f'v_mfma_f32_16x16x32_bf16 {d}, {x}, {w}, {c}')
        if mid is not None:
            mid(ks)


def paired_units(srd_s, voff, sbase, rs, nks, wbase):
    units = []
    for ks in range(nks):
        for i in range(4):
            r0 = 32 * ks + 2 * i
            units.append((srd_s, voff, sbase, r0 * rs, (r0 + 1) * rs, 1,
                          [(wbase + (ks * 2 + 0) * 4 + i, 0, f's{SELLO}'), (wbase + (ks * 2 + 1) * 4 + i, 0, f's{SELHI}')]))
    return units


def lane_woff(A, dst, rs, colbytes, tmp):
    A.i(f'v_lshrrev_b32 v{tmp}, 4, v0')
    A.i(f's_mov_b32 s{sT0}, {8*rs}')
    A.i(f'v_mul_lo_u32 v{dst}, v{tmp}, s{sT0}')
    A.i(f'v_and_b32 v{tmp}, 15, v0')
    A.i(f'v_mul_u32_u24 v{tmp}, {colbytes}, v{tmp}')
    A.i(f'v_add_u32 v{dst}, v{dst}, v{tmp}')


def h_flag_addr(A, vdst, sseg, stmp):
    A.i(f's_and_b32 s{stmp}, s{sseg}, 7')
    A.i(f's_lshl_b32 s{stmp}, s{stmp}, 10')
    A.i(f's_add_u32 s{stmp}, s{stmp}, {F_H:#x}')
    A.i(f'v_and_b32 v{vdst}, 7, v0')
    A.i(f'v_lshlrev_b32 v{vdst}, 7, v{vdst}')
    A.i(f'v_add_u32 v{vdst}, s{stmp}, v{vdst}')


def t1_loop(A, sy, name, seg0, segstep, src_base, wait_src, body, vdma, vrd, vab, vtmp, vflag):
    Ltop, Lhave, Lnopf, Lend = (A.newlabel(name + x) for x in ('top', 'have', 'nopf', 'end'))
    A.i(f's_mov_b32 s72, {XB0}')
    A.i('s_mov_b32 s73, 0')
    A.label(Ltop)
    A.i('s_cmp_lg_u32 s73, 0')
    A.i(f's_cbranch_scc1 {Lhave}')
    wait_src(sS, True, None)
    A.i(f's_lshl_b32 s75, s{sS}, 15')
    A.i(f's_add_u32 s75, s75, {src_base:#x}')
    t1_dma(A, vdma, vtmp, 75, 72)
    A.label(Lhave)
    A.i('s_waitcnt vmcnt(0)')
    A.i('s_barrier')
    for k in range(8):
        A.i(f'v_add_u32 v{vab+k}, s72, v{vrd+k}')
    A.i('s_mov_b32 s73, 0')
    A.i(f's_add_u32 s74, s{sS}, {segstep}')
    A.i('s_cmp_ge_u32 s74, 64')
    A.i(f's_cbranch_scc1 {Lnopf}')
    wait_src(74, False, Lnopf)
    A.i('s_lshl_b32 s75, s74, 15')
    A.i(f's_add_u32 s75, s75, {src_base:#x}')
    A.i(f's_xor_b32 s76, s72, {XBS}')
    t1_dma(A, vdma, vtmp, 75, 76)
    A.i('s_mov_b32 s73, 1')
    A.label(Lnopf)
    body()
    if sy.on:
        A.i('s_waitcnt vmcnt(0)')
    A.i('s_barrier')
    if sy.on:
        Ls = A.newlabel(name + 'pub')
        A.i(f's_cmp_lg_u32 s{sW}, 0')
        A.i(f's_cbranch_scc1 {Ls}')
        A.i(f's_add_u32 s{sT0}, s{sS}, 1')
        sy.publish(A, vflag, vtmp, sT0)
        A.label(Ls)
    A.i(f's_xor_b32 s72, s72, {XBS}')
    A.i(f's_add_u32 s{sS}, s{sS}, {segstep}')
    A.i(f's_cmp_lt_u32 s{sS}, 64')
    A.i(f's_cbranch_scc1 {Ltop}')
    A.label(Lend)


def flag_test(A, sy, vaddr, vtmp, sneed, blocking, Lnot):
    if not sy.on:
        return
    if blocking:
        sy.wait(A, vaddr, vtmp, sneed)
    else:
        A.i(f'buffer_load_dword v{vtmp}, v{vaddr}, {WSR}, 0 offen sc1')
        A.i('s_waitcnt vmcnt(0)')
        A.i(f'v_cmp_le_u32 vcc, s{sneed}, v{vtmp}')
        A.i('s_cmp_eq_u64 vcc, exec')
        A.i(f's_cbranch_scc0 {Lnot}')


def make_wait_h(A, sy, va, vtmp):
    def wait_src(sseg, blocking, Lnot):
        if not sy.on:
            return
        h_flag_addr(A, va, sseg, sT0)
        A.i(f's_lshr_b32 s{sT2}, s{sseg}, 3')
        A.i(f's_add_u32 s{sT2}, s{sT2}, 1')
        flag_test(A, sy, va, vtmp, sT2, blocking, Lnot)
    return wait_src


def role_kv(A, sy, is_v):
    name = 'V' if is_v else 'K'
    srd(A, S_A, P_WV if is_v else P_WK, 512 * 8192)
    VDMA, VRD, VAB, VT_, VFL, VST, VWA = 2, 4, 12, 20, 22, 23, 24
    XF, D, PK = 32, 64, 80
    lane_woff(A, 3, 8192, 4, 4)
    A.i(f's_lshl_b32 s77, s{sR}, 8')
    A.i(f's_lshl_b32 s{sT0}, s{sW}, 6')
    A.i(f's_add_u32 s77, s77, s{sT0}')
    load_weights(A, paired_units(S_A, 3, 77, 8192, 16, 256), 128, 32, 4)
    t1_setup(A, VDMA, VRD)
    A.i(f's_lshl_b32 s{sT0}, s{sR}, 7')
    A.i(f's_add_u32 s{sT0}, s{sT0}, {F_KV + (32*FL if is_v else 0):#x}')
    A.i(f'v_mov_b32 v{VFL}, s{sT0}')
    if is_v:
        A.i(f's_lshl_b32 s77, s{sR}, 13')
        A.i(f's_lshl_b32 s{sT0}, s{sW}, 11')
        A.i(f's_add_u32 s77, s77, s{sT0}')
        A.i(f's_add_u32 s77, s77, {VT:#x}')
        A.i(f'v_mov_b32 v{VST}, v1')
    else:
        A.i(f's_lshl_b32 s77, s{sR}, 13')
        A.i(f's_lshl_b32 s{sT0}, s{sW}, 11')
        A.i(f's_add_u32 s77, s77, s{sT0}')
        A.i(f's_add_u32 s77, s77, {KX:#x}')
        A.i(f'v_lshrrev_b32 v{VST}, 4, v0')
        A.i(f'v_lshlrev_b32 v{VST}, 9, v{VST}')
        A.i(f'v_and_b32 v{VT_}, 15, v0')
        A.i(f'v_lshl_add_u32 v{VST}, v{VT_}, 4, v{VST}')
    A.i(f's_mov_b32 s{sS}, 0')

    def body():
        t1_compute(A, VRD, VAB, XF, 256, D, swapped=not is_v)
        A.i(f's_lshl_b32 s{sT0}, s{sS}, 18')
        A.i(f's_add_u32 s{sT0}, s{sT0}, s77')
        if is_v:
            for t in range(2):
                for tt in range(2):
                    d = D + (t * 2 + tt) * 4
                    A.i(f'v_cvt_pk_bf16_f32 v{PK+t*4+tt*2}, v{d}, v{d+1}')
                    A.i(f'v_cvt_pk_bf16_f32 v{PK+t*4+tt*2+1}, v{d+2}, v{d+3}')
                A.i(f'buffer_store_dwordx4 v[{PK+t*4}:{PK+t*4+3}], v{VST}, {WSR}, s{sT0} offen offset:{t*1024} sc1')
        else:
            for tt in range(2):
                for r in range(4):
                    A.i(f'v_cvt_pk_bf16_f32 v{PK+tt*4+r}, v{D+tt*4+r}, v{D+(2+tt)*4+r}')
                A.i(f'buffer_store_dwordx4 v[{PK+tt*4}:{PK+tt*4+3}], v{VST}, {WSR}, s{sT0} offen offset:{tt*256} sc1')

    t1_loop(A, sy, name, 0, 1, H, make_wait_h(A, sy, VWA, VT_), body, VDMA, VRD, VAB, VT_, VFL)


def score_round(A, regs, tmp):
    for a, b in zip(regs[0::2], regs[1::2]):
        round2(A, a, b, tmp)
    for a in regs:
        A.i(f'v_mul_f32 v{a}, s{sSCALE}, v{a}')
    for a, b in zip(regs[0::2], regs[1::2]):
        round2(A, a, b, tmp)


def xlane(A, op, v, t):
    A.i(f'v_mov_b32 v{t}, v{v}')
    A.i(f'v_permlane32_swap_b32 v{v}, v{t}')
    A.i(f'{op} v{v}, v{v}, v{t}')
    A.i(f'v_mov_b32 v{t}, v{v}')
    A.i(f'v_permlane16_swap_b32 v{v}, v{t}')
    A.i(f'{op} v{v}, v{v}, v{t}')


QIMG = 65536


def role_qa(A, sy):
    srd(A, S_A, P_WQ, 512 * 8192)
    VDMA, VRD, VAB, VT_, VFL, VWA = 2, 4, 12, 20, 22, 24
    VQW, VQR, VKX, VKM, VVM, VOST, VFKV, VFCH = 23, 25, 26, 27, 28, 29, 30, 31
    XF, D, PK = 32, 64, 80
    KF, VF, QF, KMF, VMF = 96, 128, 144, 160, 176
    S1, S2, S0, PX, PY, PM, OD, TM = 184, 188, 192, 196, 200, 204, 208, 224
    sH = 78
    if 'pfw' in getattr(sy, 'opts', set()):
        srd(A, S_B, P_WO, 4096 * 1024)
        srd(A, S_C, P_WK, 4096 * 1024)
        srd(A, S_D, P_WV, 4096 * 1024)
        A.i(f's_lshl_b32 s{sT0}, s{sR}, 12')
        A.i(f's_lshl_b32 s{sT1}, s{sW}, 10')
        A.i(f's_add_u32 s{sT1}, s{sT0}, s{sT1}')
        n = 0
        for sd in (S_B, S_A, S_C, S_D):
            A.i(f's_mov_b32 s{sT0}, s{sT1}')
            for i in range(16):
                if n >= 32:
                    A.i('s_waitcnt vmcnt(31)')
                A.i(f'buffer_load_dwordx4 {vr(128+4*(n%32),4)}, v1, s[{sd}:{sd+3}], s{sT0} offen')
                A.i(f's_add_u32 s{sT0}, s{sT0}, 0x40000')
                n += 1
        A.i('s_waitcnt vmcnt(0)')
    A.i(f's_lshr_b32 s{sH}, s{sR}, 1')
    dense_stage_setup(A, 3, 4, 79, 8192, 0, 5)
    A.i(f's_lshl_b32 s77, s{sH}, 8')
    A.i(f's_lshl_b32 s{sT0}, s{sW}, 6')
    A.i(f's_add_u32 s77, s77, s{sT0}')
    if 'deferqa' in getattr(sy, 'opts', set()):
        defer_to_chain(A, sy, 6, 7)
    staged_load(A, dense_chunks(S_A, 77, 8192, 16, 256), 3, 4, 79, 8, 128, 6)
    A.i('s_barrier')
    t1_setup(A, VDMA, VRD)
    A.i(f's_lshl_b32 s{sT0}, s{sR}, 7')
    A.i(f's_add_u32 s{sT0}, s{sT0}, {F_QA:#x}')
    A.i(f'v_mov_b32 v{VFL}, s{sT0}')
    A.i(f'v_lshrrev_b32 v{TM}, 4, v0')
    A.i(f'v_and_b32 v{TM+1}, 15, v0')
    A.i(f'v_lshlrev_b32 v{VKX}, 9, v{TM}')
    A.i(f'v_lshl_add_u32 v{VKX}, v{TM+1}, 4, v{VKX}')
    A.i(f's_lshl_b32 s{sT0}, s{sW}, 11')
    A.i(f's_add_u32 s{sT0}, s{sT0}, {QIMG}')
    A.i(f'v_add_u32 v{VQW}, s{sT0}, v{VKX}')
    A.i(f's_and_b32 s79, s{sW}, 1')
    A.i(f's_lshr_b32 s80, s{sW}, 1')
    A.i(f's_lshl_b32 s{sT0}, s79, 8')
    A.i(f's_add_u32 s{sT1}, s{sT0}, {QIMG}')
    A.i(f'v_add_u32 v{VQR}, s{sT1}, v{VKX}')
    A.i(f's_lshl_b32 s{sT1}, s80, 12')
    A.i(f's_add_u32 s{sT1}, s{sT1}, s{sT0}')
    A.i(f'v_add_u32 v{VOST}, s{sT1}, v{VKX}')
    A.i(f'v_lshrrev_b32 v{TM+2}, 2, v{TM+1}')
    A.i(f'v_lshlrev_b32 v{TM+2}, 9, v{TM+2}')
    A.i(f'v_lshl_add_u32 v{VKM}, v{TM}, 5, v{TM+2}')
    A.i('s_mov_b32 s4, 0xaaaaaaaa')
    A.i('s_mov_b32 s5, 0xaaaaaaaa')
    A.i(f'v_lshlrev_b32 v{VVM}, 4, v{TM+1}')
    A.i(f'v_lshl_add_u32 v{VVM}, v{TM}, 2, v{VVM}')
    A.i(f's_lshl_b32 s{sT0}, s80, 10')
    A.i(f'v_add_u32 v{VVM}, s{sT0}, v{VVM}')
    A.i(f'v_and_b32 v{TM+2}, 1, v0')
    A.i(f'v_lshlrev_b32 v{TM+2}, 12, v{TM+2}')
    A.i(f's_lshl_b32 s{sT0}, s{sH}, 7')
    A.i(f's_add_u32 s{sT1}, s{sT0}, {F_KV:#x}')
    A.i(f'v_mov_b32 v{VFKV}, s{sT1}')
    A.i(f's_add_u32 s{sT1}, s{sT0}, {F_CH:#x}')
    A.i(f'v_mov_b32 v{VFCH}, s{sT1}')
    A.i(f's_lshl_b32 s{sT0}, s79, 4')
    A.i(f'v_lshlrev_b32 v{TM+2}, 2, v{TM}')
    A.i(f'v_sub_u32 v{TM+2}, v{TM+1}, v{TM+2}')
    A.i(f'v_add_u32 v{TM+2}, s{sT0}, v{TM+2}')
    for i in range(8):
        A.i(f'v_cmp_le_i32 s[{82+2*i}:{83+2*i}], {16*(i>>2)+(i&3)}, v{TM+2}')
    A.i(f'v_mov_b32 v{PM+1}, 0')
    A.i(f's_and_b32 s{sS}, s{sR}, 1')
    if getattr(sy, 'single', False):
        ready_wait(A, VWA, VT_)

    def body():
        A.i(f's_add_u32 s{sT2}, s{sS}, 1')
        sy.wait(A, VFKV, VT_, sT2)
        A.i(f's_lshl_b32 s81, s{sS}, 18')
        A.i(f's_lshl_b32 s{sT0}, s{sH}, 13')
        A.i(f's_add_u32 s81, s81, s{sT0}')
        A.i(f's_add_u32 s{sT0}, s81, {KX:#x}')
        A.i(f's_add_u32 s{sT1}, s{sT0}, 4096')
        for kt in range(2):
            for ks in range(4):
                so = sT0 if ks < 2 else sT1
                A.i(f'buffer_load_dwordx4 {vr(KF+(kt*4+ks)*4,4)}, v{VKX}, {WSR}, s{so} offen offset:{(ks&1)*2048+kt*256} sc1')
        A.i(f's_lshl_b32 s{sT0}, s80, 12')
        A.i(f's_add_u32 s{sT0}, s{sT0}, s81')
        A.i(f's_add_u32 s{sT0}, s{sT0}, {VT:#x}')
        for i in range(4):
            A.i(f'buffer_load_dwordx4 {vr(VF+i*4,4)}, v1, {WSR}, s{sT0} offen offset:{i*1024} sc1')
        t1_compute(A, VRD, VAB, XF, 256, D, swapped=True)
        for tt in range(2):
            for r in range(4):
                A.i(f'v_cvt_pk_bf16_f32 v{PK+tt*4+r}, v{D+tt*4+r}, v{D+(2+tt)*4+r}')
            A.i(f'ds_write_b128 v{VQW}, v[{PK+tt*4}:{PK+tt*4+3}] offset:{tt*256}')
        A.i('s_waitcnt lgkmcnt(0)')
        A.i('s_barrier')
        for ks in range(4):
            A.i(f'ds_read_b128 {vr(QF+ks*4,4)}, v{VQR} offset:{ks*2048}')
        A.i('s_waitcnt vmcnt(0) lgkmcnt(0)')
        for kt, S in ((0, S1), (1, S2)):
            for ks in range(4):
                c = '0' if ks == 0 else vr(S, 4)
                A.i(f'v_mfma_f32_16x16x32_bf16 {vr(S,4)}, {vr(KF+(kt*4+ks)*4,4)}, {vr(QF+ks*4,4)}, {c}')
        xs = [S1 + i for i in range(8)]
        score_round(A, xs, TM)
        A.i(f'v_mov_b32 v{TM}, 0xce6e6b28')
        for i in range(8):
            A.i(f'v_cndmask_b32 v{S1+i}, v{TM}, v{S1+i}, s[{82+2*i}:{83+2*i}]')
        A.i(f'v_max3_f32 v{TM+2}, v{S1}, v{S1+1}, v{S1+2}')
        A.i(f'v_max3_f32 v{TM+2}, v{TM+2}, v{S1+3}, v{S1+4}')
        A.i(f'v_max3_f32 v{TM+2}, v{TM+2}, v{S1+5}, v{S1+6}')
        A.i(f'v_max_f32 v{TM+2}, v{TM+2}, v{S1+7}')
        A.i(f's_add_u32 s{sT2}, s{sS}, 1')
        sy.wait(A, VFCH, VT_, sT2)
        A.i(f's_lshr_b32 s{sT0}, s81, 2')
        A.i(f's_add_u32 s{sT1}, s{sT0}, {VM:#x}')
        A.i(f's_add_u32 s{sT0}, s{sT0}, {KM:#x}')
        KR2 = KF
        for ks in range(4):
            for hq in range(2):
                A.i(f'buffer_load_dwordx4 {vr(KR2+ks*8+hq*4,4)}, v{VKM}, {WSR}, s{sT0} offen offset:{ks*128+hq*16} sc1')
        for i in range(4):
            A.i(f'buffer_load_dword v{VMF+2*i}, v{VVM}, {WSR}, s{sT1} offen offset:{i*256} sc1')
            A.i(f'v_mov_b32 v{VMF+2*i+1}, 0')
        for ks in range(4):
            A.i(f's_waitcnt vmcnt({10-2*ks})')
            for j in range(4):
                A.i(f'v_cndmask_b32 v{KMF+ks*4+j}, v{KR2+ks*8+2*j}, v{KR2+ks*8+2*j+1}, s[4:5]')
            c = '0' if ks == 0 else vr(S0, 4)
            A.i(f'v_mfma_f32_16x16x32_bf16 {vr(S0,4)}, {vr(KMF+ks*4,4)}, {vr(QF+ks*4,4)}, {c}')
        score_round(A, [S0, S0 + 1], TM)
        A.i(f'v_max3_f32 v{TM+2}, v{TM+2}, v{S0}, v{S0+1}')
        xlane(A, 'v_max_f32', TM + 2, TM + 3)
        vals = xs + [S0, S0 + 1]
        A.i(f'v_mul_f32 v{TM+2}, s{sLOG2E}, v{TM+2}')
        for a in vals:
            A.i(f'v_fma_f32 v{a}, v{a}, s{sLOG2E}, -v{TM+2}')
        for a in vals:
            A.i(f'v_exp_f32 v{a}, v{a}')
        A.i(f'v_add_f32 v{TM+2}, v{vals[0]}, v{vals[1]}')
        A.i(f'v_add_f32 v{TM+4}, v{vals[2]}, v{vals[3]}')
        for k in range(4, 10, 2):
            A.i(f'v_add_f32 v{TM+2}, v{TM+2}, v{vals[k]}')
            A.i(f'v_add_f32 v{TM+4}, v{TM+4}, v{vals[k+1]}')
        A.i(f'v_add_f32 v{TM+2}, v{TM+2}, v{TM+4}')
        xlane(A, 'v_add_f32', TM + 2, TM + 3)
        A.i(f'v_rcp_f32 v{TM+2}, v{TM+2}')
        for a in vals:
            A.i(f'v_mul_f32 v{a}, v{a}, v{TM+2}')
        for k in range(4):
            A.i(f'v_cvt_pk_bf16_f32 v{PX+k}, v{S1+2*k}, v{S1+2*k+1}')
        A.i(f'v_cvt_pk_bf16_f32 v{PM}, v{S0}, v{S0+1}')
        A.i('s_waitcnt vmcnt(0)')
        for i in range(4):
            p = PX
            A.i(f'v_mfma_f32_16x16x32_bf16 {vr(OD+4*i,4)}, {vr(VF+4*i,4)}, {vr(p,4)}, 0')
        for i in range(4):
            A.i(f'v_mfma_f32_16x16x16_bf16 {vr(OD+4*i,4)}, {vr(VMF+2*i,2)}, {vr(PM,2)}, {vr(OD+4*i,4)}')
        A.i(f's_add_u32 s{sT0}, s81, {OB:#x}')
        for u in range(2):
            for r in range(4):
                A.i(f'v_cvt_pk_bf16_f32 v{PK+u*4+r}, v{OD+8*u+r}, v{OD+8*u+4+r}')
            A.i(f'buffer_store_dwordx4 v[{PK+u*4}:{PK+u*4+3}], v{VOST}, {WSR}, s{sT0} offen offset:{u*2048} sc1')

    t1_loop(A, sy, 'QA', 0, 2, H, make_wait_h(A, sy, VWA, VT_), body, VDMA, VRD, VAB, VT_, VFL)


def natural_units(srd_s, voff, sbase, rs, nks, ntiles, wbase, vsel, tile_stride=32, tile_index=None):
    units = []
    for ks in range(nks):
        for t in range(ntiles):
            for i in range(4):
                r0 = 32 * ks + 2 * i
                idx = tile_index(ks, t) if tile_index else ks * ntiles + t
                units.append((srd_s, voff, sbase, r0 * rs + t * tile_stride, (r0 + 1) * rs + t * tile_stride, 1,
                              [(wbase + idx * 4 + i, 0, f'v{vsel}')]))
    return units


def natural_setup(A, voff, vsel, rs, tmp):
    A.i(f'v_lshrrev_b32 v{tmp}, 4, v0')
    A.i(f's_mov_b32 s{sT0}, {8*rs}')
    A.i(f'v_mul_lo_u32 v{voff}, v{tmp}, s{sT0}')
    A.i(f'v_and_b32 v{tmp}, 14, v0')
    A.i(f'v_lshl_add_u32 v{voff}, v{tmp}, 1, v{voff}')
    A.i(f'v_and_b32 v{tmp}, 1, v0')
    A.i(f'v_cmp_eq_u32 vcc, 1, v{tmp}')
    A.i(f'v_mov_b32 v{vsel}, s{SELLO}')
    A.i(f'v_mov_b32 v{tmp}, s{SELHI}')
    A.i(f'v_cndmask_b32 v{vsel}, v{vsel}, v{tmp}, vcc')


def role_wo(A, sy):
    srd(A, S_A, P_WO, 4096 * 1024)
    VPC, VFL, VFQ, VT_, VLW, VLR, VST = 2, 5, 6, 7, 8, 9, 10
    XF, D, RD = 32, 96, 128
    natural_setup(A, 3, 4, 1024, 5)
    A.i(f's_lshr_b32 s78, s{sR}, 3')
    A.i(f's_and_b32 s79, s{sR}, 7')
    A.i(f's_lshl_b32 s80, s78, 2')
    A.i(f's_add_u32 s80, s80, s{sW}')
    A.i(f's_lshl_b32 s77, s80, 18')
    A.i(f's_lshl_b32 s{sT0}, s79, 7')
    A.i(f's_add_u32 s77, s77, s{sT0}')
    load_weights(A, natural_units(S_A, 3, 77, 1024, 8, 4, 256, 4), 128, 32, 6)
    A.i(f'v_lshrrev_b32 v{VT_}, 4, v0')
    A.i(f'v_lshlrev_b32 v{VPC}, 9, v{VT_}')
    A.i(f'v_and_b32 v{VST}, 15, v0')
    A.i(f'v_lshl_add_u32 v{VPC}, v{VST}, 4, v{VPC}')
    A.i(f'v_lshlrev_b32 v{VST}, 11, v{VST}')
    A.i(f'v_lshl_add_u32 v{VST}, v{VT_}, 4, v{VST}')
    A.i(f's_lshl_b32 s{sT0}, s79, 8')
    A.i(f's_lshl_b32 s{sT1}, s{sW}, 6')
    A.i(f's_add_u32 s{sT0}, s{sT0}, s{sT1}')
    A.i(f's_lshl_b32 s{sT1}, s78, 16')
    A.i(f's_add_u32 s{sT0}, s{sT0}, s{sT1}')
    A.i(f's_add_u32 s81, s{sT0}, {PART:#x}')
    A.i(f's_lshl_b32 s{sT0}, s{sW}, 13')
    A.i(f'v_add_u32 v{VLW}, s{sT0}, v1')
    A.i(f's_lshl_b32 s{sT0}, s{sW}, 11')
    A.i(f'v_add_u32 v{VLR}, s{sT0}, v1')
    A.i(f's_lshl_b32 s{sT0}, s{sR}, 7')
    A.i(f's_add_u32 s{sT0}, s{sT0}, {F_WO:#x}')
    A.i(f'v_mov_b32 v{VFL}, s{sT0}')
    A.i(f'v_and_b32 v{VT_}, 1, v0')
    A.i(f'v_lshlrev_b32 v{VT_}, 8, v{VT_}')
    A.i(f's_lshl_b32 s{sT0}, s80, 9')
    A.i(f's_add_u32 s{sT0}, s{sT0}, {F_QA:#x}')
    A.i(f'v_add_u32 v{VFQ}, s{sT0}, v{VT_}')
    A.i(f's_lshl_b32 s82, s80, 14')
    A.i(f's_add_u32 s82, s82, {OB:#x}')
    A.i(f's_mov_b32 s{sS}, 0')
    Ltop = A.newlabel('WOtop')
    A.label(Ltop)
    if sy.on:
        A.i(f's_and_b32 s{sT0}, s{sS}, 1')
        A.i(f's_lshl_b32 s{sT0}, s{sT0}, 7')
        A.i(f'v_add_u32 v11, s{sT0}, v{VFQ}')
        A.i(f's_add_u32 s{sT2}, s{sS}, 1')
        sy.wait(A, 11, VT_, sT2)
        sy.trace(A, VT_, sS, imm=110, wave=0, lim=40)
    A.i(f's_lshl_b32 s{sT0}, s{sS}, 18')
    A.i(f's_add_u32 s{sT0}, s{sT0}, s82')
    for ks in range(8):
        if ks and (ks & 1) == 0:
            A.i(f's_add_u32 s{sT0}, s{sT0}, 4096')
        for tt in range(2):
            A.i(f'buffer_load_dwordx4 {vr(XF+(ks*2+tt)*4,4)}, v{VPC}, {WSR}, s{sT0} offen offset:{(ks&1)*2048+tt*256} sc1')
    for ks in range(8):
        A.i(f's_waitcnt vmcnt({14-2*ks})')
        for t in range(4):
            for tt in range(2):
                d = vr(D + (t * 2 + tt) * 4, 4)
                c = '0' if ks == 0 else d
                A.i(f'v_mfma_f32_16x16x32_bf16 {d}, {ur(256+(ks*4+t)*4,4)}, {vr(XF+(ks*2+tt)*4,4)}, {c}')
    sy.trace(A, VT_, sS, imm=150, wave=0, lim=40)
    for q in range(8):
        A.i(f'ds_write_b128 v{VLW}, {vr(D+q*4,4)} offset:{q*1024}')
    A.i('s_waitcnt lgkmcnt(0)')
    A.i('s_barrier')
    for u in range(2):
        for w2 in range(4):
            A.i(f'ds_read_b128 {vr(RD+(u*4+w2)*4,4)}, v{VLR} offset:{w2*8192+u*1024}')
    A.i(f's_lshl_b32 s{sT0}, s{sS}, 18')
    A.i(f's_add_u32 s{sT0}, s{sT0}, s81')
    A.i(f's_add_u32 s{sT1}, s{sT0}, {16*2048}')
    for u in range(2):
        A.i(f's_waitcnt lgkmcnt({4-4*u})')
        b = RD + u * 16
        for r in range(4):
            A.i(f'v_add_f32 v{b+r}, v{b+r}, v{b+4+r}')
            A.i(f'v_add_f32 v{b+8+r}, v{b+8+r}, v{b+12+r}')
        for r in range(4):
            A.i(f'v_add_f32 v{b+r}, v{b+r}, v{b+8+r}')
        A.i(f'buffer_store_dwordx4 {vr(b,4)}, v{VST}, {WSR}, s{sT0 if u == 0 else sT1} offen sc1')
    sy.trace(A, VT_, sS, imm=190, wave=0, lim=40)
    if sy.on:
        A.i('s_waitcnt vmcnt(0)')
    A.i('s_barrier')
    if sy.on:
        Ls = A.newlabel('WOpub')
        A.i(f's_cmp_lg_u32 s{sW}, 0')
        A.i(f's_cbranch_scc1 {Ls}')
        A.i(f's_add_u32 s{sT0}, s{sS}, 1')
        sy.publish(A, VFL, VT_, sT0)
        A.label(Ls)
    A.i(f's_add_u32 s{sS}, s{sS}, 1')
    A.i(f's_cmp_lt_u32 s{sS}, 64')
    A.i(f's_cbranch_scc1 {Ltop}')


def role_r(A, sy):
    srd(A, S_A, P_X, 2048 * 1024)
    VFL, VFW, VT_ = 3, 4, 5
    GA, C1, SH, X, T, PK, XR, PT = 8, 16, 24, 32, 40, 52, 56, 64
    A.i('v_lshlrev_b32 v2, 5, v0')
    load_mod8(A, GA, 2)
    load_mod8(A, C1, 4)
    load_mod8(A, SH, 3)
    A.i(f's_and_b32 s78, s{sR}, 7')
    A.i(f's_lshl_b32 s78, s78, 2')
    A.i(f's_add_u32 s78, s78, s{sW}')
    A.i(f's_lshl_b32 s{sT0}, s{sR}, 7')
    A.i(f's_add_u32 s{sT0}, s{sT0}, {F_R:#x}')
    A.i(f'v_mov_b32 v{VFL}, s{sT0}')
    A.i(f'v_and_b32 v{VFW}, 31, v0')
    A.i(f'v_lshlrev_b32 v{VFW}, 7, v{VFW}')
    A.i(f'v_add_u32 v{VFW}, {F_WO:#x}, v{VFW}')
    A.i('s_waitcnt vmcnt(0)')
    one_plus(A, C1, VT_)
    A.i(f's_lshr_b32 s{sS}, s{sR}, 3')
    Ltop = A.newlabel('Rtop')
    A.label(Ltop)
    A.i(f's_lshl_b32 s79, s{sS}, 5')
    A.i(f's_add_u32 s79, s79, s78')
    A.i(f's_lshl_b32 s79, s79, 10')
    A.i(f'buffer_load_dwordx4 {vr(XR,4)}, v1, s[{S_A}:{S_A+3}], s79 offen')
    A.i(f's_add_u32 s{sT2}, s{sS}, 1')
    sy.wait(A, VFW, VT_, sT2)
    A.i(f's_lshl_b32 s{sT0}, s{sS}, 18')
    A.i(f's_lshl_b32 s{sT1}, s78, 11')
    A.i(f's_add_u32 s{sT0}, s{sT0}, s{sT1}')
    A.i(f's_add_u32 s{sT0}, s{sT0}, {PART:#x}')
    for kq in range(4):
        if kq:
            A.i(f's_add_u32 s{sT0}, s{sT0}, 0x10000')
        A.i(f'buffer_load_dwordx4 {vr(PT+kq*8,4)}, v2, {WSR}, s{sT0} offen sc1')
        A.i(f'buffer_load_dwordx4 {vr(PT+kq*8+4,4)}, v2, {WSR}, s{sT0} offen offset:16 sc1')
    A.i('s_waitcnt vmcnt(0)')
    for j in range(8):
        A.i(f'v_add_f32 v{PT+j}, v{PT+j}, v{PT+8+j}')
        A.i(f'v_add_f32 v{PT+16+j}, v{PT+16+j}, v{PT+24+j}')
    for j in range(8):
        A.i(f'v_add_f32 v{PT+j}, v{PT+j}, v{PT+16+j}')
    for j in range(4):
        round2(A, PT + 2 * j, PT + 2 * j + 1, T + j)
    for j in range(8):
        A.i(f'v_mul_f32 v{PT+j}, v{PT+j}, v{GA+j}')
    for j in range(4):
        round2(A, PT + 2 * j, PT + 2 * j + 1, T + j)
    for j in range(4):
        unpack(A, X + 2 * j, X + 2 * j + 1, XR + j)
    for j in range(8):
        A.i(f'v_add_f32 v{X+j}, v{X+j}, v{PT+j}')
    for j in range(4):
        A.i(f'v_cvt_pk_bf16_f32 v{XR+j}, v{X+2*j}, v{X+2*j+1}')
    A.i(f's_add_u32 s{sT0}, s79, {X1:#x}')
    A.i(f'buffer_store_dwordx4 {vr(XR,4)}, v1, {WSR}, s{sT0} offen sc1')
    for j in range(4):
        unpack(A, X + 2 * j, X + 2 * j + 1, XR + j)
    ln_core(A, X, T, C1, SH, PK)
    A.i(f's_add_u32 s{sT0}, s79, {H2:#x}')
    A.i(f'buffer_store_dwordx4 {vr(PK,4)}, v1, {WSR}, s{sT0} offen sc1')
    A.i('s_waitcnt vmcnt(0)')
    if sy.on:
        A.i('s_barrier')
        Ls = A.newlabel('Rpub')
        A.i(f's_cmp_lg_u32 s{sW}, 0')
        A.i(f's_cbranch_scc1 {Ls}')
        A.i(f's_add_u32 s{sT0}, s{sS}, 1')
        sy.publish(A, VFL, VT_, sT0)
        A.label(Ls)
    A.i(f's_add_u32 s{sS}, s{sS}, 2')
    A.i(f's_cmp_lt_u32 s{sS}, 64')
    A.i(f's_cbranch_scc1 {Ltop}')


def role_f1(A, sy):
    srd(A, S_A, P_WG, 512 * 3584)
    srd(A, S_B, P_WU, 512 * 3584)
    VDMA, VRD, VAB, VT_, VFL, VST, VWA = 2, 4, 12, 20, 22, 23, 24
    XF, D, PK, T = 32, 64, 80, 88
    natural_setup(A, 3, 25, 3584, 4)
    A.i(f's_lshl_b32 s77, s{sR}, 7')
    A.i(f's_lshl_b32 s{sT0}, s{sW}, 5')
    A.i(f's_add_u32 s77, s77, s{sT0}')
    ug = natural_units(S_A, 3, 77, 3584, 16, 1, 256, 25, tile_index=lambda ks, t: ks * 2)
    uu = natural_units(S_B, 3, 77, 3584, 16, 1, 256, 25, tile_index=lambda ks, t: ks * 2 + 1)
    load_weights(A, ug + uu, 128, 32, 4)
    t1_setup(A, VDMA, VRD)
    A.i(f's_lshl_b32 s{sT0}, s{sR}, 7')
    A.i(f's_add_u32 s{sT0}, s{sT0}, {F_F1:#x}')
    A.i(f'v_mov_b32 v{VFL}, s{sT0}')
    A.i(f'v_lshrrev_b32 v{VST}, 5, v0')
    A.i(f'v_lshlrev_b32 v{VST}, 9, v{VST}')
    A.i(f'v_and_b32 v{VT_}, 15, v0')
    A.i(f'v_lshl_add_u32 v{VST}, v{VT_}, 4, v{VST}')
    A.i(f'v_bfe_u32 v{VT_}, v0, 4, 1')
    A.i(f'v_lshl_add_u32 v{VST}, v{VT_}, 3, v{VST}')
    A.i(f's_lshl_b32 s77, s{sR}, 12')
    A.i(f's_lshl_b32 s{sT0}, s{sW}, 10')
    A.i(f's_add_u32 s77, s77, s{sT0}')
    A.i(f's_add_u32 s77, s77, {GU:#x}')
    A.i(f's_mov_b32 s{sS}, 0')

    def wait_src(sseg, blocking, Lnot):
        if not sy.on:
            return
        A.i(f's_and_b32 s{sT0}, s{sseg}, 1')
        A.i(f's_lshl_b32 s{sT0}, s{sT0}, 10')
        A.i(f's_add_u32 s{sT0}, s{sT0}, {F_R:#x}')
        A.i(f'v_and_b32 v{VWA}, 7, v0')
        A.i(f'v_lshlrev_b32 v{VWA}, 7, v{VWA}')
        A.i(f'v_add_u32 v{VWA}, s{sT0}, v{VWA}')
        A.i(f's_add_u32 s{sT2}, s{sseg}, 1')
        flag_test(A, sy, VWA, VT_, sT2, blocking, Lnot)

    def body():
        t1_compute(A, VRD, VAB, XF, 256, D, swapped=True)
        g = [D + i for i in range(8)]
        u = [D + 8 + i for i in range(8)]
        for k in range(0, 8, 2):
            round2(A, g[k], g[k + 1], T)
        for k in range(8):
            A.i(f'v_mul_f32 v{T+k}, s{sLOG2E}, v{g[k]}')
        for k in range(8):
            A.i(f'v_exp_f32 v{T+k}, -v{T+k}')
        for k in range(0, 8, 2):
            round2(A, u[k], u[k + 1], PK)
        for k in range(8):
            A.i(f'v_add_f32 v{T+k}, 1.0, v{T+k}')
        for k in range(8):
            A.i(f'v_rcp_f32 v{T+k}, v{T+k}')
        for k in range(8):
            A.i(f'v_mul_f32 v{g[k]}, v{g[k]}, v{T+k}')
        for k in range(0, 8, 2):
            round2(A, g[k], g[k + 1], T)
        for k in range(8):
            A.i(f'v_mul_f32 v{g[k]}, v{g[k]}, v{u[k]}')
        for k in range(4):
            A.i(f'v_cvt_pk_bf16_f32 v{PK+k}, v{g[2*k]}, v{g[2*k+1]}')
        A.i(f's_mul_i32 s{sT0}, s{sS}, 114688')
        A.i(f's_add_u32 s{sT0}, s{sT0}, s77')
        for tt in range(2):
            A.i(f'buffer_store_dwordx2 v[{PK+2*tt}:{PK+2*tt+1}], v{VST}, {WSR}, s{sT0} offen offset:{tt*256} sc1')

    t1_loop(A, sy, 'F1', 0, 1, H2, wait_src, body, VDMA, VRD, VAB, VT_, VFL)


def role_f2(A, sy):
    srd(A, S_A, P_WD, 1792 * 1024)
    srd(A, S_B, P_OUT, 2048 * 1024)
    VPC, VFQ, VT_, VLW, VLR, VST, GB = 2, 6, 7, 8, 9, 10, 12
    XF, D, RD, XR = 32, 144, 160, 176
    lane_woff(A, 3, 1024, 4, 4)
    A.i(f's_mul_i32 s77, s{sW}, {448*1024}')
    A.i(f's_lshl_b32 s{sT0}, s{sR}, 6')
    A.i(f's_add_u32 s77, s77, s{sT0}')
    load_weights(A, paired_units(S_A, 3, 77, 1024, 14, 256), 128, 32, 4)
    A.i(f'v_lshrrev_b32 v{VT_}, 4, v0')
    A.i(f'v_lshlrev_b32 v{VPC}, 9, v{VT_}')
    A.i(f'v_and_b32 v{VST}, 15, v0')
    A.i(f'v_lshl_add_u32 v{VPC}, v{VST}, 4, v{VPC}')
    A.i(f's_and_b32 s78, s{sW}, 1')
    A.i(f's_lshr_b32 s79, s{sW}, 1')
    A.i(f'v_lshlrev_b32 v{VST}, 10, v{VST}')
    A.i(f'v_lshl_add_u32 v{VST}, v{VT_}, 4, v{VST}')
    A.i(f's_lshl_b32 s{sT0}, s78, 14')
    A.i(f's_lshl_b32 s{sT1}, s{sR}, 6')
    A.i(f's_add_u32 s{sT0}, s{sT0}, s{sT1}')
    A.i(f's_lshl_b32 s{sT1}, s79, 3')
    A.i(f's_add_u32 s{sT0}, s{sT0}, s{sT1}')
    A.i(f'v_add_u32 v{VST}, s{sT0}, v{VST}')
    A.i(f'v_lshlrev_b32 v{VT_}, 5, v{VT_}')
    A.i(f's_lshl_b32 s{sT0}, s{sR}, 7')
    A.i(f's_lshl_b32 s{sT1}, s79, 4')
    A.i(f's_add_u32 s{sT0}, s{sT0}, s{sT1}')
    A.i(f's_add_u32 s{sT0}, s{sT0}, {MOD + 5*2048:#x}')
    A.i(f'buffer_load_dwordx4 {vr(GB,4)}, v{VT_}, {WSR}, s{sT0} offen sc1')
    A.i(f's_lshl_b32 s{sT0}, s{sW}, 12')
    A.i(f'v_add_u32 v{VLW}, s{sT0}, v1')
    A.i(f's_lshl_b32 s{sT0}, s78, 10')
    A.i(f's_lshl_b32 s{sT1}, s79, 3')
    A.i(f's_add_u32 s{sT0}, s{sT0}, s{sT1}')
    A.i(f'v_add_u32 v{VLR}, s{sT0}, v1')
    A.i(f'v_and_b32 v{VFQ}, 7, v0')
    A.i(f'v_min_u32 v{VFQ}, 6, v{VFQ}')
    A.i(f'v_lshlrev_b32 v{VFQ}, 7, v{VFQ}')
    A.i(f's_mul_i32 s{sT0}, s{sW}, {7*FL}')
    A.i(f's_add_u32 s{sT0}, s{sT0}, {F_F1:#x}')
    A.i(f'v_add_u32 v{VFQ}, s{sT0}, v{VFQ}')
    A.i(f's_mul_i32 s82, s{sW}, {56*512}')
    A.i(f's_add_u32 s82, s82, {GU:#x}')
    A.i(f's_mov_b32 s{sS}, 0')
    Ltop = A.newlabel('F2top')
    A.label(Ltop)
    A.i(f's_add_u32 s{sT2}, s{sS}, 1')
    sy.wait(A, VFQ, VT_, sT2)
    A.i(f's_mul_i32 s{sT0}, s{sS}, 114688')
    A.i(f's_add_u32 s{sT0}, s{sT0}, s82')
    for ks in range(14):
        if ks and (ks & 1) == 0:
            A.i(f's_add_u32 s{sT0}, s{sT0}, 4096')
        for tt in range(2):
            A.i(f'buffer_load_dwordx4 {vr(XF+(ks*2+tt)*4,4)}, v{VPC}, {WSR}, s{sT0} offen offset:{(ks&1)*2048+tt*256} sc1')
    A.i(f's_lshl_b32 s83, s{sS}, 15')
    A.i(f's_add_u32 s{sT0}, s83, {X1:#x}')
    A.i(f'buffer_load_dwordx2 {vr(XR,2)}, v{VST}, {WSR}, s{sT0} offen sc1')
    for ks in range(14):
        A.i(f's_waitcnt vmcnt({27-2*ks})')
        for t in range(2):
            for tt in range(2):
                d = vr(D + (t * 2 + tt) * 4, 4)
                c = '0' if ks == 0 else d
                A.i(f'v_mfma_f32_16x16x32_bf16 {d}, {ur(256+(ks*2+t)*4,4)}, {vr(XF+(ks*2+tt)*4,4)}, {c}')
    for q in range(4):
        A.i(f'ds_write_b128 v{VLW}, {vr(D+q*4,4)} offset:{q*1024}')
    A.i('s_waitcnt lgkmcnt(0)')
    A.i('s_barrier')
    for t in range(2):
        for w2 in range(4):
            A.i(f'ds_read_b64 {vr(RD+(t*4+w2)*2,2)}, v{VLR} offset:{w2*4096+t*2048}')
    A.i('s_waitcnt vmcnt(0) lgkmcnt(0)')
    A.i('s_barrier')
    for t in range(2):
        b = RD + t * 8
        for r in range(2):
            A.i(f'v_add_f32 v{b+r}, v{b+r}, v{b+2+r}')
            A.i(f'v_add_f32 v{b+4+r}, v{b+4+r}, v{b+6+r}')
        for r in range(2):
            A.i(f'v_add_f32 v{b+r}, v{b+r}, v{b+4+r}')
    f = [RD, RD + 8, RD + 1, RD + 9]
    round2(A, f[0], f[1], VT_)
    round2(A, f[2], f[3], VT_)
    for k in range(4):
        A.i(f'v_mul_f32 v{f[k]}, v{f[k]}, v{GB+k}')
    round2(A, f[0], f[1], VT_)
    round2(A, f[2], f[3], VT_)
    unpack(A, RD + 2, RD + 3, XR)
    unpack(A, RD + 4, RD + 5, XR + 1)
    for k in range(4):
        A.i(f'v_add_f32 v{f[k]}, v{f[k]}, v{RD+2+k}')
    A.i(f'v_cvt_pk_bf16_f32 v{XR}, v{f[0]}, v{f[1]}')
    A.i(f'v_cvt_pk_bf16_f32 v{XR+1}, v{f[2]}, v{f[3]}')
    A.i(f'buffer_store_dwordx2 {vr(XR,2)}, v{VST}, s[{S_B}:{S_B+3}], s83 offen')
    sy.trace(A, VT_, sS, imm=1, wave=0)
    A.i(f's_add_u32 s{sS}, s{sS}, 1')
    A.i(f's_cmp_lt_u32 s{sS}, 64')
    A.i(f's_cbranch_scc1 {Ltop}')


def h_wait_simple(A, sy, sseg, va, vtmp):
    if not sy.on:
        return
    Lok, Lall = A.newlabel('Hok'), A.newlabel('Hall')
    A.i('s_cmp_lg_u32 s87, 0')
    A.i(f's_cbranch_scc1 {Lok}')
    A.i(f's_cmp_ge_u32 s{sseg}, 8')
    A.i(f's_cbranch_scc1 {Lall}')
    h_flag_addr(A, va, sseg, sT0)
    A.i(f's_mov_b32 s{sT2}, 1')
    sy.wait(A, va, vtmp, sT2)
    A.i(f's_branch {Lok}')
    A.label(Lall)
    A.i(f'v_lshlrev_b32 v{va}, 7, v0')
    A.i(f'v_add_u32 v{va}, {F_H:#x}, v{va}')
    A.i(f's_mov_b32 s{sT2}, 8')
    sy.wait(A, va, vtmp, sT2)
    A.i('s_mov_b32 s87, 1')
    A.label(Lok)


def role_kv2(A, sy):
    srd(A, S_A, P_WK, 512 * 8192)
    srd(A, S_B, P_WV, 512 * 8192)
    VDMA, VRD, VAB, VT_, VFL, VST, VWA = 2, 4, 12, 20, 22, 23, 24
    XF, DK, DV, PK = 32, 64, 80, 96
    WKb, WVb = 256, 384
    dense_stage_setup(A, 3, 4, 78, 8192, 0, 5)
    A.i(f's_lshl_b32 s77, s{sR}, 8')
    A.i(f's_lshl_b32 s{sT0}, s{sW}, 6')
    A.i(f's_add_u32 s77, s77, s{sT0}')
    staged_load(A, dense_chunks(S_A, 77, 8192, 16, WKb) + dense_chunks(S_B, 77, 8192, 16, WVb), 3, 4, 78, 8, 128, 6)
    A.i('s_barrier')
    sy.trace(A, 5, None, imm=101, wave=0)
    t1_setup(A, VDMA, VRD)
    A.i(f's_lshl_b32 s{sT0}, s{sR}, 7')
    A.i(f's_add_u32 s{sT0}, s{sT0}, {F_KV:#x}')
    A.i(f'v_mov_b32 v{VFL}, s{sT0}')
    A.i(f's_lshl_b32 s77, s{sR}, 13')
    A.i(f's_lshl_b32 s{sT0}, s{sW}, 11')
    A.i(f's_add_u32 s77, s77, s{sT0}')
    A.i(f's_add_u32 s77, s77, {KX:#x}')
    A.i(f'v_lshrrev_b32 v{VST}, 4, v0')
    A.i(f'v_lshlrev_b32 v{VST}, 9, v{VST}')
    A.i(f'v_and_b32 v{VT_}, 15, v0')
    A.i(f'v_lshl_add_u32 v{VST}, v{VT_}, 4, v{VST}')
    A.i(f's_mov_b32 s{sS}, 0')
    A.i('s_mov_b32 s87, 0')
    A.i(f's_mov_b32 s72, {XB0}')
    if getattr(sy, 'single', False):
        ready_wait(A, VWA, VT_)
        A.i(f'v_add_u32 v{VWA}, {32*FL}, v{VFL}')
        A.i(f'v_mov_b32 v{VT_}, 1')
        A.i('s_mov_b64 exec, 1')
        A.i(f'buffer_store_dword v{VT_}, v{VWA}, {WSR}, 0 offen sc1')
        A.i('s_mov_b64 exec, -1')
    A.i('s_mov_b32 s74, 8')
    h_wait_simple(A, sy, 74, VWA, VT_)
    A.i(f's_mov_b32 s75, {H:#x}')
    t1_dma(A, VDMA, VT_, 75, 72)
    A.i('s_waitcnt vmcnt(0)')
    Ltop, Lnopf = A.newlabel('KVtop'), A.newlabel('KVnopf')
    A.label(Ltop)
    A.i('s_barrier')
    for k in range(8):
        A.i(f'v_add_u32 v{VAB+k}, s72, v{VRD+k}')

    def rd(ks):
        for tt in range(2):
            A.i(f'ds_read_b128 {vr(XF + (ks & 3) * 8 + tt * 4, 4)}, v{VAB + tt*4 + (ks & 3)} offset:{(ks >> 2) * 256}')
    for ks in range(3):
        rd(ks)
    for ks in range(16):
        if ks + 3 < 16:
            rd(ks + 3)
            A.i('s_waitcnt lgkmcnt(6)')
        else:
            A.i(f's_waitcnt lgkmcnt({2 * (15 - ks)})')
        for t in range(2):
            for tt in range(2):
                x = vr(XF + (ks & 3) * 8 + tt * 4, 4)
                d = vr(DK + (t * 2 + tt) * 4, 4)
                A.i(f'v_mfma_f32_16x16x32_bf16 {d}, {ur(WKb + (ks*2+t)*4, 4)}, {x}, {"0" if ks == 0 else d}')
                d = vr(DV + (t * 2 + tt) * 4, 4)
                A.i(f'v_mfma_f32_16x16x32_bf16 {d}, {x}, {ur(WVb + (ks*2+t)*4, 4)}, {"0" if ks == 0 else d}')
        if ks == 5:
            A.i('s_waitcnt vmcnt(0)')
            A.i('s_barrier')
            if sy.on:
                Ls = A.newlabel('KVpub')
                A.i(f's_cmp_lg_u32 s{sW}, 0')
                A.i(f's_cbranch_scc1 {Ls}')
                sy.publish(A, VFL, VT_, sS)
                A.label(Ls)
            A.i(f's_add_u32 s74, s{sS}, 1')
            A.i('s_cmp_ge_u32 s74, 64')
            A.i(f's_cbranch_scc1 {Lnopf}')
            h_wait_simple(A, sy, 74, VWA, VT_)
            A.i('s_lshl_b32 s75, s74, 15')
            A.i(f's_add_u32 s75, s75, {H:#x}')
            A.i(f's_xor_b32 s76, s72, {XBS}')
            t1_dma(A, VDMA, VT_, 75, 76)
            A.label(Lnopf)
    A.i(f's_lshl_b32 s{sT0}, s{sS}, 18')
    A.i(f's_add_u32 s{sT0}, s{sT0}, s77')
    A.i(f's_add_u32 s{sT1}, s{sT0}, {VT-KX:#x}')
    for tt in range(2):
        for r in range(4):
            A.i(f'v_cvt_pk_bf16_f32 v{PK+tt*4+r}, v{DK+tt*4+r}, v{DK+(2+tt)*4+r}')
        A.i(f'buffer_store_dwordx4 v[{PK+tt*4}:{PK+tt*4+3}], v{VST}, {WSR}, s{sT0} offen offset:{tt*256} sc1')
    for t in range(2):
        for tt in range(2):
            d = DV + (t * 2 + tt) * 4
            A.i(f'v_cvt_pk_bf16_f32 v{PK+8+t*4+tt*2}, v{d}, v{d+1}')
            A.i(f'v_cvt_pk_bf16_f32 v{PK+8+t*4+tt*2+1}, v{d+2}, v{d+3}')
        A.i(f'buffer_store_dwordx4 v[{PK+8+t*4}:{PK+8+t*4+3}], v1, {WSR}, s{sT1} offen offset:{t*1024} sc1')
    A.i(f's_xor_b32 s72, s72, {XBS}')
    A.i(f's_add_u32 s{sS}, s{sS}, 1')
    if sy.on:
        Lq, Ls = A.newlabel('KVq'), A.newlabel('KVpub')
        A.i(f's_cmp_gt_u32 s{sS}, 2')
        A.i(f's_cbranch_scc1 {Lq}')
        A.i('s_waitcnt vmcnt(0)')
        A.i('s_barrier')
        A.i(f's_cmp_lg_u32 s{sW}, 0')
        A.i(f's_cbranch_scc1 {Lq}')
        tr = sy.tr
        sy.tr = False
        sy.publish(A, VFL, VT_, sS)
        sy.tr = tr
        A.label(Lq)
    A.i('s_waitcnt vmcnt(4)')
    A.i(f's_cmp_lt_u32 s{sS}, 64')
    A.i(f's_cbranch_scc1 {Ltop}')
    if sy.on:
        A.i('s_waitcnt vmcnt(0)')
        A.i('s_barrier')
        Ls = A.newlabel('KVpub')
        A.i(f's_cmp_lg_u32 s{sW}, 0')
        A.i(f's_cbranch_scc1 {Ls}')
        sy.publish(A, VFL, VT_, sS)
        A.label(Ls)


def role_mod(A, sy, sidx):
    end = A.newlabel('Lmodend')
    srd(A, S_A, P_C, 1024)
    srd(A, S_B, P_WMOD, 512 * 6144)
    A.i(f's_lshl_b32 s{sT0}, s{sW}, 6')
    A.i(f'v_add_u32 v2, s{sT0}, v0')
    A.i('v_and_b32 v3, 7, v2')
    A.i('v_lshrrev_b32 v4, 3, v2')
    A.i('v_lshlrev_b32 v5, 5, v4')
    A.i(f'buffer_load_dwordx4 v[8:11], v5, s[{S_A}:{S_A+3}], 0 offen')
    A.i(f'buffer_load_dwordx4 v[12:15], v5, s[{S_A}:{S_A+3}], 0 offen offset:16')
    A.i(f's_mov_b32 s{sT1}, {16*6144}')
    A.i(f'v_mul_lo_u32 v6, v4, s{sT1}')
    A.i('v_lshl_add_u32 v6, v3, 4, v6')
    A.i(f's_lshl_b32 s{sT1}, s{sidx}, 7')
    for i in range(16):
        A.i(f's_add_u32 s{sT0}, s{sT1}, {i*6144}')
        A.i(f'buffer_load_dwordx4 v[{64+4*i}:{67+4*i}], v6, s[{S_B}:{S_B+3}], s{sT0} offen')
    A.i('s_waitcnt vmcnt(16)')
    for i in range(8):
        unpack(A, 16 + 2 * i, 17 + 2 * i, 8 + i)
    for i in range(16):
        A.i(f'v_mul_f32 v{32+i}, s{sLOG2E}, v{16+i}')
    for i in range(16):
        A.i(f'v_exp_f32 v{32+i}, -v{32+i}')
    for i in range(16):
        A.i(f'v_add_f32 v{32+i}, 1.0, v{32+i}')
    for i in range(16):
        A.i(f'v_rcp_f32 v{32+i}, v{32+i}')
    for i in range(16):
        A.i(f'v_mul_f32 v{16+i}, v{16+i}, v{32+i}')
    for i in range(8):
        round2(A, 16 + 2 * i, 17 + 2 * i, 48)
    for j in range(8):
        A.i(f'v_mov_b32 v{32+j}, 0')
    for i in range(16):
        A.i(f's_waitcnt vmcnt({15-i})')
        for d in range(4):
            unpack(A, 48, 49, 64 + 4 * i + d)
            A.i(f'v_fmac_f32 v{32+2*d}, v{16+i}, v48')
            A.i(f'v_fmac_f32 v{33+2*d}, v{16+i}, v49')
    A.i('v_lshlrev_b32 v5, 8, v4')
    A.i('v_lshl_add_u32 v5, v3, 5, v5')
    A.i('ds_write_b128 v5, v[32:35]')
    A.i('ds_write_b128 v5, v[36:39] offset:16')
    A.i('s_waitcnt lgkmcnt(0)')
    A.i('s_barrier')
    A.i(f's_cmp_lg_u32 s{sW}, 0')
    A.i(f's_cbranch_scc1 {end}')
    A.i('v_lshlrev_b32 v5, 2, v0')
    for i in range(32):
        A.i(f'ds_read_b32 v{64+i}, v5 offset:{i*256}')
        if i == 14 or i == 29:
            A.i('s_waitcnt lgkmcnt(0)')
    A.i('s_waitcnt lgkmcnt(0)')
    for st in (16, 8, 4, 2, 1):
        for i in range(st):
            A.i(f'v_add_f32 v{64+i}, v{64+i}, v{64+st+i}')
    A.i('v_cvt_pk_bf16_f32 v64, v64, v64')
    A.i('v_lshlrev_b32 v64, 16, v64')
    A.i(f's_lshl_b32 s{sT0}, s{sidx}, 8')
    A.i(f's_add_u32 s{sT0}, s{sT0}, {MOD:#x}')
    A.i(f'buffer_store_dword v64, v5, {WSR}, s{sT0} offen sc1')
    ready_wait(A, 6, 7)
    A.i(f's_lshl_b32 s{sT0}, s{sidx}, 7')
    A.i(f's_add_u32 s{sT0}, s{sT0}, {F_MOD:#x}')
    A.i('v_mov_b32 v6, 1')
    A.i('s_mov_b64 exec, 1')
    A.i(f'buffer_store_dword v6, off, {WSR}, s{sT0} sc1')
    A.i('s_mov_b64 exec, -1')
    sy.trace(A, 6, None, imm=0)
    A.label(end)


def role_zero(A):
    for i in range(4):
        A.i(f'v_mov_b32 v{4+i}, 0')
    A.i(f's_lshl_b32 s{sT0}, s{sW}, 10')
    A.i(f's_add_u32 s{sT0}, s{sT0}, {FLAGS:#x}')
    for i in range(NFLAG * FL // 4096):
        A.i(f'buffer_store_dwordx4 v[4:7], v1, {WSR}, s{sT0} offen sc1')
        A.i(f's_add_u32 s{sT0}, s{sT0}, 4096')
    A.i('s_waitcnt vmcnt(0)')
    A.i('s_barrier')
    A.i('v_mov_b32 v5, 1')
    A.i('s_mov_b64 exec, 1')
    A.i(f'global_store_dword v4, v5, s[{P_DBG}:{P_DBG+1}] offset:{DBG_READY} sc1')
    A.i('s_mov_b64 exec, -1')


def mod_wait(A, sy, first, count, va, vt):
    ready_wait(A, va, vt)
    A.i(f'v_min_u32 v{va}, {count-1}, v0')
    A.i(f'v_lshlrev_b32 v{va}, 7, v{va}')
    A.i(f'v_add_u32 v{va}, {F_MOD + first*FL:#x}, v{va}')
    A.i(f's_mov_b32 s{sT2}, 1')
    sy.wait(A, va, vt, sT2)


def defer_to_chain(A, sy, va, vt):
    if not getattr(sy, 'single', False) or 'defer' not in getattr(sy, 'opts', set()):
        return
    ready_wait(A, va, vt)
    A.i(f's_and_b32 s{sT0}, s{sR}, 31')
    A.i(f's_lshl_b32 s{sT0}, s{sT0}, 7')
    A.i(f's_add_u32 s{sT0}, s{sT0}, {F_KV + 32*FL:#x}')
    A.i(f'v_mov_b32 v{va}, s{sT0}')
    A.i(f's_mov_b32 s{sT2}, 1')
    sy.wait(A, va, vt, sT2, sleep=8)


def staged_load(A, chunks, vdma, vrd, slds, nslots, tmp, ptmp, pre_issue=None, extra_out=0):
    def issue(c):
        srd_s, sbase, offs, _, _ = chunks[c]
        assert len(offs) == 4
        A.i(f's_add_u32 s{sT1}, s{slds}, {(c % nslots) * 4096}')
        for i, off in enumerate(offs):
            if i:
                A.i(f's_add_u32 s{sT1}, s{sT1}, 1024')
            A.i(f's_mov_b32 m0, s{sT1}')
            A.i(f's_add_u32 s{sT0}, s{sbase}, {off:#x}')
            A.i(f'buffer_load_dwordx4 v{vdma}, s[{srd_s}:{srd_s+3}], s{sT0} offen lds')
    n = len(chunks)
    for c in range(min(nslots, n)):
        issue(c)
    if pre_issue:
        pre_issue()
    for c in range(n):
        younger = 4 * (min(c + nslots, n) - c - 1)
        A.i(f's_waitcnt vmcnt({younger})')
        outs = chunks[c][3]
        for k in range(8):
            blk = (c % nslots) * 16 + 2 * k
            A.i(f'ds_read2st64_b32 {vr(tmp + 2*k, 2)}, v{vrd} offset0:{blk} offset1:{blk+1}')
        for k in range(8):
            A.i(f's_waitcnt lgkmcnt({7-k})')
            lo, hi = outs[k]
            perm_to(A, lo, tmp + 2 * k + 1, tmp + 2 * k, f's{SELLO}', ptmp)
            perm_to(A, hi, tmp + 2 * k + 1, tmp + 2 * k, f's{SELHI}', ptmp + 1)
        if chunks[c][4]:
            chunks[c][4]()
        if c + nslots < n:
            issue(c + nslots)


def dense_chunks(srd_s, sbase, rs, nks, wbase):
    ch = []
    for k2 in range(0, nks, 2):
        offs = [(32 * (k2 + (i >> 1)) + 4 * (i & 1)) * rs for i in range(4)]
        outs = []
        for kk in range(2):
            for i in range(4):
                ks = k2 + kk
                outs.append((wbase + (ks * 2) * 4 + i, wbase + (ks * 2 + 1) * 4 + i))
        ch.append((srd_s, sbase, offs, outs, None))
    return ch


def dense_stage_setup(A, vdma, vrd, slds, rs, lds0, tmp):
    A.i(f'v_bfe_u32 v{tmp}, v0, 2, 2')
    A.i(f'v_lshlrev_b32 v{tmp}, 3, v{tmp}')
    A.i(f'v_lshrrev_b32 v{vdma}, 4, v0')
    A.i(f'v_add_u32 v{tmp}, v{tmp}, v{vdma}')
    A.i(f's_mov_b32 s{sT0}, {rs}')
    A.i(f'v_mul_lo_u32 v{vdma}, v{tmp}, s{sT0}')
    A.i(f'v_and_b32 v{tmp}, 3, v0')
    A.i(f'v_lshl_add_u32 v{vdma}, v{tmp}, 4, v{vdma}')
    A.i(f's_lshl_b32 s{slds}, s{sW}, 15')
    if lds0:
        A.i(f's_add_u32 s{slds}, s{slds}, {lds0}')
    A.i(f'v_lshlrev_b32 v{vrd}, 2, v0')
    A.i(f'v_add_u32 v{vrd}, s{slds}, v{vrd}')
```
